```python
import torch

def _softmax(x, axis=-1):
    return torch.softmax(x, dim=axis)
def _gelu(x):
    return torch.nn.functional.gelu(x, approximate="tanh")
def _silu(x):
    return torch.nn.functional.silu(x)
def _sigmoid(x):
    return torch.sigmoid(x)
def _layernorm(x, axis=-1, eps=1e-5):
    m = x.mean(dim=axis, keepdim=True)
    v = x.var(dim=axis, keepdim=True, unbiased=False)
    return (x - m) / torch.sqrt(v + eps)
def _scatter_add(tgt, idx, src, axis=0):
    return tgt.clone().index_add_(axis, idx, src)
def _segment_sum(src, seg, n):
    out = torch.zeros((n,) + src.shape[1:], dtype=src.dtype)
    return out.index_add_(0, seg, src)
def _pad(x, pw):
    flat = tuple(v for pair in reversed(pw) for v in pair)
    return torch.nn.functional.pad(x, flat)

kernel_name = 'parallel_sum__sliding_block__mixer_token_mlp__prompt'

def setup_inputs():

    _w = (lambda a: (lambda t: t.to(torch.bfloat16) if t.is_floating_point() else t)(torch.as_tensor(a)))
    def _A_setup():
        B, S, D = 1, 2048, 640
        return {
            "x": _w((lambda *s: torch.randn(*s, dtype=torch.bfloat16) * 0.05)(B, S, D)),
            "wqkv": _w((lambda *s: torch.randn(*s, dtype=torch.bfloat16) * 0.05)(D, 3 * D)),
            "wo": _w((lambda *s: torch.randn(*s, dtype=torch.bfloat16) * 0.05)(D, D)),
        }
    _A_in = _A_setup()

    def _B_setup():
        B, S, D, F = 1, 2048, 640, 1728
        return {
            "x": _w((lambda *s: torch.randn(*s, dtype=torch.bfloat16) * 0.05)(B, S, D)),
            "w1": _w((lambda *s: torch.randn(*s, dtype=torch.bfloat16) * 0.8)(S, F) * (S ** -0.5)),
            "b1": _w((lambda *s: torch.randn(*s, dtype=torch.bfloat16) * 0.8)(F) * 0.02),
            "w2": _w((lambda *s: torch.randn(*s, dtype=torch.bfloat16) * 0.8)(F, S) * (F ** -0.5)),
            "b2": _w((lambda *s: torch.randn(*s, dtype=torch.bfloat16) * 0.8)(S) * 0.02),
        }
    _B_in = _B_setup()

    return {
        "A_x": _A_in["x"],
        "A_wqkv": _A_in["wqkv"],
        "A_wo": _A_in["wo"],
        "B_x": _B_in["x"],
        "B_w1": _B_in["w1"],
        "B_b1": _B_in["b1"],
        "B_w2": _B_in["w2"],
        "B_b2": _B_in["b2"],
    }

def reference(A_x, A_wqkv, A_wo, B_x, B_w1, B_b1, B_w2, B_b2):
    def _A_ref(x, wqkv, wo):
        B, S, D = x.shape
        H = 32; Dh = D // H; W = 256
        qkv = (lambda x, *d: x.permute(*d))((x @ wqkv).reshape(B, S, 3, H, Dh), 2, 0, 3, 1, 4)
        q, k, v = qkv[0], qkv[1], qkv[2]
        scores = torch.einsum("bhqd,bhkd->bhqk", q, k) * (Dh ** -0.5)
        idx = torch.arange(S)
        mask = (idx[:, None] - idx[None, :] >= 0) & (idx[:, None] - idx[None, :] < W)
        scores = torch.where(mask[None, None], scores, -1e9)
        p = _softmax(scores, axis=-1)
        o = torch.einsum("bhqk,bhkd->bhqd", p, v)
        return (lambda x, *d: x.permute(*d))(o, 0, 2, 1, 3).reshape(B, S, D) @ wo

    def _B_ref(x, w1, b1, w2, b2):
        B, S, D = x.shape
        h = _layernorm(x, axis=-1)
        u = torch.einsum("bsd,sf->bdf", h, w1) + b1
        u = _gelu(u)
        y = torch.einsum("bdf,fs->bds", u, w2) + b2
        return (lambda x, *d: x.permute(*d))(y, 0, 2, 1)

    x = A_x
    xn = _layernorm(x, axis=-1)
    return x + _A_ref(xn, A_wqkv, A_wo) + _B_ref(xn, B_w1, B_b1, B_w2, B_b2)
```

```python
import re
class Asm:
    def __init__(self):
        self.L = []
        self.uid = 0
    def __call__(self, s):
        for ln in s.split("\n"):
            ln = ln.strip()
            if ln: self.L.append(ln)
    def lab(self, n): self.L.append(n + ":")
    def newlab(self, p="L"):
        self.uid += 1
        return f"{p}_{self.uid}"
    def text(self):
        out = []
        for l in self.L:
            if l.endswith(":") or l.startswith(".") or l.startswith(";"): out.append(l)
            else: out.append("    " + l)
        return "\n".join(out) + "\n"
def v(a, n=1): return f"v{a}" if n == 1 else f"v[{a}:{a+n-1}]"
def s(a, n=1): return f"s{a}" if n == 1 else f"s[{a}:{a+n-1}]"

TRANS = ("v_exp_f32", "v_log_f32", "v_rcp_f32", "v_rsq_f32", "v_sqrt_f32", "v_sin_f32", "v_cos_f32")
def regs(tok):
    tok = tok.strip()
    tok = re.sub(r"^-|^\|", "", tok); tok = tok.replace("abs(", "").replace(")", "").replace("|", "")
    m = re.fullmatch(r"([vsa])(\d+)", tok)
    if m: return [(m.group(1), int(m.group(2)))]
    m = re.fullmatch(r"([vsa])\[(\d+):(\d+)\]", tok)
    if m: return [(m.group(1), i) for i in range(int(m.group(2)), int(m.group(3))+1)]
    if tok == "vcc": return [("s", 106), ("s", 107)]
    if tok == "vcc_lo": return [("s", 106)]
    if tok == "vcc_hi": return [("s", 107)]
    if tok == "exec": return [("s", 126), ("s", 127)]
    if tok == "exec_lo": return [("s", 126)]
    if tok == "exec_hi": return [("s", 127)]
    if tok == "m0": return [("s", 124)]
    return []
class I: pass
def parse(line):
    line = line.split(";")[0].strip()
    m = re.match(r"(\S+)\s*(.*)", line)
    op, rest = m.group(1), m.group(2)
    toks = [t.strip() for t in re.split(r",(?![^\[]*\])", rest)] if rest else []
    mods = ""
    if toks:
        parts = toks[-1].split(None, 1)
        if len(parts) > 1 and not parts[0].startswith("hwreg"):
            toks[-1] = parts[0]; mods = parts[1]
    i = I(); i.op = op; i.toks = toks; i.mods = mods; i.line = line
    i.kind = "salu"
    R = [regs(t) for t in toks]
    i.d = []; i.u = []; i.c = []; i.passes = 0; i.stdata = []
    if op.startswith("v_mfma"):
        i.kind = "mfma"; i.passes = 8 if "32x32" in op else 4
        i.d = R[0]; i.u = R[1] + R[2]; i.c = R[3]
    elif op.startswith("v_"):
        i.kind = "trans" if op.replace("_e32","").replace("_e64","") in TRANS else "valu"
        if op.startswith("v_cmp"):
            i.d = R[0]; i.u = sum(R[1:], [])
            if op.startswith("v_cmpx"): i.d = i.d + regs("exec")
        elif "_co_" in op:
            i.d = R[0] + R[1]; i.u = sum(R[2:], [])
        elif op.startswith("v_permlane") and "swap" in op:
            i.d = R[0] + R[1]; i.u = R[0] + R[1]
        else:
            i.d = R[0]; i.u = sum(R[1:], [])
            if op.startswith(("v_fmac", "v_dot2c", "v_pk_fmac")) or "dpp" in op or "row_" in mods or "quad_perm" in mods: i.u = i.u + R[0]
    elif op.startswith(("buffer_", "global_")):
        i.kind = "vmem"
        if op.startswith(("buffer_wbl2", "buffer_inv")): pass
        elif "store" in op:
            if op.startswith("buffer"): i.stdata = R[0]; i.u = sum(R, [])
            else: i.stdata = R[1]; i.u = sum(R, [])
        elif "atomic" in op:
            i.u = sum(R, [])
            if "sc0" in mods: i.d = R[0]
        elif " lds" in (" " + mods) or "_lds_" in op:
            i.u = sum(R, []) + regs("m0")
        else:
            i.d = R[0]; i.u = sum(R[1:], [])
    elif op.startswith("ds_"):
        i.kind = "ds"
        if op.startswith(("ds_read", "ds_bpermute", "ds_permute", "ds_swizzle")) or "_rtn" in op: i.d = R[0]; i.u = sum(R[1:], [])
        else: i.u = sum(R, [])
    else:
        if op.startswith(("s_cmp", "s_cbranch", "s_branch", "s_waitcnt", "s_nop", "s_barrier", "s_endpgm", "s_sleep", "s_setprio", "s_bitcmp")): i.u = sum(R, [])
        else:
            i.d = R[0] if R else []; i.u = sum(R[1:], [])
            if "saveexec" in op: i.d = i.d + regs("exec")
    i.ws = (int(toks[0], 0) + 1) if op == "s_nop" else 1
    return i
def check_pair(a, b, dist):
    need = 0; why = ""
    A = set(a.d);
    def req(n, w):
        nonlocal need, why
        if n > need: need, why = n, w
    bv = b.kind in ("valu", "trans")
    av = a.kind in ("valu", "trans")
    vA = {r for r in A if r[0] in "va"}; sA = {r for r in A if r[0] == "s"}
    if av:
        if b.kind == "mfma" and vA & set(b.u + b.c): req(2, "valu->mfma")
        if b.kind == "mfma" and ("s",126) in sA: req(4, "valu exec->mfma")
        if b.op.startswith(("v_readfirstlane", "v_readlane")) and vA & set(b.u): req(1, "valu->readlane")
        if b.op.startswith("v_permlane") and vA & set(b.u): req(2, "valu->permlane")
        if bv and ("dpp" in b.op or "row_" in b.mods or "quad_perm" in b.mods) and vA & set(b.u): req(2, "valu->dpp")
        if b.kind == "vmem" and sA & set(b.u): req(5, "valu sgpr->vmem")
        if bv and sA & set(b.u): req(2, "valu sgpr->valu")
        if bv and b.op.startswith("v_cndmask") and len(b.toks) == 3 and ("s",106) in sA: req(2, "vcc->cndmask")
        if a.kind == "trans" and b.kind == "valu" and vA & set(b.u): req(1, "trans->valu")
        if ("op_sel" in a.mods and "op_sel_hi" not in a.mods) and bv and vA & set(b.u): req(1, "opsel")
    if a.kind == "mfma":
        p = a.passes
        big = {4: 8, 8: 12}[p]
        if b.kind == "mfma":
            if A & set(b.u): req(big, "mfma D->mfma AB")
            if A & set(b.c):
                if not (set(b.c) == A and b.passes == p): req({4: 6, 8: 10}[p], "mfma D->mfma C overlap")
            elif A & set(b.d): req(big, "mfma D->mfma D waw")
        elif bv:
            if A & set(b.u + b.d): req(big, "mfma D->valu")
            if set(a.c) & set(b.d): req({4: 3, 8: 7}[p], "mfma C war")
        elif b.kind in ("vmem", "ds"):
            if A & set(b.u + b.d): req(big, "mfma D->mem")
    if a.kind == "vmem" and len(a.stdata) >= 3:
        if set(a.stdata) & set(b.d): req(2, "store data war")
    if a.kind == "salu" and ("s",124) in A and b.kind == "vmem" and ("s",124) in set(b.u): req(1, "m0->lds dma")
    return (need, why) if dist < need else None
def hazard_check(text, verbose=True):
    lines = [l.strip() for l in text.split("\n")]
    ins = []; labs = {}
    for l in lines:
        l = l.split(";")[0].strip()
        if not l or l.startswith("."):
            continue
        if l.endswith(":"): labs[l[:-1]] = len(ins); continue
        ins.append(parse(l))
    W = 22
    bad = set()
    def succ(k):
        i = ins[k]
        if i.op == "s_endpgm": return []
        if i.op == "s_branch": return [labs[i.toks[0]]]
        r = [k+1] if k+1 < len(ins) else []
        if i.op.startswith("s_cbranch"): r.append(labs[i.toks[0]])
        return r
    for k, a in enumerate(ins):
        if a.kind == "salu" and ("s",124) not in a.d: continue
        st = [(n, 0) for n in succ(k)]; seen = {}
        while st:
            n, d = st.pop()
            if d >= W or seen.get(n, 99) <= d: continue
            seen[n] = d
            r = check_pair(a, ins[n], d)
            if r: bad.add((k, n, d, r[0], r[1]))
            for m in succ(n): st.append((m, d + ins[n].ws))
    for k, n, d, need, why in sorted(bad):
        print(f"HAZARD {why}: need {need} have {d}\n   [{k}] {ins[k].line}\n   [{n}] {ins[n].line}")
    return len(bad)
```

```python
from asmlib import *
OFF_R, OFF_RM, OFF_CS = 0, 8192, 16384
OFF_FLAG = 32768
OFF_H = 0x20000
SZ = 0x280000
OFF_WOF = OFF_H + SZ
OFF_Q = OFF_WOF + 0xC8000
OFF_K = OFF_Q + SZ
OFF_V = OFF_K + SZ
OFF_O = OFF_V + SZ + 0x1000
OFF_G = OFF_O + SZ
OFF_STAMP = OFF_G + 0x21C000
WS_USED = OFF_STAMP + 0x100000
SX, SWQ, SWO, SW1, SW2, SWS, SOUT, SB1, SB2, SDBG = 4, 8, 12, 16, 20, 24, 28, 32, 36, 40
SWAVE, SXCD, SJ = 44, 45, 46
SRDS = {SX: (0, 2621440), SWQ: (8, 2457600), SWO: (16, 819200), SW1: (32, 7077888), SW2: (48, 7077888),
        SWS: (80, WS_USED), SOUT: (64, 2621440), SB1: (40, 3456), SB2: (56, 4096), SDBG: (72, 256)}
VL = 1
NEGINF = "0xff800000"
OOB = "0x7fff0000"

STAMP = False
def stamp(a, i, force=False):
    if STAMP and (force or not OPT.get("mst") or i not in (1, 5, 6)): a(f"s_waitcnt lgkmcnt(0)\ns_memrealtime s[100:101]\ns_waitcnt lgkmcnt(0)\ns_mov_b32 s{84+i}, s100\ns_memtime s[100:101]\ns_waitcnt lgkmcnt(0)\ns_mov_b32 s{92+i}, s100")
def stamp_dump(a, k):
    if not STAMP: return
    stamp(a, 7)
    a(f"s_lshl_b32 s100, s2, 3\ns_add_u32 s100, s100, s{SWAVE}\ns_lshl_b32 s100, s100, 6\ns_add_u32 s100, s100, {OFF_STAMP + k*131072}\ns_mov_b64 exec, 1")
    for i in range(16): a(f"v_mov_b32 v2, s{84+i}\nbuffer_store_dword v2, off, {s(SWS,4)}, s100 offset:{4*i}")
def prologue(a, name, nwg, srds, end):
    a(f".globl {name}\n.p2align 8\n.type {name},@function")
    a.lab(name)
    a(f"s_cmp_ge_u32 s2, {nwg}\ns_cbranch_scc1 {end}")
    if STAMP:
        for i in range(16): a(f"s_mov_b32 s{84+i}, 0")
    stamp(a, 0)
    for r in srds: a(f"s_load_dwordx2 {s(r,2)}, s[0:1], {SRDS[r][0]}")
    a(f"v_lshrrev_b32 v2, 6, v0\nv_and_b32 v{VL}, 63, v0")
    a(f"s_and_b32 s{SXCD}, s2, 7\ns_lshr_b32 s{SJ}, s2, 3")
    a(f"v_readfirstlane_b32 s{SWAVE}, v2")
    for r in srds: a(f"s_mov_b32 s{r+2}, {SRDS[r][1]}\ns_mov_b32 s{r+3}, 0x20000")
    a("s_waitcnt lgkmcnt(0)")

def kd(name, vg=256):
    return f""".p2align 6
.amdhsa_kernel {name}
  .amdhsa_next_free_vgpr {vg}
  .amdhsa_next_free_sgpr 102
  .amdhsa_accum_offset {vg}
  .amdhsa_group_segment_fixed_size 0
  .amdhsa_kernarg_size 88
  .amdhsa_user_sgpr_count 2
  .amdhsa_user_sgpr_kernarg_segment_ptr 1
  .amdhsa_system_sgpr_workgroup_id_x 1
.end_amdhsa_kernel
"""

def reduce32(a, r, t):
    for sh in (8, 4, 2, 1):
        a(f"s_nop 1\nv_add_f32_dpp v{r}, v{r}, v{r} row_ror:{sh} row_mask:0xf bank_mask:0xf")
    a(f"v_mov_b32 v{t}, v{r}\ns_nop 1\nv_permlane16_swap_b32 v{r}, v{t}\nv_add_f32 v{r}, v{r}, v{t}")

def rows_load(a, srd, sw, srow, st):
    a(f"v_lshrrev_b32 v2, 5, v{VL}\nv_and_b32 v3, 31, v{VL}")
    a(f"v_mul_u32_u24 v4, 1280, v2\nv_lshl_add_u32 v5, v3, 3, v4\nv_lshl_add_u32 v4, v3, 4, v4")
    a(f"s_mul_i32 s{st}, s{srow}, 1280")
    a(f"buffer_load_dwordx4 v[16:19], v4, {s(srd,4)}, s{st} offen")
    a(f"buffer_load_dwordx4 v[20:23], v4, {s(srd,4)}, s{st} offen offset:512")
    a(f"buffer_load_dwordx2 v[24:25], v5, {s(srd,4)}, s{st} offen offset:1024")
def rows_ln(a, srow, st, stf):
    for i in range(10):
        a(f"v_lshlrev_b32 v{28+2*i}, 16, v{16+i}\nv_and_b32 v{29+2*i}, 0xffff0000, v{16+i}")
    a("v_pk_add_f32 v[6:7], v[28:29], v[30:31]")
    for i in range(2, 10): a(f"v_pk_add_f32 v[6:7], v[6:7], v[{28+2*i}:{29+2*i}]")
    a("v_add_f32 v6, v6, v7")
    reduce32(a, 6, 7)
    a(f"v_mul_f32 v6, {hexf(1/640)}, v6")
    for i in range(10): a(f"v_pk_add_f32 v[{28+2*i}:{29+2*i}], v[{28+2*i}:{29+2*i}], v[6:7] op_sel_hi:[1,0] neg_lo:[0,1] neg_hi:[0,1]")
    a("v_pk_mul_f32 v[8:9], v[28:29], v[28:29]")
    for i in range(1, 10): a(f"v_pk_fma_f32 v[8:9], v[{28+2*i}:{29+2*i}], v[{28+2*i}:{29+2*i}], v[8:9]")
    a("v_add_f32 v8, v8, v9")
    reduce32(a, 8, 9)
    a(f"v_mul_f32 v8, {hexf(1/640)}, v8")
    a(f"v_add_f32 v9, {hexf(1e-5)}, v8\nv_rsq_f32 v9, v9")
    a(f"v_mov_b32 v11, {hexf(1e-5)}\nv_mul_f32 v10, v9, v9\nv_fma_f32 v10, v10, v8, v11\nv_rsq_f32 v10, v10")
    a("v_mul_f32 v11, v9, v6\nv_mul_f32 v10, v10, v9")
    a(f"s_lshl_b32 s{st}, s{srow}, 2")
    a(f"v_lshlrev_b32 v12, 2, v2\nv_cmp_eq_u32 vcc, 0, v3\nv_mov_b32 v13, {OOB}\ns_nop 0\nv_cndmask_b32 v12, v13, v12, vcc")
    a(f"buffer_store_dword v9, v12, {s(SWS,4)}, s{st} offen {stf}")
    a(f"s_add_u32 s{st}, s{st}, {OFF_RM}")
    a(f"buffer_store_dword v11, v12, {s(SWS,4)}, s{st} offen {stf}")
    for i in range(10): a(f"v_pk_mul_f32 v[{28+2*i}:{29+2*i}], v[{28+2*i}:{29+2*i}], v[10:11] op_sel_hi:[1,0]")
    for i in range(10): a(f"v_cvt_pk_bf16_f32 v{16+i}, v{28+2*i}, v{29+2*i}")
def rows_to_lds(a, sw, ldsbase, st):
    a(f"s_mul_i32 s{st}, s{sw}, 2688\ns_add_u32 s{st}, s{st}, {ldsbase}")
    a(f"v_mul_u32_u24 v4, 1344, v2\nv_add_u32 v4, s{st}, v4\nv_lshl_add_u32 v5, v3, 3, v4\nv_lshl_add_u32 v4, v3, 4, v4")
    a("ds_write_b128 v4, v[16:19]\nds_write_b128 v4, v[20:23] offset:512\nds_write_b64 v5, v[24:25] offset:1024")
def rows_tr_store(a, sw, ldsbase, sdst, dt, st, stf):
    a(f"v_lshrrev_b32 v2, 4, v{VL}\nv_and_b32 v3, 15, v{VL}")
    a(f"v_lshrrev_b32 v4, 2, v3\nv_mul_u32_u24 v4, 1344, v4\nv_lshl_add_u32 v4, v2, 5, v4\nv_and_b32 v5, 3, v3\nv_lshl_add_u32 v4, v5, 3, v4")
    a(f"s_lshl_b32 s{st}, s{sw}, 7\ns_add_u32 s{st}, s{st}, {ldsbase}\nv_add_u32 v4, s{st}, v4")
    skip = a.newlab("trs")
    for k in range(3):
        if k == 2: a(f"s_cmp_ge_u32 s{sw}, 2\ns_cbranch_scc1 {skip}")
        a(f"ds_read_b64_tr_b16 v[{16+4*k}:{17+4*k}], v4 offset:{k*512}\nds_read_b64_tr_b16 v[{18+4*k}:{19+4*k}], v4 offset:{k*512+5376}")
        a(f"s_lshl_b32 s{st}, s{sw}, 2\ns_add_u32 s{st}, s{st}, {16*k}\nv_add_u32 v5, s{st}, v2")
        a(f"v_mul_u32_u24 v6, 52, v5\nv_lshrrev_b32 v6, 8, v6\ns_mov_b32 s{st}, {dt-5120}\nv_mul_lo_u32 v6, v6, s{st}\nv_lshl_add_u32 v6, v5, 10, v6\nv_lshl_add_u32 v6, v3, 4, v6")
        a(f"s_waitcnt lgkmcnt(0)\nbuffer_store_dwordx4 v[{16+4*k}:{19+4*k}], v6, {s(SWS,4)}, s{sdst} offen {stf}")
    a.lab(skip)

import struct
def hexf(x): return "0x%08x" % struct.unpack("<I", struct.pack("<f", x))[0]

def colsum(a, snt, ldsbase, st, stf):
    a(f"v_lshrrev_b32 v2, 4, v{VL}\nv_and_b32 v3, 15, v{VL}\nv_mul_u32_u24 v4, 3840, v2\nv_lshl_add_u32 v4, v3, 4, v4")
    a(f"s_mul_i32 s{st}, s{SWAVE}, {80*3840}\ns_lshl_b32 s{st+1}, s{snt}, 8\ns_add_u32 s{st}, s{st}, s{st+1}")
    for i in range(20):
        a(f"buffer_load_dwordx4 v[{32+4*i}:{35+4*i}], v4, {s(SWQ,4)}, s{st} offen\ns_add_u32 s{st}, s{st}, {4*3840}")
    for c in range(8): a(f"v_mov_b32 v{16+c}, 0")
    for i in range(20):
        a(f"s_waitcnt vmcnt({19-i})")
        for c in range(4):
            a(f"v_lshlrev_b32 v24, 16, v{32+4*i+c}\nv_and_b32 v25, 0xffff0000, v{32+4*i+c}\nv_pk_add_f32 v[{16+2*c}:{17+2*c}], v[{16+2*c}:{17+2*c}], v[24:25]")
    for sw in ("v_permlane32_swap_b32", "v_permlane16_swap_b32"):
        for c in range(8): a(f"v_mov_b32 v{24+c}, v{16+c}")
        a("s_nop 0")
        for c in range(8): a(f"{sw} v{16+c}, v{24+c}")
        for c in range(8): a(f"v_add_f32 v{16+c}, v{16+c}, v{24+c}")
    a(f"s_lshl_b32 s{st}, s{SWAVE}, 9\ns_add_u32 s{st}, s{st}, {ldsbase}\nv_lshlrev_b32 v4, 5, v3\nv_add_u32 v4, s{st}, v4")
    a("ds_write_b128 v4, v[16:19]\nds_write_b128 v4, v[20:23] offset:16\ns_waitcnt lgkmcnt(0)\ns_barrier")
    skip = a.newlab("cs")
    a(f"s_cmp_ge_u32 s{SWAVE}, 2\ns_cbranch_scc1 {skip}")
    a(f"v_lshlrev_b32 v4, 2, v0\nv_add_u32 v5, {ldsbase}, v4")
    for w in range(8): a(f"ds_read_b32 v{16+w}, v5 offset:{w*512}")
    a("s_waitcnt lgkmcnt(0)")
    for w in range(1, 8): a(f"v_add_f32 v16, v16, v{16+w}")
    a(f"s_lshl_b32 s{st}, s{snt}, 9\ns_add_u32 s{st}, s{st}, {OFF_CS}")
    a(f"buffer_store_dword v16, v4, {s(SWS,4)}, s{st} offen {stf}")
    a.lab(skip)

def qkv_tile(a, sm, sn):
    a(f"s_lshr_b32 s{sm}, s{SXCD}, 1\ns_lshl_b32 s{sm}, s{sm}, 2\ns_and_b32 s{sn}, s{SJ}, 3\ns_add_u32 s{sm}, s{sm}, s{sn}")
    a(f"s_and_b32 s{sn}, s{SXCD}, 1\ns_lshl_b32 s{sn}, s{sn}, 3\ns_lshr_b32 s47, s{SJ}, 2\ns_add_u32 s{sn}, s{sn}, s47")
def qkv_loader(a, sm, sn, st):
    lw, sxo, swo, sm0, t = st, st+1, st+2, st+3, st+4
    a(f"s_sub_u32 s{lw}, s{SWAVE}, 4")
    a(f"v_lshrrev_b32 v2, 3, v{VL}\nv_mul_u32_u24 v2, 1280, v2\nv_and_b32 v3, 7, v{VL}\nv_lshrrev_b32 v4, 4, v{VL}\nv_xor_b32 v3, v3, v4\nv_lshl_add_u32 v6, v3, 4, v2\nv_xor_b32 v7, 64, v6")
    a(f"v_mul_u32_u24 v2, 3840, v4\nv_bfe_u32 v3, v{VL}, 2, 2\nv_xor_b32 v3, v3, v4\nv_lshl_add_u32 v2, v3, 6, v2\nv_and_b32 v3, 3, v{VL}\nv_lshl_add_u32 v8, v3, 4, v2")
    a(f"s_lshl_b32 s{sxo}, s{sm}, 7\ns_lshl_b32 s{t}, s{lw}, 5\ns_add_u32 s{sxo}, s{sxo}, s{t}\ns_mul_i32 s{sxo}, s{sxo}, 1280")
    a(f"s_mul_i32 s{swo}, s{lw}, {16*3840}\ns_lshl_b32 s{t}, s{sn}, 8\ns_add_u32 s{swo}, s{swo}, s{t}")
    a(f"s_lshl_b32 s{sm0}, s{lw}, 12")
    ko = st+5
    if OPT["rot1"]:
        a(f"s_and_b32 s{ko}, s{SJ}, 3\ns_lshl_b32 s{ko}, s{ko}, 1\ns_lshr_b32 s{t}, s{SJ}, 2\ns_add_u32 s{ko}, s{ko}, s{t}")
        if OPT["rot1"] > 1: a(f"s_add_u32 s{ko}, s{ko}, s{SXCD}")
        for _ in range(2): a(f"s_cmp_ge_u32 s{ko}, 10\ns_cselect_b32 s{t}, 10, 0\ns_sub_u32 s{ko}, s{ko}, s{t}")
        a(f"s_lshl_b32 s{t}, s{ko}, 7\ns_add_u32 s{sxo}, s{sxo}, s{t}\ns_mul_i32 s{t}, s{ko}, 245760\ns_add_u32 s{swo}, s{swo}, s{t}")
    def stage(sidx):
        slot = sidx % 4
        if OPT.get("k1_noload"): return
        if OPT["rot1"] and sidx:
            a(f"s_add_u32 s{ko}, s{ko}, 1\ns_cmp_eq_u32 s{ko}, 10\ns_cselect_b32 s{t}, 1280, 0\ns_sub_u32 s{sxo}, s{sxo}, s{t}\ns_cmp_eq_u32 s{ko}, 10\ns_cselect_b32 s{t}, 2457600, 0\ns_sub_u32 s{swo}, s{swo}, s{t}")
        a(f"s_add_u32 m0, s{sm0}, {slot*32768}")
        for i in range(4):
            a(f"s_add_u32 s{t}, s{sxo}, {i*9216 + sidx*128}")
            a(f"buffer_load_dwordx4 v{6+(i&1)}, {s(SX,4)}, s{t} offen offset:{i*1024} lds")
        a(f"s_add_u32 m0, s{sm0}, {slot*32768+16384}")
        for i in range(4):
            a(f"s_add_u32 s{t}, s{swo}, {i*14336 + sidx*245760}")
            a(f"buffer_load_dwordx4 v8, {s(SWQ,4)}, s{t} offen offset:{i*1024} lds")
    LA = OPT.get("la", 2)
    for sidx in range(LA):
        a(f"s_setprio {3-sidx}"); stage(sidx)
    a("s_setprio 0")
    for sidx in range(10):
        n = 8*min(LA-1, 9-sidx)
        a(f"s_waitcnt vmcnt({n})\ns_barrier")
        if sidx + LA <= 9: stage(sidx + LA)

QACC, QF = 64, 32
def qkv_consumer_setup(a):
    a(f"s_lshr_b32 s48, s{SWAVE}, 1\ns_and_b32 s49, s{SWAVE}, 1")
    a(f"v_and_b32 v2, 31, v{VL}\nv_lshrrev_b32 v3, 5, v{VL}")
    a(f"v_bfe_u32 v4, v{VL}, 1, 3")
    a(f"s_lshl_b32 s50, s48, 13\nv_lshlrev_b32 v5, 7, v2\nv_add_u32 v5, s50, v5")
    for ks in range(4):
        a(f"v_or_b32 v6, {2*ks}, v3\nv_xor_b32 v6, v6, v4\nv_lshl_add_u32 v{8+ks}, v6, 4, v5")
    a(f"v_bfe_u32 v4, v{VL}, 2, 2\nv_lshl_add_u32 v5, v3, 3, v4\nv_lshlrev_b32 v5, 8, v5\nv_bfe_u32 v6, v{VL}, 4, 1\nv_lshl_add_u32 v5, v6, 5, v5\nv_and_b32 v6, 3, v{VL}\nv_lshl_add_u32 v5, v6, 3, v5\nv_add_u32 v5, 16384, v5")
    a(f"s_lshl_b32 s50, s49, 1")
    for cf in range(2):
        a(f"s_add_u32 s51, s50, {cf}\nv_xor_b32 v6, s51, v4\nv_lshl_add_u32 v{12+cf}, v6, 6, v5")
    for i in range(64): a(f"v_mov_b32 v{QACC+i}, 0")
def qkv_rd(a, ks, buf, slot, which):
    if OPT.get("k1_noread"): return
    b = QF + 16*buf; o = slot*32768
    if which[0] == "x":
        i = int(which[1]); a(f"ds_read_b128 {v(b+4*i,4)}, v{8+ks} offset:{o+i*4096}")
    else:
        cf = int(which[1])
        for rd in range(2): a(f"ds_read_b64_tr_b16 {v(b+8+4*cf+2*rd,2)}, v{12+cf} offset:{o+ks*4096+rd*1024}")
def qkv_mf(a, buf, vori, i, cf):
    if OPT.get("k1_nomfma"): return
    b = QF + 16*buf
    acc = v(QACC + 16*(2*i+cf), 16); X = v(b+4*i, 4); Wf = v(b+8+4*cf, 4)
    if vori: a(f"v_mfma_f32_32x32x16_bf16 {acc}, {X}, {Wf}, {acc}")
    else: a(f"v_mfma_f32_32x32x16_bf16 {acc}, {Wf}, {X}, {acc}")
def qkv_consumer_loop(a, vori, first_barrier=True):
    L = a.newlab("qloop"); last = a.newlab("qlast"); done = a.newlab("qdone")
    if first_barrier: a("s_barrier")
    for w in ("x0", "w0", "w1", "x1"): qkv_rd(a, 0, 0, 0, w)
    a("s_mov_b32 s50, 0")
    a(".p2align 3")
    a.lab(L)
    for slot in range(2):
        for ks in range(4):
            buf = ks & 1; nb = buf ^ 1
            if ks < 3:
                a("s_waitcnt lgkmcnt(3)"); qkv_mf(a, buf, vori, 0, 0); qkv_rd(a, ks+1, nb, slot, "x0"); qkv_rd(a, ks+1, nb, slot, "w0")
                a("s_waitcnt lgkmcnt(4)"); qkv_mf(a, buf, vori, 0, 1); qkv_rd(a, ks+1, nb, slot, "w1")
                a("s_waitcnt lgkmcnt(5)"); qkv_mf(a, buf, vori, 1, 0); qkv_rd(a, ks+1, nb, slot, "x1")
                qkv_mf(a, buf, vori, 1, 1)
            else:
                a("s_waitcnt lgkmcnt(3)"); qkv_mf(a, buf, vori, 0, 0)
                if slot == 1:
                    a(f"s_cmp_eq_u32 s50, 4\ns_cbranch_scc1 {last}")
                    for r in range(8, 14): a(f"v_xor_b32 v{r}, 0x10000, v{r}")
                a("s_waitcnt lgkmcnt(0)\ns_barrier")
                ns = slot ^ 1
                qkv_rd(a, 0, nb, ns, "x0"); qkv_rd(a, 0, nb, ns, "w0")
                qkv_mf(a, buf, vori, 0, 1); qkv_rd(a, 0, nb, ns, "w1")
                qkv_mf(a, buf, vori, 1, 0); qkv_rd(a, 0, nb, ns, "x1")
                qkv_mf(a, buf, vori, 1, 1)
    a(f"s_add_u32 s50, s50, 1\ns_branch {L}")
    a.lab(last)
    a("s_waitcnt lgkmcnt(0)")
    qkv_mf(a, 1, vori, 0, 1); qkv_mf(a, 1, vori, 1, 0); qkv_mf(a, 1, vori, 1, 1)
QSCALE = (20 ** -0.5) * 1.4426950408889634
def qkv_epi_loads(a, sm, sn, vori, ldf):
    a(f"s_lshl_b32 s50, s{sm}, 7\ns_lshl_b32 s51, s48, 6\ns_add_u32 s50, s50, s51\ns_lshl_b32 s51, s50, 2")
    a(f"s_add_u32 s52, s51, {OFF_RM}")
    a(f"s_lshl_b32 s53, s{sn}, 7\ns_lshl_b32 s54, s49, 6\ns_add_u32 s53, s53, s54\ns_lshl_b32 s54, s53, 2\ns_add_u32 s54, s54, {OFF_CS}")
    a(f"v_and_b32 v2, 31, v{VL}\nv_lshrrev_b32 v3, 5, v{VL}\nv_lshlrev_b32 v4, 2, v2\nv_lshlrev_b32 v5, 4, v3")
    ws = s(SWS, 4)
    if not vori:
        for i in range(2):
            a(f"buffer_load_dword v{128+2*i}, v4, {ws}, s51 offen offset:{i*128} {ldf}")
            a(f"buffer_load_dword v{132+2*i}, v4, {ws}, s52 offen offset:{i*128} {ldf}")
        for k in range(8): a(f"buffer_load_dwordx4 {v(136+4*k,4)}, v5, {ws}, s54 offen offset:{k*32} {ldf}")
    else:
        for cf in range(2): a(f"buffer_load_dword v{128+2*cf}, v4, {ws}, s54 offen offset:{cf*128} {ldf}")
        for k in range(8):
            a(f"buffer_load_dwordx4 {v(136+4*k,4)}, v5, {ws}, s51 offen offset:{k*32} {ldf}")
            a(f"buffer_load_dwordx4 {v(168+4*k,4)}, v5, {ws}, s52 offen offset:{k*32} {ldf}")
def qkv_epi(a, sm, sn, vori, stf):
    ws = s(SWS, 4)
    a("s_waitcnt vmcnt(0)")
    if not vori:
        a(f"s_cmp_lt_u32 s{sn}, 5\ns_cselect_b32 s55, {hexf(QSCALE)}, 1.0")
        for r in (128, 130, 132, 134): a(f"v_mul_f32 v{r}, s55, v{r}")
        a(f"s_cselect_b32 s56, 0, {OFF_K - OFF_Q - 160*256}\ns_add_u32 s56, s56, {OFF_Q}")
        a(f"s_lshr_b32 s55, s50, 5\ns_mul_i32 s55, s55, 40960\ns_add_u32 s56, s56, s55\ns_lshl_b32 s55, s53, 6\ns_add_u32 s56, s56, s55\ns_add_u32 s57, s56, 40960")
        a("v_lshlrev_b32 v4, 3, v2\nv_lshl_add_u32 v4, v3, 8, v4")
        for i in range(2):
            for cf in range(2):
                b = QACC + 16*(2*i+cf)
                for p in range(8):
                    a(f"v_pk_mul_f32 {v(b+2*p,2)}, {v(b+2*p,2)}, {v(128+2*i,2)} op_sel_hi:[1,0]")
                for p in range(8):
                    a(f"v_pk_fma_f32 {v(b+2*p,2)}, {v(136+16*cf+2*p,2)}, {v(132+2*i,2)}, {v(b+2*p,2)} op_sel_hi:[1,0,1] neg_lo:[0,1,0] neg_hi:[0,1,0]")
                for p in range(8): a(f"v_cvt_pk_bf16_f32 v{b+p}, v{b+2*p}, v{b+2*p+1}")
                for q in range(4):
                    a(f"buffer_store_dwordx2 {v(b+2*q,2)}, v4, {ws}, s{56+i} offen offset:{(8*cf+2*q)*256} {stf}")
    else:
        a(f"s_lshr_b32 s55, s50, 5\ns_mul_i32 s55, s55, 40960\ns_lshl_b32 s56, s53, 4\ns_add_u32 s56, s56, s55\ns_add_u32 s56, s56, {OFF_V - 1280*16}")
        for k in range(1, 4): a(f"s_add_u32 s{56+k}, s56, {k*20480}")
        a("v_mul_u32_u24 v4, 10240, v3\nv_lshl_add_u32 v4, v2, 4, v4")
        for i in range(2):
            for cf in range(2):
                b = QACC + 16*(2*i+cf)
                for p in range(8):
                    a(f"v_pk_mul_f32 {v(b+2*p,2)}, {v(b+2*p,2)}, {v(136+16*i+2*p,2)}")
                for p in range(8):
                    a(f"v_pk_fma_f32 {v(b+2*p,2)}, {v(168+16*i+2*p,2)}, {v(128+2*cf,2)}, {v(b+2*p,2)} op_sel_hi:[1,0,1] neg_lo:[0,1,0] neg_hi:[0,1,0]")
                for p in range(8): a(f"v_cvt_pk_bf16_f32 v{b+p}, v{b+2*p}, v{b+2*p+1}")
                for m in range(2):
                    a(f"buffer_store_dwordx4 {v(b+4*m,4)}, v4, {ws}, s{56+2*i+m} offen offset:{cf*512} {stf}")

def lds_sync(a, addr, n, vt=2, st=60):
    L = a.newlab("sync")
    a(f"s_waitcnt lgkmcnt(0)\nv_mov_b32 v{vt}, {addr}\nv_mov_b32 v{vt+1}, 1\ns_mov_b64 exec, 1\nds_add_u32 v{vt}, v{vt+1}\ns_mov_b64 exec, -1\ns_mov_b32 s47, 0x80000")
    a.lab(L)
    a(f"ds_read_b32 v{vt+1}, v{vt}\ns_sub_u32 s47, s47, 1\ns_cbranch_scc1 {L}x\ns_waitcnt lgkmcnt(0)\nv_readfirstlane_b32 s{st}, v{vt+1}\ns_cmp_lt_u32 s{st}, {n}\ns_cbranch_scc1 {L}")
    a.lab(L + "x")

MACC, MA, MB = 16, 96, 112
MTR, MDMA, MDIR = 4, 8, 9
S_SRD, S_TO, S_D8, S_STEP, S_DO, S_M0, S_CNT, S_T, S_T2 = 52, 56, 57, 58, 59, 61, 62, 63, 64
def mlp_setup(a, srd, stride, sring, rot=None):
    for k in range(3): a(f"s_mov_b32 s{S_SRD+k}, s{srd+k}")
    a(f"s_mov_b32 s{S_SRD+3}, 0x20000")
    a(f"s_mov_b32 s{S_D8}, {8*stride-1024}\ns_mov_b32 s{S_STEP}, {32*stride - 3*(8*stride-1024)}\ns_mov_b32 s{S_M0}, s{sring}")
    a(f"v_lshrrev_b32 v2, 3, v{VL}\nv_mul_u32_u24 v2, {stride}, v2\nv_bfe_u32 v3, v{VL}, 1, 2\nv_lshrrev_b32 v10, 4, v{VL}\nv_xor_b32 v3, v3, v10\nv_lshl_add_u32 v2, v3, 5, v2\nv_and_b32 v3, 1, v{VL}\nv_lshl_add_u32 v{MDMA}, v3, 4, v2")
    a(f"v_lshlrev_b32 v{MDIR}, 4, v{VL}")
    a(f"v_lshrrev_b32 v2, 2, v{VL}\nv_lshlrev_b32 v2, 7, v2\nv_and_b32 v3, 3, v{VL}\nv_lshl_add_u32 v2, v3, 3, v2\nv_add_u32 v2, s{sring}, v2\nv_bfe_u32 v3, v{VL}, 3, 2")
    if rot is not None: a(f"v_xor_b32 v3, s{rot}, v3")
    for fb in range(4): a(f"v_xor_b32 v10, {fb}, v3\nv_lshl_add_u32 v{MTR+fb}, v10, 5, v2")
def mlp_dma(a, slot):
    a(f"s_add_u32 m0, s{S_M0}, {slot*4096}")
    for i in range(4):
        a(f"buffer_load_dwordx4 v{MDMA}, {s(S_SRD,4)}, s{S_TO} offen offset:{i*1024} lds" if i else f"s_nop 0\nbuffer_load_dwordx4 v{MDMA}, {s(S_SRD,4)}, s{S_TO} offen lds")
        a(f"s_add_u32 s{S_TO}, s{S_TO}, s{S_D8 if i < 3 else S_STEP}")
def mlp_dir(a, slot, db, ldf):
    r = MB + 20*slot + 4*db
    if db < 4: a(f"buffer_load_dwordx4 {v(r,4)}, v{MDIR}, {s(SWS,4)}, s{S_DO} offen offset:{db*1024} {ldf}")
    else: a(f"s_add_u32 s{S_T}, s{S_DO}, 4096\nbuffer_load_dwordx4 {v(r,4)}, v{MDIR}, {s(SWS,4)}, s{S_T} offen {ldf}\ns_add_u32 s{S_DO}, s{S_DO}, 5120")
def mlp_body(a, slot, wait, loads, ldf):
    a(f"s_waitcnt vmcnt({wait})")
    for fb in range(4):
        for rd in range(2):
            if not OPT.get("m_noread"): a(f"ds_read_b64_tr_b16 {v(MA+4*fb+2*rd,2)}, v{MTR+fb} offset:{slot*4096+rd*2048}")
    a("s_waitcnt lgkmcnt(0)")
    if loads: mlp_dma(a, slot)
    for db in range(5):
        for fb in range(4):
            acc = v(MACC + (fb*5+db)*4, 4)
            if not OPT.get("m_nomfma"): a(f"v_mfma_f32_16x16x32_bf16 {acc}, {v(MA+4*fb,4)}, {v(MB+20*slot+4*db,4)}, {acc}")
        if loads: mlp_dir(a, slot, db, ldf)
OPT = {"lead": 0, "leadwait": 27, "rot1": 0}
def lead_setup(a, skw, slead):
    a(f"s_lshr_b32 s{slead}, s{SJ}, 2\ns_add_u32 s{slead}, s{slead}, s{SJ}\ns_and_b32 s{slead}, s{slead}, 3\ns_cmp_eq_u32 s{slead}, s{skw}\ns_cselect_b32 s{slead}, 1, 0")
def mlp_loop(a, sphi, ldf, slead=None, flag=None):
    P = [a.newlab("mp") for _ in range(7)]; B = [a.newlab("mb") for _ in range(4)]; go = a.newlab("mgo")
    lead = OPT["lead"] and slead is not None
    if lead:
        L0 = a.newlab("ld"); L1 = a.newlab("ld")
        a(f"v_mov_b32 v12, {flag}\ns_cmp_eq_u32 s{slead}, 1\ns_cbranch_scc1 {L1}")
        for i in range(80): a(f"v_mov_b32 v{MACC+i}, 0")
        a.lab(L0)
        a(f"ds_read_b32 v13, v12\ns_waitcnt lgkmcnt(0)\nv_readfirstlane_b32 s{S_T}, v13\ns_cmp_eq_u32 s{S_T}, 0\ns_cbranch_scc1 {L0}")
        a.lab(L1)
    a(f"s_cmp_eq_u32 s{sphi}, 2\ns_cbranch_scc1 {P[2]}\ns_cmp_eq_u32 s{sphi}, 3\ns_cbranch_scc1 {P[3]}")
    for k in range(7):
        a.lab(P[k])
        mlp_dma(a, k % 4)
        for db in range(5): mlp_dir(a, k % 4, db, ldf)
        if k in (3, 5): a(f"s_cmp_eq_u32 s{sphi}, {k-3}\ns_cbranch_scc1 {go}")
    a.lab(go)
    if lead:
        L2 = a.newlab("ld")
        a(f"s_cmp_eq_u32 s{slead}, 0\ns_cbranch_scc1 {L2}")
        if OPT["lead"] > 1: a("s_setprio 3")
    for i in range(80): a(f"v_mov_b32 v{MACC+i}, 0")
    if lead:
        a(f"v_mov_b32 v13, 1\ns_waitcnt vmcnt({OPT['leadwait']})\nds_write_b32 v12, v13")
        a.lab(L2)
    a(f"s_cmp_eq_u32 s{sphi}, 2\ns_cbranch_scc1 {B[2]}\ns_cmp_eq_u32 s{sphi}, 3\ns_cbranch_scc1 {B[3]}")
    for k in range(4):
        a.lab(B[k])
        mlp_body(a, k, 27, True, ldf)
    a(f"s_sub_u32 s{S_CNT}, s{S_CNT}, 1\ns_cmp_lg_u32 s{S_CNT}, 0\ns_cbranch_scc1 {B[0]}")
    for k in range(4): mlp_body(a, k, 27-9*k, False, ldf)

def mlp1_tile(a, sdt, sft, skip):
    a(f"s_and_b32 s{sdt}, s{SXCD}, 1\ns_lshl_b32 s{sdt}, s{sdt}, 2\ns_and_b32 s47, s{SJ}, 3\ns_add_u32 s{sdt}, s{sdt}, s47")
    a(f"s_lshr_b32 s{sft}, s{SXCD}, 1\ns_mul_i32 s{sft}, s{sft}, 7\ns_lshr_b32 s47, s{SJ}, 2\ns_add_u32 s{sft}, s{sft}, s47")
    a(f"s_cmp_ge_u32 s47, 7\ns_cbranch_scc1 {skip}\ns_cmp_ge_u32 s{sft}, 27\ns_cbranch_scc1 {skip}")
def mlp1_main(a, sdt, sft, skw, ringbase, ringstride, ldf, flag=None):
    a(f"s_mul_i32 s66, s{skw}, {ringstride}\ns_add_u32 s66, s66, {ringbase}")
    a(f"s_mul_i32 s67, s{skw}, 3\ns_cmp_eq_u32 s{skw}, 3\ns_cselect_b32 s67, 8, s67")
    a(f"v_lshrrev_b32 v2, 4, v{VL}\nv_lshlrev_b32 v11, 3, v2")
    for k in range(3):
        a(f"s_add_u32 s65, s67, {k}\ns_cmp_ge_u32 s65, 5\ns_cselect_b32 s65, 64, 0\ns_lshl_b32 s68, s{sft}, 7\ns_add_u32 s65, s65, s68")
        for t in range(2): a(f"buffer_load_dwordx2 {v(192+4*k+2*t,2)}, v11, {s(SB1,4)}, s65 offen offset:{t*32}")
    mlp_setup(a, SW1, 3456, 66)
    a(f"s_mul_i32 s{S_TO}, s{skw}, {512*3456}\ns_lshl_b32 s65, s{sft}, 7\ns_add_u32 s{S_TO}, s{S_TO}, s65")
    a(f"s_mul_i32 s{S_DO}, s{sdt}, 327680\ns_mul_i32 s65, s{skw}, {16*5120}\ns_add_u32 s{S_DO}, s{S_DO}, s65\ns_add_u32 s{S_DO}, s{S_DO}, {OFF_H}")
    lead_setup(a, skw, 75)
    a(f"s_mov_b32 s{S_CNT}, 3\ns_mov_b32 s65, 0")
    mlp_loop(a, 65, ldf, 75, flag)
GC1 = -2*1.4426950408889634*0.7978845608028654
GC2 = GC1*0.044715
def mlp1_epi(a, sdt, sft, skw, ringbase, ringstride, cnt_addr, stf):
    a(f"v_add_u32 v10, s66, v{MDIR}\ns_nop 7")
    for t in range(20): a(f"ds_write_b128 v10, {v(MACC+4*t,4)} offset:{t*1024}")
    lds_sync(a, cnt_addr, 4)
    a(f"s_mul_i32 s68, s{sdt}, {54*5120}\ns_mul_i32 s65, s{sft}, 10240\ns_add_u32 s68, s68, s65\ns_lshl_b32 s65, s67, 10\ns_add_u32 s68, s68, s65\ns_add_u32 s68, s68, {OFF_G}")
    skip = a.newlab("m1e")
    for k in range(3):
        if k == 2: a(f"s_cmp_ge_u32 s{skw}, 2\ns_cbranch_scc1 {skip}_r")
        a(f"s_add_u32 s65, s67, {k}\ns_cmp_ge_u32 s65, 5\ns_cselect_b32 s69, 5, 0\ns_add_u32 s65, s65, s69\ns_lshl_b32 s65, s65, 10\ns_add_u32 s65, s65, {ringbase}")
        a(f"v_add_u32 v10, s65, v{MDIR}\nv_add_u32 v11, 5120, v10")
        for t in range(2):
            for src in range(4): a(f"ds_read_b128 {v(16+32*k+16*t+4*src,4)}, v{10+t} offset:{src*ringstride}")
    a.lab(skip + "_r")
    a(f"s_mov_b32 s70, {hexf(GC1)}\ns_mov_b32 s71, {hexf(GC1)}\ns_mov_b32 s72, {hexf(GC2)}\ns_mov_b32 s73, {hexf(GC2)}\nv_mov_b32 v14, s70\nv_mov_b32 v15, s70")
    a("s_waitcnt lgkmcnt(0)")
    for k in range(3):
        if k == 2: a(f"s_cmp_ge_u32 s{skw}, 2\ns_cbranch_scc1 {skip}")
        b = 16 + 32*k
        for t in range(2):
            for q in range(2):
                bb = 192+4*k+2*t+q
                a(f"v_lshlrev_b32 v{112+4*t+2*q}, 16, v{bb}\nv_and_b32 v{113+4*t+2*q}, 0xffff0000, v{bb}")
        for src in range(4):
            for t in range(2):
                for q in range(2): a(f"v_pk_add_f32 {v(112+4*t+2*q,2)}, {v(112+4*t+2*q,2)}, {v(b+16*t+4*src+2*q,2)}")
        for q in range(4): a(f"v_pk_mul_f32 {v(120+2*q,2)}, {v(112+2*q,2)}, {v(112+2*q,2)}")
        for q in range(4): a(f"v_pk_fma_f32 {v(120+2*q,2)}, {v(120+2*q,2)}, s[72:73], v[14:15]")
        for q in range(4): a(f"v_pk_mul_f32 {v(120+2*q,2)}, {v(120+2*q,2)}, {v(112+2*q,2)}")
        for q in range(8): a(f"v_exp_f32 v{120+q}, v{120+q}")
        for q in range(8): a(f"v_add_f32 v{120+q}, 1.0, v{120+q}")
        for q in range(8): a(f"v_rcp_f32 v{120+q}, v{120+q}")
        a("s_nop 0")
        for q in range(4): a(f"v_pk_mul_f32 {v(120+2*q,2)}, {v(120+2*q,2)}, {v(112+2*q,2)}")
        for q in range(4): a(f"v_cvt_pk_bf16_f32 v{128+4*k+q}, v{120+2*q}, v{121+2*q}")
        a(f"buffer_store_dwordx4 {v(128+4*k,4)}, v{MDIR}, {s(SWS,4)}, s68 offen offset:{k*1024} {stf}")
    a.lab(skip)

AS, AMD, AME, AO, AK, AV, AQ = 16, 160, 176, 192, 208, 226, 242
def attn_ids(a, shd, sb):
    a(f"s_lshl_b32 s{shd}, s{SXCD}, 2\ns_and_b32 s47, s{SJ}, 3\ns_add_u32 s{shd}, s{shd}, s47\ns_lshr_b32 s{sb}, s{SJ}, 2")
def attn_masks(a):
    a(f"v_and_b32 v2, 31, v{VL}\nv_lshrrev_b32 v3, 5, v{VL}\nv_lshlrev_b32 v3, 2, v3\nv_sub_u32 v2, v2, v3\nv_mov_b32 v3, {NEGINF}")
    for r0 in range(0, 16, 4):
        for r in range(r0, r0+4): a(f"v_cmp_le_i32 {s(66+2*(r-r0),2)}, {8*(r>>2)+(r&3)}, v2")
        for r in range(r0, r0+4): a(f"v_cndmask_b32 v{AMD+r}, v3, 0, {s(66+2*(r-r0),2)}\nv_cndmask_b32 v{AME+r}, 0, v3, {s(66+2*(r-r0),2)}")
def attn_loads(a, shd, sb, base, ldf):
    ws = s(SWS, 4); w = SWAVE
    KB, VB = base, base + 20480
    a(f"s_lshl_b32 s50, s{sb}, 3\ns_sub_u32 s51, s50, 8\ns_cmp_eq_u32 s{sb}, 0\ns_cselect_b32 s52, 0, s51\ns_cmp_ge_u32 s{w}, 2\ns_cselect_b32 s51, s51, s52\ns_lshl_b32 s52, s{w}, 2\ns_add_u32 s51, s51, s52\ns_mul_i32 s51, s51, 40960")
    a(f"v_and_b32 v2, 31, v{VL}\nv_lshrrev_b32 v3, 5, v{VL}\nv_lshlrev_b32 v4, 3, v2\nv_lshl_add_u32 v5, v3, 9, v4\nv_mov_b32 v6, {OOB}\nv_cmp_eq_u32 vcc, 0, v3\ns_nop 1\nv_cndmask_b32 v6, v6, v4, vcc")
    a(f"s_add_u32 s52, s50, s{w}\ns_mul_i32 s52, s52, 40960\ns_mul_i32 s53, s{shd}, 1280\ns_add_u32 s52, s52, s53\ns_add_u32 s54, s52, {OFF_Q}\ns_add_u32 s55, s54, {4*40960}")
    for t in range(2):
        a(f"buffer_load_dwordx2 {v(AQ+6*t,2)}, v5, {ws}, s{54+t} offen {ldf}\nbuffer_load_dwordx2 {v(AQ+6*t+2,2)}, v5, {ws}, s{54+t} offen offset:256 {ldf}\nbuffer_load_dwordx2 {v(AQ+6*t+4,2)}, v6, {ws}, s{54+t} offen offset:1024 {ldf}")
    a(f"s_add_u32 s56, s52, {OFF_O}")
    a(f"s_add_u32 s53, s53, s51\ns_add_u32 s53, s53, {OFF_K}\ns_mul_i32 s54, s{w}, 5120\ns_add_u32 m0, s54, {KB}\ns_mov_b32 s55, 39680")
    for i in range(5):
        a(f"v_add_u32 v7, {64*i}, v{VL}\nv_mul_u32_u24 v7, 205, v7\nv_lshrrev_b32 v7, 14, v7\nv_mul_lo_u32 v7, v7, s55\nv_lshl_add_u32 v7, v{VL}, 4, v7")
        if i == 4: a(f"s_add_u32 m0, s54, {KB+4096}\nv_add_u32 v7, 4096, v7")
        a(f"buffer_load_dwordx4 v7, {ws}, s53 offen offset:{(i&3)*1024} {ldf} lds")
    a(f"v_mul_u32_u24 v7, 49, v{VL}\nv_lshrrev_b32 v7, 10, v7\nv_mul_u32_u24 v7, {10240-336}, v7\nv_lshl_add_u32 v7, v{VL}, 4, v7")
    a(f"s_mul_i32 s53, s{shd}, 320\ns_add_u32 s53, s53, s51\ns_add_u32 s53, s53, {OFF_V}\ns_mul_i32 s54, s{w}, 5376\ns_add_u32 s54, s54, {VB}")
    for k in range(6):
        a(f"s_add_u32 m0, s54, {k*1008}")
        if k == 5: a("s_mov_b64 exec, 0x1fffff")
        else: a("s_nop 0")
        a(f"buffer_load_dwordx4 v7, {ws}, s53 offen {ldf} lds\ns_add_u32 s53, s53, 30720")
    a("s_mov_b64 exec, -1")
    a(f"s_mul_i32 s53, s{w}, 1280\ns_add_u32 s53, s53, {KB}\nv_add_u32 v8, s53, v5\nv_add_u32 v9, s53, v4")
    a(f"v_min_u32 v10, 20, v2\nv_cmp_lt_u32 vcc, 27, v2\nv_mul_u32_u24 v13, 336, v3\ns_nop 0\nv_cndmask_b32 v10, v10, 4, vcc".replace("v_cndmask_b32 v10, v10, 4, vcc", "v_cndmask_b32_e64 v10, v10, 4, vcc"))
    a(f"s_mul_i32 s53, s{w}, 1344\ns_add_u32 s53, s53, {VB}\nv_lshl_add_u32 v10, v10, 4, v13\nv_add_u32 v10, s53, v10")
    a(f"v_lshl_add_u32 v11, v3, 8, v4\nv_mov_b32 v12, v6")
    a(f"v_and_b32 v13, 15, v{VL}\nv_mul_u32_u24 v13, 336, v13\nv_add_u32 v13, s54, v13")
    a("v_mov_b32 v4, 0x3f803f80\nv_mov_b32 v5, v4\nv_mov_b32 v6, v4\nv_mov_b32 v7, v4")
    a(f"s_sub_u32 s57, 8, s{w}\ns_cmp_eq_u32 s{sb}, 0\ns_cselect_b32 s57, s57, 0\ns_cselect_b32 s58, 4, 0")
def attn_compute(a, cnt_addr, stf):
    ws = s(SWS, 4)
    a("s_waitcnt vmcnt(0)\nds_write_b128 v13, v[4:7] offset:320")
    lds_sync(a, cnt_addr, 4)
    a("s_mov_b32 s59, 0")
    if OPT.get("astamp"): stamp(a, 3)
    L = a.newlab("atask")
    if OPT.get("aalign"): a(".p2align 3")
    a.lab(L)
    def kread(p):
        b = AK + 6*(p % 3)
        a(f"ds_read_b64 {v(b,2)}, v8 offset:{p*1280}\nds_read_b64 {v(b+2,2)}, v8 offset:{p*1280+256}\nds_read_b64 {v(b+4,2)}, v9 offset:{p*1280+1024}")
    def vread(p):
        b = AV + 8*(p % 2)
        for m in range(2): a(f"ds_read_b128 {v(b+4*m,4)}, v10 offset:{p*1344+m*672}")
    def mx(p):
        sk = a.newlab("inv")
        if p < 8:
            a(f"s_cmp_le_u32 s57, {p}\ns_cbranch_scc1 {sk}")
            for r in range(16): a(f"v_mov_b32 v{AS+16*p+r}, {NEGINF}")
            a.lab(sk)
        for q in range(8):
            d = 2 + (q & 1)
            if p == 0 and q < 2: a(f"v_max_f32 v{d}, v{AS+2*q}, v{AS+2*q+1}")
            else: a(f"v_max3_f32 v{d}, v{d}, v{AS+16*p+2*q}, v{AS+16*p+2*q+1}")
    kread(0); kread(1)
    for p in range(9):
        if p + 2 < 9: kread(p+2)
        a(f"s_waitcnt lgkmcnt({min(2, 8-p)*3})")
        b = AK + 6*(p % 3); S = v(AS+16*p, 16)
        C = v(AME,16) if p == 0 else v(AMD,16) if p == 8 else "0"
        a(f"v_mfma_f32_32x32x16_bf16 {S}, {v(b,4)}, {v(AQ,4)}, {C}")
        a(f"v_mfma_f32_32x32x8bf16_1k {S}, {v(b+4,2)}, {v(AQ+4,2)}, {S}")
        if p >= 2: mx(p-2)
    vread(0)
    mx(7)
    a("s_nop 1")
    mx(8)
    a("v_max_f32 v2, v2, v3\nv_mov_b32 v3, v2\ns_nop 1\nv_permlane32_swap_b32 v2, v3\nv_max_f32 v2, v2, v3")
    if OPT.get("astamp"):
        LL = a.newlab("st"); a(f"s_cmp_eq_u32 s59, {OPT['astamp']-1}\ns_cbranch_scc0 {LL}"); stamp(a, 4); a.lab(LL)
    def pv(p):
        b = AV + 8*(p % 2)
        for m in range(2):
            C = "0" if (p == 0 and m == 0) else v(AO,16)
            a(f"v_mfma_f32_32x32x16_bf16 {v(AO,16)}, {v(b+4*m,4)}, {v(AS+16*p+4*m,4)}, {C}")
    for p in range(9):
        b = AS + 16*p
        if OPT.get("nopk"):
            for q in range(16): a(f"v_sub_f32 v{b+q}, v{b+q}, v2")
        else:
            for q in range(8): a(f"v_pk_add_f32 {v(b+2*q,2)}, {v(b+2*q,2)}, v[2:3] op_sel_hi:[1,0] neg_lo:[0,1] neg_hi:[0,1]")
        if p > 0:
            a("s_waitcnt lgkmcnt(0)"); pv(p-1)
        if p + 1 < 9 and p > 0: vread(p+1)
        if p == 0: vread(1)
        for q in range(16): a(f"v_exp_f32 v{b+q}, v{b+q}")
        a("s_nop 0")
        for q in range(8): a(f"v_cvt_pk_bf16_f32 v{b+q}, v{b+2*q}, v{b+2*q+1}")
    a("s_waitcnt lgkmcnt(0)\ns_nop 0"); pv(8)
    for r in range(6): a(f"v_mov_b32 v{AQ+r}, v{AQ+6+r}")
    a(f"v_add_u32 v8, {4*1280}, v8\nv_add_u32 v9, {4*1280}, v9\nv_add_u32 v10, {4*1344}, v10\ns_sub_u32 s57, s57, s58\ns_nop 2")
    a(f"v_mov_b32 v2, v{AO+8}\nv_mov_b32 v3, v{AO+8}\ns_nop 1\nv_permlane32_swap_b32 v2, v3\nv_rcp_f32 v2, v3\ns_nop 0")
    for q in range(6): a(f"v_pk_mul_f32 {v(AO+2*q,2)}, {v(AO+2*q,2)}, v[2:3] op_sel_hi:[1,0]")
    for q in range(6): a(f"v_cvt_pk_bf16_f32 v{AS+q}, v{AO+2*q}, v{AO+2*q+1}")
    a(f"buffer_store_dwordx2 {v(AS,2)}, v11, {ws}, s56 offen {stf}\nbuffer_store_dwordx2 {v(AS+2,2)}, v11, {ws}, s56 offen offset:512 {stf}\nbuffer_store_dwordx2 {v(AS+4,2)}, v12, {ws}, s56 offen offset:1024 {stf}")
    if OPT.get("astamp"):
        LL = a.newlab("st"); a(f"s_cmp_eq_u32 s59, 0\ns_cbranch_scc0 {LL}"); stamp(a, 5 if OPT['astamp'] == 1 else 3); a.lab(LL)
    a(f"s_add_u32 s56, s56, {4*40960}\ns_add_u32 s59, s59, 1\ns_cmp_lt_u32 s59, 2\ns_cbranch_scc1 {L}")

def fin_tile(a, sdt, sst):
    a(f"s_and_b32 s{sdt}, s{SXCD}, 1\ns_lshl_b32 s{sdt}, s{sdt}, 2\ns_and_b32 s47, s{SJ}, 3\ns_add_u32 s{sdt}, s{sdt}, s47")
    a(f"s_lshr_b32 s{sst}, s{SXCD}, 1\ns_lshl_b32 s{sst}, s{sst}, 3\ns_lshr_b32 s47, s{SJ}, 2\ns_add_u32 s{sst}, s{sst}, s47")
def fin_resid_loads(a, sdt, sst, sw):
    a(f"s_lshl_b32 s65, s{sst}, 6\ns_lshl_b32 s68, s{sw}, 4\ns_add_u32 s65, s65, s68\ns_mul_i32 s74, s65, 1280\ns_mul_i32 s68, s{sdt}, 160\ns_add_u32 s74, s74, s68\ns_lshl_b32 s65, s65, 1")
    for k in range(3):
        a(f"v_add_u32 v2, {64*k}, v{VL}\nv_mul_u32_u24 v3, 205, v2\nv_lshrrev_b32 v3, 11, v3\nv_mul_u32_u24 v10, 1120, v3\nv_lshl_add_u32 v{207+k}, v2, 4, v10\nv_lshlrev_b32 v3, 1, v3")
        if k == 2: a(f"v_cmp_gt_u32 vcc, 32, v{VL}\nv_mov_b32 v10, {OOB}\ns_nop 0\nv_cndmask_b32 v209, v10, v209, vcc\nv_cndmask_b32 v3, v10, v3, vcc")
        a(f"buffer_load_dwordx4 {v(192+4*k,4)}, v{207+k}, {s(SX,4)}, s74 offen\nbuffer_load_ushort v{204+k}, v3, {s(SB2,4)}, s65 offen")
def mlp2_main(a, sdt, sst, sw, ringbase, ringstride, ldf, flag=None):
    a(f"s_mul_i32 s66, s{sw}, {ringstride}\ns_add_u32 s66, s66, {ringbase}")
    mlp_setup(a, SW2, 4096, 66, rot=sw)
    a(f"s_mul_i32 s67, s{sw}, 14\ns_cmp_eq_u32 s{sw}, 3\ns_cselect_b32 s67, 41, s67")
    a(f"s_lshl_b32 s{S_TO}, s67, 17\ns_lshl_b32 s65, s{sst}, 7\ns_add_u32 s{S_TO}, s{S_TO}, s65")
    a(f"s_mul_i32 s{S_DO}, s{sdt}, {54*5120}\ns_mul_i32 s65, s67, 5120\ns_add_u32 s{S_DO}, s{S_DO}, s65\ns_add_u32 s{S_DO}, s{S_DO}, {OFF_G}")
    lead_setup(a, sw, 75)
    a(f"s_mov_b32 s{S_CNT}, 3\ns_cmp_ge_u32 s{sw}, 2\ns_cselect_b32 s65, 3, 2")
    mlp_loop(a, 65, ldf, 75, flag)
WB, WA = 96, 196
def wo_bloads(a, sdt, skw, ldf):
    a(f"v_lshlrev_b32 v{MDIR}, 4, v{VL}\ns_mul_i32 s50, s{sdt}, 102400\ns_mul_i32 s51, s{skw}, {5*5120}\ns_add_u32 s50, s50, s51\ns_add_u32 s50, s50, {OFF_WOF}")
    for i in range(25):
        a(f"buffer_load_dwordx4 {v(WB+4*i,4)}, v{MDIR}, {s(SWS,4)}, s50 offen offset:{(i&3)*1024} {ldf}")
        if (i & 3) == 3: a("s_add_u32 s50, s50, 4096")
def wo_main(a, sst, skw, ldf):
    a(f"v_lshrrev_b32 v2, 4, v{VL}\nv_and_b32 v3, 15, v{VL}\nv_lshlrev_b32 v3, 3, v3\nv_lshl_add_u32 v8, v2, 9, v3")
    a(f"s_mul_i32 s50, s{sst}, 81920\ns_mul_i32 s51, s{skw}, {5*2048}\ns_add_u32 s50, s50, s51\ns_add_u32 s50, s50, {OFF_O}")
    for i in range(4):
        a(f"s_xor_b32 s51, s{skw}, {i}\ns_lshr_b32 s56, s51, 1\ns_mul_i32 s56, s56, 40960\ns_and_b32 s51, s51, 1\ns_lshl_b32 s51, s51, 7\ns_add_u32 s51, s51, s56\ns_add_u32 s{52+i}, s50, s51")
    def aload(st):
        for i in range(4):
            for e in range(2): a(f"buffer_load_dwordx2 {v(WA+16*(st%3)+4*i+2*e,2)}, v8, {s(SWS,4)}, s{52+i} offen offset:{(st&1)*2048+e*256} {ldf}")
            if st & 1: a(f"s_add_u32 s{52+i}, s{52+i}, 4096")
    for st in range(3): aload(st)
    for st in range(5):
        a(f"s_waitcnt vmcnt({8*min(2, 4-st)})")
        for db in range(5):
            for i in range(4):
                acc = v(MACC+(i*5+db)*4, 4)
                a(f"v_mfma_f32_16x16x32_bf16 {acc}, {v(WA+16*(st%3)+4*i,4)}, {v(WB+20*st+4*db,4)}, {'0' if st == 0 else acc}")
        if st + 3 < 5: aload(st+3)
def fin_write(a, sbase, first):
    a(f"v_add_u32 v10, s{sbase}, v{MDIR}\ns_nop 7")
    for t in range(first, 20): a(f"ds_write_b128 v10, {v(MACC+4*t,4)} offset:{(t-first)*1024}")
    a("s_waitcnt lgkmcnt(0)")
def fin_epi(a, sw, xbase, xstride, ybase, ystride):
    for i in range(1, 4):
        a(f"s_xor_b32 s65, s{sw}, {i}\ns_mul_i32 s65, s65, {xstride}\ns_add_u32 s65, s65, {xbase+(i-1)*5120}\nv_add_u32 v10, s65, v{MDIR}")
        for db in range(5): a(f"ds_read_b128 {v(16+20*i+4*db,4)}, v10 offset:{db*1024}")
    for i in range(4):
        a(f"s_xor_b32 s65, s{sw}, {i}\ns_mul_i32 s65, s65, {ystride}\ns_add_u32 s65, s65, {ybase+i*5120}\nv_add_u32 v10, s65, v{MDIR}")
        if i == 0: a("s_mov_b32 s66, s65")
        for db in range(5): a(f"ds_read_b128 {v(96+20*i+4*db,4)}, v10 offset:{db*1024}")
        if i == 1: a("s_waitcnt lgkmcnt(10)")
    for i in range(1, 8):
        if i == 4: a("s_waitcnt lgkmcnt(0)")
        for q in range(10): a(f"v_pk_add_f32 {v(16+2*q,2)}, {v(16+2*q,2)}, {v(16+20*i+2*q,2)}")
    a(f"v_lshrrev_b32 v2, 4, v{VL}\nv_mul_u32_u24 v2, 1280, v2\nv_and_b32 v3, 15, v{VL}\nv_lshl_add_u32 v2, v3, 2, v2\nv_add_u32 v2, s66, v2\nv_lshlrev_b32 v3, 5, v{VL}\nv_add_u32 v3, s66, v3")
    for db in range(5):
        for r in range(4): a(f"ds_write_b32 v2, v{16+4*db+r} offset:{r*320+db*64}")
    a("s_waitcnt lgkmcnt(0)")
    for k in range(3): a(f"ds_read_b128 {v(40+8*k,4)}, v3 offset:{k*2048}\nds_read_b128 {v(44+8*k,4)}, v3 offset:{k*2048+16}")
    for k in range(3):
        a(f"v_lshlrev_b32 v{204+k}, 16, v{204+k}")
        for q in range(4): a(f"v_lshlrev_b32 v{64+8*k+2*q}, 16, v{192+4*k+q}\nv_and_b32 v{65+8*k+2*q}, 0xffff0000, v{192+4*k+q}")
        for q in range(8): a(f"v_add_f32 v{64+8*k+q}, v{64+8*k+q}, v{204+k}")
    for k in range(3):
        a(f"s_waitcnt lgkmcnt({4-2*k})")
        for q in range(4): a(f"v_pk_add_f32 {v(40+8*k+2*q,2)}, {v(40+8*k+2*q,2)}, {v(64+8*k+2*q,2)}")
        for q in range(4): a(f"v_cvt_pk_bf16_f32 v{96+4*k+q}, v{40+8*k+2*q}, v{41+8*k+2*q}")
        a(f"buffer_store_dwordx4 {v(96+4*k,4)}, v{207+k}, {s(SOUT,4)}, s74 offen")
```

```python
import sys
import blocks
from blocks import *
NAME = "parallel_sum__sliding_block__mixer_token_mlp__prompt_kernel"
LDS = 163840
L_LN = 131072
L_ST = 147456
L_CSP = L_ST + 1536
OFF_CSP = 0xA000
L_CNT = LDS - 64
C_QA, C_AGO, C_AK, C_OA, C_MP, C_GA, C_W1, C_W2, C_GGO, C_OGO, C_AV = [L_CNT + 4*i for i in range(11)]
M1BASE, M1STR = 65536, 20480
G_Q, G_O, G_G, G_W = OFF_FLAG, OFF_FLAG + 16*128, OFF_FLAG + 24*128, OFF_FLAG + 32*128
NCTR = 33
OFF_O1, OFF_O2 = OFF_O, OFF_O + 0x200000
ST, LD = "sc1", "sc1"
SM, SN, SROLE, SDT1, SFT, SHAS1, SDT3, SST, SHD, SBQ, SKW = 76, 77, 78, 79, 80, 81, 82, 83, 48, 49, 75

def arrive(a, lcnt, n, goff_sgpr, srd=SWS):
    L = a.newlab("arr")
    a(f"s_waitcnt vmcnt(0)\nv_mov_b32 v2, {lcnt}\nv_mov_b32 v3, 1\ns_mov_b64 exec, 1\nds_add_rtn_u32 v14, v2, v3\ns_waitcnt lgkmcnt(0)\nv_readfirstlane_b32 s60, v14\ns_cmp_lg_u32 s60, {n-1}\ns_cbranch_scc1 {L}")
    a(f"buffer_atomic_add v3, off, {s(srd,4)}, s{goff_sgpr} sc1")
    a.lab(L)
    a("s_mov_b64 exec, -1")
def lds_wait(a, addr, n):
    L = a.newlab("lw")
    a(f"v_mov_b32 v2, {addr}\ns_mov_b32 s47, 0x80000")
    a.lab(L)
    a(f"ds_read_b32 v3, v2\ns_sub_u32 s47, s47, 1\ns_cbranch_scc1 {L}x\ns_waitcnt lgkmcnt(0)\nv_readfirstlane_b32 s60, v3\ns_cmp_lt_u32 s60, {n}\ns_cbranch_scc1 {L}")
    a.lab(L + "x")
def lds_set(a, addr):
    a(f"v_mov_b32 v2, {addr}\nv_mov_b32 v3, 1\nds_write_b32 v2, v3")
def gpoll(a, vaddr, srd, soff, target, nl, vd=3):
    L = a.newlab("gp")
    a(f"s_mov_b64 exec, {(1<<nl)-1}\ns_mov_b32 s47, 0x8000")
    a.lab(L)
    a(f"buffer_load_dword v{vd}, v{vaddr}, {s(srd,4)}, {soff} offen sc1\ns_sub_u32 s47, s47, 1\ns_cbranch_scc1 {L}x\ns_waitcnt vmcnt(0)\nv_cmp_ne_u32 vcc, {target}, v{vd}\ns_cbranch_vccz {L}x\ns_sleep {OPT.get('slp', 4)}\ns_branch {L}")
    a.lab(L + "x")
    a("s_mov_b64 exec, -1")
def c1_poll(a):
    a(f"v_lshlrev_b32 v2, 6, v{VL}")
    gpoll(a, 2, SDBG, 0, 64, 4)

def ids(a):
    x, j = SXCD, SJ
    a(f"s_and_b32 s50, s{x}, 1\ns_mul_i32 s51, s50, 30\ns_add_u32 s51, s51, s{j}\ns_lshr_b32 s{SN}, s51, 2\ns_and_b32 s51, s51, 3\ns_lshr_b32 s52, s{x}, 1\ns_lshl_b32 s{SM}, s52, 2\ns_add_u32 s{SM}, s{SM}, s51")
def ids_late(a):
    x, j = SXCD, SJ
    a(f"s_and_b32 s56, s{x}, 1\ns_lshl_b32 s56, s56, 2\ns_lshr_b32 s58, s{x}, 1")
    a(f"s_mul_i32 s57, s58, 27\ns_add_u32 s57, s57, s{j}\ns_lshr_b32 s{SFT}, s57, 2\ns_and_b32 s57, s57, 3\ns_add_u32 s{SDT1}, s56, s57")
    a(f"s_and_b32 s57, s{j}, 3\ns_add_u32 s{SDT3}, s56, s57\ns_lshl_b32 s58, s58, 3\ns_lshr_b32 s57, s{j}, 2\ns_add_u32 s{SST}, s58, s57")

def ln_issue(a):
    a(f"s_lshr_b32 s50, s{SXCD}, 1\ns_lshl_b32 s50, s50, 6\ns_and_b32 s51, s{SXCD}, 1\ns_lshl_b32 s51, s51, 5\ns_add_u32 s50, s50, s51\ns_add_u32 s50, s50, s{SJ}")
    a(f"s_lshr_b32 s51, s50, 2\ns_and_b32 s52, s50, 3\ns_lshl_b32 s53, s51, 5\ns_lshl_b32 s54, s52, 2\ns_add_u32 s53, s53, s54")
    a(f"s_lshr_b32 s54, s{SWAVE}, 1\ns_lshl_b32 s54, s54, 4\ns_add_u32 s53, s53, s54\ns_and_b32 s54, s{SWAVE}, 1\ns_lshl_b32 s54, s54, 1\ns_add_u32 s53, s53, s54")
    rows_load(a, SX, SWAVE, 53, 54)
    a(f"s_mul_i32 s55, s51, 5120\ns_lshl_b32 s52, s52, 8\ns_add_u32 s55, s55, s52\ns_add_u32 s55, s55, {OFF_H}")
def init_counters(a):
    L = a.newlab("ic")
    a(f"s_cmp_lg_u32 s{SWAVE}, 0\ns_cbranch_scc1 {L}")
    a(f"v_and_b32 v6, 15, v{VL}\nv_lshlrev_b32 v6, 2, v6\nv_add_u32 v6, {L_CNT}, v6\nv_mov_b32 v7, 0\nds_write_b32 v6, v7")
    a(f"s_cmp_ge_u32 s2, {NCTR}\ns_cbranch_scc1 {L}\ns_lshl_b32 s56, s2, 7\ns_add_u32 s56, s56, {OFF_FLAG}\ns_mov_b64 exec, 1\nbuffer_store_dword v7, off, {s(SWS,4)}, s56 sc1\ns_mov_b64 exec, -1")
    a.lab(L)
def c1_arrive(a):
    a(f"s_and_b32 s56, s2, 3\ns_lshl_b32 s56, s56, 6\nv_mov_b32 v15, 1\ns_mov_b64 exec, 1\nbuffer_atomic_add v15, off, {s(SDBG,4)}, s56 sc1\ns_mov_b64 exec, -1")

def loader(a):
    st = 48
    lw, sxo, swo, sm0, t, ko = st, st+1, st+2, st+3, st+4, st+5
    a(f"s_sub_u32 s{lw}, s{SWAVE}, 4")
    a(f"v_lshrrev_b32 v2, 3, v{VL}\nv_mul_u32_u24 v2, 1280, v2\nv_and_b32 v3, 7, v{VL}\nv_lshrrev_b32 v4, 4, v{VL}\nv_xor_b32 v3, v3, v4\nv_lshl_add_u32 v210, v3, 4, v2\nv_xor_b32 v211, 64, v210")
    a(f"v_mul_u32_u24 v2, 3840, v4\nv_bfe_u32 v3, v{VL}, 2, 2\nv_xor_b32 v3, v3, v4\nv_lshl_add_u32 v2, v3, 6, v2\nv_and_b32 v3, 3, v{VL}\nv_lshl_add_u32 v212, v3, 4, v2")
    a(f"s_lshl_b32 s{sxo}, s{SM}, 7\ns_lshl_b32 s{t}, s{lw}, 5\ns_add_u32 s{sxo}, s{sxo}, s{t}\ns_mul_i32 s{sxo}, s{sxo}, 1280")
    a(f"s_mul_i32 s{swo}, s{lw}, {16*3840}\ns_lshl_b32 s{t}, s{SN}, 8\ns_add_u32 s{swo}, s{swo}, s{t}")
    a(f"s_lshl_b32 s{sm0}, s{lw}, 12")
    rot = 2
    if rot:
        a(f"s_and_b32 s{ko}, s{SM}, 3\ns_lshl_b32 s{ko}, s{ko}, 1\ns_add_u32 s{ko}, s{ko}, s{SN}")
        if rot > 1: a(f"s_lshr_b32 s{t}, s{SM}, 2\ns_mul_i32 s{t}, s{t}, 3\ns_add_u32 s{ko}, s{ko}, s{t}")
        a(f"s_mul_i32 s{t}, s{ko}, 26\ns_lshr_b32 s{t}, s{t}, 8\ns_mul_i32 s{t}, s{t}, 10\ns_sub_u32 s{ko}, s{ko}, s{t}")
        a(f"s_lshl_b32 s{t}, s{ko}, 7\ns_add_u32 s{sxo}, s{sxo}, s{t}\ns_mul_i32 s{t}, s{ko}, 245760\ns_add_u32 s{swo}, s{swo}, s{t}")
    def stage():
        a(f"s_mov_b32 m0, s{sm0}\ns_mov_b32 s{t}, s{sxo}")
        for i in range(4):
            a(f"buffer_load_dwordx4 v{210+(i&1)}, {s(SX,4)}, s{t} offen offset:{i*1024} lds")
            if i < 3: a(f"s_add_u32 s{t}, s{t}, 9216")
        a(f"s_add_u32 m0, s{sm0}, 16384\ns_mov_b32 s{t}, s{swo}")
        for i in range(4):
            a(f"buffer_load_dwordx4 v212, {s(SWQ,4)}, s{t} offen offset:{i*1024} lds")
            if i < 3: a(f"s_add_u32 s{t}, s{t}, 14336")
        a(f"s_add_u32 s{sm0}, s{sm0}, 0x8000\ns_and_b32 s{sm0}, s{sm0}, 0x1ffff\ns_add_u32 s{sxo}, s{sxo}, 128\ns_add_u32 s{swo}, s{swo}, 245760")
        if rot: a(f"s_add_u32 s{ko}, s{ko}, 1\ns_cmp_eq_u32 s{ko}, 10\ns_cselect_b32 s{t}, 1280, 0\ns_sub_u32 s{sxo}, s{sxo}, s{t}\ns_cmp_eq_u32 s{ko}, 10\ns_cselect_b32 s{t}, 2457600, 0\ns_sub_u32 s{swo}, s{swo}, s{t}")
    a(f"s_mul_i32 s59, s{SN}, 5120\ns_lshl_b32 s{t}, s{ko}, 9\ns_add_u32 s59, s59, s{t}\ns_lshl_b32 s{t}, s{lw}, 7\ns_add_u32 s59, s59, s{t}\ns_add_u32 s59, s59, {OFF_CSP}")
    a("s_setprio 3"); stage(); a("s_setprio 1"); stage()
    stamp(a, 1)
    ids_late(a)
    a(f"s_cmp_lt_u32 s{SJ}, 27\ns_cselect_b32 s{SHAS1}, 1, 0\ns_mov_b32 s{SKW}, s{lw}")
    a(f"s_lshl_b32 s54, s{lw}, 12\ns_add_u32 s54, s54, 16384\nv_lshlrev_b32 v2, 4, v{VL}\nv_add_u32 v2, s54, v2")
    a(f"v_lshrrev_b32 v4, 4, v{VL}\nv_bfe_u32 v3, v{VL}, 2, 2\nv_xor_b32 v3, v3, v4\nv_lshlrev_b32 v3, 7, v3\nv_and_b32 v5, 3, v{VL}\nv_lshl_add_u32 v3, v5, 5, v3\nv_lshl_add_u32 v3, v4, 9, v3\ns_lshl_b32 s54, s{lw}, 11\ns_add_u32 s54, s54, {L_CSP}\nv_add_u32 v3, s54, v3")
    a(f"v_and_b32 v5, 31, v{VL}\nv_lshlrev_b32 v5, 2, v5\nv_lshrrev_b32 v6, 5, v{VL}\nv_lshl_add_u32 v6, v6, 12, v5\ns_lshl_b32 s54, s{lw}, 7\ns_add_u32 s54, s54, {L_CSP}\nv_add_u32 v6, s54, v6")
    a("s_waitcnt vmcnt(8)")
    for i in range(4): a(f"ds_read_b128 {v(32+4*i,4)}, v2 offset:{i*1024}")
    for i in range(4):
        a(f"s_waitcnt lgkmcnt({3-i})")
        for c in range(4):
            if i == 0: a(f"v_lshlrev_b32 v{16+2*c}, 16, v{32+c}\nv_and_b32 v{17+2*c}, 0xffff0000, v{32+c}")
            else: a(f"v_lshlrev_b32 v24, 16, v{32+4*i+c}\nv_and_b32 v25, 0xffff0000, v{32+4*i+c}\nv_pk_add_f32 {v(16+2*c,2)}, {v(16+2*c,2)}, v[24:25]")
    a("ds_write_b128 v3, v[16:19]\nds_write_b128 v3, v[20:23] offset:16\ns_waitcnt lgkmcnt(0)\ns_barrier")
    for k in range(8): a(f"ds_read_b32 v{16+k}, v6 offset:{k*512}")
    stage()
    a("s_waitcnt lgkmcnt(0)")
    for k in range(1, 8): a(f"v_add_f32 v16, v16, v{16+k}")
    a(f"v_mov_b32 v17, v16\ns_nop 1\nv_permlane32_swap_b32 v16, v17\nv_add_f32 v16, v16, v17\ns_mov_b32 exec_hi, 0\nbuffer_store_dword v16, v5, {s(SWS,4)}, s59 offen sc1\ns_mov_b64 exec, -1")
    a("s_waitcnt vmcnt(9)\ns_barrier"); stage(); stage()
    a("s_mov_b32 s54, 0")
    L = a.newlab("ldl")
    a.lab(L)
    a("s_waitcnt vmcnt(16)\ns_barrier"); stage()
    a(f"s_add_u32 s54, s54, 1\ns_cmp_lt_u32 s54, 5\ns_cbranch_scc1 {L}")
    oth = a.newlab("c1o"); ok = a.newlab("c1ok")
    a(f"s_cmp_lg_u32 s{lw}, 0\ns_cbranch_scc1 {oth}")
    a(f"v_lshlrev_b32 v2, 6, v{VL}\ns_mov_b64 exec, 15\nbuffer_load_dword v3, v2, {s(SDBG,4)}, 0 offen sc1\ns_mov_b64 exec, -1")
    a("s_waitcnt vmcnt(17)\ns_barrier\ns_waitcnt vmcnt(9)\ns_barrier")
    a(f"s_waitcnt vmcnt(0)\ns_mov_b64 exec, 15\nv_cmp_ne_u32 vcc, 64, v3\ns_mov_b64 exec, -1\ns_cbranch_vccz {ok}")
    c1_poll(a)
    a(f"s_branch {ok}")
    a.lab(oth)
    a("s_waitcnt vmcnt(16)\ns_barrier\ns_waitcnt vmcnt(8)\ns_barrier\ns_waitcnt vmcnt(0)")
    a.lab(ok)
    a("s_barrier")
    nst = a.newlab("nst"); cs = a.newlab("ncs")
    a(f"v_lshlrev_b32 v2, 4, v{VL}\ns_cmp_eq_u32 s{lw}, 3\ns_cbranch_scc1 {nst}\ns_cmp_eq_u32 s{lw}, 2\ns_cbranch_scc1 {cs}")
    a(f"s_lshl_b32 s54, s{SM}, 9\ns_lshl_b32 s55, s{lw}, 13\ns_add_u32 s54, s54, s55")
    a(f"s_lshl_b32 s55, s{lw}, 9\ns_add_u32 m0, s55, {L_ST}\ns_mov_b32 exec_hi, 0\nbuffer_load_dwordx4 v2, {s(SWS,4)}, s54 offen sc1 lds\ns_mov_b64 exec, -1\ns_branch {nst}")
    a.lab(cs)
    a(f"s_mul_i32 s54, s{SN}, 5120\ns_add_u32 s54, s54, {OFF_CSP}\ns_add_u32 s55, s54, 4096")
    for k in range(5): a(f"buffer_load_dwordx4 {v(216+4*k,4)}, v2, {s(SWS,4)}, s{54 if k < 4 else 55} offen offset:{(k&3)*1024} sc1")
    a.lab(nst)
def loader_fin(a, n):
    sk = a.newlab("lf")
    a(f"s_waitcnt vmcnt({n})\ns_cmp_lg_u32 s{SKW}, 2\ns_cbranch_scc1 {sk}")
    for k in range(1, 5):
        for q in range(2): a(f"v_pk_add_f32 {v(216+2*q,2)}, {v(216+2*q,2)}, {v(216+4*k+2*q,2)}")
    for q in range(4): a(f"v_mov_b32 v{220+q}, v{216+q}")
    a(f"v_and_b32 v2, 31, v{VL}\nv_lshlrev_b32 v2, 4, v2")
    for q in range(4): a(f"v_permlane32_swap_b32 v{216+q}, v{220+q}")
    for q in range(2): a(f"v_pk_add_f32 {v(216+2*q,2)}, {v(216+2*q,2)}, {v(220+2*q,2)}")
    a(f"v_add_u32 v2, {L_ST+1024}, v2\nds_write_b128 v2, v[216:219]\ns_waitcnt lgkmcnt(0)")
    a.lab(sk)
    a("s_barrier")

def qkv_epi_lds(a, vori):
    a(f"s_lshl_b32 s50, s{SM}, 7\ns_lshl_b32 s51, s48, 6\ns_add_u32 s50, s50, s51")
    a(f"s_lshl_b32 s53, s{SN}, 7\ns_lshl_b32 s54, s49, 6\ns_add_u32 s53, s53, s54")
    a(f"s_lshl_b32 s51, s48, 8\ns_add_u32 s51, s51, {L_ST}\ns_lshl_b32 s54, s49, 8\ns_add_u32 s54, s54, {L_ST+1024}")
    a(f"v_and_b32 v2, 31, v{VL}\nv_lshrrev_b32 v3, 5, v{VL}\nv_lshlrev_b32 v4, 2, v2\nv_lshlrev_b32 v5, 4, v3")
    if not vori:
        a("v_add_u32 v4, s51, v4\nv_add_u32 v5, s54, v5")
        for i in range(2): a(f"ds_read_b32 v{128+2*i}, v4 offset:{i*128}\nds_read_b32 v{132+2*i}, v4 offset:{512+i*128}")
        for k in range(8): a(f"ds_read_b128 {v(136+4*k,4)}, v5 offset:{k*32}")
    else:
        a("v_add_u32 v4, s54, v4\nv_add_u32 v5, s51, v5")
        for cf in range(2): a(f"ds_read_b32 v{128+2*cf}, v4 offset:{cf*128}")
        for k in range(8): a(f"ds_read_b128 {v(136+4*k,4)}, v5 offset:{k*32}\nds_read_b128 {v(168+4*k,4)}, v5 offset:{512+k*32}")
    a("s_waitcnt lgkmcnt(0)")

def consumer_loop(a, vori):
    L = a.newlab("qloop"); last = a.newlab("qlast"); pub = a.newlab("qpub"); back = a.newlab("qback"); pfl = a.newlab("qpf"); pfb = a.newlab("qpfb")
    for w in ("x0", "w0", "w1", "x1"): qkv_rd(a, 0, 0, 0, w)
    a("s_mov_b32 s50, 0")
    a(".p2align 3")
    a.lab(L)
    for slot in range(2):
        for ks in range(4):
            buf = ks & 1; nb = buf ^ 1
            if ks < 3:
                a("s_waitcnt lgkmcnt(3)"); qkv_mf(a, buf, vori, 0, 0); qkv_rd(a, ks+1, nb, slot, "x0"); qkv_rd(a, ks+1, nb, slot, "w0")
                a("s_waitcnt lgkmcnt(4)"); qkv_mf(a, buf, vori, 0, 1); qkv_rd(a, ks+1, nb, slot, "w1")
                a("s_waitcnt lgkmcnt(5)"); qkv_mf(a, buf, vori, 1, 0); qkv_rd(a, ks+1, nb, slot, "x1")
                qkv_mf(a, buf, vori, 1, 1)
            else:
                a("s_waitcnt lgkmcnt(3)"); qkv_mf(a, buf, vori, 0, 0)
                if slot == 1:
                    a(f"s_cmp_eq_u32 s50, 4\ns_cbranch_scc1 {last}")
                    for r in range(8, 14): a(f"v_xor_b32 v{r}, 0x10000, v{r}")
                    a(f"s_cmp_eq_u32 s50, 0\ns_cbranch_scc1 {pub}\ns_waitcnt lgkmcnt(0)\ns_barrier")
                    a.lab(back)
                else:
                    a(f"s_cmp_eq_u32 s50, s64\ns_cbranch_scc1 {pfl}")
                    a.lab(pfb)
                    a("s_waitcnt lgkmcnt(0)\ns_barrier")
                ns = slot ^ 1
                qkv_rd(a, 0, nb, ns, "x0"); qkv_rd(a, 0, nb, ns, "w0")
                qkv_mf(a, buf, vori, 0, 1); qkv_rd(a, 0, nb, ns, "w1")
                qkv_mf(a, buf, vori, 1, 0); qkv_rd(a, 0, nb, ns, "x1")
                qkv_mf(a, buf, vori, 1, 1)
    a(f"s_add_u32 s50, s50, 1\ns_branch {L}")
    a.lab(pub)
    a(f"s_waitcnt vmcnt(0) lgkmcnt(0)\ns_barrier\ns_cmp_lg_u32 s{SWAVE}, 0\ns_cbranch_scc1 {back}")
    c1_arrive(a)
    a(f"s_branch {back}")
    a.lab(pfl)
    a(f"s_setprio 3\ns_mov_b32 exec_hi, 0\nbuffer_load_dword v255, v14, {s(SW1,4)}, s65 offen\ns_mov_b64 exec, -1\ns_setprio 0\ns_branch {pfb}")
    a.lab(last)
    a("s_waitcnt lgkmcnt(0)")
    qkv_mf(a, 1, vori, 0, 1); qkv_mf(a, 1, vori, 1, 0); qkv_mf(a, 1, vori, 1, 1)
    a("s_barrier")

NB1, NB2 = 16*56, 14*64
def prefetch(a, sid, nw, n0, n1):
    L = a.newlab("pf"); w2 = a.newlab("pfw"); nx = a.newlab("pfn"); done = a.newlab("pfd")
    a(f"v_lshlrev_b32 v4, 7, v{VL}\ns_add_u32 s50, s{sid}, {n0}")
    a.lab(L)
    a(f"s_cmp_ge_u32 s50, {n1}\ns_cbranch_scc1 {done}\ns_cmp_ge_u32 s50, {NB1}\ns_cbranch_scc1 {w2}")
    a(f"s_mul_i32 s51, s50, 1171\ns_lshr_b32 s51, s51, 16\ns_mul_i32 s52, s51, 56\ns_sub_u32 s52, s50, s52")
    a(f"s_mul_i32 s53, s52, 37\ns_lshr_b32 s53, s53, 9\ns_mul_i32 s54, s53, 14\ns_sub_u32 s52, s52, s54")
    a(f"s_lshl_b32 s53, s53, 4\ns_add_u32 s51, s51, s53\ns_mul_i32 s51, s51, 110592\ns_lshl_b32 s52, s52, 13\ns_add_u32 s51, s51, s52")
    a(f"buffer_load_dword v5, v4, {s(SW1,4)}, s51 offen\ns_branch {nx}")
    a.lab(w2)
    a(f"s_sub_u32 s51, s50, {NB1}\ns_lshr_b32 s52, s51, 6\ns_bfe_u32 s53, s51, 0x20004\ns_and_b32 s51, s51, 15")
    a(f"s_mul_i32 s54, s53, 14\ns_cmp_eq_u32 s53, 3\ns_cselect_b32 s54, 41, s54\ns_add_u32 s52, s52, s54\ns_lshl_b32 s52, s52, 4\ns_add_u32 s51, s51, s52\ns_lshl_b32 s51, s51, 13")
    a(f"buffer_load_dword v5, v4, {s(SW2,4)}, s51 offen")
    a.lab(nx)
    a(f"s_add_u32 s50, s50, {nw}\ns_branch {L}")
    a.lab(done)

def wof(a):
    a(f"s_mul_i32 s61, s{SXCD}, 5\ns_add_u32 s61, s61, s{SJ}\ns_sub_u32 s61, s61, 27\ns_lshl_b32 s61, s61, 1")
    for g in range(2):
        a(f"s_add_u32 s50, s61, {g}\ns_lshr_b32 s51, s50, 2\ns_and_b32 s52, s50, 3\ns_mul_i32 s53, s51, 52\ns_lshr_b32 s53, s53, 8\ns_mul_i32 s54, s53, 5\ns_sub_u32 s54, s51, s54")
        a(f"s_lshl_b32 s56, s53, 4\ns_lshl_b32 s57, s54, 2\ns_add_u32 s56, s56, s57\ns_add_u32 s56, s56, s52")
        a(f"s_lshr_b32 s57, s56, 1\ns_mul_i32 s57, s57, 20\ns_and_b32 s56, s56, 1\ns_lshl_b32 s56, s56, 2\ns_add_u32 s56, s56, s57")
        a(f"s_lshl_b32 s57, s53, 3\ns_lshl_b32 s58, s52, 1\ns_add_u32 s57, s57, s58\ns_mul_i32 s57, s57, 20\ns_add_u32 s57, s57, 16")
        a(f"s_cmp_eq_u32 s54, 4\ns_cselect_b32 s56, s57, s56\ns_cselect_b32 s57, 20, 8\ns_cmp_ge_u32 s{SKW}, 2\ns_cselect_b32 s57, s57, 0\ns_add_u32 s56, s56, s57")
        a(f"s_and_b32 s57, s{SKW}, 1\ns_lshl_b32 s57, s57, 1\ns_add_u32 s53, s56, s57")
        rows_load(a, SWO, SKW, 53, 54)
        a(f"s_mul_i32 s55, s51, 5120\ns_lshl_b32 s52, s52, 8\ns_add_u32 s55, s55, s52\ns_add_u32 s55, s55, {OFF_WOF}\ns_waitcnt vmcnt(0)")
        rows_to_lds(a, SKW, M1BASE + g*16384, 54)
        lds_sync(a, C_MP, 4*(g+1))
        rows_tr_store(a, SKW, M1BASE + g*16384, 55, 102400, 54, ST)
    a(f"s_mov_b32 s61, {G_W}")
    arrive(a, C_W1, 4, 61)

def attn_setup(a):
    pass
def attn2(a):
    ws = s(SWS, 4); w = SWAVE; shd, sb = SHD, SBQ
    KB, VB = 0, 20480
    attn_ids(a, shd, sb)
    a(f"s_lshl_b32 s50, s{sb}, 3\ns_sub_u32 s51, s50, 8\ns_cmp_eq_u32 s{sb}, 0\ns_cselect_b32 s52, 0, s51\ns_cmp_ge_u32 s{w}, 2\ns_cselect_b32 s51, s51, s52\ns_lshl_b32 s52, s{w}, 2\ns_add_u32 s51, s51, s52\ns_mul_i32 s51, s51, 40960")
    attn_masks(a)
    a(f"v_and_b32 v2, 31, v{VL}\nv_lshrrev_b32 v3, 5, v{VL}\nv_lshlrev_b32 v4, 3, v2\nv_lshl_add_u32 v5, v3, 9, v4\nv_mov_b32 v6, {OOB}\nv_cmp_eq_u32 vcc, 0, v3\ns_nop 1\nv_cndmask_b32 v6, v6, v4, vcc")
    a(f"s_add_u32 s52, s50, s{w}\ns_mul_i32 s53, s52, 40960\ns_mul_i32 s54, s{shd}, 1280\ns_add_u32 s53, s53, s54\ns_add_u32 s62, s53, {OFF_Q}\ns_add_u32 s63, s62, {4*40960}")
    a(f"s_lshl_b32 s56, s52, 15\ns_lshl_b32 s53, s{shd}, 10\ns_add_u32 s56, s56, s53\ns_add_u32 s56, s56, {OFF_O1}")
    a(f"s_lshl_b32 s61, s52, 13\ns_lshl_b32 s53, s{shd}, 8\ns_add_u32 s61, s61, s53\ns_add_u32 s61, s61, {OFF_O2}")
    a(f"s_add_u32 s64, s54, s51\ns_add_u32 s64, s64, {OFF_K}\ns_mov_b32 s55, 39680")
    for i in range(5):
        a(f"v_add_u32 v{16+i}, {64*i}, v{VL}\nv_mul_u32_u24 v{16+i}, 205, v{16+i}\nv_lshrrev_b32 v{16+i}, 14, v{16+i}\nv_mul_u32_u24 v{16+i}, s55, v{16+i}\nv_lshl_add_u32 v{16+i}, v{VL}, 4, v{16+i}")
    a("v_add_u32 v20, 4096, v20")
    a(f"v_mul_u32_u24 v7, 49, v{VL}\nv_lshrrev_b32 v7, 10, v7\nv_mul_u32_u24 v7, {10240-336}, v7\nv_lshl_add_u32 v7, v{VL}, 4, v7")
    a(f"s_mul_i32 s65, s{shd}, 320\ns_add_u32 s65, s65, s51\ns_add_u32 s65, s65, {OFF_V}\ns_mul_i32 s54, s{w}, 5376\ns_add_u32 s54, s54, {VB}\ns_mul_i32 s66, s{w}, 5120")
    a(f"s_mul_i32 s53, s{w}, 1280\ns_add_u32 s53, s53, {KB}\nv_add_u32 v8, s53, v5\nv_add_u32 v9, s53, v4")
    a(f"v_min_u32 v10, 20, v2\nv_cmp_lt_u32 vcc, 27, v2\nv_mul_u32_u24 v13, 336, v3\ns_nop 0\nv_cndmask_b32_e64 v10, v10, 4, vcc")
    a(f"s_mul_i32 s53, s{w}, 1344\ns_add_u32 s53, s53, {VB}\nv_lshl_add_u32 v10, v10, 4, v13\nv_add_u32 v10, s53, v10")
    a(f"v_lshlrev_b32 v11, 4, v2\nv_lshl_add_u32 v11, v3, 9, v11\nv_mov_b32 v12, v6")
    a(f"v_and_b32 v13, 15, v{VL}\nv_mul_u32_u24 v13, 336, v13\nv_add_u32 v13, s54, v13")
    a("v_mov_b32 v24, 0x3f803f80\nv_mov_b32 v25, v24\nv_mov_b32 v26, v24\nv_mov_b32 v27, v24")
    a(f"s_sub_u32 s57, 8, s{w}\ns_cmp_eq_u32 s{sb}, 0\ns_cselect_b32 s57, s57, 0\ns_cselect_b32 s58, 4, 0")
    stamp(a, 4)
    oth = a.newlab("aw"); go = a.newlab("ag")
    a(f"s_cmp_lg_u32 s{w}, 0\ns_cbranch_scc1 {oth}")
    lds_wait(a, C_QA, 4)
    a(f"s_lshl_b32 s53, s{sb}, 1\ns_sub_u32 s53, s53, 2\nv_add_u32 v2, s53, v{VL}\nv_max_i32 v2, 0, v2\nv_lshlrev_b32 v2, 7, v2\ns_mov_b32 s53, {G_Q}")
    gpoll(a, 2, SWS, "s53", 15, 4)
    lds_set(a, C_AGO)
    a(f"s_branch {go}")
    a.lab(oth)
    lds_wait(a, C_AGO, 1)
    a.lab(go)
    stamp(a, 5)
    a(f"s_mov_b32 m0, s66")
    a(f"buffer_load_dwordx2 {v(AQ,2)}, v5, {ws}, s62 offen {LD}\nbuffer_load_dwordx2 {v(AQ+2,2)}, v5, {ws}, s62 offen offset:256 {LD}\nbuffer_load_dwordx2 {v(AQ+4,2)}, v6, {ws}, s62 offen offset:1024 {LD}")
    for i in range(5):
        if i == 4: a(f"s_add_u32 m0, s66, 4096\ns_nop 0")
        a(f"buffer_load_dwordx4 v{16+i}, {ws}, s64 offen offset:{(i&3)*1024} {LD} lds")
    for k in range(6):
        a(f"s_add_u32 m0, s54, {k*1008}")
        a("s_mov_b64 exec, 0x1fffff" if k == 5 else "s_nop 0")
        a(f"buffer_load_dwordx4 v7, {ws}, s65 offen {LD} lds\ns_add_u32 s65, s65, 30720")
    a("s_mov_b64 exec, -1")
    a(f"buffer_load_dwordx2 {v(AQ+6,2)}, v5, {ws}, s63 offen {LD}\nbuffer_load_dwordx2 {v(AQ+8,2)}, v5, {ws}, s63 offen offset:256 {LD}\nbuffer_load_dwordx2 {v(AQ+10,2)}, v6, {ws}, s63 offen offset:1024 {LD}")
    a(f"s_setprio {OPT.get('prioa', 0)}\ns_waitcnt vmcnt(9)")
    lds_sync(a, C_AK, 4)
    a("s_mov_b32 s59, 0")
    L = a.newlab("atask"); vw = a.newlab("avw"); vwb = a.newlab("avb")
    inv = [a.newlab("inv") for _ in range(8)]; invb = [a.newlab("invb") for _ in range(8)]
    a(".p2align 3")
    a.lab(L)
    def kread(p):
        b = AK + 6*(p % 3)
        a(f"ds_read_b64 {v(b,2)}, v8 offset:{p*1280}\nds_read_b64 {v(b+2,2)}, v8 offset:{p*1280+256}\nds_read_b64 {v(b+4,2)}, v9 offset:{p*1280+1024}")
    def vread(p):
        b = AV + 8*(p % 2)
        for m in range(2): a(f"ds_read_b128 {v(b+4*m,4)}, v10 offset:{p*1344+m*672}")
    def mx(p):
        if p < 8:
            a(f"s_cmp_gt_u32 s57, {p}\ns_cbranch_scc1 {inv[p]}")
            a.lab(invb[p])
        for q in range(8):
            d = 2 + (q & 1)
            if p == 0 and q < 2: a(f"v_max_f32 v{d}, v{AS+2*q}, v{AS+2*q+1}")
            else: a(f"v_max3_f32 v{d}, v{d}, v{AS+16*p+2*q}, v{AS+16*p+2*q+1}")
    def m1(p):
        b = AK + 6*(p % 3); S = v(AS+16*p, 16)
        C = v(AME,16) if p == 0 else v(AMD,16) if p == 8 else "0"
        a(f"v_mfma_f32_32x32x16_bf16 {S}, {v(b,4)}, {v(AQ,4)}, {C}")
    def m2(p):
        b = AK + 6*(p % 3); S = v(AS+16*p, 16)
        a(f"v_mfma_f32_32x32x8bf16_1k {S}, {v(b+4,2)}, {v(AQ+4,2)}, {S}")
    kread(0); kread(1); kread(2)
    a("s_waitcnt lgkmcnt(6)"); m1(0)
    for p in range(9):
        if p + 1 < 9:
            a(f"s_waitcnt lgkmcnt({3 if p + 2 < 9 else 0})"); m1(p+1)
        m2(p)
        if p + 3 < 9: kread(p+3)
        if p >= 2: mx(p-2)
    a(f"s_cmp_eq_u32 s59, 0\ns_cbranch_scc1 {vw}")
    a.lab(vwb)
    vread(0)
    mx(7)
    a("s_nop 0")
    mx(8)
    a("v_max_f32 v2, v2, v3\nv_mov_b32 v3, v2\ns_nop 1\nv_permlane32_swap_b32 v2, v3\nv_max_f32 v2, v2, v3")
    def pv(p):
        b = AV + 8*(p % 2)
        for m in range(2):
            C = "0" if (p == 0 and m == 0) else v(AO,16)
            a(f"v_mfma_f32_32x32x16_bf16 {v(AO,16)}, {v(b+4*m,4)}, {v(AS+16*p+4*m,4)}, {C}")
    for p in range(9):
        b = AS + 16*p
        for q in range(8): a(f"v_pk_add_f32 {v(b+2*q,2)}, {v(b+2*q,2)}, v[2:3] op_sel_hi:[1,0] neg_lo:[0,1] neg_hi:[0,1]")
        if p > 0:
            a("s_waitcnt lgkmcnt(0)"); pv(p-1)
        if p + 1 < 9 and p > 0: vread(p+1)
        if p == 0: vread(1)
        for q in range(16): a(f"v_exp_f32 v{b+q}, v{b+q}")
        a("s_nop 0")
        for q in range(8): a(f"v_cvt_pk_bf16_f32 v{b+q}, v{b+2*q}, v{b+2*q+1}")
    a("s_waitcnt lgkmcnt(0)\ns_nop 0"); pv(8)
    for r in range(6): a(f"v_mov_b32 v{AQ+r}, v{AQ+6+r}")
    a(f"v_add_u32 v8, {4*1280}, v8\nv_add_u32 v9, {4*1280}, v9\nv_add_u32 v10, {4*1344}, v10\ns_sub_u32 s57, s57, s58\ns_nop 2")
    a(f"v_mov_b32 v2, v{AO+8}\nv_mov_b32 v3, v{AO+8}\ns_nop 1\nv_permlane32_swap_b32 v2, v3\nv_rcp_f32 v2, v3\ns_nop 0")
    for q in range(6): a(f"v_pk_mul_f32 {v(AO+2*q,2)}, {v(AO+2*q,2)}, v[2:3] op_sel_hi:[1,0]")
    for q in range(6): a(f"v_cvt_pk_bf16_f32 v{4+q if q < 4 else 10+q}, v{AO+2*q}, v{AO+2*q+1}")
    a(f"s_setprio 2\nbuffer_store_dwordx4 v[4:7], v11, {ws}, s56 offen {ST}\nbuffer_store_dwordx2 v[14:15], v12, {ws}, s61 offen {ST}\ns_setprio {OPT.get('prioa', 0)}")
    a(f"s_add_u32 s56, s56, {4*32768}\ns_add_u32 s61, s61, {4*8192}\ns_add_u32 s59, s59, 1\ns_cmp_lt_u32 s59, 2\ns_cbranch_scc1 {L}")
    fin = a.newlab("afin")
    a(f"s_branch {fin}")
    for p in range(8):
        a.lab(inv[p])
        for r in range(16): a(f"v_mov_b32 v{AS+16*p+r}, {NEGINF}")
        a(f"s_branch {invb[p]}")
    a.lab(vw)
    a("s_waitcnt vmcnt(0)\nv_mov_b32 v4, 0x3f803f80\nv_mov_b32 v5, v4\nv_mov_b32 v6, v4\nv_mov_b32 v7, v4\nds_write_b128 v13, v[4:7] offset:320")
    lds_sync(a, C_AV, 4, vt=14)
    a(f"s_branch {vwb}")
    a.lab(fin)

def wo2(a):
    skw = SKW; ws = s(SWS, 4)
    a(f"v_lshrrev_b32 v2, 4, v{VL}\nv_and_b32 v3, 15, v{VL}\nv_lshlrev_b32 v8, 4, v3\nv_lshl_add_u32 v8, v2, 9, v8\nv_lshlrev_b32 v10, 3, v3\nv_lshl_add_u32 v10, v2, 9, v10")
    a(f"s_lshl_b32 s50, s{SST}, 16\ns_lshl_b32 s51, s{skw}, 13\ns_add_u32 s50, s50, s51\ns_add_u32 s50, s50, {OFF_O1}")
    a(f"s_lshl_b32 s61, s{SST}, 14\ns_lshl_b32 s51, s{skw}, 11\ns_add_u32 s61, s61, s51\ns_add_u32 s61, s61, {OFF_O2}")
    for i in range(4):
        a(f"s_xor_b32 s51, s{skw}, {i}\ns_lshr_b32 s56, s51, 1\ns_and_b32 s51, s51, 1\ns_lshl_b32 s57, s56, 15\ns_lshl_b32 s58, s51, 8\ns_add_u32 s57, s57, s58\ns_add_u32 s{52+i}, s50, s57")
        a(f"s_lshl_b32 s57, s56, 13\ns_lshl_b32 s58, s51, 7\ns_add_u32 s57, s57, s58\ns_add_u32 s{62+i}, s61, s57")
    oth = a.newlab("ow"); go = a.newlab("og")
    a(f"s_cmp_lg_u32 s{skw}, 0\ns_cbranch_scc1 {oth}")
    a(f"s_lshr_b32 s51, s{SST}, 2\ns_lshl_b32 s51, s51, 7\ns_add_u32 s51, s51, {G_O}\nv_mov_b32 v2, 0")
    gpoll(a, 2, SWS, "s51", 32, 1)
    lds_set(a, C_OGO)
    a(f"s_branch {go}")
    a.lab(oth)
    lds_wait(a, C_OGO, 1)
    a.lab(go)
    stamp(a, 5)
    def aload(st):
        for i in range(4):
            r = WA+16*(st%3)+4*i
            if st < 4:
                a(f"buffer_load_dwordx4 {v(r,4)}, v8, {ws}, s{52+i} offen offset:{(st&1)*2048} {LD}")
                if st == 1: a(f"s_add_u32 s{52+i}, s{52+i}, 4096")
            else:
                for e in range(2): a(f"buffer_load_dwordx2 {v(r+2*e,2)}, v10, {ws}, s{62+i} offen offset:{e*256} {LD}")
    for st in range(3): aload(st)
    for st in range(5):
        a(f"s_waitcnt vmcnt({[8, 8, 12, 8, 0][st]})")
        for db in range(5):
            for i in range(4):
                acc = v(MACC+(i*5+db)*4, 4)
                a(f"v_mfma_f32_16x16x32_bf16 {acc}, {v(WA+16*(st%3)+4*i,4)}, {v(WB+20*st+4*db,4)}, {'0' if st == 0 else acc}")
        if st + 3 < 5: aload(st+3)

def colsum4(a, snt, ldsbase, st):
    a(f"v_lshrrev_b32 v2, 4, v{VL}\nv_and_b32 v3, 15, v{VL}\nv_mul_u32_u24 v4, 3840, v2\nv_lshl_add_u32 v4, v3, 4, v4")
    a(f"s_mul_i32 s{st}, s{SKW}, {160*3840}\ns_lshl_b32 s{st+1}, s{snt}, 8\ns_add_u32 s{st}, s{st}, s{st+1}")
    a(f"s_cmp_eq_u32 s{snt}, 15\ns_cbranch_scc0 L_cs_go\ns_barrier\ns_branch L_cs_end")
    a.lab("L_cs_go")
    for i in range(40):
        a(f"buffer_load_dwordx4 v[{32+4*i}:{35+4*i}], v4, {s(SWQ,4)}, s{st} offen\ns_add_u32 s{st}, s{st}, {4*3840}")
        if i == 9: a("s_barrier")
    for c in range(8): a(f"v_mov_b32 v{16+c}, 0")
    for i in range(40):
        a(f"s_waitcnt vmcnt({39-i})")
        for c in range(4):
            a(f"v_lshlrev_b32 v24, 16, v{32+4*i+c}\nv_and_b32 v25, 0xffff0000, v{32+4*i+c}\nv_pk_add_f32 v[{16+2*c}:{17+2*c}], v[{16+2*c}:{17+2*c}], v[24:25]")
    for sw in ("v_permlane32_swap_b32", "v_permlane16_swap_b32"):
        for c in range(8): a(f"v_mov_b32 v{24+c}, v{16+c}")
        a("s_nop 0")
        for c in range(8): a(f"{sw} v{16+c}, v{24+c}")
        for c in range(8): a(f"v_add_f32 v{16+c}, v{16+c}, v{24+c}")
    a(f"s_lshl_b32 s{st}, s{SKW}, 9\ns_add_u32 s{st}, s{st}, {ldsbase}\nv_lshlrev_b32 v4, 5, v3\nv_add_u32 v4, s{st}, v4")
    a("ds_write_b128 v4, v[16:19]\nds_write_b128 v4, v[20:23] offset:16")
    lds_sync(a, C_W2, 4)
    a(f"s_cmp_ge_u32 s{SKW}, 2\ns_cbranch_scc1 L_cs_end")
    a(f"s_lshl_b32 s{st}, s{SKW}, 8\nv_lshlrev_b32 v4, 2, v{VL}\nv_add_u32 v4, s{st}, v4\nv_add_u32 v5, {ldsbase}, v4")
    for w in range(4): a(f"ds_read_b32 v{16+w}, v5 offset:{w*512}")
    a("s_waitcnt lgkmcnt(0)")
    for w in range(1, 4): a(f"v_add_f32 v16, v16, v{16+w}")
    a(f"s_lshl_b32 s{st}, s{snt}, 9\ns_add_u32 s{st}, s{st}, {OFF_CS}")
    a(f"buffer_store_dword v16, v4, {s(SWS,4)}, s{st} offen {ST}")
    a.lab("L_cs_end")

def gen():
    a = Asm()
    a(f"; @launch grid=(256,1,1) block=(512,1,1) lds={LDS}")
    a('.amdgcn_target "amdgcn-amd-amdhsa--gfx950"\n.text')
    prologue(a, NAME, 256, [SX, SWQ, SWS, SDBG, SW1, SB1, SW2, SB2, SWO, SOUT], "L_end")
    ids(a)
    a(f"s_cmp_ge_u32 s{SJ}, 30\ns_cbranch_scc1 L_spare\ns_cmp_ge_u32 s{SWAVE}, 4\ns_cbranch_scc0 L_cons")
    loader(a)
    a(f"s_cmp_eq_u32 s{SHAS1}, 0\ns_cbranch_scc1 L_idle9")
    a(f"s_mul_i32 s66, s{SKW}, {M1STR}\ns_add_u32 s66, s66, {M1BASE}")
    a(f"s_mul_i32 s67, s{SKW}, 3\ns_cmp_eq_u32 s{SKW}, 3\ns_cselect_b32 s67, 8, s67")
    mlp_setup(a, SW1, 3456, 66)
    a(f"s_mul_i32 s{S_TO}, s{SKW}, {512*3456}\ns_lshl_b32 s65, s{SFT}, 7\ns_add_u32 s{S_TO}, s{S_TO}, s65")
    a(f"s_mul_i32 s{S_DO}, s{SDT1}, 327680\ns_mul_i32 s65, s{SKW}, {16*5120}\ns_add_u32 s{S_DO}, s{S_DO}, s65\ns_add_u32 s{S_DO}, s{S_DO}, {OFF_H}")
    def blk(k):
        mlp_dma(a, k)
        for db in range(5): mlp_dir(a, k, db, LD)
    blk(0)
    loader_fin(a, 9)
    stamp(a, 2)
    for k in range(1, 4): blk(k)
    for i in range(80): a(f"v_mov_b32 v{MACC+i}, 0")
    a(f"s_mov_b32 s{S_CNT}, 3\ns_mov_b32 s{SROLE}, 1\ns_setprio {OPT.get('prio1', 1)}")
    B = ["L_mb0", "L_mb1", "L_mb2", "L_mb3"]
    a(".p2align 3")
    for k in range(4):
        a.lab(B[k])
        mlp_body(a, k, 27, True, LD)
    if OPT.get("mst"):
        for c, i in ((3, 1), (2, 5), (1, 6)):
            LL = a.newlab("mst"); a(f"s_cmp_eq_u32 s{SROLE}, {OPT['mst']}\ns_cbranch_scc0 {LL}\ns_cmp_eq_u32 s{S_CNT}, {c}\ns_cbranch_scc0 {LL}"); stamp(a, i, True); a.lab(LL)
    a(f"s_sub_u32 s{S_CNT}, s{S_CNT}, 1\ns_cmp_lg_u32 s{S_CNT}, 0\ns_cbranch_scc1 {B[0]}")
    a(f"s_cmp_eq_u32 s{SROLE}, 1\ns_cbranch_scc0 L_tail")
    a(f"v_lshrrev_b32 v2, 4, v{VL}\nv_lshlrev_b32 v11, 3, v2")
    for k in range(3):
        a(f"s_add_u32 s65, s67, {k}\ns_cmp_ge_u32 s65, 5\ns_cselect_b32 s65, 64, 0\ns_lshl_b32 s68, s{SFT}, 7\ns_add_u32 s65, s65, s68")
        for t in range(2): a(f"buffer_load_dwordx2 {v(192+4*k+2*t,2)}, v11, {s(SB1,4)}, s65 offen offset:{t*32}")
    for k in range(4): mlp_body(a, k, [33, 24, 15, 6][k], False, LD)
    stamp(a, 3)
    a("s_waitcnt vmcnt(0)")
    mlp1_epi(a, SDT1, SFT, SKW, M1BASE, M1STR, C_MP, ST)
    stamp(a, 4)
    a(f"s_lshl_b32 s61, s{SDT1}, 7\ns_add_u32 s61, s61, {G_G}")
    arrive(a, C_GA, 4, 61)
    a("s_setprio 0")
    a.lab("L_wo")
    oth = a.newlab("ww"); go = a.newlab("wg")
    a(f"s_cmp_lg_u32 s{SKW}, 0\ns_cbranch_scc1 {oth}\ns_mov_b32 s51, {G_W}\nv_mov_b32 v2, 0")
    gpoll(a, 2, SWS, "s51", 40, 1)
    lds_set(a, C_W2)
    a(f"s_branch {go}")
    a.lab(oth)
    lds_wait(a, C_W2, 1)
    a.lab(go)
    wo_bloads(a, SDT3, SKW, LD)
    wo2(a)
    stamp(a, 6)
    nw = a.newlab("nw")
    a(f"s_cmp_eq_u32 s{SHAS1}, 0\ns_cbranch_scc1 {nw}")
    lds_wait(a, C_GA, 4)
    a.lab(nw)
    a(f"s_mul_i32 s66, s{SKW}, {M1STR}\ns_add_u32 s66, s66, {M1BASE}")
    fin_write(a, 66, 0)
    a("s_barrier")
    stamp_dump(a, 0)
    a("s_endpgm")
    a.lab("L_tail")
    for k in range(4): mlp_body(a, k, 27-9*k, False, LD)
    stamp(a, 6)
    fin_write(a, 66, 5)
    a("s_barrier")
    fin_epi(a, SWAVE, 0, 16384, M1BASE, M1STR)
    if blocks.STAMP: a("s_waitcnt vmcnt(0)")
    stamp_dump(a, 0)
    a("s_endpgm")
    a.lab("L_idle9")
    loader_fin(a, 0)
    a.lab("L_idle")
    stamp(a, 2)
    wof(a)
    stamp(a, 3)
    if OPT.get("pf", 1):
        a(f"s_mul_i32 s61, s{SXCD}, 5\ns_add_u32 s61, s61, s{SJ}\ns_sub_u32 s61, s61, 27\ns_lshl_b32 s61, s61, 2\ns_add_u32 s61, s61, s{SKW}")
        lds_wait(a, C_AV, 4)
        prefetch(a, 61, 160, NB1, NB1 + NB2)
    stamp(a, 4)
    a("s_branch L_wo")
    a.lab("L_cons")
    ln_issue(a)
    a("s_mov_b32 s62, s53\ns_mov_b32 s63, s55")
    qkv_consumer_setup(a)
    a(f"v_lshrrev_b32 v2, 5, v{VL}\nv_and_b32 v3, 31, v{VL}")
    for r in range(8, 14): a(f"v_mov_b32 v{200+r}, v{r}")
    a("s_waitcnt vmcnt(0)")
    init_counters(a)
    rows_ln(a, 62, 54, ST)
    rows_to_lds(a, SWAVE, L_LN, 54)
    stamp(a, 1)
    a("s_waitcnt lgkmcnt(0)\ns_barrier")
    rows_tr_store(a, SWAVE, L_LN, 63, 327680, 54, ST)
    for r in range(8, 14): a(f"v_mov_b32 v{r}, v{200+r}")
    a(f"s_mul_i32 s50, s{SXCD}, 30\ns_add_u32 s50, s50, s{SJ}\ns_lshl_b32 s50, s50, 2\ns_add_u32 s50, s50, s{SWAVE}")
    a(f"s_mul_i32 s51, s50, 4370\ns_lshr_b32 s51, s51, 20\ns_mul_i32 s52, s51, 240\ns_sub_u32 s52, s50, s52\ns_mul_i32 s51, s51, {16*110592}\ns_lshl_b32 s65, s52, 12\ns_add_u32 s65, s65, s51\ns_add_u32 s65, s65, {16*110592 - 240*4096}")
    a(f"s_mul_i32 s64, s52, 274\ns_lshr_b32 s64, s64, 14\ns_add_u32 s64, s64, {1 if OPT.get('pf', 1) else 9}\nv_lshlrev_b32 v14, 7, v{VL}")
    stamp(a, 2)
    a(f"s_cmp_ge_u32 s{SN}, 10\ns_cbranch_scc1 L_consv")
    for vori in (0, 1):
        if vori: a.lab("L_consv")
        consumer_loop(a, vori)
        stamp(a, 3)
        a("s_setprio 3")
        qkv_epi_lds(a, vori)
        qkv_epi(a, SM, SN, vori, ST)
        if not vori: a("s_branch L_qdone")
    a.lab("L_qdone")
    ids_late(a)
    a(f"s_lshl_b32 s61, s{SM}, 7\ns_add_u32 s61, s61, {G_Q}")
    arrive(a, C_QA, 4, 61)
    a.lab("L_attn")
    attn2(a)
    a("s_setprio 2")
    a(f"s_lshl_b32 s61, s{SBQ}, 7\ns_add_u32 s61, s61, {G_O}")
    arrive(a, C_OA, 4, 61)
    w = SWAVE
    fin_resid_loads(a, SDT3, SST, w)
    a(f"s_lshl_b32 s66, s{w}, 14")
    mlp_setup(a, SW2, 4096, 66, rot=w)
    a(f"s_mul_i32 s67, s{w}, 14\ns_cmp_eq_u32 s{w}, 3\ns_cselect_b32 s67, 41, s67")
    a(f"s_lshl_b32 s{S_TO}, s67, 17\ns_lshl_b32 s65, s{SST}, 7\ns_add_u32 s{S_TO}, s{S_TO}, s65")
    a(f"s_mul_i32 s{S_DO}, s{SDT3}, {54*5120}\ns_mul_i32 s65, s67, 5120\ns_add_u32 s{S_DO}, s{S_DO}, s65\ns_add_u32 s{S_DO}, s{S_DO}, {OFF_G}")
    lds_wait(a, C_OA, 4)
    a(f"s_cmp_ge_u32 s{w}, 2\ns_cbranch_scc1 L_p3")
    mlp_dma(a, 2)
    a.lab("L_p3")
    for k in (3, 0, 1): mlp_dma(a, k)
    a(f"s_cmp_ge_u32 s{w}, 2\ns_cbranch_scc0 L_p3b")
    mlp_dma(a, 2)
    a.lab("L_p3b")
    for i in range(80): a(f"v_mov_b32 v{MACC+i}, 0")
    oth = a.newlab("gw"); go = a.newlab("gg")
    a(f"s_cmp_lg_u32 s{w}, 0\ns_cbranch_scc1 {oth}")
    a(f"s_lshl_b32 s51, s{SDT3}, 7\ns_add_u32 s51, s51, {G_G}\nv_mov_b32 v2, 0")
    gpoll(a, 2, SWS, "s51", 27, 1)
    lds_set(a, C_GGO)
    a(f"s_branch {go}")
    a.lab(oth)
    lds_wait(a, C_GGO, 1)
    a.lab(go)
    stamp(a, 1)
    a(f"s_mov_b32 s{S_CNT}, 3\ns_mov_b32 s{SROLE}, 2\ns_cmp_ge_u32 s{w}, 2\ns_cbranch_scc1 L_d3")
    for k in (2, 3, 0, 1):
        for db in range(5): mlp_dir(a, k, db, LD)
    a(f"s_waitcnt vmcnt(0)\ns_branch {B[2]}")
    a.lab("L_d3")
    for k in (3, 0, 1, 2):
        for db in range(5): mlp_dir(a, k, db, LD)
    a(f"s_waitcnt vmcnt(0)\ns_branch {B[3]}")
    a.lab("L_spare")
    ids_late(a)
    a(f"s_mov_b32 s{SHAS1}, 0\ns_sub_u32 s{SKW}, s{SWAVE}, 4\ns_cmp_ge_u32 s{SWAVE}, 4\ns_cbranch_scc0 L_sp_ln")
    if OPT.get("cpf", 1):
        a(f"s_getpc_b64 s[50:51]\ns_sub_u32 s50, s50, .-{NAME}\ns_subb_u32 s51, s51, 0\nv_lshlrev_b32 v2, 7, v0\nv_add_u32 v2, 0xffff8000, v2")
        a(f"v_cmp_gt_u32 vcc, L_end-{NAME}, v2\ns_and_saveexec_b64 s[52:53], vcc\ns_cbranch_execz L_nocpf\nglobal_load_dword v255, v2, s[50:51]\nv_add_u32 v2, 0x8000, v2\nv_cmp_gt_u32 vcc, L_end-{NAME}, v2\ns_and_saveexec_b64 s[52:53], vcc\ns_cbranch_execz L_nocpf\nglobal_load_dword v255, v2, s[50:51]")
        a.lab("L_nocpf")
        a("s_mov_b64 exec, -1")
    if OPT.get("pf", 1):
        a(f"s_lshl_b32 s61, s{SXCD}, 1\ns_add_u32 s61, s61, s{SJ}\ns_sub_u32 s61, s61, 30\ns_lshl_b32 s61, s61, 2\ns_add_u32 s61, s61, s{SKW}")
    a("s_barrier\ns_barrier")
    if OPT.get("pf", 1): prefetch(a, 61, 64, 0, OPT.get("np1", 8*56))
    stamp(a, 1)
    a("s_waitcnt vmcnt(0)")
    lds_wait(a, C_QA, 4)
    a("s_branch L_idle")
    a.lab("L_sp_ln")
    ln_issue(a)
    a("s_waitcnt vmcnt(0)")
    init_counters(a)
    rows_ln(a, 53, 54, ST)
    rows_to_lds(a, SWAVE, L_LN, 54)
    a("s_waitcnt lgkmcnt(0)\ns_barrier")
    rows_tr_store(a, SWAVE, L_LN, 55, 327680, 54, ST)
    a(f"s_waitcnt vmcnt(0)\ns_barrier\ns_cmp_lg_u32 s{SWAVE}, 0\ns_cbranch_scc1 L_sp_na")
    c1_arrive(a)
    c1_poll(a)
    a(f"v_mov_b32 v2, {C_QA}\nv_mov_b32 v3, 4\nds_write_b32 v2, v3")
    a.lab("L_sp_na")
    stamp(a, 1)
    a("s_branch L_attn")
    a.lab("L_end"); a("s_endpgm")
    a('.section .rodata,"a"')
    return a.text() + kd(NAME)
if __name__ == "__main__":
    blocks.STAMP = "stamp" in sys.argv
    for x in sys.argv[2:]:
        if "=" in x: k, val = x.split("="); blocks.OPT[k] = int(val)
    t = gen()
    print("hazards:", hazard_check(t))
    open(sys.argv[1], "w").write(open("hdr.txt").read() + t)
```

```python
from asmlib import *
OFF_R, OFF_RM, OFF_CS = 0, 8192, 16384
OFF_FLAG = 32768
OFF_H = 0x20000
SZ = 0x280000
OFF_WOF = OFF_H + SZ
OFF_Q = OFF_WOF + 0xC8000
OFF_K = OFF_Q + SZ
OFF_V = OFF_K + SZ
OFF_O = OFF_V + SZ + 0x1000
OFF_G = OFF_O + SZ
OFF_STAMP = OFF_G + 0x21C000
WS_USED = OFF_STAMP + 0x100000
SX, SWQ, SWO, SW1, SW2, SWS, SOUT, SB1, SB2, SDBG = 4, 8, 12, 16, 20, 24, 28, 32, 36, 40
SWAVE, SXCD, SJ = 44, 45, 46
SRDS = {SX: (0, 2621440), SWQ: (8, 2457600), SWO: (16, 819200), SW1: (32, 7077888), SW2: (48, 7077888),
        SWS: (80, WS_USED), SOUT: (64, 2621440), SB1: (40, 3456), SB2: (56, 4096), SDBG: (72, 256)}
VL = 1
NEGINF = "0xff800000"
OOB = "0x7fff0000"

STAMP = False
def stamp(a, i, force=False):
    if STAMP and (force or not OPT.get("mst") or i not in ((1, 4, 5, 6) if OPT["mst"] == 3 else (1, 2, 3, 4, 5, 6) if OPT["mst"] in (4, 5, 7) else (1, 5, 6))): a(f"s_waitcnt lgkmcnt(0)\ns_memrealtime s[100:101]\ns_waitcnt lgkmcnt(0)\ns_mov_b32 s{84+i}, s100\ns_memtime s[100:101]\ns_waitcnt lgkmcnt(0)\ns_mov_b32 s{92+i}, s100")
def stamp_dump(a, k):
    if not STAMP: return
    stamp(a, 7)
    if OPT.get("dbgout"):
        LL = a.newlab("dbo")
        a(f"s_cmp_lg_u32 s2, {OPT['dbgout']-1}\ns_cbranch_scc1 {LL}\ns_and_b32 s100, s{SWAVE}, 3\ns_cmp_lg_u32 s100, 0\ns_cbranch_scc1 {LL}\ns_lshl_b32 s100, s{SWAVE}, 3\ns_mov_b64 exec, 1")
        for i in range(1, 8): a(f"s_sub_u32 s101, s{84+i}, s84\nv_mov_b32 v2, s101\nbuffer_store_dword v2, off, {s(SDBG,4)}, s100 offset:{4*i}")
        a.lab(LL)
    a(f"s_lshl_b32 s100, s2, 3\ns_add_u32 s100, s100, s{SWAVE}\ns_lshl_b32 s100, s100, 6\ns_add_u32 s100, s100, {OFF_STAMP + k*131072}\ns_mov_b64 exec, 1")
    for i in range(16): a(f"v_mov_b32 v2, s{84+i}\nbuffer_store_dword v2, off, {s(SWS,4)}, s100 offset:{4*i}")
def prologue(a, name, nwg, srds, end):
    a(f".globl {name}\n.p2align 8\n.type {name},@function")
    a.lab(name)
    a(f"s_cmp_ge_u32 s2, {nwg}\ns_cbranch_scc1 {end}")
    if STAMP:
        for i in range(16): a(f"s_mov_b32 s{84+i}, 0")
    stamp(a, 0)
    for r in srds: a(f"s_load_dwordx2 {s(r,2)}, s[0:1], {SRDS[r][0]}")
    a(f"v_lshrrev_b32 v2, 6, v0\nv_and_b32 v{VL}, 63, v0")
    a(f"s_and_b32 s{SXCD}, s2, 7\ns_lshr_b32 s{SJ}, s2, 3")
    a(f"v_readfirstlane_b32 s{SWAVE}, v2")
    for r in srds: a(f"s_mov_b32 s{r+2}, {SRDS[r][1]}\ns_mov_b32 s{r+3}, 0x20000")
    a("s_waitcnt lgkmcnt(0)")

def kd(name, vg=256):
    return f""".p2align 6
.amdhsa_kernel {name}
  .amdhsa_next_free_vgpr {vg}
  .amdhsa_next_free_sgpr 102
  .amdhsa_accum_offset {vg}
  .amdhsa_group_segment_fixed_size 0
  .amdhsa_kernarg_size 88
  .amdhsa_user_sgpr_count 2
  .amdhsa_user_sgpr_kernarg_segment_ptr 1
  .amdhsa_system_sgpr_workgroup_id_x 1
.end_amdhsa_kernel
"""

def reduce32(a, r, t):
    for sh in (8, 4, 2, 1):
        a(f"s_nop 1\nv_add_f32_dpp v{r}, v{r}, v{r} row_ror:{sh} row_mask:0xf bank_mask:0xf")
    a(f"v_mov_b32 v{t}, v{r}\ns_nop 1\nv_permlane16_swap_b32 v{r}, v{t}\nv_add_f32 v{r}, v{r}, v{t}")

def rows_load(a, srd, sw, srow, st):
    a(f"v_lshrrev_b32 v2, 5, v{VL}\nv_and_b32 v3, 31, v{VL}")
    a(f"v_mul_u32_u24 v4, 1280, v2\nv_lshl_add_u32 v5, v3, 3, v4\nv_lshl_add_u32 v4, v3, 4, v4")
    a(f"s_mul_i32 s{st}, s{srow}, 1280")
    a(f"buffer_load_dwordx4 v[16:19], v4, {s(srd,4)}, s{st} offen")
    a(f"buffer_load_dwordx4 v[20:23], v4, {s(srd,4)}, s{st} offen offset:512")
    a(f"buffer_load_dwordx2 v[24:25], v5, {s(srd,4)}, s{st} offen offset:1024")
def rows_ln(a, srow, st, stf):
    for i in range(10):
        a(f"v_lshlrev_b32 v{28+2*i}, 16, v{16+i}\nv_and_b32 v{29+2*i}, 0xffff0000, v{16+i}")
    a("v_pk_add_f32 v[6:7], v[28:29], v[30:31]")
    for i in range(2, 10): a(f"v_pk_add_f32 v[6:7], v[6:7], v[{28+2*i}:{29+2*i}]")
    a("v_add_f32 v6, v6, v7")
    reduce32(a, 6, 7)
    a(f"v_mul_f32 v6, {hexf(1/640)}, v6")
    for i in range(10): a(f"v_pk_add_f32 v[{28+2*i}:{29+2*i}], v[{28+2*i}:{29+2*i}], v[6:7] op_sel_hi:[1,0] neg_lo:[0,1] neg_hi:[0,1]")
    a("v_pk_mul_f32 v[8:9], v[28:29], v[28:29]")
    for i in range(1, 10): a(f"v_pk_fma_f32 v[8:9], v[{28+2*i}:{29+2*i}], v[{28+2*i}:{29+2*i}], v[8:9]")
    a("v_add_f32 v8, v8, v9")
    reduce32(a, 8, 9)
    a(f"v_mul_f32 v8, {hexf(1/640)}, v8")
    a(f"v_add_f32 v9, {hexf(1e-5)}, v8\nv_rsq_f32 v9, v9")
    a(f"v_mov_b32 v11, {hexf(1e-5)}\nv_mul_f32 v10, v9, v9\nv_fma_f32 v10, v10, v8, v11\nv_rsq_f32 v10, v10")
    a("v_mul_f32 v11, v9, v6\nv_mul_f32 v10, v10, v9")
    a(f"s_lshl_b32 s{st}, s{srow}, 2")
    a(f"v_lshlrev_b32 v12, 2, v2\nv_cmp_eq_u32 vcc, 0, v3\nv_mov_b32 v13, {OOB}\ns_nop 0\nv_cndmask_b32 v12, v13, v12, vcc")
    a(f"buffer_store_dword v9, v12, {s(SWS,4)}, s{st} offen {stf}")
    a(f"s_add_u32 s{st}, s{st}, {OFF_RM}")
    a(f"buffer_store_dword v11, v12, {s(SWS,4)}, s{st} offen {stf}")
    for i in range(10): a(f"v_pk_mul_f32 v[{28+2*i}:{29+2*i}], v[{28+2*i}:{29+2*i}], v[10:11] op_sel_hi:[1,0]")
    for i in range(10): a(f"v_cvt_pk_bf16_f32 v{16+i}, v{28+2*i}, v{29+2*i}")
def rows_to_lds(a, sw, ldsbase, st):
    a(f"s_mul_i32 s{st}, s{sw}, 2688\ns_add_u32 s{st}, s{st}, {ldsbase}")
    a(f"v_mul_u32_u24 v4, 1344, v2\nv_add_u32 v4, s{st}, v4\nv_lshl_add_u32 v5, v3, 3, v4\nv_lshl_add_u32 v4, v3, 4, v4")
    a("ds_write_b128 v4, v[16:19]\nds_write_b128 v4, v[20:23] offset:512\nds_write_b64 v5, v[24:25] offset:1024")
def rows_tr_store(a, sw, ldsbase, sdst, dt, st, stf):
    a(f"v_lshrrev_b32 v2, 4, v{VL}\nv_and_b32 v3, 15, v{VL}")
    a(f"v_lshrrev_b32 v4, 2, v3\nv_mul_u32_u24 v4, 1344, v4\nv_lshl_add_u32 v4, v2, 5, v4\nv_and_b32 v5, 3, v3\nv_lshl_add_u32 v4, v5, 3, v4")
    a(f"s_lshl_b32 s{st}, s{sw}, 7\ns_add_u32 s{st}, s{st}, {ldsbase}\nv_add_u32 v4, s{st}, v4")
    skip = a.newlab("trs")
    for k in range(3):
        if k == 2: a(f"s_cmp_ge_u32 s{sw}, 2\ns_cbranch_scc1 {skip}")
        a(f"ds_read_b64_tr_b16 v[{16+4*k}:{17+4*k}], v4 offset:{k*512}\nds_read_b64_tr_b16 v[{18+4*k}:{19+4*k}], v4 offset:{k*512+5376}")
        a(f"s_lshl_b32 s{st}, s{sw}, 2\ns_add_u32 s{st}, s{st}, {16*k}\nv_add_u32 v5, s{st}, v2")
        a(f"v_mul_u32_u24 v6, 52, v5\nv_lshrrev_b32 v6, 8, v6\ns_mov_b32 s{st}, {dt-5120}\nv_mul_lo_u32 v6, v6, s{st}\nv_lshl_add_u32 v6, v5, 10, v6\nv_lshl_add_u32 v6, v3, 4, v6")
        a(f"s_waitcnt lgkmcnt(0)\nbuffer_store_dwordx4 v[{16+4*k}:{19+4*k}], v6, {s(SWS,4)}, s{sdst} offen {stf}")
    a.lab(skip)

import struct
def hexf(x): return "0x%08x" % struct.unpack("<I", struct.pack("<f", x))[0]

def colsum(a, snt, ldsbase, st, stf):
    a(f"v_lshrrev_b32 v2, 4, v{VL}\nv_and_b32 v3, 15, v{VL}\nv_mul_u32_u24 v4, 3840, v2\nv_lshl_add_u32 v4, v3, 4, v4")
    a(f"s_mul_i32 s{st}, s{SWAVE}, {80*3840}\ns_lshl_b32 s{st+1}, s{snt}, 8\ns_add_u32 s{st}, s{st}, s{st+1}")
    for i in range(20):
        a(f"buffer_load_dwordx4 v[{32+4*i}:{35+4*i}], v4, {s(SWQ,4)}, s{st} offen\ns_add_u32 s{st}, s{st}, {4*3840}")
    for c in range(8): a(f"v_mov_b32 v{16+c}, 0")
    for i in range(20):
        a(f"s_waitcnt vmcnt({19-i})")
        for c in range(4):
            a(f"v_lshlrev_b32 v24, 16, v{32+4*i+c}\nv_and_b32 v25, 0xffff0000, v{32+4*i+c}\nv_pk_add_f32 v[{16+2*c}:{17+2*c}], v[{16+2*c}:{17+2*c}], v[24:25]")
    for sw in ("v_permlane32_swap_b32", "v_permlane16_swap_b32"):
        for c in range(8): a(f"v_mov_b32 v{24+c}, v{16+c}")
        a("s_nop 0")
        for c in range(8): a(f"{sw} v{16+c}, v{24+c}")
        for c in range(8): a(f"v_add_f32 v{16+c}, v{16+c}, v{24+c}")
    a(f"s_lshl_b32 s{st}, s{SWAVE}, 9\ns_add_u32 s{st}, s{st}, {ldsbase}\nv_lshlrev_b32 v4, 5, v3\nv_add_u32 v4, s{st}, v4")
    a("ds_write_b128 v4, v[16:19]\nds_write_b128 v4, v[20:23] offset:16\ns_waitcnt lgkmcnt(0)\ns_barrier")
    skip = a.newlab("cs")
    a(f"s_cmp_ge_u32 s{SWAVE}, 2\ns_cbranch_scc1 {skip}")
    a(f"v_lshlrev_b32 v4, 2, v0\nv_add_u32 v5, {ldsbase}, v4")
    for w in range(8): a(f"ds_read_b32 v{16+w}, v5 offset:{w*512}")
    a("s_waitcnt lgkmcnt(0)")
    for w in range(1, 8): a(f"v_add_f32 v16, v16, v{16+w}")
    a(f"s_lshl_b32 s{st}, s{snt}, 9\ns_add_u32 s{st}, s{st}, {OFF_CS}")
    a(f"buffer_store_dword v16, v4, {s(SWS,4)}, s{st} offen {stf}")
    a.lab(skip)

def qkv_tile(a, sm, sn):
    a(f"s_lshr_b32 s{sm}, s{SXCD}, 1\ns_lshl_b32 s{sm}, s{sm}, 2\ns_and_b32 s{sn}, s{SJ}, 3\ns_add_u32 s{sm}, s{sm}, s{sn}")
    a(f"s_and_b32 s{sn}, s{SXCD}, 1\ns_lshl_b32 s{sn}, s{sn}, 3\ns_lshr_b32 s47, s{SJ}, 2\ns_add_u32 s{sn}, s{sn}, s47")
def qkv_loader(a, sm, sn, st):
    lw, sxo, swo, sm0, t = st, st+1, st+2, st+3, st+4
    a(f"s_sub_u32 s{lw}, s{SWAVE}, 4")
    a(f"v_lshrrev_b32 v2, 3, v{VL}\nv_mul_u32_u24 v2, 1280, v2\nv_and_b32 v3, 7, v{VL}\nv_lshrrev_b32 v4, 4, v{VL}\nv_xor_b32 v3, v3, v4\nv_lshl_add_u32 v6, v3, 4, v2\nv_xor_b32 v7, 64, v6")
    a(f"v_mul_u32_u24 v2, 3840, v4\nv_bfe_u32 v3, v{VL}, 2, 2\nv_xor_b32 v3, v3, v4\nv_lshl_add_u32 v2, v3, 6, v2\nv_and_b32 v3, 3, v{VL}\nv_lshl_add_u32 v8, v3, 4, v2")
    a(f"s_lshl_b32 s{sxo}, s{sm}, 7\ns_lshl_b32 s{t}, s{lw}, 5\ns_add_u32 s{sxo}, s{sxo}, s{t}\ns_mul_i32 s{sxo}, s{sxo}, 1280")
    a(f"s_mul_i32 s{swo}, s{lw}, {16*3840}\ns_lshl_b32 s{t}, s{sn}, 8\ns_add_u32 s{swo}, s{swo}, s{t}")
    a(f"s_lshl_b32 s{sm0}, s{lw}, 12")
    ko = st+5
    if OPT["rot1"]:
        a(f"s_and_b32 s{ko}, s{SJ}, 3\ns_lshl_b32 s{ko}, s{ko}, 1\ns_lshr_b32 s{t}, s{SJ}, 2\ns_add_u32 s{ko}, s{ko}, s{t}")
        if OPT["rot1"] > 1: a(f"s_add_u32 s{ko}, s{ko}, s{SXCD}")
        for _ in range(2): a(f"s_cmp_ge_u32 s{ko}, 10\ns_cselect_b32 s{t}, 10, 0\ns_sub_u32 s{ko}, s{ko}, s{t}")
        a(f"s_lshl_b32 s{t}, s{ko}, 7\ns_add_u32 s{sxo}, s{sxo}, s{t}\ns_mul_i32 s{t}, s{ko}, 245760\ns_add_u32 s{swo}, s{swo}, s{t}")
    def stage(sidx):
        slot = sidx % 4
        if OPT.get("k1_noload"): return
        if OPT["rot1"] and sidx:
            a(f"s_add_u32 s{ko}, s{ko}, 1\ns_cmp_eq_u32 s{ko}, 10\ns_cselect_b32 s{t}, 1280, 0\ns_sub_u32 s{sxo}, s{sxo}, s{t}\ns_cmp_eq_u32 s{ko}, 10\ns_cselect_b32 s{t}, 2457600, 0\ns_sub_u32 s{swo}, s{swo}, s{t}")
        a(f"s_add_u32 m0, s{sm0}, {slot*32768}")
        for i in range(4):
            a(f"s_add_u32 s{t}, s{sxo}, {i*9216 + sidx*128}")
            a(f"buffer_load_dwordx4 v{6+(i&1)}, {s(SX,4)}, s{t} offen offset:{i*1024} lds")
        a(f"s_add_u32 m0, s{sm0}, {slot*32768+16384}")
        for i in range(4):
            a(f"s_add_u32 s{t}, s{swo}, {i*14336 + sidx*245760}")
            a(f"buffer_load_dwordx4 v8, {s(SWQ,4)}, s{t} offen offset:{i*1024} lds")
    LA = OPT.get("la", 2)
    for sidx in range(LA):
        a(f"s_setprio {3-sidx}"); stage(sidx)
    a("s_setprio 0")
    for sidx in range(10):
        n = 8*min(LA-1, 9-sidx)
        a(f"s_waitcnt vmcnt({n})\ns_barrier")
        if sidx + LA <= 9: stage(sidx + LA)

QACC, QF = 64, 32
def qkv_consumer_setup(a):
    a(f"s_lshr_b32 s48, s{SWAVE}, 1\ns_and_b32 s49, s{SWAVE}, 1")
    a(f"v_and_b32 v2, 31, v{VL}\nv_lshrrev_b32 v3, 5, v{VL}")
    a(f"v_bfe_u32 v4, v{VL}, 1, 3")
    a(f"s_lshl_b32 s50, s48, 13\nv_lshlrev_b32 v5, 7, v2\nv_add_u32 v5, s50, v5")
    for ks in range(4):
        a(f"v_or_b32 v6, {2*ks}, v3\nv_xor_b32 v6, v6, v4\nv_lshl_add_u32 v{8+ks}, v6, 4, v5")
    a(f"v_bfe_u32 v4, v{VL}, 2, 2\nv_lshl_add_u32 v5, v3, 3, v4\nv_lshlrev_b32 v5, 8, v5\nv_bfe_u32 v6, v{VL}, 4, 1\nv_lshl_add_u32 v5, v6, 5, v5\nv_and_b32 v6, 3, v{VL}\nv_lshl_add_u32 v5, v6, 3, v5\nv_add_u32 v5, 16384, v5")
    a(f"s_lshl_b32 s50, s49, 1")
    for cf in range(2):
        a(f"s_add_u32 s51, s50, {cf}\nv_xor_b32 v6, s51, v4\nv_lshl_add_u32 v{12+cf}, v6, 6, v5")
    for i in range(64): a(f"v_mov_b32 v{QACC+i}, 0")
def qkv_rd(a, ks, buf, slot, which):
    if OPT.get("k1_noread"): return
    b = QF + 16*buf; o = slot*32768
    if which[0] == "x":
        i = int(which[1]); a(f"ds_read_b128 {v(b+4*i,4)}, v{8+ks} offset:{o+i*4096}")
    else:
        cf = int(which[1])
        for rd in range(2): a(f"ds_read_b64_tr_b16 {v(b+8+4*cf+2*rd,2)}, v{12+cf} offset:{o+ks*4096+rd*1024}")
def qkv_mf(a, buf, vori, i, cf):
    if OPT.get("k1_nomfma"): return
    b = QF + 16*buf
    acc = v(QACC + 16*(2*i+cf), 16); X = v(b+4*i, 4); Wf = v(b+8+4*cf, 4)
    if vori: a(f"v_mfma_f32_32x32x16_bf16 {acc}, {X}, {Wf}, {acc}")
    else: a(f"v_mfma_f32_32x32x16_bf16 {acc}, {Wf}, {X}, {acc}")
def qkv_consumer_loop(a, vori, first_barrier=True):
    L = a.newlab("qloop"); last = a.newlab("qlast"); done = a.newlab("qdone")
    if first_barrier: a("s_barrier")
    for w in ("x0", "w0", "w1", "x1"): qkv_rd(a, 0, 0, 0, w)
    a("s_mov_b32 s50, 0")
    a(".p2align 3")
    a.lab(L)
    for slot in range(2):
        for ks in range(4):
            buf = ks & 1; nb = buf ^ 1
            if ks < 3:
                a("s_waitcnt lgkmcnt(3)"); qkv_mf(a, buf, vori, 0, 0); qkv_rd(a, ks+1, nb, slot, "x0"); qkv_rd(a, ks+1, nb, slot, "w0")
                a("s_waitcnt lgkmcnt(4)"); qkv_mf(a, buf, vori, 0, 1); qkv_rd(a, ks+1, nb, slot, "w1")
                a("s_waitcnt lgkmcnt(5)"); qkv_mf(a, buf, vori, 1, 0); qkv_rd(a, ks+1, nb, slot, "x1")
                qkv_mf(a, buf, vori, 1, 1)
            else:
                a("s_waitcnt lgkmcnt(3)"); qkv_mf(a, buf, vori, 0, 0)
                if slot == 1:
                    a(f"s_cmp_eq_u32 s50, 4\ns_cbranch_scc1 {last}")
                    for r in range(8, 14): a(f"v_xor_b32 v{r}, 0x10000, v{r}")
                a("s_waitcnt lgkmcnt(0)\ns_barrier")
                ns = slot ^ 1
                qkv_rd(a, 0, nb, ns, "x0"); qkv_rd(a, 0, nb, ns, "w0")
                qkv_mf(a, buf, vori, 0, 1); qkv_rd(a, 0, nb, ns, "w1")
                qkv_mf(a, buf, vori, 1, 0); qkv_rd(a, 0, nb, ns, "x1")
                qkv_mf(a, buf, vori, 1, 1)
    a(f"s_add_u32 s50, s50, 1\ns_branch {L}")
    a.lab(last)
    a("s_waitcnt lgkmcnt(0)")
    qkv_mf(a, 1, vori, 0, 1); qkv_mf(a, 1, vori, 1, 0); qkv_mf(a, 1, vori, 1, 1)
QSCALE = (20 ** -0.5) * 1.4426950408889634
def qkv_epi_loads(a, sm, sn, vori, ldf):
    a(f"s_lshl_b32 s50, s{sm}, 7\ns_lshl_b32 s51, s48, 6\ns_add_u32 s50, s50, s51\ns_lshl_b32 s51, s50, 2")
    a(f"s_add_u32 s52, s51, {OFF_RM}")
    a(f"s_lshl_b32 s53, s{sn}, 7\ns_lshl_b32 s54, s49, 6\ns_add_u32 s53, s53, s54\ns_lshl_b32 s54, s53, 2\ns_add_u32 s54, s54, {OFF_CS}")
    a(f"v_and_b32 v2, 31, v{VL}\nv_lshrrev_b32 v3, 5, v{VL}\nv_lshlrev_b32 v4, 2, v2\nv_lshlrev_b32 v5, 4, v3")
    ws = s(SWS, 4)
    if not vori:
        for i in range(2):
            a(f"buffer_load_dword v{128+2*i}, v4, {ws}, s51 offen offset:{i*128} {ldf}")
            a(f"buffer_load_dword v{132+2*i}, v4, {ws}, s52 offen offset:{i*128} {ldf}")
        for k in range(8): a(f"buffer_load_dwordx4 {v(136+4*k,4)}, v5, {ws}, s54 offen offset:{k*32} {ldf}")
    else:
        for cf in range(2): a(f"buffer_load_dword v{128+2*cf}, v4, {ws}, s54 offen offset:{cf*128} {ldf}")
        for k in range(8):
            a(f"buffer_load_dwordx4 {v(136+4*k,4)}, v5, {ws}, s51 offen offset:{k*32} {ldf}")
            a(f"buffer_load_dwordx4 {v(168+4*k,4)}, v5, {ws}, s52 offen offset:{k*32} {ldf}")
def qkv_epi(a, sm, sn, vori, stf):
    ws = s(SWS, 4)
    a("s_waitcnt vmcnt(0)")
    if not vori:
        a(f"s_cmp_lt_u32 s{sn}, 5\ns_cselect_b32 s55, {hexf(QSCALE)}, 1.0")
        for r in (128, 130, 132, 134): a(f"v_mul_f32 v{r}, s55, v{r}")
        a(f"s_cselect_b32 s56, 0, {OFF_K - OFF_Q - 160*256}\ns_add_u32 s56, s56, {OFF_Q}")
        a(f"s_lshr_b32 s55, s50, 5\ns_mul_i32 s55, s55, 40960\ns_add_u32 s56, s56, s55\ns_lshl_b32 s55, s53, 6\ns_add_u32 s56, s56, s55\ns_add_u32 s57, s56, 40960")
        a("v_lshlrev_b32 v4, 3, v2\nv_lshl_add_u32 v4, v3, 8, v4")
        for i in range(2):
            for cf in range(2):
                b = QACC + 16*(2*i+cf)
                for p in range(8):
                    a(f"v_pk_mul_f32 {v(b+2*p,2)}, {v(b+2*p,2)}, {v(128+2*i,2)} op_sel_hi:[1,0]")
                for p in range(8):
                    a(f"v_pk_fma_f32 {v(b+2*p,2)}, {v(136+16*cf+2*p,2)}, {v(132+2*i,2)}, {v(b+2*p,2)} op_sel_hi:[1,0,1] neg_lo:[0,1,0] neg_hi:[0,1,0]")
                for p in range(8): a(f"v_cvt_pk_bf16_f32 v{b+p}, v{b+2*p}, v{b+2*p+1}")
                for q in range(4):
                    a(f"buffer_store_dwordx2 {v(b+2*q,2)}, v4, {ws}, s{56+i} offen offset:{(8*cf+2*q)*256} {stf}")
    else:
        a(f"s_lshr_b32 s55, s50, 5\ns_mul_i32 s55, s55, 40960\ns_lshl_b32 s56, s53, 4\ns_add_u32 s56, s56, s55\ns_add_u32 s56, s56, {OFF_V - 1280*16}")
        for k in range(1, 4): a(f"s_add_u32 s{56+k}, s56, {k*20480}")
        a("v_mul_u32_u24 v4, 10240, v3\nv_lshl_add_u32 v4, v2, 4, v4")
        for i in range(2):
            for cf in range(2):
                b = QACC + 16*(2*i+cf)
                for p in range(8):
                    a(f"v_pk_mul_f32 {v(b+2*p,2)}, {v(b+2*p,2)}, {v(136+16*i+2*p,2)}")
                for p in range(8):
                    a(f"v_pk_fma_f32 {v(b+2*p,2)}, {v(168+16*i+2*p,2)}, {v(128+2*cf,2)}, {v(b+2*p,2)} op_sel_hi:[1,0,1] neg_lo:[0,1,0] neg_hi:[0,1,0]")
                for p in range(8): a(f"v_cvt_pk_bf16_f32 v{b+p}, v{b+2*p}, v{b+2*p+1}")
                for m in range(2):
                    a(f"buffer_store_dwordx4 {v(b+4*m,4)}, v4, {ws}, s{56+2*i+m} offen offset:{cf*512} {stf}")

def lds_sync(a, addr, n, vt=2, st=60):
    L = a.newlab("sync")
    a(f"s_waitcnt lgkmcnt(0)\nv_mov_b32 v{vt}, {addr}\nv_mov_b32 v{vt+1}, 1\ns_mov_b64 exec, 1\nds_add_u32 v{vt}, v{vt+1}\ns_mov_b64 exec, -1\ns_mov_b32 s47, 0x80000")
    a.lab(L)
    a(f"ds_read_b32 v{vt+1}, v{vt}\ns_sub_u32 s47, s47, 1\ns_cbranch_scc1 {L}x\ns_waitcnt lgkmcnt(0)\nv_readfirstlane_b32 s{st}, v{vt+1}\ns_cmp_lt_u32 s{st}, {n}\ns_cbranch_scc1 {L}")
    a.lab(L + "x")

MACC, MA, MB = 16, 96, 112
MTR, MDMA, MDIR = 4, 8, 9
S_SRD, S_TO, S_D8, S_STEP, S_DO, S_M0, S_CNT, S_T, S_T2 = 52, 56, 57, 58, 59, 61, 62, 63, 64
def mlp_setup(a, srd, stride, sring, rot=None):
    for k in range(3): a(f"s_mov_b32 s{S_SRD+k}, s{srd+k}")
    a(f"s_mov_b32 s{S_SRD+3}, 0x20000")
    a(f"s_mov_b32 s{S_D8}, {8*stride-1024}\ns_mov_b32 s{S_STEP}, {32*stride - 3*(8*stride-1024)}\ns_mov_b32 s{S_M0}, s{sring}")
    a(f"v_lshrrev_b32 v2, 3, v{VL}\nv_mul_u32_u24 v2, {stride}, v2\nv_bfe_u32 v3, v{VL}, 1, 2\nv_lshrrev_b32 v10, 4, v{VL}\nv_xor_b32 v3, v3, v10\nv_lshl_add_u32 v2, v3, 5, v2\nv_and_b32 v3, 1, v{VL}\nv_lshl_add_u32 v{MDMA}, v3, 4, v2")
    a(f"v_lshlrev_b32 v{MDIR}, 4, v{VL}")
    a(f"v_lshrrev_b32 v2, 2, v{VL}\nv_lshlrev_b32 v2, 7, v2\nv_and_b32 v3, 3, v{VL}\nv_lshl_add_u32 v2, v3, 3, v2\nv_add_u32 v2, s{sring}, v2\nv_bfe_u32 v3, v{VL}, 3, 2")
    if rot is not None: a(f"v_xor_b32 v3, s{rot}, v3")
    for fb in range(4): a(f"v_xor_b32 v10, {fb}, v3\nv_lshl_add_u32 v{MTR+fb}, v10, 5, v2")
def mlp_dma(a, slot):
    a(f"s_add_u32 m0, s{S_M0}, {slot*4096}")
    for i in range(4):
        a(f"buffer_load_dwordx4 v{MDMA}, {s(S_SRD,4)}, s{S_TO} offen offset:{i*1024} lds" if i else f"s_nop 0\nbuffer_load_dwordx4 v{MDMA}, {s(S_SRD,4)}, s{S_TO} offen lds")
        a(f"s_add_u32 s{S_TO}, s{S_TO}, s{S_D8 if i < 3 else S_STEP}")
def mlp_dir(a, slot, db, ldf):
    r = MB + 20*slot + 4*db
    if db < 4: a(f"buffer_load_dwordx4 {v(r,4)}, v{MDIR}, {s(SWS,4)}, s{S_DO} offen offset:{db*1024} {ldf}")
    else: a(f"s_add_u32 s{S_T}, s{S_DO}, 4096\nbuffer_load_dwordx4 {v(r,4)}, v{MDIR}, {s(SWS,4)}, s{S_T} offen {ldf}\ns_add_u32 s{S_DO}, s{S_DO}, 5120")
def mlp_body(a, slot, wait, loads, ldf, swap=False):
    a(f"s_waitcnt vmcnt({wait})")
    for fb in range(4):
        for rd in range(2):
            if not OPT.get("m_noread"): a(f"ds_read_b64_tr_b16 {v(MA+4*fb+2*rd,2)}, v{MTR+fb} offset:{slot*4096+rd*2048}")
    a("s_waitcnt lgkmcnt(0)")
    if loads: mlp_dma(a, slot)
    for db in range(5):
        for fb in range(4):
            acc = v(MACC + (fb*5+db)*4, 4)
            A_, B_ = v(MA+4*fb,4), v(MB+20*slot+4*db,4)
            if swap: A_, B_ = B_, A_
            if not OPT.get("m_nomfma"): a(f"v_mfma_f32_16x16x32_bf16 {acc}, {A_}, {B_}, {acc}")
        if loads: mlp_dir(a, slot, db, ldf)
OPT = {"lead": 0, "leadwait": 27, "rot1": 0}
def lead_setup(a, skw, slead):
    a(f"s_lshr_b32 s{slead}, s{SJ}, 2\ns_add_u32 s{slead}, s{slead}, s{SJ}\ns_and_b32 s{slead}, s{slead}, 3\ns_cmp_eq_u32 s{slead}, s{skw}\ns_cselect_b32 s{slead}, 1, 0")
def mlp_loop(a, sphi, ldf, slead=None, flag=None):
    P = [a.newlab("mp") for _ in range(7)]; B = [a.newlab("mb") for _ in range(4)]; go = a.newlab("mgo")
    lead = OPT["lead"] and slead is not None
    if lead:
        L0 = a.newlab("ld"); L1 = a.newlab("ld")
        a(f"v_mov_b32 v12, {flag}\ns_cmp_eq_u32 s{slead}, 1\ns_cbranch_scc1 {L1}")
        for i in range(80): a(f"v_mov_b32 v{MACC+i}, 0")
        a.lab(L0)
        a(f"ds_read_b32 v13, v12\ns_waitcnt lgkmcnt(0)\nv_readfirstlane_b32 s{S_T}, v13\ns_cmp_eq_u32 s{S_T}, 0\ns_cbranch_scc1 {L0}")
        a.lab(L1)
    a(f"s_cmp_eq_u32 s{sphi}, 2\ns_cbranch_scc1 {P[2]}\ns_cmp_eq_u32 s{sphi}, 3\ns_cbranch_scc1 {P[3]}")
    for k in range(7):
        a.lab(P[k])
        mlp_dma(a, k % 4)
        for db in range(5): mlp_dir(a, k % 4, db, ldf)
        if k in (3, 5): a(f"s_cmp_eq_u32 s{sphi}, {k-3}\ns_cbranch_scc1 {go}")
    a.lab(go)
    if lead:
        L2 = a.newlab("ld")
        a(f"s_cmp_eq_u32 s{slead}, 0\ns_cbranch_scc1 {L2}")
        if OPT["lead"] > 1: a("s_setprio 3")
    for i in range(80): a(f"v_mov_b32 v{MACC+i}, 0")
    if lead:
        a(f"v_mov_b32 v13, 1\ns_waitcnt vmcnt({OPT['leadwait']})\nds_write_b32 v12, v13")
        a.lab(L2)
    a(f"s_cmp_eq_u32 s{sphi}, 2\ns_cbranch_scc1 {B[2]}\ns_cmp_eq_u32 s{sphi}, 3\ns_cbranch_scc1 {B[3]}")
    for k in range(4):
        a.lab(B[k])
        mlp_body(a, k, 27, True, ldf)
    a(f"s_sub_u32 s{S_CNT}, s{S_CNT}, 1\ns_cmp_lg_u32 s{S_CNT}, 0\ns_cbranch_scc1 {B[0]}")
    for k in range(4): mlp_body(a, k, 27-9*k, False, ldf)

def mlp1_tile(a, sdt, sft, skip):
    a(f"s_and_b32 s{sdt}, s{SXCD}, 1\ns_lshl_b32 s{sdt}, s{sdt}, 2\ns_and_b32 s47, s{SJ}, 3\ns_add_u32 s{sdt}, s{sdt}, s47")
    a(f"s_lshr_b32 s{sft}, s{SXCD}, 1\ns_mul_i32 s{sft}, s{sft}, 7\ns_lshr_b32 s47, s{SJ}, 2\ns_add_u32 s{sft}, s{sft}, s47")
    a(f"s_cmp_ge_u32 s47, 7\ns_cbranch_scc1 {skip}\ns_cmp_ge_u32 s{sft}, 27\ns_cbranch_scc1 {skip}")
def mlp1_main(a, sdt, sft, skw, ringbase, ringstride, ldf, flag=None):
    a(f"s_mul_i32 s66, s{skw}, {ringstride}\ns_add_u32 s66, s66, {ringbase}")
    a(f"s_mul_i32 s67, s{skw}, 3\ns_cmp_eq_u32 s{skw}, 3\ns_cselect_b32 s67, 8, s67")
    a(f"v_lshrrev_b32 v2, 4, v{VL}\nv_lshlrev_b32 v11, 3, v2")
    for k in range(3):
        a(f"s_add_u32 s65, s67, {k}\ns_cmp_ge_u32 s65, 5\ns_cselect_b32 s65, 64, 0\ns_lshl_b32 s68, s{sft}, 7\ns_add_u32 s65, s65, s68")
        for t in range(2): a(f"buffer_load_dwordx2 {v(192+4*k+2*t,2)}, v11, {s(SB1,4)}, s65 offen offset:{t*32}")
    mlp_setup(a, SW1, 3456, 66)
    a(f"s_mul_i32 s{S_TO}, s{skw}, {512*3456}\ns_lshl_b32 s65, s{sft}, 7\ns_add_u32 s{S_TO}, s{S_TO}, s65")
    a(f"s_mul_i32 s{S_DO}, s{sdt}, 327680\ns_mul_i32 s65, s{skw}, {16*5120}\ns_add_u32 s{S_DO}, s{S_DO}, s65\ns_add_u32 s{S_DO}, s{S_DO}, {OFF_H}")
    lead_setup(a, skw, 75)
    a(f"s_mov_b32 s{S_CNT}, 3\ns_mov_b32 s65, 0")
    mlp_loop(a, 65, ldf, 75, flag)
GC1 = -2*1.4426950408889634*0.7978845608028654
GC2 = GC1*0.044715
def mlp1_epi(a, sdt, sft, skw, ringbase, ringstride, cnt_addr, stf):
    a(f"v_add_u32 v10, s66, v{MDIR}\ns_nop 7")
    for t in range(20): a(f"ds_write_b128 v10, {v(MACC+4*t,4)} offset:{t*1024}")
    lds_sync(a, cnt_addr, 4)
    a(f"s_mul_i32 s68, s{sdt}, {54*5120}\ns_mul_i32 s65, s{sft}, 10240\ns_add_u32 s68, s68, s65\ns_lshl_b32 s65, s67, 10\ns_add_u32 s68, s68, s65\ns_add_u32 s68, s68, {OFF_G}")
    skip = a.newlab("m1e")
    for k in range(3):
        if k == 2: a(f"s_cmp_ge_u32 s{skw}, 2\ns_cbranch_scc1 {skip}_r")
        a(f"s_add_u32 s65, s67, {k}\ns_cmp_ge_u32 s65, 5\ns_cselect_b32 s69, 5, 0\ns_add_u32 s65, s65, s69\ns_lshl_b32 s65, s65, 10\ns_add_u32 s65, s65, {ringbase}")
        a(f"v_add_u32 v10, s65, v{MDIR}\nv_add_u32 v11, 5120, v10")
        for t in range(2):
            for src in range(4): a(f"ds_read_b128 {v(16+32*k+16*t+4*src,4)}, v{10+t} offset:{src*ringstride}")
    a.lab(skip + "_r")
    a(f"s_mov_b32 s70, {hexf(GC1)}\ns_mov_b32 s71, {hexf(GC1)}\ns_mov_b32 s72, {hexf(GC2)}\ns_mov_b32 s73, {hexf(GC2)}\nv_mov_b32 v14, s70\nv_mov_b32 v15, s70")
    a("s_waitcnt lgkmcnt(0)")
    for k in range(3):
        if k == 2: a(f"s_cmp_ge_u32 s{skw}, 2\ns_cbranch_scc1 {skip}")
        b = 16 + 32*k
        for t in range(2):
            for q in range(2):
                bb = 192+4*k+2*t+q
                a(f"v_lshlrev_b32 v{112+4*t+2*q}, 16, v{bb}\nv_and_b32 v{113+4*t+2*q}, 0xffff0000, v{bb}")
        for src in range(4):
            for t in range(2):
                for q in range(2): a(f"v_pk_add_f32 {v(112+4*t+2*q,2)}, {v(112+4*t+2*q,2)}, {v(b+16*t+4*src+2*q,2)}")
        for q in range(4): a(f"v_pk_mul_f32 {v(120+2*q,2)}, {v(112+2*q,2)}, {v(112+2*q,2)}")
        for q in range(4): a(f"v_pk_fma_f32 {v(120+2*q,2)}, {v(120+2*q,2)}, s[72:73], v[14:15]")
        for q in range(4): a(f"v_pk_mul_f32 {v(120+2*q,2)}, {v(120+2*q,2)}, {v(112+2*q,2)}")
        for q in range(8): a(f"v_exp_f32 v{120+q}, v{120+q}")
        for q in range(8): a(f"v_add_f32 v{120+q}, 1.0, v{120+q}")
        for q in range(8): a(f"v_rcp_f32 v{120+q}, v{120+q}")
        a("s_nop 0")
        for q in range(4): a(f"v_pk_mul_f32 {v(120+2*q,2)}, {v(120+2*q,2)}, {v(112+2*q,2)}")
        for q in range(4): a(f"v_cvt_pk_bf16_f32 v{128+4*k+q}, v{120+2*q}, v{121+2*q}")
        a(f"buffer_store_dwordx4 {v(128+4*k,4)}, v{MDIR}, {s(SWS,4)}, s68 offen offset:{k*1024} {stf}")
    a.lab(skip)

AS, AMD, AME, AO, AK, AV, AQ = 16, 160, 176, 192, 208, 226, 242
def attn_ids(a, shd, sb):
    a(f"s_lshl_b32 s{shd}, s{SXCD}, 2\ns_and_b32 s47, s{SJ}, 3\ns_add_u32 s{shd}, s{shd}, s47\ns_lshr_b32 s{sb}, s{SJ}, 2")
def attn_masks(a):
    a(f"v_and_b32 v2, 31, v{VL}\nv_lshrrev_b32 v3, 5, v{VL}\nv_lshlrev_b32 v3, 2, v3\nv_sub_u32 v2, v2, v3\nv_mov_b32 v3, {NEGINF}")
    for r0 in range(0, 16, 4):
        for r in range(r0, r0+4): a(f"v_cmp_le_i32 {s(66+2*(r-r0),2)}, {8*(r>>2)+(r&3)}, v2")
        for r in range(r0, r0+4): a(f"v_cndmask_b32 v{AMD+r}, v3, 0, {s(66+2*(r-r0),2)}\nv_cndmask_b32 v{AME+r}, 0, v3, {s(66+2*(r-r0),2)}")
def attn_loads(a, shd, sb, base, ldf):
    ws = s(SWS, 4); w = SWAVE
    KB, VB = base, base + 20480
    a(f"s_lshl_b32 s50, s{sb}, 3\ns_sub_u32 s51, s50, 8\ns_cmp_eq_u32 s{sb}, 0\ns_cselect_b32 s52, 0, s51\ns_cmp_ge_u32 s{w}, 2\ns_cselect_b32 s51, s51, s52\ns_lshl_b32 s52, s{w}, 2\ns_add_u32 s51, s51, s52\ns_mul_i32 s51, s51, 40960")
    a(f"v_and_b32 v2, 31, v{VL}\nv_lshrrev_b32 v3, 5, v{VL}\nv_lshlrev_b32 v4, 3, v2\nv_lshl_add_u32 v5, v3, 9, v4\nv_mov_b32 v6, {OOB}\nv_cmp_eq_u32 vcc, 0, v3\ns_nop 1\nv_cndmask_b32 v6, v6, v4, vcc")
    a(f"s_add_u32 s52, s50, s{w}\ns_mul_i32 s52, s52, 40960\ns_mul_i32 s53, s{shd}, 1280\ns_add_u32 s52, s52, s53\ns_add_u32 s54, s52, {OFF_Q}\ns_add_u32 s55, s54, {4*40960}")
    for t in range(2):
        a(f"buffer_load_dwordx2 {v(AQ+6*t,2)}, v5, {ws}, s{54+t} offen {ldf}\nbuffer_load_dwordx2 {v(AQ+6*t+2,2)}, v5, {ws}, s{54+t} offen offset:256 {ldf}\nbuffer_load_dwordx2 {v(AQ+6*t+4,2)}, v6, {ws}, s{54+t} offen offset:1024 {ldf}")
    a(f"s_add_u32 s56, s52, {OFF_O}")
    a(f"s_add_u32 s53, s53, s51\ns_add_u32 s53, s53, {OFF_K}\ns_mul_i32 s54, s{w}, 5120\ns_add_u32 m0, s54, {KB}\ns_mov_b32 s55, 39680")
    for i in range(5):
        a(f"v_add_u32 v7, {64*i}, v{VL}\nv_mul_u32_u24 v7, 205, v7\nv_lshrrev_b32 v7, 14, v7\nv_mul_lo_u32 v7, v7, s55\nv_lshl_add_u32 v7, v{VL}, 4, v7")
        if i == 4: a(f"s_add_u32 m0, s54, {KB+4096}\nv_add_u32 v7, 4096, v7")
        a(f"buffer_load_dwordx4 v7, {ws}, s53 offen offset:{(i&3)*1024} {ldf} lds")
    a(f"v_mul_u32_u24 v7, 49, v{VL}\nv_lshrrev_b32 v7, 10, v7\nv_mul_u32_u24 v7, {10240-336}, v7\nv_lshl_add_u32 v7, v{VL}, 4, v7")
    a(f"s_mul_i32 s53, s{shd}, 320\ns_add_u32 s53, s53, s51\ns_add_u32 s53, s53, {OFF_V}\ns_mul_i32 s54, s{w}, 5376\ns_add_u32 s54, s54, {VB}")
    for k in range(6):
        a(f"s_add_u32 m0, s54, {k*1008}")
        if k == 5: a("s_mov_b64 exec, 0x1fffff")
        else: a("s_nop 0")
        a(f"buffer_load_dwordx4 v7, {ws}, s53 offen {ldf} lds\ns_add_u32 s53, s53, 30720")
    a("s_mov_b64 exec, -1")
    a(f"s_mul_i32 s53, s{w}, 1280\ns_add_u32 s53, s53, {KB}\nv_add_u32 v8, s53, v5\nv_add_u32 v9, s53, v4")
    a(f"v_min_u32 v10, 20, v2\nv_cmp_lt_u32 vcc, 27, v2\nv_mul_u32_u24 v13, 336, v3\ns_nop 0\nv_cndmask_b32 v10, v10, 4, vcc".replace("v_cndmask_b32 v10, v10, 4, vcc", "v_cndmask_b32_e64 v10, v10, 4, vcc"))
    a(f"s_mul_i32 s53, s{w}, 1344\ns_add_u32 s53, s53, {VB}\nv_lshl_add_u32 v10, v10, 4, v13\nv_add_u32 v10, s53, v10")
    a(f"v_lshl_add_u32 v11, v3, 8, v4\nv_mov_b32 v12, v6")
    a(f"v_and_b32 v13, 15, v{VL}\nv_mul_u32_u24 v13, 336, v13\nv_add_u32 v13, s54, v13")
    a("v_mov_b32 v4, 0x3f803f80\nv_mov_b32 v5, v4\nv_mov_b32 v6, v4\nv_mov_b32 v7, v4")
    a(f"s_sub_u32 s57, 8, s{w}\ns_cmp_eq_u32 s{sb}, 0\ns_cselect_b32 s57, s57, 0\ns_cselect_b32 s58, 4, 0")
def attn_compute(a, cnt_addr, stf):
    ws = s(SWS, 4)
    a("s_waitcnt vmcnt(0)\nds_write_b128 v13, v[4:7] offset:320")
    lds_sync(a, cnt_addr, 4)
    a("s_mov_b32 s59, 0")
    if OPT.get("astamp"): stamp(a, 3)
    L = a.newlab("atask")
    if OPT.get("aalign"): a(".p2align 3")
    a.lab(L)
    def kread(p):
        b = AK + 6*(p % 3)
        a(f"ds_read_b64 {v(b,2)}, v8 offset:{p*1280}\nds_read_b64 {v(b+2,2)}, v8 offset:{p*1280+256}\nds_read_b64 {v(b+4,2)}, v9 offset:{p*1280+1024}")
    def vread(p):
        b = AV + 8*(p % 2)
        for m in range(2): a(f"ds_read_b128 {v(b+4*m,4)}, v10 offset:{p*1344+m*672}")
    def mx(p):
        sk = a.newlab("inv")
        if p < 8:
            a(f"s_cmp_le_u32 s57, {p}\ns_cbranch_scc1 {sk}")
            for r in range(16): a(f"v_mov_b32 v{AS+16*p+r}, {NEGINF}")
            a.lab(sk)
        for q in range(8):
            d = 2 + (q & 1)
            if p == 0 and q < 2: a(f"v_max_f32 v{d}, v{AS+2*q}, v{AS+2*q+1}")
            else: a(f"v_max3_f32 v{d}, v{d}, v{AS+16*p+2*q}, v{AS+16*p+2*q+1}")
    kread(0); kread(1)
    for p in range(9):
        if p + 2 < 9: kread(p+2)
        a(f"s_waitcnt lgkmcnt({min(2, 8-p)*3})")
        b = AK + 6*(p % 3); S = v(AS+16*p, 16)
        C = v(AME,16) if p == 0 else v(AMD,16) if p == 8 else "0"
        a(f"v_mfma_f32_32x32x16_bf16 {S}, {v(b,4)}, {v(AQ,4)}, {C}")
        a(f"v_mfma_f32_32x32x8bf16_1k {S}, {v(b+4,2)}, {v(AQ+4,2)}, {S}")
        if p >= 2: mx(p-2)
    vread(0)
    mx(7)
    a("s_nop 1")
    mx(8)
    a("v_max_f32 v2, v2, v3\nv_mov_b32 v3, v2\ns_nop 1\nv_permlane32_swap_b32 v2, v3\nv_max_f32 v2, v2, v3")
    if OPT.get("astamp"):
        LL = a.newlab("st"); a(f"s_cmp_eq_u32 s59, {OPT['astamp']-1}\ns_cbranch_scc0 {LL}"); stamp(a, 4); a.lab(LL)
    def pv(p):
        b = AV + 8*(p % 2)
        for m in range(2):
            C = "0" if (p == 0 and m == 0) else v(AO,16)
            a(f"v_mfma_f32_32x32x16_bf16 {v(AO,16)}, {v(b+4*m,4)}, {v(AS+16*p+4*m,4)}, {C}")
    for p in range(9):
        b = AS + 16*p
        if OPT.get("nopk"):
            for q in range(16): a(f"v_sub_f32 v{b+q}, v{b+q}, v2")
        else:
            for q in range(8): a(f"v_pk_add_f32 {v(b+2*q,2)}, {v(b+2*q,2)}, v[2:3] op_sel_hi:[1,0] neg_lo:[0,1] neg_hi:[0,1]")
        if p > 0:
            a("s_waitcnt lgkmcnt(0)"); pv(p-1)
        if p + 1 < 9 and p > 0: vread(p+1)
        if p == 0: vread(1)
        for q in range(16): a(f"v_exp_f32 v{b+q}, v{b+q}")
        a("s_nop 0")
        for q in range(8): a(f"v_cvt_pk_bf16_f32 v{b+q}, v{b+2*q}, v{b+2*q+1}")
    a("s_waitcnt lgkmcnt(0)\ns_nop 0"); pv(8)
    for r in range(6): a(f"v_mov_b32 v{AQ+r}, v{AQ+6+r}")
    a(f"v_add_u32 v8, {4*1280}, v8\nv_add_u32 v9, {4*1280}, v9\nv_add_u32 v10, {4*1344}, v10\ns_sub_u32 s57, s57, s58\ns_nop 2")
    a(f"v_mov_b32 v2, v{AO+8}\nv_mov_b32 v3, v{AO+8}\ns_nop 1\nv_permlane32_swap_b32 v2, v3\nv_rcp_f32 v2, v3\ns_nop 0")
    for q in range(6): a(f"v_pk_mul_f32 {v(AO+2*q,2)}, {v(AO+2*q,2)}, v[2:3] op_sel_hi:[1,0]")
    for q in range(6): a(f"v_cvt_pk_bf16_f32 v{AS+q}, v{AO+2*q}, v{AO+2*q+1}")
    a(f"buffer_store_dwordx2 {v(AS,2)}, v11, {ws}, s56 offen {stf}\nbuffer_store_dwordx2 {v(AS+2,2)}, v11, {ws}, s56 offen offset:512 {stf}\nbuffer_store_dwordx2 {v(AS+4,2)}, v12, {ws}, s56 offen offset:1024 {stf}")
    if OPT.get("astamp"):
        LL = a.newlab("st"); a(f"s_cmp_eq_u32 s59, 0\ns_cbranch_scc0 {LL}"); stamp(a, 5 if OPT['astamp'] == 1 else 3); a.lab(LL)
    a(f"s_add_u32 s56, s56, {4*40960}\ns_add_u32 s59, s59, 1\ns_cmp_lt_u32 s59, 2\ns_cbranch_scc1 {L}")

def fin_tile(a, sdt, sst):
    a(f"s_and_b32 s{sdt}, s{SXCD}, 1\ns_lshl_b32 s{sdt}, s{sdt}, 2\ns_and_b32 s47, s{SJ}, 3\ns_add_u32 s{sdt}, s{sdt}, s47")
    a(f"s_lshr_b32 s{sst}, s{SXCD}, 1\ns_lshl_b32 s{sst}, s{sst}, 3\ns_lshr_b32 s47, s{SJ}, 2\ns_add_u32 s{sst}, s{sst}, s47")
def fin_resid_loads(a, sdt, sst, sw):
    a(f"s_lshl_b32 s65, s{sst}, 6\ns_lshl_b32 s68, s{sw}, 4\ns_add_u32 s65, s65, s68\ns_mul_i32 s74, s65, 1280\ns_mul_i32 s68, s{sdt}, 160\ns_add_u32 s74, s74, s68\ns_lshl_b32 s65, s65, 1")
    for k in range(3):
        a(f"v_add_u32 v2, {64*k}, v{VL}\nv_mul_u32_u24 v3, 205, v2\nv_lshrrev_b32 v3, 11, v3\nv_mul_u32_u24 v10, 1120, v3\nv_lshl_add_u32 v{207+k}, v2, 4, v10\nv_lshlrev_b32 v3, 1, v3")
        if k == 2: a(f"v_cmp_gt_u32 vcc, 32, v{VL}\nv_mov_b32 v10, {OOB}\ns_nop 0\nv_cndmask_b32 v209, v10, v209, vcc\nv_cndmask_b32 v3, v10, v3, vcc")
        a(f"buffer_load_dwordx4 {v(192+4*k,4)}, v{207+k}, {s(SX,4)}, s74 offen\nbuffer_load_ushort v{204+k}, v3, {s(SB2,4)}, s65 offen")
def mlp2_main(a, sdt, sst, sw, ringbase, ringstride, ldf, flag=None):
    a(f"s_mul_i32 s66, s{sw}, {ringstride}\ns_add_u32 s66, s66, {ringbase}")
    mlp_setup(a, SW2, 4096, 66, rot=sw)
    a(f"s_mul_i32 s67, s{sw}, 14\ns_cmp_eq_u32 s{sw}, 3\ns_cselect_b32 s67, 41, s67")
    a(f"s_lshl_b32 s{S_TO}, s67, 17\ns_lshl_b32 s65, s{sst}, 7\ns_add_u32 s{S_TO}, s{S_TO}, s65")
    a(f"s_mul_i32 s{S_DO}, s{sdt}, {54*5120}\ns_mul_i32 s65, s67, 5120\ns_add_u32 s{S_DO}, s{S_DO}, s65\ns_add_u32 s{S_DO}, s{S_DO}, {OFF_G}")
    lead_setup(a, sw, 75)
    a(f"s_mov_b32 s{S_CNT}, 3\ns_cmp_ge_u32 s{sw}, 2\ns_cselect_b32 s65, 3, 2")
    mlp_loop(a, 65, ldf, 75, flag)
WB, WA = 96, 196
def wo_bloads(a, sdt, skw, ldf):
    a(f"v_lshlrev_b32 v{MDIR}, 4, v{VL}\ns_mul_i32 s50, s{sdt}, 102400\ns_mul_i32 s51, s{skw}, {5*5120}\ns_add_u32 s50, s50, s51\ns_add_u32 s50, s50, {OFF_WOF}")
    for i in range(25):
        a(f"buffer_load_dwordx4 {v(WB+4*i,4)}, v{MDIR}, {s(SWS,4)}, s50 offen offset:{(i&3)*1024} {ldf}")
        if (i & 3) == 3: a("s_add_u32 s50, s50, 4096")
def wo_main(a, sst, skw, ldf):
    a(f"v_lshrrev_b32 v2, 4, v{VL}\nv_and_b32 v3, 15, v{VL}\nv_lshlrev_b32 v3, 3, v3\nv_lshl_add_u32 v8, v2, 9, v3")
    a(f"s_mul_i32 s50, s{sst}, 81920\ns_mul_i32 s51, s{skw}, {5*2048}\ns_add_u32 s50, s50, s51\ns_add_u32 s50, s50, {OFF_O}")
    for i in range(4):
        a(f"s_xor_b32 s51, s{skw}, {i}\ns_lshr_b32 s56, s51, 1\ns_mul_i32 s56, s56, 40960\ns_and_b32 s51, s51, 1\ns_lshl_b32 s51, s51, 7\ns_add_u32 s51, s51, s56\ns_add_u32 s{52+i}, s50, s51")
    def aload(st):
        for i in range(4):
            for e in range(2): a(f"buffer_load_dwordx2 {v(WA+16*(st%3)+4*i+2*e,2)}, v8, {s(SWS,4)}, s{52+i} offen offset:{(st&1)*2048+e*256} {ldf}")
            if st & 1: a(f"s_add_u32 s{52+i}, s{52+i}, 4096")
    for st in range(3): aload(st)
    for st in range(5):
        a(f"s_waitcnt vmcnt({8*min(2, 4-st)})")
        for db in range(5):
            for i in range(4):
                acc = v(MACC+(i*5+db)*4, 4)
                a(f"v_mfma_f32_16x16x32_bf16 {acc}, {v(WA+16*(st%3)+4*i,4)}, {v(WB+20*st+4*db,4)}, {'0' if st == 0 else acc}")
        if st + 3 < 5: aload(st+3)
def fin_write(a, sbase, first):
    a(f"v_add_u32 v10, s{sbase}, v{MDIR}\ns_nop 7")
    for t in range(first, 20): a(f"ds_write_b128 v10, {v(MACC+4*t,4)} offset:{(t-first)*1024}")
    a("s_waitcnt lgkmcnt(0)")
def fin_epi(a, sw, xbase, xstride, ybase, ystride):
    for i in range(1, 4):
        a(f"s_xor_b32 s65, s{sw}, {i}\ns_mul_i32 s65, s65, {xstride}\ns_add_u32 s65, s65, {xbase+(i-1)*5120}\nv_add_u32 v10, s65, v{MDIR}")
        for db in range(5): a(f"ds_read_b128 {v(16+20*i+4*db,4)}, v10 offset:{db*1024}")
    for i in range(4):
        a(f"s_xor_b32 s65, s{sw}, {i}\ns_mul_i32 s65, s65, {ystride}\ns_add_u32 s65, s65, {ybase+i*5120}\nv_add_u32 v10, s65, v{MDIR}")
        if i == 0: a("s_mov_b32 s66, s65")
        for db in range(5): a(f"ds_read_b128 {v(96+20*i+4*db,4)}, v10 offset:{db*1024}")
        if i == 1: a("s_waitcnt lgkmcnt(10)")
    for i in range(1, 8):
        if i == 4: a("s_waitcnt lgkmcnt(0)")
        for q in range(10): a(f"v_pk_add_f32 {v(16+2*q,2)}, {v(16+2*q,2)}, {v(16+20*i+2*q,2)}")
    a(f"v_lshrrev_b32 v2, 4, v{VL}\nv_mul_u32_u24 v2, 1280, v2\nv_and_b32 v3, 15, v{VL}\nv_lshl_add_u32 v2, v3, 2, v2\nv_add_u32 v2, s66, v2\nv_lshlrev_b32 v3, 5, v{VL}\nv_add_u32 v3, s66, v3")
    for db in range(5):
        for r in range(4): a(f"ds_write_b32 v2, v{16+4*db+r} offset:{r*320+db*64}")
    a("s_waitcnt lgkmcnt(0)")
    for k in range(3): a(f"ds_read_b128 {v(40+8*k,4)}, v3 offset:{k*2048}\nds_read_b128 {v(44+8*k,4)}, v3 offset:{k*2048+16}")
    for k in range(3):
        a(f"v_lshlrev_b32 v{204+k}, 16, v{204+k}")
        for q in range(4): a(f"v_lshlrev_b32 v{64+8*k+2*q}, 16, v{192+4*k+q}\nv_and_b32 v{65+8*k+2*q}, 0xffff0000, v{192+4*k+q}")
        for q in range(8): a(f"v_add_f32 v{64+8*k+q}, v{64+8*k+q}, v{204+k}")
    for k in range(3):
        a(f"s_waitcnt lgkmcnt({4-2*k})")
        for q in range(4): a(f"v_pk_add_f32 {v(40+8*k+2*q,2)}, {v(40+8*k+2*q,2)}, {v(64+8*k+2*q,2)}")
        for q in range(4): a(f"v_cvt_pk_bf16_f32 v{96+4*k+q}, v{40+8*k+2*q}, v{41+8*k+2*q}")
        a(f"buffer_store_dwordx4 {v(96+4*k,4)}, v{207+k}, {s(SOUT,4)}, s74 offen")
```

```python
import sys
import blocks
from blocks import *
NAME = "parallel_sum__sliding_block__mixer_token_mlp__prompt_kernel"
LDS = 163840
L_LN = 131072
L_ST = 147456
L_CSP = L_ST + 1536
OFF_CSP = 0xB000
L_KN = LDS - 128
L_CNT = LDS - 64
C_QA, C_AGO, C_AK, C_OA, C_MP, C_GA, C_W1, C_W2, C_GGO, C_OGO, C_AV, C_WR = [L_CNT + 4*i for i in range(12)]
M1BASE, M1STR = 65536, 20480
G_Q, G_O, G_G, G_W = OFF_FLAG, OFF_FLAG + 16*256, OFF_FLAG + 24*256, OFF_FLAG + 32*256
NCTR = 33
OFF_O1, OFF_O2 = OFF_O, OFF_O + 0x200000
ST, LD = "sc1", "sc1"
SM, SN, SROLE, SDT1, SFT, SHAS1, SDT3, SST, SHD, SBQ, SKW = 76, 77, 78, 79, 80, 81, 82, 83, 48, 49, 75

def garrive(a, srd, soff, target, doneoff, L, va=3):
    a(f"v_mov_b32 v{va}, 1\nbuffer_atomic_add v{va}, off, {s(srd,4)}, s{soff} sc0 sc1\ns_waitcnt vmcnt(0)\nv_readfirstlane_b32 s60, v{va}\ns_cmp_lg_u32 s60, {target-1}\ns_cbranch_scc1 {L}")
    a(f"v_mov_b32 v{va}, 1\nbuffer_store_dword v{va}, off, {s(srd,4)}, s{doneoff[0]} offset:{doneoff[1]} sc1")
def arrive(a, lcnt, n, goff_sgpr, target):
    L = a.newlab("arr")
    a(f"s_waitcnt vmcnt(0)\nv_mov_b32 v2, {lcnt}\nv_mov_b32 v3, 1\ns_mov_b64 exec, 1\nds_add_rtn_u32 v14, v2, v3\ns_waitcnt lgkmcnt(0)\nv_readfirstlane_b32 s60, v14\ns_cmp_lg_u32 s60, {n-1}\ns_cbranch_scc1 {L}")
    garrive(a, SWS, goff_sgpr, target, (goff_sgpr, 128), L)
    a.lab(L)
    a("s_mov_b64 exec, -1")
def lds_wait(a, addr, n, vreg=2):
    L = a.newlab("lw")
    if addr is not None: a(f"v_mov_b32 v2, {addr}")
    a("s_mov_b32 s47, 0x80000")
    a.lab(L)
    a(f"ds_read_b32 v3, v{vreg}\ns_sub_u32 s47, s47, 1\ns_cbranch_scc1 {L}x\ns_waitcnt lgkmcnt(0)\nv_readfirstlane_b32 s60, v3\ns_cmp_lt_u32 s60, {n}\ns_cbranch_scc1 {L}")
    a.lab(L + "x")
def lds_set(a, addr):
    a(f"v_mov_b32 v2, {addr}\nv_mov_b32 v3, 1\nds_write_b32 v2, v3")
def gpoll(a, vaddr, srd, soff, target, nl, vd=3, slp=None):
    L = a.newlab("gp")
    a(f"s_mov_b64 exec, {(1<<nl)-1}\ns_mov_b32 s47, 0x8000")
    a.lab(L)
    a(f"buffer_load_dword v{vd}, v{vaddr}, {s(srd,4)}, {soff} offen sc1\ns_sub_u32 s47, s47, 1\ns_cbranch_scc1 {L}x\ns_waitcnt vmcnt(0)\nv_cmp_ne_u32 vcc, {target}, v{vd}\ns_cbranch_vccz {L}x\ns_sleep {slp or OPT.get('slp', 2)}\ns_branch {L}")
    a.lab(L + "x")
    a("s_mov_b64 exec, -1")
def c1_poll(a, slp=None):
    a(f"v_lshlrev_b32 v2, 2, v{VL}\nv_add_u32 v2, 128, v2")
    gpoll(a, 2, SDBG, 0, 1, 2, slp=slp)

def est(a, i):
    if OPT.get("mst") == 3: stamp(a, i, True)
def ast(a, i, cond=None, m=5):
    if OPT.get("mst") != m: return
    if cond is None: stamp(a, i, True); return
    LL = a.newlab("as"); a(f"s_cmp_eq_u32 s59, {cond}\ns_cbranch_scc0 {LL}"); stamp(a, i, True); a.lab(LL)
def fst(a, i):
    if OPT.get("mst") == 4: stamp(a, i, True)
def ids(a):
    x, j = SXCD, SJ
    a(f"s_and_b32 s50, s{x}, 1\ns_mul_i32 s51, s50, 30\ns_add_u32 s51, s51, s{j}\ns_lshr_b32 s{SN}, s51, 2\ns_and_b32 s51, s51, 3\ns_lshr_b32 s52, s{x}, 1\ns_lshl_b32 s{SM}, s52, 2\ns_add_u32 s{SM}, s{SM}, s51")
def ids_late(a):
    x, j = SXCD, SJ
    a(f"s_and_b32 s56, s{x}, 1\ns_lshl_b32 s56, s56, 2\ns_lshr_b32 s58, s{x}, 1")
    a(f"s_mul_i32 s57, s58, 27\ns_add_u32 s57, s57, s{j}\ns_lshr_b32 s{SFT}, s57, 2\ns_and_b32 s57, s57, 3\ns_add_u32 s{SDT1}, s56, s57")
    a(f"s_and_b32 s57, s{j}, 3\ns_add_u32 s{SDT3}, s56, s57\ns_lshl_b32 s58, s58, 3\ns_lshr_b32 s57, s{j}, 2\ns_add_u32 s{SST}, s58, s57")

def ln_issue(a):
    a(f"s_lshr_b32 s50, s{SXCD}, 1\ns_lshl_b32 s50, s50, 6\ns_and_b32 s51, s{SXCD}, 1\ns_lshl_b32 s51, s51, 5\ns_add_u32 s50, s50, s51\ns_add_u32 s50, s50, s{SJ}")
    a(f"s_lshr_b32 s51, s50, 2\ns_and_b32 s52, s50, 3\ns_lshl_b32 s53, s51, 5\ns_lshl_b32 s54, s52, 2\ns_add_u32 s53, s53, s54")
    a(f"s_lshr_b32 s54, s{SWAVE}, 1\ns_lshl_b32 s54, s54, 4\ns_add_u32 s53, s53, s54\ns_and_b32 s54, s{SWAVE}, 1\ns_lshl_b32 s54, s54, 1\ns_add_u32 s53, s53, s54")
    rows_load(a, SX, SWAVE, 53, 54)
    a(f"s_mul_i32 s55, s51, 5120\ns_lshl_b32 s52, s52, 8\ns_add_u32 s55, s55, s52\ns_add_u32 s55, s55, {OFF_H}")
def init_counters(a):
    L = a.newlab("ic")
    a(f"s_cmp_lg_u32 s{SWAVE}, 0\ns_cbranch_scc1 {L}")
    a(f"v_and_b32 v6, 15, v{VL}\nv_lshlrev_b32 v6, 2, v6\nv_add_u32 v6, {L_CNT}, v6\nv_mov_b32 v7, 0\nds_write_b32 v6, v7")
    a(f"s_cmp_ge_u32 s2, {NCTR}\ns_cbranch_scc1 {L}\ns_lshl_b32 s56, s2, 8\ns_add_u32 s56, s56, {OFF_FLAG}\nv_lshlrev_b32 v6, 7, v{VL}\ns_mov_b64 exec, 3\nbuffer_store_dword v7, v6, {s(SWS,4)}, s56 offen sc1\ns_mov_b64 exec, -1")
    a.lab(L)
def c1_arrive(a):
    L = a.newlab("c1a")
    a(f"s_and_b32 s57, s2, 1\ns_lshl_b32 s56, s57, 6\ns_lshl_b32 s57, s57, 2\ns_mov_b64 exec, 1")
    garrive(a, SDBG, 56, 128, (57, 128), L, va=15)
    a.lab(L)
    a("s_mov_b64 exec, -1")

def loader(a):
    st = 48
    lw, sxo, swo, sm0, t, ko = st, st+1, st+2, st+3, st+4, st+5
    a(f"s_sub_u32 s{lw}, s{SWAVE}, 4")
    a(f"v_lshrrev_b32 v2, 3, v{VL}\nv_mul_u32_u24 v2, 1280, v2\nv_and_b32 v3, 7, v{VL}\nv_lshrrev_b32 v4, 4, v{VL}\nv_xor_b32 v3, v3, v4\nv_lshl_add_u32 v210, v3, 4, v2\nv_xor_b32 v211, 64, v210")
    a(f"v_mul_u32_u24 v2, 3840, v4\nv_bfe_u32 v3, v{VL}, 2, 2\nv_xor_b32 v3, v3, v4\nv_lshl_add_u32 v2, v3, 6, v2\nv_and_b32 v3, 3, v{VL}\nv_lshl_add_u32 v212, v3, 4, v2")
    a(f"s_lshl_b32 s{sxo}, s{SM}, 7\ns_lshl_b32 s{t}, s{lw}, 5\ns_add_u32 s{sxo}, s{sxo}, s{t}\ns_mul_i32 s{sxo}, s{sxo}, 1280")
    a(f"s_mul_i32 s{swo}, s{lw}, {16*3840}\ns_lshl_b32 s{t}, s{SN}, 8\ns_add_u32 s{swo}, s{swo}, s{t}")
    a(f"s_lshl_b32 s{sm0}, s{lw}, 12")
    rot = 2
    G10 = OPT.get("g10", 1)
    if G10: a(f"s_mul_i32 s{ko}, s{SN}, 3\ns_add_u32 s{ko}, s{ko}, s{SM}\ns_mul_i32 s{t}, s{ko}, 205\ns_lshr_b32 s{t}, s{t}, 11\ns_mul_i32 s{t}, s{t}, 10\ns_sub_u32 s{ko}, s{ko}, s{t}")
    else: a(f"s_add_u32 s{ko}, s{SM}, s{SN}\ns_mul_i32 s{t}, s{ko}, 52\ns_lshr_b32 s{t}, s{t}, 8\ns_mul_i32 s{t}, s{t}, 5\ns_sub_u32 s{ko}, s{ko}, s{t}\ns_lshl_b32 s{ko}, s{ko}, 1")
    a(f"s_lshl_b32 s{t}, s{ko}, 7\ns_add_u32 s{sxo}, s{sxo}, s{t}\ns_mul_i32 s{t}, s{ko}, 245760\ns_add_u32 s{swo}, s{swo}, s{t}")
    t2 = 62
    a("s_movk_i32 s65, 128\ns_mov_b32 s66, 245760")
    def stage(extra=""):
        a(f"s_mov_b32 m0, s{sm0}\ns_add_u32 s{t}, s{sxo}, 9216")
        a(f"buffer_load_dwordx4 v210, {s(SX,4)}, s{sxo} offen lds")
        a(f"buffer_load_dwordx4 v211, {s(SX,4)}, s{t} offen offset:1024 lds\ns_add_u32 s{t}, s{t}, 9216\ns_add_u32 s{t2}, s{t}, 9216")
        a(f"buffer_load_dwordx4 v210, {s(SX,4)}, s{t} offen offset:2048 lds\nbuffer_load_dwordx4 v211, {s(SX,4)}, s{t2} offen offset:3072 lds")
        a(f"s_add_u32 m0, s{sm0}, 16384\ns_add_u32 s{t}, s{swo}, 14336")
        a(f"buffer_load_dwordx4 v212, {s(SWQ,4)}, s{swo} offen lds\nbuffer_load_dwordx4 v212, {s(SWQ,4)}, s{t} offen offset:1024 lds")
        a(f"s_add_u32 s{t}, s{t}, 14336\ns_add_u32 s{t2}, s{t}, 14336")
        a(f"s_add_u32 s{sm0}, s{sm0}, 0x8000\ns_and_b32 s{sm0}, s{sm0}, 0x1ffff\ns_add_u32 s{ko}, s{ko}, 1\ns_cmp_eq_u32 s{ko}, 10\ns_cselect_b32 s63, {128-1280}, s65\ns_cselect_b32 s64, {245760-2457600}, s66\ns_add_u32 s{sxo}, s{sxo}, s63\ns_add_u32 s{swo}, s{swo}, s64")
        a(f"buffer_load_dwordx4 v212, {s(SWQ,4)}, s{t} offen offset:2048 lds")
        if extra: a(extra)
        a(f"buffer_load_dwordx4 v212, {s(SWQ,4)}, s{t2} offen offset:3072 lds")
    if G10: a(f"s_cmp_lt_u32 s{SM}, 10\ns_cselect_b32 s61, 0, 2")
    else: a(f"s_mul_i32 s61, s{SM}, 52\ns_lshr_b32 s61, s61, 8\ns_min_u32 s61, s61, 2")
    a(f"s_mul_i32 s59, s{SN}, 5120\ns_add_u32 s{t}, s{ko}, s61\ns_lshl_b32 s{t}, s{t}, 9\ns_add_u32 s59, s59, s{t}\ns_lshl_b32 s{t}, s{lw}, 7\ns_add_u32 s59, s59, s{t}\ns_add_u32 s59, s59, {OFF_CSP}")
    a("s_setprio 2"); stage(); a("s_setprio 1"); stage()
    stamp(a, 1)
    ids_late(a)
    a(f"s_cmp_lt_u32 s{SJ}, 27\ns_cselect_b32 s{SHAS1}, 1, 0\ns_mov_b32 s{SKW}, s{lw}")
    a(f"s_lshl_b32 s54, s{lw}, 12\ns_add_u32 s54, s54, 16384\nv_lshlrev_b32 v2, 4, v{VL}\nv_add_u32 v2, s54, v2")
    a(f"v_lshrrev_b32 v4, 4, v{VL}\nv_bfe_u32 v3, v{VL}, 2, 2\nv_xor_b32 v3, v3, v4\nv_lshlrev_b32 v3, 7, v3\nv_and_b32 v5, 3, v{VL}\nv_lshl_add_u32 v3, v5, 5, v3\nv_lshl_add_u32 v3, v4, 9, v3\ns_lshl_b32 s54, s{lw}, 11\ns_add_u32 s54, s54, {L_CSP}\nv_add_u32 v3, s54, v3")
    a(f"v_and_b32 v5, 31, v{VL}\nv_lshlrev_b32 v5, 2, v5\nv_lshrrev_b32 v6, 5, v{VL}\nv_lshl_add_u32 v6, v6, 12, v5\ns_lshl_b32 s54, s{lw}, 7\ns_add_u32 s54, s54, {L_CSP}\nv_add_u32 v6, s54, v6")
    a(f"v_mov_b32 v7, {OOB}\ns_cmp_eq_u32 s61, 2\ns_cselect_b64 vcc, -1, 0\nv_cndmask_b32 v5, v5, v7, vcc")
    def job(slot):
        sk = a.newlab("cj")
        a(f"s_cmp_lg_u32 s61, {slot}\ns_cbranch_scc1 {sk}")
        for i in range(4): a(f"ds_read_b128 {v(32+4*i,4)}, v2 offset:{slot*32768+i*1024}")
        for i in range(4):
            a(f"s_waitcnt lgkmcnt({3-i})")
            for c in range(4):
                if i == 0: a(f"v_lshlrev_b32 v{16+2*c}, 16, v{32+c}\nv_and_b32 v{17+2*c}, 0xffff0000, v{32+c}")
                else: a(f"v_lshlrev_b32 v24, 16, v{32+4*i+c}\nv_and_b32 v25, 0xffff0000, v{32+4*i+c}\nv_pk_add_f32 {v(16+2*c,2)}, {v(16+2*c,2)}, v[24:25]")
        a("ds_write_b128 v3, v[16:19]\nds_write_b128 v3, v[20:23] offset:16\ns_waitcnt lgkmcnt(0)")
        a.lab(sk)
    def jobB():
        for k in range(8): a(f"ds_read_b32 v{16+k}, v6 offset:{k*512}")
        a("s_waitcnt lgkmcnt(0)")
        for k in range(1, 8): a(f"v_add_f32 v16, v16, v{16+k}")
        a(f"v_mov_b32 v17, v16\ns_nop 1\nv_permlane32_swap_b32 v16, v17\nv_add_f32 v16, v16, v17\ns_mov_b32 exec_hi, 0\nbuffer_store_dword v16, v5, {s(SWS,4)}, s59 offen sc1\ns_mov_b64 exec, -1")
    a("s_waitcnt vmcnt(8)"); est(a, 4); job(0); a("s_barrier")
    if G10:
        jobB(); stage()
        a("s_waitcnt vmcnt(8)\ns_barrier")
    else:
        stage()
        a("s_waitcnt vmcnt(8)")
        job(1); a("s_barrier")
        jobB()
    stage(); stage()
    a("s_mov_b32 s54, 0")
    L = a.newlab("ldl")
    a.lab(L)
    a("s_waitcnt vmcnt(16)")
    def cst(off):
        if OPT.get("mst") != 4: return
        s0 = OPT.get("s0", 1)
        for k in range(3):
            st_ = s0 + k
            if st_ < 2: continue
            LL = a.newlab("fs"); a(f"s_cmp_eq_u32 s54, {st_-2}\ns_cbranch_scc0 {LL}"); stamp(a, 1+2*k+off, True); a.lab(LL)
    cst(0)
    a("s_barrier")
    cst(1)
    stage("s_add_u32 s54, s54, 1\ns_cmp_lt_u32 s54, 5")
    a(f"s_cbranch_scc1 {L}")
    est(a, 5)
    ok = a.newlab("c1ok")
    a(f"s_cmp_lg_u32 s{lw}, 0\ns_cbranch_scc1 {ok}")
    c1_poll(a)
    a.lab(ok)
    a("s_waitcnt vmcnt(16)")
    est(a, 6)
    a("s_barrier")
    nst = a.newlab("nst"); cs = a.newlab("ncs")
    a(f"v_lshlrev_b32 v2, 4, v{VL}\ns_cmp_eq_u32 s{lw}, 3\ns_cbranch_scc1 {nst}\ns_cmp_eq_u32 s{lw}, 2\ns_cbranch_scc1 {cs}")
    a(f"s_lshl_b32 s54, s{SM}, 9\ns_lshl_b32 s55, s{lw}, 13\ns_add_u32 s54, s54, s55")
    a(f"s_lshl_b32 s55, s{lw}, 9\ns_add_u32 m0, s55, {L_ST}\ns_mov_b32 exec_hi, 0\nbuffer_load_dwordx4 v2, {s(SWS,4)}, s54 offen sc1 lds\ns_mov_b64 exec, -1\ns_branch {nst}")
    a.lab(cs)
    a(f"s_mul_i32 s54, s{SN}, 5120\ns_add_u32 s54, s54, {OFF_CSP}\ns_add_u32 s55, s54, 4096")
    for k in range(5): a(f"buffer_load_dwordx4 {v(216+4*k,4)}, v2, {s(SWS,4)}, s{54 if k < 4 else 55} offen offset:{(k&3)*1024} sc1")
    a.lab(nst)
    if OPT.get("b1", 1):
        a(f"s_mul_i32 s50, s{SXCD}, 30\ns_add_u32 s50, s50, s{SJ}\ns_lshl_b32 s50, s50, 2\ns_add_u32 s50, s50, s{lw}")
        a(f"s_mul_i32 s51, s50, 4370\ns_lshr_b32 s51, s51, 20\ns_mul_i32 s52, s51, 240\ns_sub_u32 s52, s50, s52\ns_mul_i32 s51, s51, {16*110592}\ns_lshl_b32 s52, s52, 12\ns_add_u32 s52, s52, s51\ns_add_u32 s52, s52, {16*110592 - 240*4096}")
        a(f"v_lshlrev_b32 v2, 7, v{VL}\ns_mov_b32 exec_hi, 0\nbuffer_load_dword v255, v2, {s(SW1,4)}, s52 offen\ns_mov_b64 exec, -1")
    a(f"s_waitcnt vmcnt({9 if OPT.get('b1', 1) else 8})\ns_barrier")
    est(a, 1)
def loader_fin(a, n):
    sk = a.newlab("lf")
    a(f"s_waitcnt vmcnt({n})\ns_cmp_lg_u32 s{SKW}, 2\ns_cbranch_scc1 {sk}")
    for k in range(1, 5):
        for q in range(2): a(f"v_pk_add_f32 {v(216+2*q,2)}, {v(216+2*q,2)}, {v(216+4*k+2*q,2)}")
    for q in range(4): a(f"v_mov_b32 v{220+q}, v{216+q}")
    a(f"v_and_b32 v2, 31, v{VL}\nv_lshlrev_b32 v2, 4, v2")
    for q in range(4): a(f"v_permlane32_swap_b32 v{216+q}, v{220+q}")
    for q in range(2): a(f"v_pk_add_f32 {v(216+2*q,2)}, {v(216+2*q,2)}, {v(220+2*q,2)}")
    a(f"v_add_u32 v2, {L_ST+1024}, v2\nds_write_b128 v2, v[216:219]\ns_waitcnt lgkmcnt(0)")
    a.lab(sk)
    a("s_barrier")

def qkv_epi_lds(a, vori):
    a(f"s_lshl_b32 s50, s{SM}, 7\ns_lshl_b32 s51, s48, 6\ns_add_u32 s50, s50, s51")
    a(f"s_lshl_b32 s53, s{SN}, 7\ns_lshl_b32 s54, s49, 6\ns_add_u32 s53, s53, s54")
    a(f"s_lshl_b32 s51, s48, 8\ns_add_u32 s51, s51, {L_ST}\ns_lshl_b32 s54, s49, 8\ns_add_u32 s54, s54, {L_ST+1024}")
    a(f"v_and_b32 v2, 31, v{VL}\nv_lshrrev_b32 v3, 5, v{VL}\nv_lshlrev_b32 v4, 2, v2\nv_lshlrev_b32 v5, 4, v3")
    if not vori:
        a("v_add_u32 v4, s51, v4\nv_add_u32 v5, s54, v5")
        for i in range(2): a(f"ds_read_b32 v{128+2*i}, v4 offset:{i*128}\nds_read_b32 v{132+2*i}, v4 offset:{512+i*128}")
        for k in range(8): a(f"ds_read_b128 {v(136+4*k,4)}, v5 offset:{k*32}")
    else:
        a("v_add_u32 v4, s54, v4\nv_add_u32 v5, s51, v5")
        for cf in range(2): a(f"ds_read_b32 v{128+2*cf}, v4 offset:{cf*128}")
        for k in range(8): a(f"ds_read_b128 {v(136+4*k,4)}, v5 offset:{k*32}\nds_read_b128 {v(168+4*k,4)}, v5 offset:{512+k*32}")
    a("s_waitcnt lgkmcnt(0)")

def consumer_loop(a, vori):
    L = a.newlab("qloop"); last = a.newlab("qlast"); pub = a.newlab("qpub"); back = a.newlab("qback"); pub2 = a.newlab("qpf"); back2 = a.newlab("qpfb")
    for w in ("x0", "w0", "w1", "x1"): qkv_rd(a, 0, 0, 0, w)
    a("s_mov_b32 s50, 0")
    a(".p2align 3")
    a.lab(L)
    for slot in range(2):
        for ks in range(4):
            buf = ks & 1; nb = buf ^ 1
            if ks < 3:
                if slot == (0 if OPT.get("g10", 1) else 1) and ks == 2:
                    a(f"s_cmp_eq_u32 s50, 1\ns_cbranch_scc1 {pub2}")
                    a.lab(back2)
                a("s_waitcnt lgkmcnt(3)"); qkv_mf(a, buf, vori, 0, 0); qkv_rd(a, ks+1, nb, slot, "x0"); qkv_rd(a, ks+1, nb, slot, "w0")
                a("s_waitcnt lgkmcnt(4)"); qkv_mf(a, buf, vori, 0, 1); qkv_rd(a, ks+1, nb, slot, "w1")
                a("s_waitcnt lgkmcnt(5)"); qkv_mf(a, buf, vori, 1, 0); qkv_rd(a, ks+1, nb, slot, "x1")
                qkv_mf(a, buf, vori, 1, 1)
            else:
                a("s_waitcnt lgkmcnt(3)"); qkv_mf(a, buf, vori, 0, 0)
                if slot == 1:
                    a(f"s_cmp_eq_u32 s50, 4\ns_cbranch_scc1 {last}")
                    for r in range(8, 14): a(f"v_xor_b32 v{r}, 0x10000, v{r}")
                if slot == (0 if OPT.get("g10", 1) else 1):
                    a(f"s_cmp_eq_u32 s50, 0\ns_cbranch_scc1 {pub}\ns_waitcnt lgkmcnt(0)\ns_barrier")
                    a.lab(back)
                else:
                    a("s_waitcnt lgkmcnt(0)\ns_barrier")
                ns = slot ^ 1
                qkv_rd(a, 0, nb, ns, "x0"); qkv_rd(a, 0, nb, ns, "w0")
                qkv_mf(a, buf, vori, 0, 1); qkv_rd(a, 0, nb, ns, "w1")
                qkv_mf(a, buf, vori, 1, 0); qkv_rd(a, 0, nb, ns, "x1")
                qkv_mf(a, buf, vori, 1, 1)
    a(f"s_add_u32 s50, s50, 1\ns_branch {L}")
    a.lab(pub)
    a(f"s_waitcnt vmcnt(0) lgkmcnt(0)\ns_barrier\ns_cmp_lg_u32 s{SWAVE}, 0\ns_cbranch_scc1 {back}")
    a(f"s_and_b32 s57, s2, 1\ns_lshl_b32 s56, s57, 6\ns_lshl_b32 s57, s57, 2\ns_mov_b64 exec, 1\nv_mov_b32 v15, 1\ns_setprio 3\nbuffer_atomic_add v15, off, {s(SDBG,4)}, s56 sc0 sc1\ns_setprio 0\ns_mov_b64 exec, -1\ns_branch {back}")
    a.lab(pub2)
    a(f"s_cmp_lg_u32 s{SWAVE}, 0\ns_cbranch_scc1 {back2}\ns_waitcnt vmcnt(0)\nv_readfirstlane_b32 s60, v15\ns_cmp_lg_u32 s60, 127\ns_cbranch_scc1 {back2}")
    a(f"s_mov_b64 exec, 1\nv_mov_b32 v15, 1\ns_setprio 3\nbuffer_store_dword v15, off, {s(SDBG,4)}, s57 offset:128 sc1\ns_setprio 0\ns_mov_b64 exec, -1\ns_branch {back2}")
    a.lab(last)
    a("s_waitcnt lgkmcnt(0)")
    qkv_mf(a, 1, vori, 0, 1); qkv_mf(a, 1, vori, 1, 0); qkv_mf(a, 1, vori, 1, 1)

NB1, NB2 = 16*56, 14*64
def prefetch(a, sid, nw, n0, n1, thr=None):
    L = a.newlab("pf"); w2 = a.newlab("pfw"); nx = a.newlab("pfn"); done = a.newlab("pfd")
    a(f"v_lshlrev_b32 v4, 7, v{VL}\ns_add_u32 s50, s{sid}, {n0}")
    a.lab(L)
    a(f"s_cmp_ge_u32 s50, {n1}\ns_cbranch_scc1 {done}\ns_cmp_ge_u32 s50, {NB1}\ns_cbranch_scc1 {w2}")
    a(f"s_mul_i32 s51, s50, 1171\ns_lshr_b32 s51, s51, 16\ns_mul_i32 s52, s51, 56\ns_sub_u32 s52, s50, s52")
    a(f"s_mul_i32 s53, s52, 37\ns_lshr_b32 s53, s53, 9\ns_mul_i32 s54, s53, 14\ns_sub_u32 s52, s52, s54")
    a(f"s_lshl_b32 s53, s53, 4\ns_add_u32 s51, s51, s53\ns_mul_i32 s51, s51, 110592\ns_lshl_b32 s52, s52, 13\ns_add_u32 s51, s51, s52")
    a(f"buffer_load_dword v255, v4, {s(SW1,4)}, s51 offen\ns_branch {nx}")
    a.lab(w2)
    a(f"s_sub_u32 s51, s50, {NB1}\ns_lshr_b32 s52, s51, 6\ns_bfe_u32 s53, s51, 0x20004\ns_and_b32 s51, s51, 15")
    a(f"s_mul_i32 s54, s53, 14\ns_cmp_eq_u32 s53, 3\ns_cselect_b32 s54, 41, s54\ns_add_u32 s52, s52, s54\ns_lshl_b32 s52, s52, 4\ns_add_u32 s51, s51, s52\ns_lshl_b32 s51, s51, 13")
    a(f"buffer_load_dword v255, v4, {s(SW2,4)}, s51 offen")
    a.lab(nx)
    if thr is not None: a(f"s_waitcnt vmcnt({thr})")
    a(f"s_add_u32 s50, s50, {nw}\ns_branch {L}")
    a.lab(done)

def wof(a, mid):
    a(f"s_mul_i32 s61, s{SXCD}, 5\ns_add_u32 s61, s61, s{SJ}\ns_sub_u32 s61, s61, 27\ns_lshl_b32 s61, s61, 1")
    a(f"v_lshrrev_b32 v2, 5, v{VL}\nv_and_b32 v3, 31, v{VL}\nv_mul_u32_u24 v6, 1280, v2\nv_lshl_add_u32 v7, v3, 3, v6\nv_lshl_add_u32 v6, v3, 4, v6")
    for g in range(2):
        a(f"s_add_u32 s50, s61, {g}\ns_lshr_b32 s51, s50, 2\ns_and_b32 s52, s50, 3\ns_mul_i32 s53, s51, 52\ns_lshr_b32 s53, s53, 8\ns_mul_i32 s54, s53, 5\ns_sub_u32 s54, s51, s54")
        a(f"s_lshl_b32 s56, s53, 4\ns_lshl_b32 s57, s54, 2\ns_add_u32 s56, s56, s57\ns_add_u32 s56, s56, s52")
        a(f"s_lshr_b32 s57, s56, 1\ns_mul_i32 s57, s57, 20\ns_and_b32 s56, s56, 1\ns_lshl_b32 s56, s56, 2\ns_add_u32 s56, s56, s57")
        a(f"s_lshl_b32 s57, s53, 3\ns_lshl_b32 s58, s52, 1\ns_add_u32 s57, s57, s58\ns_mul_i32 s57, s57, 20\ns_add_u32 s57, s57, 16")
        a(f"s_cmp_eq_u32 s54, 4\ns_cselect_b32 s56, s57, s56\ns_cselect_b32 s57, 20, 8\ns_cmp_ge_u32 s{SKW}, 2\ns_cselect_b32 s57, s57, 0\ns_add_u32 s56, s56, s57")
        a(f"s_and_b32 s57, s{SKW}, 1\ns_lshl_b32 s57, s57, 1\ns_add_u32 s53, s56, s57\ns_mul_i32 s54, s53, 1280")
        b = 32 + 12*g
        a(f"buffer_load_dwordx4 {v(b,4)}, v6, {s(SWO,4)}, s54 offen\nbuffer_load_dwordx4 {v(b+4,4)}, v6, {s(SWO,4)}, s54 offen offset:512\nbuffer_load_dwordx2 {v(b+8,2)}, v7, {s(SWO,4)}, s54 offen offset:1024")
        a(f"s_mul_i32 s55, s51, 5120\ns_lshl_b32 s52, s52, 8\ns_add_u32 s55, s55, s52\ns_add_u32 s{62+g}, s55, {OFF_WOF}")
    mid()
    trs_prep(a, SKW, M1BASE, 102400, 54, 214)
    a(f"v_lshrrev_b32 v2, 5, v{VL}\nv_and_b32 v3, 31, v{VL}")
    a(f"s_mul_i32 s54, s{SKW}, 2688\ns_add_u32 s54, s54, {M1BASE}\nv_mul_u32_u24 v4, 1344, v2\nv_add_u32 v4, s54, v4\nv_lshl_add_u32 v5, v3, 3, v4\nv_lshl_add_u32 v4, v3, 4, v4\ns_waitcnt vmcnt(0)")
    for g in range(2):
        b = 32 + 12*g
        a(f"ds_write_b128 v4, {v(b,4)} offset:{g*16384}\nds_write_b128 v4, {v(b+4,4)} offset:{g*16384+512}\nds_write_b64 v5, {v(b+8,2)} offset:{g*16384+1024}")
    lds_sync(a, C_MP, 4)
    trs_go(a, SKW, 62, 214)
    a("s_waitcnt lgkmcnt(0)\nv_add_u32 v214, 16384, v214\ns_nop 0")
    trs_go(a, SKW, 63, 214, 32)
    a(f"s_mov_b32 s61, {G_W}")
    arrive(a, C_W1, 4, 61, 40)

def attn_setup(a):
    pass
def attn2(a):
    ws = s(SWS, 4); w = SWAVE; shd, sb = SHD, SBQ
    KB, VB = 0, 20480
    attn_ids(a, shd, sb)
    a(f"s_lshl_b32 s50, s{sb}, 3\ns_sub_u32 s51, s50, 8\ns_cmp_eq_u32 s{sb}, 0\ns_cselect_b32 s52, 0, s51\ns_cmp_ge_u32 s{w}, 2\ns_cselect_b32 s51, s51, s52\ns_lshl_b32 s52, s{w}, 2\ns_add_u32 s51, s51, s52\ns_mul_i32 s51, s51, 40960")
    attn_masks(a)
    a(f"v_and_b32 v2, 31, v{VL}\nv_lshrrev_b32 v3, 5, v{VL}\nv_lshlrev_b32 v4, 3, v2\nv_lshl_add_u32 v5, v3, 9, v4\nv_mov_b32 v6, {OOB}\nv_cmp_eq_u32 vcc, 0, v3\ns_nop 1\nv_cndmask_b32 v6, v6, v4, vcc")
    a(f"s_add_u32 s52, s50, s{w}\ns_mul_i32 s53, s52, 40960\ns_mul_i32 s54, s{shd}, 1280\ns_add_u32 s53, s53, s54\ns_add_u32 s62, s53, {OFF_Q}\ns_add_u32 s63, s62, {4*40960}")
    a(f"s_lshl_b32 s56, s52, 15\ns_lshl_b32 s53, s{shd}, 10\ns_add_u32 s56, s56, s53\ns_add_u32 s56, s56, {OFF_O1}")
    a(f"s_lshl_b32 s61, s52, 13\ns_lshl_b32 s53, s{shd}, 8\ns_add_u32 s61, s61, s53\ns_add_u32 s61, s61, {OFF_O2}")
    a(f"s_add_u32 s64, s54, s51\ns_add_u32 s64, s64, {OFF_K}\ns_mov_b32 s55, 39680")
    for i in range(5):
        a(f"v_add_u32 v{16+i}, {64*i}, v{VL}\nv_mul_u32_u24 v{16+i}, 205, v{16+i}\nv_lshrrev_b32 v{16+i}, 14, v{16+i}\nv_mul_u32_u24 v{16+i}, s55, v{16+i}\nv_lshl_add_u32 v{16+i}, v{VL}, 4, v{16+i}")
    a("v_add_u32 v20, 4096, v20")
    a(f"v_mul_u32_u24 v7, 49, v{VL}\nv_lshrrev_b32 v7, 10, v7\nv_mul_u32_u24 v7, {10240-336}, v7\nv_lshl_add_u32 v7, v{VL}, 4, v7")
    a(f"s_mul_i32 s65, s{shd}, 320\ns_add_u32 s65, s65, s51\ns_add_u32 s65, s65, {OFF_V}\ns_mul_i32 s54, s{w}, 5376\ns_add_u32 s54, s54, {VB}\ns_mul_i32 s66, s{w}, 5120")
    a(f"s_mul_i32 s53, s{w}, 1280\ns_add_u32 s53, s53, {KB}\nv_add_u32 v8, s53, v5\nv_add_u32 v9, s53, v4")
    a(f"v_min_u32 v10, 20, v2\nv_cmp_lt_u32 vcc, 27, v2\nv_mul_u32_u24 v13, 336, v3\ns_nop 0\nv_cndmask_b32_e64 v10, v10, 4, vcc")
    a(f"s_mul_i32 s53, s{w}, 1344\ns_add_u32 s53, s53, {VB}\nv_lshl_add_u32 v10, v10, 4, v13\nv_add_u32 v10, s53, v10")
    a(f"v_lshlrev_b32 v11, 4, v2\nv_lshl_add_u32 v11, v3, 9, v11\nv_mov_b32 v12, v6")
    a(f"v_and_b32 v13, 15, v{VL}\nv_mul_u32_u24 v13, 336, v13\nv_add_u32 v13, s54, v13")
    a("v_mov_b32 v24, 0x3f803f80\nv_mov_b32 v25, v24\nv_mov_b32 v26, v24\nv_mov_b32 v27, v24")
    a(f"s_sub_u32 s57, 8, s{w}\ns_cmp_eq_u32 s{sb}, 0\ns_cselect_b32 s57, s57, 0\ns_cselect_b32 s58, 4, 0")
    stamp(a, 4)
    oth = a.newlab("aw"); go = a.newlab("ag")
    a(f"s_cmp_lg_u32 s{w}, 0\ns_cbranch_scc1 {oth}")
    lds_wait(a, C_QA, 4)
    a(f"s_lshl_b32 s53, s{sb}, 1\ns_sub_u32 s53, s53, 2\nv_add_u32 v2, s53, v{VL}\nv_max_i32 v2, 0, v2\nv_lshlrev_b32 v2, 8, v2\ns_mov_b32 s53, {G_Q+128}")
    gpoll(a, 2, SWS, "s53", 1, 4)
    lds_set(a, C_AGO)
    a(f"s_branch {go}")
    a.lab(oth)
    lds_wait(a, C_AGO, 1)
    a.lab(go)
    stamp(a, 5, OPT.get("mst") == 5)
    a(f"s_mov_b32 m0, s66")
    a(f"buffer_load_dwordx2 {v(AQ,2)}, v5, {ws}, s62 offen {LD}\nbuffer_load_dwordx2 {v(AQ+2,2)}, v5, {ws}, s62 offen offset:256 {LD}\nbuffer_load_dwordx2 {v(AQ+4,2)}, v6, {ws}, s62 offen offset:1024 {LD}")
    for i in range(5):
        if i == 4: a(f"s_add_u32 m0, s66, 4096\ns_nop 0")
        a(f"buffer_load_dwordx4 v{16+i}, {ws}, s64 offen offset:{(i&3)*1024} {LD} lds")
    for k in range(6):
        a(f"s_add_u32 m0, s54, {k*1008}")
        a("s_mov_b64 exec, 0x1fffff" if k == 5 else "s_nop 0")
        a(f"buffer_load_dwordx4 v7, {ws}, s65 offen {LD} lds\ns_add_u32 s65, s65, 30720")
    a("s_mov_b64 exec, -1")
    a(f"buffer_load_dwordx2 {v(AQ+6,2)}, v5, {ws}, s63 offen {LD}\nbuffer_load_dwordx2 {v(AQ+8,2)}, v5, {ws}, s63 offen offset:256 {LD}\nbuffer_load_dwordx2 {v(AQ+10,2)}, v6, {ws}, s63 offen offset:1024 {LD}")
    a(f"s_setprio {OPT.get('prioa', 0)}")
    FAST = OPT.get("fast", 1)
    if FAST:
        a(f"v_and_b32 v2, 31, v{VL}\nv_lshrrev_b32 v3, 5, v{VL}\nv_mul_u32_u24 v3, 1280, v3\nv_lshl_add_u32 v2, v2, 3, v3\nv_add_u32 v2, s66, v2\ns_waitcnt vmcnt(9)")
        for t in range(2):
            for u in range(5): a(f"ds_read_b64 {v(28+10*t+2*u,2)}, v2 offset:{t*2560+u*256}")
        for t in range(2):
            a(f"s_waitcnt lgkmcnt({5-5*t})\nv_mov_b32 v{14+t}, 0")
            for u in range(10): a(f"v_dot2_f32_bf16 v{14+t}, v{28+10*t+u}, v{28+10*t+u}, v{14+t}")
        a("s_nop 2\nv_max_f32 v14, v14, v15")
        for sh in (8, 4, 2, 1): a(f"s_nop 1\nv_max_f32_dpp v14, v14, v14 row_ror:{sh} row_mask:0xf bank_mask:0xf")
        for sw in ("v_permlane16_swap_b32", "v_permlane32_swap_b32"): a(f"v_mov_b32 v15, v14\ns_nop 1\n{sw} v14, v15\nv_max_f32 v14, v14, v15")
        a(f"s_lshl_b32 s53, s{w}, 2\ns_add_u32 s53, s53, {L_KN}\nv_mov_b32 v15, s53\nds_write_b32 v15, v14")
    else:
        a("s_waitcnt vmcnt(9)")
    lds_sync(a, C_AK, 4)
    if FAST:
        a(f"v_mov_b32 v2, {L_KN}\nds_read_b128 v[28:31], v2\ns_waitcnt lgkmcnt(0)\nv_max3_f32 v28, v28, v29, v30\nv_max_f32 v254, v28, v31")
    ast(a, 1)
    a("s_mov_b32 s59, 0")
    fin = a.newlab("afin")
    if OPT.get("noac"):
        lds_sync(a, C_AV, 4, vt=14); a(f"s_branch {fin}")
    L = a.newlab("atask"); vw = a.newlab("avw"); vwb = a.newlab("avb")
    inv = [a.newlab("inv") for _ in range(8)]; invb = [a.newlab("invb") for _ in range(8)]
    a(".p2align 3")
    a.lab(L)
    def kread(p):
        b = AK + 6*(p % 3)
        a(f"ds_read_b64 {v(b,2)}, v8 offset:{p*1280}\nds_read_b64 {v(b+2,2)}, v8 offset:{p*1280+256}\nds_read_b64 {v(b+4,2)}, v9 offset:{p*1280+1024}")
    def vread(p):
        b = AV + 8*(p % 2)
        for m in range(2): a(f"ds_read_b128 {v(b+4*m,4)}, v10 offset:{p*1344+m*672}")
    def mx(p):
        if p < 8:
            a(f"s_cmp_gt_u32 s57, {p}\ns_cbranch_scc1 {inv[p]}")
            a.lab(invb[p])
        for q in range(8):
            d = 2 + (q & 1)
            if p == 0 and q < 2: a(f"v_max_f32 v{d}, v{AS+2*q}, v{AS+2*q+1}")
            else: a(f"v_max3_f32 v{d}, v{d}, v{AS+16*p+2*q}, v{AS+16*p+2*q+1}")
    def m1(p):
        b = AK + 6*(p % 3); S = v(AS+16*p, 16)
        C = v(AME,16) if p == 0 else v(AMD,16) if p == 8 else "0"
        a(f"v_mfma_f32_32x32x16_bf16 {S}, {v(b,4)}, {v(AQ,4)}, {C}")
    def m2(p):
        b = AK + 6*(p % 3); S = v(AS+16*p, 16)
        a(f"v_mfma_f32_32x32x8bf16_1k {S}, {v(b+4,2)}, {v(AQ+4,2)}, {S}")
    def pv(p, S=None, ms=(0, 1)):
        b = AV + 8*(p % 2); S = AS+16*p if S is None else S
        for m in ms:
            C = "0" if (p == 0 and m == 0) else v(AO,16)
            a(f"v_mfma_f32_32x32x16_bf16 {v(AO,16)}, {v(b+4*m,4)}, {v(S+4*m,4)}, {C}")
    kread(0); kread(1); kread(2)
    join = a.newlab("ajoin")
    if FAST:
        slow = a.newlab("aslow"); fvw = a.newlab("afv"); fvb = a.newlab("afb")
        finv = [a.newlab("finv") for _ in range(8)]; finvb = [a.newlab("finvb") for _ in range(8)]
        a("v_mov_b32 v2, 0")
        for r in range(6): a(f"v_dot2_f32_bf16 v2, v{AQ+r}, v{AQ+r}, v2")
        a(f"s_nop 2\nv_mov_b32 v3, v2\ns_nop 1\nv_permlane32_swap_b32 v2, v3\nv_add_f32 v2, v2, v3\nv_mul_f32 v2, v2, v254\nv_cmp_nge_f32 vcc, {hexf(3600.0)}, v2\ns_cbranch_vccnz {slow}")
        def SB(p): return AS + 16*(p % 3)
        def fm1(p):
            b = AK + 6*(p % 3); C = v(AME,16) if p == 0 else v(AMD,16) if p == 8 else "0"
            a(f"v_mfma_f32_32x32x16_bf16 {v(SB(p),16)}, {v(b,4)}, {v(AQ,4)}, {C}")
        def fm2(p):
            b = AK + 6*(p % 3)
            a(f"v_mfma_f32_32x32x8bf16_1k {v(SB(p),16)}, {v(b+4,2)}, {v(AQ+4,2)}, {v(SB(p),16)}")
        a("s_waitcnt lgkmcnt(6)"); fm1(0); fm2(0)
        a(f"s_cmp_eq_u32 s59, 0\ns_cbranch_scc1 {fvw}")
        a.lab(fvb)
        vread(0); kread(3)
        a("s_waitcnt lgkmcnt(8)"); fm1(1); fm2(1)
        a("s_nop 7")
        ast(a, 2, 1, 7)
        for p in range(9):
            S = SB(p)
            if p < 8:
                a(f"s_cmp_gt_u32 s57, {p}\ns_cbranch_scc1 {finv[p]}")
                a.lab(finvb[p])
            ex = [f"v_exp_f32 v{S+q}, v{S+q}" for q in range(16)]
            for q in range(0, 4): a(ex[q])
            if p > 0: pv(p-1, SB(p-1), (0,))
            for q in range(4, 8): a(ex[q])
            if p > 0: pv(p-1, SB(p-1), (1,))
            if p + 1 < 9: vread(p+1)
            for q in range(8, 12): a(ex[q])
            if p + 2 < 9:
                a(f"s_waitcnt lgkmcnt({(5 if p + 3 < 9 else 2) + 2})"); fm1(p+2)
            for q in range(12, 16): a(ex[q])
            if p + 2 < 9: fm2(p+2)
            else: a("s_nop 0")
            if p + 4 < 9: kread(p+4)
            for q in range(8): a(f"v_cvt_pk_bf16_f32 v{S+q}, v{S+2*q}, v{S+2*q+1}")
            n = (2 if p + 1 < 9 else 0) + (3 if p + 3 < 9 else 0) + (3 if p + 4 < 9 else 0)
            a(f"s_waitcnt lgkmcnt({n})")
        ast(a, 3, 1, 7)
        a("s_nop 0"); pv(8, SB(8))
        a(f"s_branch {join}")
        for p in range(8):
            a.lab(finv[p])
            for r in range(16): a(f"v_mov_b32 v{SB(p)+r}, {NEGINF}")
            a(f"s_branch {finvb[p]}")
        a.lab(fvw)
        a("s_waitcnt vmcnt(0)\nv_mov_b32 v4, 0x3f803f80\nv_mov_b32 v5, v4\nv_mov_b32 v6, v4\nv_mov_b32 v7, v4\nds_write_b128 v13, v[4:7] offset:320")
        lds_sync(a, C_AV, 4, vt=14)
        a(f"s_branch {fvb}")
        a.lab(slow)
    a("s_waitcnt lgkmcnt(6)"); m1(0)
    for p in range(9):
        if p + 1 < 9:
            a(f"s_waitcnt lgkmcnt({3 if p + 2 < 9 else 0})"); m1(p+1)
        m2(p)
        if p + 3 < 9: kread(p+3)
        if p >= 2: mx(p-2)
    a(f"s_cmp_eq_u32 s59, 0\ns_cbranch_scc1 {vw}")
    a.lab(vwb)
    ast(a, 2, 0)
    vread(0)
    mx(7)
    a("s_nop 0")
    mx(8)
    a("v_max_f32 v2, v2, v3\nv_mov_b32 v3, v2\ns_nop 1\nv_permlane32_swap_b32 v2, v3\nv_max_f32 v2, v2, v3")
    for p in range(9):
        b = AS + 16*p
        for q in range(8): a(f"v_pk_add_f32 {v(b+2*q,2)}, {v(b+2*q,2)}, v[2:3] op_sel_hi:[1,0] neg_lo:[0,1] neg_hi:[0,1]")
        if p > 0:
            a("s_waitcnt lgkmcnt(0)"); pv(p-1)
        if p + 1 < 9 and p > 0: vread(p+1)
        if p == 0: vread(1)
        for q in range(16): a(f"v_exp_f32 v{b+q}, v{b+q}")
        a("s_nop 0")
        for q in range(8): a(f"v_cvt_pk_bf16_f32 v{b+q}, v{b+2*q}, v{b+2*q+1}")
    a("s_waitcnt lgkmcnt(0)\ns_nop 0"); pv(8)
    a.lab(join)
    for r in range(6): a(f"v_mov_b32 v{AQ+r}, v{AQ+6+r}")
    a(f"v_add_u32 v8, {4*1280}, v8\nv_add_u32 v9, {4*1280}, v9\nv_add_u32 v10, {4*1344}, v10\ns_sub_u32 s57, s57, s58\ns_nop 2")
    a(f"v_mov_b32 v2, v{AO+8}\nv_mov_b32 v3, v{AO+8}\ns_nop 1\nv_permlane32_swap_b32 v2, v3\nv_rcp_f32 v2, v3\ns_nop 0")
    for q in range(6): a(f"v_pk_mul_f32 {v(AO+2*q,2)}, {v(AO+2*q,2)}, v[2:3] op_sel_hi:[1,0]")
    for q in range(6): a(f"v_cvt_pk_bf16_f32 v{4+q if q < 4 else 10+q}, v{AO+2*q}, v{AO+2*q+1}")
    a(f"s_setprio 2\nbuffer_store_dwordx4 v[4:7], v11, {ws}, s56 offen {ST}\nbuffer_store_dwordx2 v[14:15], v12, {ws}, s61 offen {ST}\ns_setprio {OPT.get('prioa', 0)}")
    ast(a, 3, 0); ast(a, 4, 1); ast(a, 1, 0, 7); ast(a, 4, 1, 7)
    a(f"s_add_u32 s56, s56, {4*32768}\ns_add_u32 s61, s61, {4*8192}\ns_add_u32 s59, s59, 1\ns_cmp_lt_u32 s59, 2\ns_cbranch_scc1 {L}")
    a(f"s_branch {fin}")
    for p in range(8):
        a.lab(inv[p])
        for r in range(16): a(f"v_mov_b32 v{AS+16*p+r}, {NEGINF}")
        a(f"s_branch {invb[p]}")
    a.lab(vw)
    a("s_waitcnt vmcnt(0)\nv_mov_b32 v4, 0x3f803f80\nv_mov_b32 v5, v4\nv_mov_b32 v6, v4\nv_mov_b32 v7, v4\nds_write_b128 v13, v[4:7] offset:320")
    lds_sync(a, C_AV, 4, vt=14)
    a(f"s_branch {vwb}")
    a.lab(fin)

def wo2(a):
    skw = SKW; ws = s(SWS, 4)
    a(f"v_lshrrev_b32 v2, 4, v{VL}\nv_and_b32 v3, 15, v{VL}\nv_lshlrev_b32 v8, 4, v3\nv_lshl_add_u32 v8, v2, 9, v8\nv_lshlrev_b32 v10, 3, v3\nv_lshl_add_u32 v10, v2, 9, v10")
    a(f"s_lshl_b32 s50, s{SST}, 16\ns_lshl_b32 s51, s{skw}, 13\ns_add_u32 s50, s50, s51\ns_add_u32 s50, s50, {OFF_O1}")
    a(f"s_lshl_b32 s61, s{SST}, 14\ns_lshl_b32 s51, s{skw}, 11\ns_add_u32 s61, s61, s51\ns_add_u32 s61, s61, {OFF_O2}")
    for i in range(4):
        a(f"s_xor_b32 s51, s{skw}, {i}\ns_lshr_b32 s56, s51, 1\ns_and_b32 s51, s51, 1\ns_lshl_b32 s57, s56, 15\ns_lshl_b32 s58, s51, 8\ns_add_u32 s57, s57, s58\ns_add_u32 s{52+i}, s50, s57")
        a(f"s_lshl_b32 s57, s56, 13\ns_lshl_b32 s58, s51, 7\ns_add_u32 s57, s57, s58\ns_add_u32 s{62+i}, s61, s57")
    oth = a.newlab("ow"); go = a.newlab("og")
    a(f"s_cmp_lg_u32 s{skw}, 0\ns_cbranch_scc1 {oth}")
    a(f"s_lshr_b32 s51, s{SST}, 2\ns_lshl_b32 s51, s51, 8\ns_add_u32 s51, s51, {G_O+128}\nv_mov_b32 v2, 0")
    gpoll(a, 2, SWS, "s51", 1, 1)
    lds_set(a, C_OGO)
    a(f"s_branch {go}")
    a.lab(oth)
    lds_wait(a, C_OGO, 1)
    a.lab(go)
    stamp(a, 2)
    def aload(st):
        for i in range(4):
            r = WA+16*(st%3)+4*i
            if st < 4:
                a(f"buffer_load_dwordx4 {v(r,4)}, v8, {ws}, s{52+i} offen offset:{(st&1)*2048} {LD}")
                if st == 1: a(f"s_add_u32 s{52+i}, s{52+i}, 4096")
            else:
                for e in range(2): a(f"buffer_load_dwordx2 {v(r+2*e,2)}, v10, {ws}, s{62+i} offen offset:{e*256} {LD}")
    for st in range(3): aload(st)
    for st in range(5):
        a(f"s_waitcnt vmcnt({[8, 8, 12, 8, 0][st]})")
        for db in range(5):
            for i in range(4):
                acc = v(MACC+(i*5+db)*4, 4)
                a(f"v_mfma_f32_16x16x32_bf16 {acc}, {v(WA+16*(st%3)+4*i,4)}, {v(WB+20*st+4*db,4)}, {'0' if st == 0 else acc}")
        if st + 3 < 5: aload(st+3)

def colsum4(a, snt, ldsbase, st):
    a(f"v_lshrrev_b32 v2, 4, v{VL}\nv_and_b32 v3, 15, v{VL}\nv_mul_u32_u24 v4, 3840, v2\nv_lshl_add_u32 v4, v3, 4, v4")
    a(f"s_mul_i32 s{st}, s{SKW}, {160*3840}\ns_lshl_b32 s{st+1}, s{snt}, 8\ns_add_u32 s{st}, s{st}, s{st+1}")
    a(f"s_cmp_eq_u32 s{snt}, 15\ns_cbranch_scc0 L_cs_go\ns_barrier\ns_branch L_cs_end")
    a.lab("L_cs_go")
    for i in range(40):
        a(f"buffer_load_dwordx4 v[{32+4*i}:{35+4*i}], v4, {s(SWQ,4)}, s{st} offen\ns_add_u32 s{st}, s{st}, {4*3840}")
        if i == 9: a("s_barrier")
    for c in range(8): a(f"v_mov_b32 v{16+c}, 0")
    for i in range(40):
        a(f"s_waitcnt vmcnt({39-i})")
        for c in range(4):
            a(f"v_lshlrev_b32 v24, 16, v{32+4*i+c}\nv_and_b32 v25, 0xffff0000, v{32+4*i+c}\nv_pk_add_f32 v[{16+2*c}:{17+2*c}], v[{16+2*c}:{17+2*c}], v[24:25]")
    for sw in ("v_permlane32_swap_b32", "v_permlane16_swap_b32"):
        for c in range(8): a(f"v_mov_b32 v{24+c}, v{16+c}")
        a("s_nop 0")
        for c in range(8): a(f"{sw} v{16+c}, v{24+c}")
        for c in range(8): a(f"v_add_f32 v{16+c}, v{16+c}, v{24+c}")
    a(f"s_lshl_b32 s{st}, s{SKW}, 9\ns_add_u32 s{st}, s{st}, {ldsbase}\nv_lshlrev_b32 v4, 5, v3\nv_add_u32 v4, s{st}, v4")
    a("ds_write_b128 v4, v[16:19]\nds_write_b128 v4, v[20:23] offset:16")
    lds_sync(a, C_W2, 4)
    a(f"s_cmp_ge_u32 s{SKW}, 2\ns_cbranch_scc1 L_cs_end")
    a(f"s_lshl_b32 s{st}, s{SKW}, 8\nv_lshlrev_b32 v4, 2, v{VL}\nv_add_u32 v4, s{st}, v4\nv_add_u32 v5, {ldsbase}, v4")
    for w in range(4): a(f"ds_read_b32 v{16+w}, v5 offset:{w*512}")
    a("s_waitcnt lgkmcnt(0)")
    for w in range(1, 4): a(f"v_add_f32 v16, v16, v{16+w}")
    a(f"s_lshl_b32 s{st}, s{snt}, 9\ns_add_u32 s{st}, s{st}, {OFF_CS}")
    a(f"buffer_store_dword v16, v4, {s(SWS,4)}, s{st} offen {ST}")
    a.lab("L_cs_end")

def prologue2(a):
    a(f".globl {NAME}\n.p2align 8\n.type {NAME},@function")
    a.lab(NAME)
    a(f"s_load_dwordx4 s[64:67], s[0:1], 0\ns_load_dwordx4 s[68:71], s[0:1], 72\ns_cmp_ge_u32 s2, 256\ns_cbranch_scc1 L_end")
    if blocks.STAMP:
        for i in range(16): a(f"s_mov_b32 s{84+i}, 0")
    stamp(a, 0)
    if OPT.get("cpf", 1):
        a(f"s_getpc_b64 s[50:51]\ns_sub_u32 s50, s50, .-{NAME}\ns_subb_u32 s51, s51, 0")
        a(f"s_lshr_b32 s52, s2, 3\ns_and_b32 s52, s52, 3\ns_add_u32 s52, s52, 1\ns_lshl_b32 s52, s52, 13\nv_and_b32 v2, 63, v0\nv_lshlrev_b32 v2, 7, v2")
        a(f"v_cmp_le_u32 vcc, 256, v0\nv_mov_b32 v3, s52\nv_and_b32 v4, 0xc0, v0\nv_cndmask_b32 v3, 0, v3, vcc\nv_add_u32 v2, v2, v3\nv_cmp_eq_u32 vcc, 0, v4\ns_mov_b32 s54, L_end-{NAME}\nv_cmp_gt_u32 s[52:53], s54, v2\ns_nop 0\ns_and_b64 vcc, vcc, s[52:53]")
        a(f"s_and_saveexec_b64 s[52:53], vcc\ns_cbranch_execz L_nocpf\nglobal_load_dword v255, v2, s[50:51]")
        a.lab("L_nocpf")
        a("s_mov_b64 exec, -1")
    a(f"s_load_dwordx8 s[56:63], s[0:1], 32\ns_load_dwordx2 {s(SWO,2)}, s[0:1], 16\ns_load_dwordx2 {s(SOUT,2)}, s[0:1], 64")
    a(f"v_lshrrev_b32 v2, 6, v0\nv_and_b32 v{VL}, 63, v0")
    a(f"s_and_b32 s{SXCD}, s2, 7\ns_lshr_b32 s{SJ}, s2, 3")
    a(f"v_readfirstlane_b32 s{SWAVE}, v2")
    for r in SRDS: a(f"s_mov_b32 s{r+2}, {SRDS[r][1]}\ns_mov_b32 s{r+3}, 0x20000")
    ids(a)
    a("s_waitcnt lgkmcnt(0)")
    for r, src in ((SX, 64), (SWQ, 66), (SDBG, 68), (SWS, 70), (SW1, 56), (SB1, 58), (SW2, 60), (SB2, 62)): a(f"s_mov_b64 {s(r,2)}, {s(src,2)}")

def trs_prep(a, sw, ldsbase, dt, st, vb):
    a(f"v_lshrrev_b32 v2, 4, v{VL}\nv_and_b32 v3, 15, v{VL}")
    a(f"v_lshrrev_b32 v4, 2, v3\nv_mul_u32_u24 v4, 1344, v4\nv_lshl_add_u32 v4, v2, 5, v4\nv_and_b32 v5, 3, v3\nv_lshl_add_u32 v4, v5, 3, v4")
    a(f"s_lshl_b32 s{st}, s{sw}, 7\ns_add_u32 s{st}, s{st}, {ldsbase}\nv_add_u32 v{vb}, s{st}, v4\ns_mov_b32 s{st+1}, {dt-5120}")
    for k in range(3):
        a(f"s_lshl_b32 s{st}, s{sw}, 2\ns_add_u32 s{st}, s{st}, {16*k}\nv_add_u32 v5, s{st}, v2")
        a(f"v_mul_u32_u24 v6, 52, v5\nv_lshrrev_b32 v6, 8, v6\nv_mul_u32_u24 v6, s{st+1}, v6\nv_lshl_add_u32 v6, v5, 10, v6\nv_lshl_add_u32 v{vb+1+k}, v3, 4, v6")
    a(f"s_cmp_ge_u32 s{sw}, 2\ns_cselect_b64 vcc, -1, 0\nv_mov_b32 v5, {OOB}\nv_cndmask_b32 v{vb+3}, v{vb+3}, v5, vcc")
def trs_go(a, sw, sdst, vb, d=16):
    for k in range(3):
        a(f"ds_read_b64_tr_b16 v[{d+4*k}:{d+1+4*k}], v{vb} offset:{k*512}\nds_read_b64_tr_b16 v[{d+2+4*k}:{d+3+4*k}], v{vb} offset:{k*512+5376}")
    sk = a.newlab("tg")
    for k in range(3):
        if k == 2: a(f"s_cmp_ge_u32 s{sw}, 2\ns_cbranch_scc1 {sk}")
        a(f"s_waitcnt lgkmcnt({4-2*k})\nbuffer_store_dwordx4 v[{d+4*k}:{d+3+4*k}], v{vb+1+k}, {s(SWS,4)}, s{sdst} offen {ST}")
    a.lab(sk)

def gen():
    a = Asm()
    a(f"; @launch grid=(256,1,1) block=(512,1,1) lds={LDS}")
    a('.amdgcn_target "amdgcn-amd-amdhsa--gfx950"\n.text')
    prologue2(a)
    a(f"s_cmp_ge_u32 s{SJ}, 30\ns_cbranch_scc1 L_spare\ns_cmp_ge_u32 s{SWAVE}, 4\ns_cbranch_scc0 L_cons")
    loader(a)
    a(f"s_cmp_eq_u32 s{SHAS1}, 0\ns_cbranch_scc1 L_idle9")
    a(f"s_mul_i32 s66, s{SKW}, {M1STR}\ns_add_u32 s66, s66, {M1BASE}")
    a(f"s_mul_i32 s67, s{SKW}, 3\ns_cmp_eq_u32 s{SKW}, 3\ns_cselect_b32 s67, 8, s67")
    mlp_setup(a, SW1, 3456, 66)
    a(f"s_mul_i32 s{S_TO}, s{SKW}, {512*3456}\ns_lshl_b32 s65, s{SFT}, 7\ns_add_u32 s{S_TO}, s{S_TO}, s65")
    a(f"s_mul_i32 s{S_DO}, s{SDT1}, 327680\ns_mul_i32 s65, s{SKW}, {16*5120}\ns_add_u32 s{S_DO}, s{S_DO}, s65\ns_add_u32 s{S_DO}, s{S_DO}, {OFF_H}")
    def blk(k):
        mlp_dma(a, k)
        for db in range(5): mlp_dir(a, k, db, LD)
    blk(0)
    loader_fin(a, 10 if OPT.get("b1", 1) else 9)
    stamp(a, 2)
    if OPT.get("hold", 1): lds_wait(a, C_QA, 4)
    for k in range(1, 4): blk(k)
    for i in range(80): a(f"v_mov_b32 v{MACC+i}, 0")
    a(f"s_mov_b32 s{S_CNT}, 3\ns_setprio {OPT.get('prio1', 1)}")
    a(".p2align 3")
    a.lab("L_m1")
    for k in range(4): mlp_body(a, k, 27, True, LD)
    if OPT.get("mst") == 1:
        for c, i in ((3, 1), (2, 5), (1, 6)):
            LL = a.newlab("mst"); a(f"s_cmp_eq_u32 s{S_CNT}, {c}\ns_cbranch_scc0 {LL}"); stamp(a, i, True); a.lab(LL)
    a(f"s_sub_u32 s{S_CNT}, s{S_CNT}, 1\ns_cmp_lg_u32 s{S_CNT}, 0\ns_cbranch_scc1 L_m1")
    a(f"v_lshrrev_b32 v2, 4, v{VL}\nv_lshlrev_b32 v11, 3, v2")
    for k in range(3):
        a(f"s_add_u32 s65, s67, {k}\ns_cmp_ge_u32 s65, 5\ns_cselect_b32 s65, 64, 0\ns_lshl_b32 s68, s{SFT}, 7\ns_add_u32 s65, s65, s68")
        for t in range(2): a(f"buffer_load_dwordx2 {v(192+4*k+2*t,2)}, v11, {s(SB1,4)}, s65 offen offset:{t*32}")
    b2 = OPT.get("b2", 0)
    if b2:
        a(f"s_mul_i32 s50, s{SXCD}, 27\ns_add_u32 s50, s50, s{SJ}\ns_lshl_b32 s50, s50, 2\ns_add_u32 s50, s50, s{SKW}")
        a(f"s_mul_i32 s51, s50, 4855\ns_lshr_b32 s51, s51, 20\ns_mul_i32 s65, s51, 216\ns_sub_u32 s50, s50, s65\ns_add_u32 s51, s51, 1\ns_mul_i32 s65, s51, 14\ns_cmp_ge_u32 s51, 3\ns_subb_u32 s65, s65, 0\ns_cmp_ge_u32 s51, 4\ns_subb_u32 s65, s65, 0")
        a(f"s_lshl_b32 s65, s65, 17\ns_lshl_b32 s50, s50, 12\ns_add_u32 s65, s65, s50\ns_sub_u32 s65, s65, {216*4096}")
        a(f"v_lshlrev_b32 v2, 7, v{VL}\ns_mov_b32 exec_hi, 0\nbuffer_load_dword v255, v2, {s(SW2,4)}, s65 offen\ns_mov_b64 exec, -1")
    for k in range(4): mlp_body(a, k, [33, 24, 15, 6][k] + b2, False, LD)
    stamp(a, 3)
    a(f"s_setprio 3\ns_waitcnt vmcnt({b2})")
    mlp1_epi(a, SDT1, SFT, SKW, M1BASE, M1STR, C_MP, ST)
    stamp(a, 4)
    a(f"s_lshl_b32 s61, s{SDT1}, 8\ns_add_u32 s61, s61, {G_G}")
    arrive(a, C_GA, 4, 61, 27)
    a(f"s_mov_b32 s61, {C_GA}")
    a.lab("L_m2")
    w = SKW
    a(f"s_setprio {OPT.get('prio2', 1)}\ns_mul_i32 s66, s{w}, {M1STR}\ns_add_u32 s66, s66, {M1BASE}\nv_mov_b32 v12, s61")
    mlp_setup(a, SW2, 4096, 66)
    a(f"s_mul_i32 s67, s{w}, 14\ns_cmp_eq_u32 s{w}, 3\ns_cselect_b32 s67, 41, s67")
    a(f"s_lshl_b32 s{S_TO}, s67, 17\ns_lshl_b32 s65, s{SST}, 7\ns_add_u32 s{S_TO}, s{S_TO}, s65")
    a(f"s_mul_i32 s{S_DO}, s{SDT3}, {54*5120}\ns_mul_i32 s65, s67, 5120\ns_add_u32 s{S_DO}, s{S_DO}, s65\ns_add_u32 s{S_DO}, s{S_DO}, {OFF_G}")
    for i in range(80): a(f"v_mov_b32 v{MACC+i}, 0")
    lds_wait(a, None, 4, vreg=12)
    a(f"s_cmp_ge_u32 s{w}, 2\ns_cbranch_scc1 L_p3")
    mlp_dma(a, 2)
    a.lab("L_p3")
    for k in (3, 0, 1): mlp_dma(a, k)
    a(f"s_cmp_ge_u32 s{w}, 2\ns_cbranch_scc0 L_p3b")
    mlp_dma(a, 2)
    a.lab("L_p3b")
    a(f"v_and_b32 v2, 15, v{VL}\nv_mul_u32_u24 v12, 320, v2\nv_bfe_u32 v2, v{VL}, 1, 2\nv_lshrrev_b32 v3, 4, v{VL}\nv_xor_b32 v2, v2, v3\nv_lshl_add_u32 v12, v2, 4, v12\nv_add_u32 v12, s66, v12")
    oth = a.newlab("gw"); go = a.newlab("gg")
    a(f"s_cmp_lg_u32 s{w}, 0\ns_cbranch_scc1 {oth}")
    a(f"s_lshl_b32 s51, s{SDT3}, 8\ns_add_u32 s51, s51, {G_G+128}\nv_mov_b32 v2, 0\ns_setprio 3")
    gpoll(a, 2, SWS, "s51", 1, 1)
    lds_set(a, C_GGO)
    a(f"s_setprio {OPT.get('prio2', 1)}\ns_branch {go}")
    a.lab(oth)
    lds_wait(a, C_GGO, 1)
    a.lab(go)
    stamp(a, 5)
    a(f"s_mov_b32 s{S_CNT}, 3\ns_cmp_ge_u32 s{w}, 2\ns_cbranch_scc1 L_d3")
    for k in (2, 3, 0, 1):
        for db in range(5): mlp_dir(a, k, db, LD)
    a(f"s_waitcnt vmcnt(0)\ns_branch L_mb2")
    a.lab("L_d3")
    for k in (3, 0, 1, 2):
        for db in range(5): mlp_dir(a, k, db, LD)
    a(f"s_waitcnt vmcnt(0)\ns_branch L_mb3")
    a(".p2align 3")
    for k in range(4):
        a.lab(f"L_mb{k}")
        mlp_body(a, k, 27, True, LD, swap=True)
    a(f"s_sub_u32 s{S_CNT}, s{S_CNT}, 1\ns_cmp_lg_u32 s{S_CNT}, 0\ns_cbranch_scc1 L_mb0")
    for k in range(4): mlp_body(a, k, 27-9*k, False, LD, swap=True)
    stamp(a, 6)
    a("s_nop 4")
    for db in range(5):
        for sb in range(4): a(f"ds_write_b128 v12, {v(MACC+(sb*5+db)*4,4)} offset:{sb*5120+db*64}")
    a("s_waitcnt lgkmcnt(0)\ns_barrier")
    stamp_dump(a, 0)
    a("s_endpgm")
    a.lab("L_idle9")
    loader_fin(a, 1 if OPT.get('b1', 1) else 0)
    a.lab("L_idle")
    lds_wait(a, C_QA, 4)
    stamp(a, 2)
    def pid(): a(f"s_mul_i32 s61, s{SXCD}, 5\ns_add_u32 s61, s61, s{SJ}\ns_sub_u32 s61, s61, 27\ns_lshl_b32 s61, s61, 2\ns_add_u32 s61, s61, s{SKW}")
    def mid():
        if OPT.get("pf", 1) and not OPT.get("b1", 1):
            pid(); prefetch(a, 61, 160, OPT.get("np1", 8*56), NB1)
    wof(a, mid)
    stamp(a, 3)
    if OPT.get("pf", 1):
        pid()
        if OPT.get("w2wait", 0): lds_wait(a, C_AV, 4)
        prefetch(a, 61, 160, NB1, NB1 + (8*64 if OPT.get('b2', 0) else NB2), OPT.get("thr", 0))
    stamp(a, 4)
    a(f"s_waitcnt vmcnt(0)\ns_mov_b32 s61, {C_W1}\ns_branch L_m2")
    a.lab("L_cons")
    est(a, 1)
    a("s_setprio 3")
    ln_issue(a)
    a("s_mov_b32 s62, s53\ns_mov_b32 s63, s55")
    qkv_consumer_setup(a)
    a(f"v_lshrrev_b32 v2, 5, v{VL}\nv_and_b32 v3, 31, v{VL}")
    for r in range(8, 14): a(f"v_mov_b32 v{200+r}, v{r}")
    trs_prep(a, SWAVE, L_LN, 327680, 54, 214)
    a(f"v_lshrrev_b32 v2, 5, v{VL}\nv_and_b32 v3, 31, v{VL}")
    est(a, 4)
    a("s_waitcnt vmcnt(0)")
    est(a, 5)
    init_counters(a)
    rows_ln(a, 62, 54, ST)
    rows_to_lds(a, SWAVE, L_LN, 54)
    est(a, 6)
    a("s_waitcnt lgkmcnt(0)\ns_barrier")
    trs_go(a, SWAVE, 63, 214)
    a(f"s_setprio {OPT.get('prioc', 0)}")
    for r in range(8, 14): a(f"v_mov_b32 v{r}, v{200+r}")
    stamp(a, 2)
    a(f"s_cmp_ge_u32 s{SN}, 10\ns_cbranch_scc1 L_consv")
    for vori in (0, 1):
        if vori: a.lab("L_consv")
        consumer_loop(a, vori)
        stamp(a, 3)
        a("s_setprio 3")
        qkv_epi_lds(a, vori)
        qkv_epi(a, SM, SN, vori, ST)
        if not vori: a("s_branch L_qdone")
    a.lab("L_qdone")
    ids_late(a)
    a(f"s_lshl_b32 s61, s{SM}, 8\ns_add_u32 s61, s61, {G_Q}")
    arrive(a, C_QA, 4, 61, 15)
    a.lab("L_attn")
    attn2(a)
    a("s_setprio 2")
    a(f"s_lshl_b32 s61, s{SBQ}, 8\ns_add_u32 s61, s61, {G_O}")
    arrive(a, C_OA, 4, 61, 32)
    w = SWAVE
    a(f"s_mov_b32 s{SKW}, s{w}\ns_setprio {OPT.get('priow', 2)}")
    oth = a.newlab("ww"); go = a.newlab("wg")
    a(f"s_cmp_lg_u32 s{w}, 0\ns_cbranch_scc1 {oth}\ns_mov_b32 s51, {G_W+128}\nv_mov_b32 v2, 0")
    gpoll(a, 2, SWS, "s51", 1, 1)
    lds_set(a, C_W2)
    a(f"s_branch {go}")
    a.lab(oth)
    lds_wait(a, C_W2, 1)
    a.lab(go)
    ast(a, 6)
    wo_bloads(a, SDT3, SKW, LD)
    wo2(a)
    stamp(a, 6)
    fin_resid_loads(a, SDT3, SST, w)
    lds_wait(a, C_OA, 4)
    a(f"s_lshl_b32 s66, s{w}, 14")
    fin_write(a, 66, 5)
    lds_sync(a, C_WR, 4)
    for i in range(1, 4):
        a(f"s_xor_b32 s65, s{w}, {i}\ns_lshl_b32 s65, s65, 14\ns_add_u32 s65, s65, {(i-1)*5120}\nv_add_u32 v10, s65, v{MDIR}")
        for db in range(5): a(f"ds_read_b128 {v(16+20*i+4*db,4)}, v10 offset:{db*1024}")
    for i in range(1, 4):
        a(f"s_waitcnt lgkmcnt({15-5*i})")
        for q in range(10): a(f"v_pk_add_f32 {v(16+2*q,2)}, {v(16+2*q,2)}, {v(16+20*i+2*q,2)}")
    lds_sync(a, C_WR, 8)
    a(f"v_lshrrev_b32 v2, 4, v{VL}\nv_mul_u32_u24 v2, 1280, v2\nv_and_b32 v3, 15, v{VL}\nv_lshl_add_u32 v2, v3, 2, v2\nv_add_u32 v2, s66, v2\nv_lshlrev_b32 v3, 5, v{VL}\nv_add_u32 v3, s66, v3")
    for db in range(5):
        for r in range(4): a(f"ds_write_b32 v2, v{16+4*db+r} offset:{r*320+db*64}")
    a("s_waitcnt lgkmcnt(0)")
    for k in range(3): a(f"ds_read_b128 {v(40+8*k,4)}, v3 offset:{k*2048}\nds_read_b128 {v(44+8*k,4)}, v3 offset:{k*2048+16}")
    a(f"s_mul_i32 s65, s{w}, 5120\ns_add_u32 s65, s65, {M1BASE}")
    for k in range(3):
        a(f"v_add_u32 v2, {64*k}, v{VL}\nv_min_u32 v2, 159, v2\nv_mul_u32_u24 v3, 205, v2\nv_lshrrev_b32 v3, 11, v3\nv_bfe_u32 v4, v3, 1, 2\nv_lshlrev_b32 v2, 1, v2\nv_xor_b32 v2, v2, v4\nv_lshlrev_b32 v2, 4, v2\nv_add_u32 v{210+2*k}, s65, v2\nv_xor_b32 v{211+2*k}, 16, v{210+2*k}")
    a("s_waitcnt vmcnt(0)")
    for k in range(3):
        a(f"v_lshlrev_b32 v{204+k}, 16, v{204+k}")
        for q in range(4): a(f"v_lshlrev_b32 v{64+8*k+2*q}, 16, v{192+4*k+q}\nv_and_b32 v{65+8*k+2*q}, 0xffff0000, v{192+4*k+q}")
        for q in range(8): a(f"v_add_f32 v{64+8*k+q}, v{64+8*k+q}, v{204+k}")
    a("s_waitcnt lgkmcnt(0)")
    for q in range(12): a(f"v_pk_add_f32 {v(40+2*q,2)}, {v(40+2*q,2)}, {v(64+2*q,2)}")
    stamp(a, 1)
    a("s_setprio 3\ns_barrier")
    stamp(a, 2, OPT.get("mst") == 6)
    for k in range(3):
        for src in range(4): a(f"ds_read_b128 {v(96+32*k+8*src,4)}, v{210+2*k} offset:{src*M1STR}\nds_read_b128 {v(100+32*k+8*src,4)}, v{211+2*k} offset:{src*M1STR}")
        if k >= 1:
            a("s_waitcnt lgkmcnt(8)")
            for src in range(4):
                for q in range(4): a(f"v_pk_add_f32 {v(40+8*(k-1)+2*q,2)}, {v(40+8*(k-1)+2*q,2)}, {v(96+32*(k-1)+8*src+2*q,2)}")
            for q in range(4): a(f"v_cvt_pk_bf16_f32 v{16+4*(k-1)+q}, v{40+8*(k-1)+2*q}, v{41+8*(k-1)+2*q}")
            a(f"buffer_store_dwordx4 {v(16+4*(k-1),4)}, v{207+k-1}, {s(SOUT,4)}, s74 offen {OPT.get('outf', 1) and 'sc1' or ''}")
        if k == 1: pass
    a("s_waitcnt lgkmcnt(0)")
    for src in range(4):
        for q in range(4): a(f"v_pk_add_f32 {v(56+2*q,2)}, {v(56+2*q,2)}, {v(160+8*src+2*q,2)}")
    for q in range(4): a(f"v_cvt_pk_bf16_f32 v{24+q}, v{56+2*q}, v{57+2*q}")
    a(f"buffer_store_dwordx4 v[24:27], v209, {s(SOUT,4)}, s74 offen {OPT.get('outf', 1) and 'sc1' or ''}")
    if blocks.STAMP: a("s_waitcnt vmcnt(0)")
    stamp_dump(a, 0)
    a("s_endpgm")
    a.lab("L_spare")
    ids_late(a)
    a(f"s_mov_b32 s{SHAS1}, 0\ns_sub_u32 s{SKW}, s{SWAVE}, 4\ns_cmp_ge_u32 s{SWAVE}, 4\ns_cbranch_scc0 L_sp_ln")
    if OPT.get("pf", 1):
        a(f"s_lshl_b32 s61, s{SXCD}, 1\ns_add_u32 s61, s61, s{SJ}\ns_sub_u32 s61, s61, 30\ns_lshl_b32 s61, s61, 2\ns_add_u32 s61, s61, s{SKW}")
    a("s_barrier")
    if OPT.get("early", 0) and OPT.get("pf", 1): prefetch(a, 61, 64, 0, 64)
    a("s_barrier")
    if OPT.get("pf", 1): prefetch(a, 61, 64, 64 if OPT.get("early", 0) else 0, OPT.get("np1", 8*56))
    stamp(a, 1)
    a("s_waitcnt vmcnt(0)\ns_branch L_idle")
    a.lab("L_sp_ln")
    ln_issue(a)
    a("s_waitcnt vmcnt(0)")
    init_counters(a)
    rows_ln(a, 53, 54, ST)
    rows_to_lds(a, SWAVE, L_LN, 54)
    a("s_waitcnt lgkmcnt(0)\ns_barrier")
    rows_tr_store(a, SWAVE, L_LN, 55, 327680, 54, ST)
    a(f"s_waitcnt vmcnt(0)\ns_barrier\ns_cmp_lg_u32 s{SWAVE}, 0\ns_cbranch_scc1 L_sp_na")
    c1_arrive(a)
    c1_poll(a, 8)
    a(f"v_mov_b32 v2, {C_QA}\nv_mov_b32 v3, 4\nds_write_b32 v2, v3")
    a.lab("L_sp_na")
    stamp(a, 1)
    a("s_branch L_attn")
    a.lab("L_end"); a("s_endpgm")
    a('.section .rodata,"a"')
    return a.text() + kd(NAME)
if __name__ == "__main__":
    blocks.STAMP = "stamp" in sys.argv
    for x in sys.argv[2:]:
        if "=" in x: k, val = x.split("="); blocks.OPT[k] = int(val)
    t = gen()
    print("hazards:", hazard_check(t))
    open(sys.argv[1], "w").write(open("hdr.txt").read() + t)
    import subprocess
    r = subprocess.run(["clang", "-x", "assembler", "-target", "amdgcn-amd-amdhsa", "-mcpu=gfx950", "-c", sys.argv[1], "-o", "x.o"], capture_output=True, text=True)
    if r.returncode: print(r.stderr[:1500]); sys.exit(1)
```

```python
from asmlib import *
OFF_R, OFF_RM, OFF_CS = 0, 8192, 16384
OFF_FLAG = 32768
OFF_H = 0x20000
SZ = 0x280000
OFF_WOF = OFF_H + SZ
OFF_Q = OFF_WOF + 0xC8000
OFF_K = OFF_Q + SZ
OFF_V = OFF_K + SZ
OFF_O = OFF_V + SZ + 0x1000
OFF_G = OFF_O + SZ
OFF_STAMP = OFF_G + 0x21C000
WS_USED = OFF_STAMP + 0x100000
SX, SWQ, SWO, SW1, SW2, SWS, SOUT, SB1, SB2, SDBG = 4, 8, 12, 16, 20, 24, 28, 32, 36, 40
SWAVE, SXCD, SJ = 44, 45, 46
SRDS = {SX: (0, 2621440), SWQ: (8, 2457600), SWO: (16, 819200), SW1: (32, 7077888), SW2: (48, 7077888),
        SWS: (80, WS_USED), SOUT: (64, 2621440), SB1: (40, 3456), SB2: (56, 4096), SDBG: (72, 256)}
VL = 1
NEGINF = "0xff800000"
OOB = "0x7fff0000"

STAMP = False
def stamp(a, i, force=False):
    if STAMP and OPT.get("mst") != 9 and (force or not OPT.get("mst") or i not in ((1, 4, 5, 6) if OPT["mst"] == 3 else (1, 2, 3, 4, 5, 6) if OPT["mst"] in (4, 5, 7, 8) else (1, 5, 6))): a(f"s_waitcnt lgkmcnt(0)\ns_memrealtime s[100:101]\ns_waitcnt lgkmcnt(0)\ns_mov_b32 s{84+i}, s100\ns_memtime s[100:101]\ns_waitcnt lgkmcnt(0)\ns_mov_b32 s{92+i}, s100")
def lstamp(a, i):
    if STAMP: a(f"s_memtime s[{86+2*i}:{87+2*i}]")
def stamp_dump(a, k):
    if STAMP and OPT.get("mst") == 9:
        a(f"s_waitcnt lgkmcnt(0)\ns_lshl_b32 s83, s2, 3\ns_add_u32 s83, s83, s{SWAVE}\ns_lshl_b32 s83, s83, 6\ns_add_u32 s83, s83, {OFF_STAMP}\ns_mov_b64 exec, 1")
        for i in range(8): a(f"v_mov_b32 v2, s{86+2*i}\nbuffer_store_dword v2, off, {s(SWS,4)}, s83 offset:{4*i}")
        return
    if not STAMP: return
    stamp(a, 7)
    if OPT.get("dbgout"):
        LL = a.newlab("dbo")
        a(f"s_cmp_lg_u32 s2, {OPT['dbgout']-1}\ns_cbranch_scc1 {LL}\ns_and_b32 s100, s{SWAVE}, 3\ns_cmp_lg_u32 s100, 0\ns_cbranch_scc1 {LL}\ns_lshl_b32 s100, s{SWAVE}, 3\ns_mov_b64 exec, 1")
        for i in range(1, 8): a(f"s_sub_u32 s101, s{84+i}, s84\nv_mov_b32 v2, s101\nbuffer_store_dword v2, off, {s(SDBG,4)}, s100 offset:{4*i}")
        a.lab(LL)
    a(f"s_lshl_b32 s100, s2, 3\ns_add_u32 s100, s100, s{SWAVE}\ns_lshl_b32 s100, s100, 6\ns_add_u32 s100, s100, {OFF_STAMP + k*131072}\ns_mov_b64 exec, 1")
    for i in range(16): a(f"v_mov_b32 v2, s{84+i}\nbuffer_store_dword v2, off, {s(SWS,4)}, s100 offset:{4*i}")
def prologue(a, name, nwg, srds, end):
    a(f".globl {name}\n.p2align 8\n.type {name},@function")
    a.lab(name)
    a(f"s_cmp_ge_u32 s2, {nwg}\ns_cbranch_scc1 {end}")
    if STAMP:
        for i in range(16): a(f"s_mov_b32 s{84+i}, 0")
    stamp(a, 0)
    for r in srds: a(f"s_load_dwordx2 {s(r,2)}, s[0:1], {SRDS[r][0]}")
    a(f"v_lshrrev_b32 v2, 6, v0\nv_and_b32 v{VL}, 63, v0")
    a(f"s_and_b32 s{SXCD}, s2, 7\ns_lshr_b32 s{SJ}, s2, 3")
    a(f"v_readfirstlane_b32 s{SWAVE}, v2")
    for r in srds: a(f"s_mov_b32 s{r+2}, {SRDS[r][1]}\ns_mov_b32 s{r+3}, 0x20000")
    a("s_waitcnt lgkmcnt(0)")

def kd(name, vg=256):
    return f""".p2align 6
.amdhsa_kernel {name}
  .amdhsa_next_free_vgpr {vg}
  .amdhsa_next_free_sgpr 102
  .amdhsa_accum_offset {vg}
  .amdhsa_group_segment_fixed_size 0
  .amdhsa_kernarg_size 88
  .amdhsa_user_sgpr_count 2
  .amdhsa_user_sgpr_kernarg_segment_ptr 1
  .amdhsa_system_sgpr_workgroup_id_x 1
.end_amdhsa_kernel
"""

def reduce32(a, r, t):
    for sh in (8, 4, 2, 1):
        a(f"s_nop 1\nv_add_f32_dpp v{r}, v{r}, v{r} row_ror:{sh} row_mask:0xf bank_mask:0xf")
    a(f"v_mov_b32 v{t}, v{r}\ns_nop 1\nv_permlane16_swap_b32 v{r}, v{t}\nv_add_f32 v{r}, v{r}, v{t}")

def rows_load(a, srd, sw, srow, st):
    a(f"v_lshrrev_b32 v2, 5, v{VL}\nv_and_b32 v3, 31, v{VL}")
    a(f"v_mul_u32_u24 v4, 1280, v2\nv_lshl_add_u32 v5, v3, 3, v4\nv_lshl_add_u32 v4, v3, 4, v4")
    a(f"s_mul_i32 s{st}, s{srow}, 1280")
    a(f"buffer_load_dwordx4 v[16:19], v4, {s(srd,4)}, s{st} offen")
    a(f"buffer_load_dwordx4 v[20:23], v4, {s(srd,4)}, s{st} offen offset:512")
    a(f"buffer_load_dwordx2 v[24:25], v5, {s(srd,4)}, s{st} offen offset:1024")
def rows_ln(a, srow, st, stf, lds=None):
    for i in range(10):
        a(f"v_lshlrev_b32 v{28+2*i}, 16, v{16+i}\nv_and_b32 v{29+2*i}, 0xffff0000, v{16+i}")
    a("v_pk_add_f32 v[6:7], v[28:29], v[30:31]")
    for i in range(2, 10): a(f"v_pk_add_f32 v[6:7], v[6:7], v[{28+2*i}:{29+2*i}]")
    a("v_add_f32 v6, v6, v7")
    reduce32(a, 6, 7)
    a(f"v_mul_f32 v6, {hexf(1/640)}, v6")
    for i in range(10): a(f"v_pk_add_f32 v[{28+2*i}:{29+2*i}], v[{28+2*i}:{29+2*i}], v[6:7] op_sel_hi:[1,0] neg_lo:[0,1] neg_hi:[0,1]")
    a("v_pk_mul_f32 v[8:9], v[28:29], v[28:29]")
    for i in range(1, 10): a(f"v_pk_fma_f32 v[8:9], v[{28+2*i}:{29+2*i}], v[{28+2*i}:{29+2*i}], v[8:9]")
    a("v_add_f32 v8, v8, v9")
    reduce32(a, 8, 9)
    a(f"v_mul_f32 v8, {hexf(1/640)}, v8")
    a(f"v_add_f32 v9, {hexf(1e-5)}, v8\nv_rsq_f32 v9, v9")
    a(f"v_mov_b32 v11, {hexf(1e-5)}\nv_mul_f32 v10, v9, v9\nv_fma_f32 v10, v10, v8, v11\nv_rsq_f32 v10, v10")
    a("v_mul_f32 v11, v9, v6\nv_mul_f32 v10, v10, v9")
    if lds is None:
        a(f"s_lshl_b32 s{st}, s{srow}, 2")
        a(f"v_lshlrev_b32 v12, 2, v2\nv_cmp_eq_u32 vcc, 0, v3\nv_mov_b32 v13, {OOB}\ns_nop 0\nv_cndmask_b32 v12, v13, v12, vcc")
        a(f"buffer_store_dword v9, v12, {s(SWS,4)}, s{st} offen {stf}")
        a(f"s_add_u32 s{st}, s{st}, {OFF_RM}")
        a(f"buffer_store_dword v11, v12, {s(SWS,4)}, s{st} offen {stf}")
    else:
        a(f"s_lshl_b32 s{st}, s{SWAVE}, 3\ns_add_u32 s{st}, s{st}, {lds}\nv_lshlrev_b32 v12, 2, v2\nv_add_u32 v12, s{st}, v12\nds_write_b32 v12, v9\nds_write_b32 v12, v11 offset:32")
    for i in range(10): a(f"v_pk_mul_f32 v[{28+2*i}:{29+2*i}], v[{28+2*i}:{29+2*i}], v[10:11] op_sel_hi:[1,0]")
    for i in range(10): a(f"v_cvt_pk_bf16_f32 v{16+i}, v{28+2*i}, v{29+2*i}")
def rows_to_lds(a, sw, ldsbase, st):
    a(f"s_mul_i32 s{st}, s{sw}, 2688\ns_add_u32 s{st}, s{st}, {ldsbase}")
    a(f"v_mul_u32_u24 v4, 1344, v2\nv_add_u32 v4, s{st}, v4\nv_lshl_add_u32 v5, v3, 3, v4\nv_lshl_add_u32 v4, v3, 4, v4")
    a("ds_write_b128 v4, v[16:19]\nds_write_b128 v4, v[20:23] offset:512\nds_write_b64 v5, v[24:25] offset:1024")
def rows_tr_store(a, sw, ldsbase, sdst, dt, st, stf):
    a(f"v_lshrrev_b32 v2, 4, v{VL}\nv_and_b32 v3, 15, v{VL}")
    a(f"v_lshrrev_b32 v4, 2, v3\nv_mul_u32_u24 v4, 1344, v4\nv_lshl_add_u32 v4, v2, 5, v4\nv_and_b32 v5, 3, v3\nv_lshl_add_u32 v4, v5, 3, v4")
    a(f"s_lshl_b32 s{st}, s{sw}, 7\ns_add_u32 s{st}, s{st}, {ldsbase}\nv_add_u32 v4, s{st}, v4")
    skip = a.newlab("trs")
    for k in range(3):
        if k == 2: a(f"s_cmp_ge_u32 s{sw}, 2\ns_cbranch_scc1 {skip}")
        a(f"ds_read_b64_tr_b16 v[{16+4*k}:{17+4*k}], v4 offset:{k*512}\nds_read_b64_tr_b16 v[{18+4*k}:{19+4*k}], v4 offset:{k*512+5376}")
        a(f"s_lshl_b32 s{st}, s{sw}, 2\ns_add_u32 s{st}, s{st}, {16*k}\nv_add_u32 v5, s{st}, v2")
        a(f"v_mul_u32_u24 v6, 52, v5\nv_lshrrev_b32 v6, 8, v6\ns_mov_b32 s{st}, {dt-5120}\nv_mul_lo_u32 v6, v6, s{st}\nv_lshl_add_u32 v6, v5, 10, v6\nv_lshl_add_u32 v6, v3, 4, v6")
        a(f"s_waitcnt lgkmcnt(0)\nbuffer_store_dwordx4 v[{16+4*k}:{19+4*k}], v6, {s(SWS,4)}, s{sdst} offen {stf}")
    a.lab(skip)

import struct
def hexf(x): return "0x%08x" % struct.unpack("<I", struct.pack("<f", x))[0]

def colsum(a, snt, ldsbase, st, stf):
    a(f"v_lshrrev_b32 v2, 4, v{VL}\nv_and_b32 v3, 15, v{VL}\nv_mul_u32_u24 v4, 3840, v2\nv_lshl_add_u32 v4, v3, 4, v4")
    a(f"s_mul_i32 s{st}, s{SWAVE}, {80*3840}\ns_lshl_b32 s{st+1}, s{snt}, 8\ns_add_u32 s{st}, s{st}, s{st+1}")
    for i in range(20):
        a(f"buffer_load_dwordx4 v[{32+4*i}:{35+4*i}], v4, {s(SWQ,4)}, s{st} offen\ns_add_u32 s{st}, s{st}, {4*3840}")
    for c in range(8): a(f"v_mov_b32 v{16+c}, 0")
    for i in range(20):
        a(f"s_waitcnt vmcnt({19-i})")
        for c in range(4):
            a(f"v_lshlrev_b32 v24, 16, v{32+4*i+c}\nv_and_b32 v25, 0xffff0000, v{32+4*i+c}\nv_pk_add_f32 v[{16+2*c}:{17+2*c}], v[{16+2*c}:{17+2*c}], v[24:25]")
    for sw in ("v_permlane32_swap_b32", "v_permlane16_swap_b32"):
        for c in range(8): a(f"v_mov_b32 v{24+c}, v{16+c}")
        a("s_nop 0")
        for c in range(8): a(f"{sw} v{16+c}, v{24+c}")
        for c in range(8): a(f"v_add_f32 v{16+c}, v{16+c}, v{24+c}")
    a(f"s_lshl_b32 s{st}, s{SWAVE}, 9\ns_add_u32 s{st}, s{st}, {ldsbase}\nv_lshlrev_b32 v4, 5, v3\nv_add_u32 v4, s{st}, v4")
    a("ds_write_b128 v4, v[16:19]\nds_write_b128 v4, v[20:23] offset:16\ns_waitcnt lgkmcnt(0)\ns_barrier")
    skip = a.newlab("cs")
    a(f"s_cmp_ge_u32 s{SWAVE}, 2\ns_cbranch_scc1 {skip}")
    a(f"v_lshlrev_b32 v4, 2, v0\nv_add_u32 v5, {ldsbase}, v4")
    for w in range(8): a(f"ds_read_b32 v{16+w}, v5 offset:{w*512}")
    a("s_waitcnt lgkmcnt(0)")
    for w in range(1, 8): a(f"v_add_f32 v16, v16, v{16+w}")
    a(f"s_lshl_b32 s{st}, s{snt}, 9\ns_add_u32 s{st}, s{st}, {OFF_CS}")
    a(f"buffer_store_dword v16, v4, {s(SWS,4)}, s{st} offen {stf}")
    a.lab(skip)

def qkv_tile(a, sm, sn):
    a(f"s_lshr_b32 s{sm}, s{SXCD}, 1\ns_lshl_b32 s{sm}, s{sm}, 2\ns_and_b32 s{sn}, s{SJ}, 3\ns_add_u32 s{sm}, s{sm}, s{sn}")
    a(f"s_and_b32 s{sn}, s{SXCD}, 1\ns_lshl_b32 s{sn}, s{sn}, 3\ns_lshr_b32 s47, s{SJ}, 2\ns_add_u32 s{sn}, s{sn}, s47")
def qkv_loader(a, sm, sn, st):
    lw, sxo, swo, sm0, t = st, st+1, st+2, st+3, st+4
    a(f"s_sub_u32 s{lw}, s{SWAVE}, 4")
    a(f"v_lshrrev_b32 v2, 3, v{VL}\nv_mul_u32_u24 v2, 1280, v2\nv_and_b32 v3, 7, v{VL}\nv_lshrrev_b32 v4, 4, v{VL}\nv_xor_b32 v3, v3, v4\nv_lshl_add_u32 v6, v3, 4, v2\nv_xor_b32 v7, 64, v6")
    a(f"v_mul_u32_u24 v2, 3840, v4\nv_bfe_u32 v3, v{VL}, 2, 2\nv_xor_b32 v3, v3, v4\nv_lshl_add_u32 v2, v3, 6, v2\nv_and_b32 v3, 3, v{VL}\nv_lshl_add_u32 v8, v3, 4, v2")
    a(f"s_lshl_b32 s{sxo}, s{sm}, 7\ns_lshl_b32 s{t}, s{lw}, 5\ns_add_u32 s{sxo}, s{sxo}, s{t}\ns_mul_i32 s{sxo}, s{sxo}, 1280")
    a(f"s_mul_i32 s{swo}, s{lw}, {16*3840}\ns_lshl_b32 s{t}, s{sn}, 8\ns_add_u32 s{swo}, s{swo}, s{t}")
    a(f"s_lshl_b32 s{sm0}, s{lw}, 12")
    ko = st+5
    if OPT["rot1"]:
        a(f"s_and_b32 s{ko}, s{SJ}, 3\ns_lshl_b32 s{ko}, s{ko}, 1\ns_lshr_b32 s{t}, s{SJ}, 2\ns_add_u32 s{ko}, s{ko}, s{t}")
        if OPT["rot1"] > 1: a(f"s_add_u32 s{ko}, s{ko}, s{SXCD}")
        for _ in range(2): a(f"s_cmp_ge_u32 s{ko}, 10\ns_cselect_b32 s{t}, 10, 0\ns_sub_u32 s{ko}, s{ko}, s{t}")
        a(f"s_lshl_b32 s{t}, s{ko}, 7\ns_add_u32 s{sxo}, s{sxo}, s{t}\ns_mul_i32 s{t}, s{ko}, 245760\ns_add_u32 s{swo}, s{swo}, s{t}")
    def stage(sidx):
        slot = sidx % 4
        if OPT.get("k1_noload"): return
        if OPT["rot1"] and sidx:
            a(f"s_add_u32 s{ko}, s{ko}, 1\ns_cmp_eq_u32 s{ko}, 10\ns_cselect_b32 s{t}, 1280, 0\ns_sub_u32 s{sxo}, s{sxo}, s{t}\ns_cmp_eq_u32 s{ko}, 10\ns_cselect_b32 s{t}, 2457600, 0\ns_sub_u32 s{swo}, s{swo}, s{t}")
        a(f"s_add_u32 m0, s{sm0}, {slot*32768}")
        for i in range(4):
            a(f"s_add_u32 s{t}, s{sxo}, {i*9216 + sidx*128}")
            a(f"buffer_load_dwordx4 v{6+(i&1)}, {s(SX,4)}, s{t} offen offset:{i*1024} lds")
        a(f"s_add_u32 m0, s{sm0}, {slot*32768+16384}")
        for i in range(4):
            a(f"s_add_u32 s{t}, s{swo}, {i*14336 + sidx*245760}")
            a(f"buffer_load_dwordx4 v8, {s(SWQ,4)}, s{t} offen offset:{i*1024} lds")
    LA = OPT.get("la", 2)
    for sidx in range(LA):
        a(f"s_setprio {3-sidx}"); stage(sidx)
    a("s_setprio 0")
    for sidx in range(10):
        n = 8*min(LA-1, 9-sidx)
        a(f"s_waitcnt vmcnt({n})\ns_barrier")
        if sidx + LA <= 9: stage(sidx + LA)

QACC, QF = 64, 32
def qkv_consumer_setup(a):
    a(f"s_lshr_b32 s48, s{SWAVE}, 1\ns_and_b32 s49, s{SWAVE}, 1")
    a(f"v_and_b32 v2, 31, v{VL}\nv_lshrrev_b32 v3, 5, v{VL}")
    a(f"v_bfe_u32 v4, v{VL}, 1, 3")
    a(f"s_lshl_b32 s50, s48, 13\nv_lshlrev_b32 v5, 7, v2\nv_add_u32 v5, s50, v5")
    for ks in range(4):
        a(f"v_or_b32 v6, {2*ks}, v3\nv_xor_b32 v6, v6, v4\nv_lshl_add_u32 v{8+ks}, v6, 4, v5")
    a(f"v_bfe_u32 v4, v{VL}, 2, 2\nv_lshl_add_u32 v5, v3, 3, v4\nv_lshlrev_b32 v5, 8, v5\nv_bfe_u32 v6, v{VL}, 4, 1\nv_lshl_add_u32 v5, v6, 5, v5\nv_and_b32 v6, 3, v{VL}\nv_lshl_add_u32 v5, v6, 3, v5\nv_add_u32 v5, 16384, v5")
    a(f"s_lshl_b32 s50, s49, 1")
    for cf in range(2):
        a(f"s_xor_b32 s51, s48, {cf}\ns_add_u32 s51, s50, s51\nv_xor_b32 v6, s51, v4\nv_lshl_add_u32 v{12+cf}, v6, 6, v5")
    for i in range(64): a(f"v_mov_b32 v{QACC+i}, 0")
def qkv_rd(a, ks, buf, slot, which):
    if OPT.get("k1_noread"): return
    b = QF + 16*buf; o = slot*32768
    if which[0] == "x":
        i = int(which[1]); a(f"ds_read_b128 {v(b+4*i,4)}, v{8+ks} offset:{o+i*4096}")
    else:
        cf = int(which[1])
        for rd in range(2): a(f"ds_read_b64_tr_b16 {v(b+8+4*cf+2*rd,2)}, v{12+cf} offset:{o+ks*4096+rd*1024}")
def qkv_mf(a, buf, vori, i, cf):
    if OPT.get("k1_nomfma"): return
    b = QF + 16*buf
    acc = v(QACC + 16*(2*i+cf), 16); X = v(b+4*i, 4); Wf = v(b+8+4*cf, 4)
    if vori: a(f"v_mfma_f32_32x32x16_bf16 {acc}, {X}, {Wf}, {acc}")
    else: a(f"v_mfma_f32_32x32x16_bf16 {acc}, {Wf}, {X}, {acc}")
def qkv_consumer_loop(a, vori, first_barrier=True):
    L = a.newlab("qloop"); last = a.newlab("qlast"); done = a.newlab("qdone")
    if first_barrier: a("s_barrier")
    for w in ("x0", "w0", "w1", "x1"): qkv_rd(a, 0, 0, 0, w)
    a("s_mov_b32 s50, 0")
    a(".p2align 3")
    a.lab(L)
    for slot in range(2):
        for ks in range(4):
            buf = ks & 1; nb = buf ^ 1
            if ks < 3:
                a("s_waitcnt lgkmcnt(3)"); qkv_mf(a, buf, vori, 0, 0); qkv_rd(a, ks+1, nb, slot, "x0"); qkv_rd(a, ks+1, nb, slot, "w0")
                a("s_waitcnt lgkmcnt(4)"); qkv_mf(a, buf, vori, 0, 1); qkv_rd(a, ks+1, nb, slot, "w1")
                a("s_waitcnt lgkmcnt(5)"); qkv_mf(a, buf, vori, 1, 0); qkv_rd(a, ks+1, nb, slot, "x1")
                qkv_mf(a, buf, vori, 1, 1)
            else:
                a("s_waitcnt lgkmcnt(3)"); qkv_mf(a, buf, vori, 0, 0)
                if slot == 1:
                    a(f"s_cmp_eq_u32 s50, 4\ns_cbranch_scc1 {last}")
                    for r in range(8, 14): a(f"v_xor_b32 v{r}, 0x10000, v{r}")
                a("s_waitcnt lgkmcnt(0)\ns_barrier")
                ns = slot ^ 1
                qkv_rd(a, 0, nb, ns, "x0"); qkv_rd(a, 0, nb, ns, "w0")
                qkv_mf(a, buf, vori, 0, 1); qkv_rd(a, 0, nb, ns, "w1")
                qkv_mf(a, buf, vori, 1, 0); qkv_rd(a, 0, nb, ns, "x1")
                qkv_mf(a, buf, vori, 1, 1)
    a(f"s_add_u32 s50, s50, 1\ns_branch {L}")
    a.lab(last)
    a("s_waitcnt lgkmcnt(0)")
    qkv_mf(a, 1, vori, 0, 1); qkv_mf(a, 1, vori, 1, 0); qkv_mf(a, 1, vori, 1, 1)
QSCALE = (20 ** -0.5) * 1.4426950408889634
def qkv_epi_loads(a, sm, sn, vori, ldf):
    a(f"s_lshl_b32 s50, s{sm}, 7\ns_lshl_b32 s51, s48, 6\ns_add_u32 s50, s50, s51\ns_lshl_b32 s51, s50, 2")
    a(f"s_add_u32 s52, s51, {OFF_RM}")
    a(f"s_lshl_b32 s53, s{sn}, 7\ns_lshl_b32 s54, s49, 6\ns_add_u32 s53, s53, s54\ns_lshl_b32 s54, s53, 2\ns_add_u32 s54, s54, {OFF_CS}")
    a(f"v_and_b32 v2, 31, v{VL}\nv_lshrrev_b32 v3, 5, v{VL}\nv_lshlrev_b32 v4, 2, v2\nv_lshlrev_b32 v5, 4, v3")
    ws = s(SWS, 4)
    if not vori:
        for i in range(2):
            a(f"buffer_load_dword v{128+2*i}, v4, {ws}, s51 offen offset:{i*128} {ldf}")
            a(f"buffer_load_dword v{132+2*i}, v4, {ws}, s52 offen offset:{i*128} {ldf}")
        for k in range(8): a(f"buffer_load_dwordx4 {v(136+4*k,4)}, v5, {ws}, s54 offen offset:{k*32} {ldf}")
    else:
        for cf in range(2): a(f"buffer_load_dword v{128+2*cf}, v4, {ws}, s54 offen offset:{cf*128} {ldf}")
        for k in range(8):
            a(f"buffer_load_dwordx4 {v(136+4*k,4)}, v5, {ws}, s51 offen offset:{k*32} {ldf}")
            a(f"buffer_load_dwordx4 {v(168+4*k,4)}, v5, {ws}, s52 offen offset:{k*32} {ldf}")
def qkv_epi(a, sm, sn, vori, stf):
    ws = s(SWS, 4)
    a("s_waitcnt vmcnt(0)")
    if not vori:
        a(f"s_cmp_lt_u32 s{sn}, 5\ns_cselect_b32 s55, {hexf(QSCALE)}, 1.0")
        for r in (128, 130, 132, 134): a(f"v_mul_f32 v{r}, s55, v{r}")
        a(f"s_cselect_b32 s56, 0, {OFF_K - OFF_Q - 160*256}\ns_add_u32 s56, s56, {OFF_Q}")
        a(f"s_lshr_b32 s55, s50, 5\ns_mul_i32 s55, s55, 40960\ns_add_u32 s56, s56, s55\ns_lshl_b32 s55, s53, 6\ns_add_u32 s56, s56, s55\ns_add_u32 s57, s56, 40960")
        a("v_lshlrev_b32 v4, 3, v2\nv_lshl_add_u32 v4, v3, 8, v4\ns_lshl_b32 s55, s48, 11\nv_add_u32 v4, s55, v4\nv_xor_b32 v5, 2048, v4")
        for i in range(2):
            for cf in range(2):
                b = QACC + 16*(2*i+cf)
                for p in range(8):
                    a(f"v_pk_mul_f32 {v(b+2*p,2)}, {v(b+2*p,2)}, {v(128+2*i,2)} op_sel_hi:[1,0]")
                for p in range(8):
                    a(f"v_pk_fma_f32 {v(b+2*p,2)}, {v(136+16*cf+2*p,2)}, {v(132+2*i,2)}, {v(b+2*p,2)} op_sel_hi:[1,0,1] neg_lo:[0,1,0] neg_hi:[0,1,0]")
                for p in range(8): a(f"v_cvt_pk_bf16_f32 v{b+p}, v{b+2*p}, v{b+2*p+1}")
                for q in range(4):
                    a(f"buffer_store_dwordx2 {v(b+2*q,2)}, v{4+cf}, {ws}, s{56+i} offen offset:{(2*q)*256} {stf}")
    else:
        a(f"s_lshr_b32 s55, s50, 5\ns_mul_i32 s55, s55, 40960\ns_lshl_b32 s56, s53, 4\ns_add_u32 s56, s56, s55\ns_add_u32 s56, s56, {OFF_V - 1280*16}")
        for k in range(1, 4): a(f"s_add_u32 s{56+k}, s56, {k*20480}")
        a("v_mul_u32_u24 v4, 10240, v3\nv_lshl_add_u32 v4, v2, 4, v4\ns_lshl_b32 s55, s48, 9\nv_add_u32 v4, s55, v4\nv_xor_b32 v5, 512, v4")
        for i in range(2):
            for cf in range(2):
                b = QACC + 16*(2*i+cf)
                for p in range(8):
                    a(f"v_pk_mul_f32 {v(b+2*p,2)}, {v(b+2*p,2)}, {v(136+16*i+2*p,2)}")
                for p in range(8):
                    a(f"v_pk_fma_f32 {v(b+2*p,2)}, {v(168+16*i+2*p,2)}, {v(128+2*cf,2)}, {v(b+2*p,2)} op_sel_hi:[1,0,1] neg_lo:[0,1,0] neg_hi:[0,1,0]")
                for p in range(8): a(f"v_cvt_pk_bf16_f32 v{b+p}, v{b+2*p}, v{b+2*p+1}")
                for m in range(2):
                    a(f"buffer_store_dwordx4 {v(b+4*m,4)}, v{4+cf}, {ws}, s{56+2*i+m} offen {stf}")

def lds_sync(a, addr, n, vt=2, st=60, ls=None):
    L = a.newlab("sync")
    a(f"s_waitcnt lgkmcnt(0)\nv_mov_b32 v{vt}, {addr}\nv_mov_b32 v{vt+1}, 1\ns_mov_b64 exec, 1\nds_add_u32 v{vt}, v{vt+1}\ns_mov_b64 exec, -1\ns_mov_b32 s47, 0x80000")
    a.lab(L)
    a(f"ds_read_b32 v{vt+1}, v{vt}\ns_sub_u32 s47, s47, 1\ns_cbranch_scc1 {L}x\ns_waitcnt lgkmcnt(0)\nv_readfirstlane_b32 s{st}, v{vt+1}\ns_cmp_ge_u32 s{st}, {n}\ns_cbranch_scc1 {L}x\ns_sleep {OPT.get('ls', 3) if ls is None else ls}\ns_branch {L}")
    a.lab(L + "x")

MACC, MA, MB = 16, 96, 112
MTR, MDMA, MDIR = 4, 8, 9
S_SRD, S_TO, S_D8, S_STEP, S_DO, S_M0, S_CNT, S_T, S_T2 = 52, 56, 57, 58, 59, 61, 62, 63, 64
def mlp_setup(a, srd, stride, sring, rot=None):
    for k in range(3): a(f"s_mov_b32 s{S_SRD+k}, s{srd+k}")
    a(f"s_mov_b32 s{S_SRD+3}, 0x20000")
    a(f"s_mov_b32 s{S_D8}, {8*stride-1024}\ns_mov_b32 s{S_STEP}, {32*stride - 3*(8*stride-1024)}\ns_mov_b32 s{S_M0}, s{sring}")
    a(f"v_lshrrev_b32 v2, 3, v{VL}\nv_mul_u32_u24 v2, {stride}, v2\nv_bfe_u32 v3, v{VL}, 1, 2\nv_lshrrev_b32 v10, 4, v{VL}\nv_xor_b32 v3, v3, v10\nv_lshl_add_u32 v2, v3, 5, v2\nv_and_b32 v3, 1, v{VL}\nv_lshl_add_u32 v{MDMA}, v3, 4, v2")
    a(f"v_lshlrev_b32 v{MDIR}, 4, v{VL}")
    a(f"v_lshrrev_b32 v2, 2, v{VL}\nv_lshlrev_b32 v2, 7, v2\nv_and_b32 v3, 3, v{VL}\nv_lshl_add_u32 v2, v3, 3, v2\nv_add_u32 v2, s{sring}, v2\nv_bfe_u32 v3, v{VL}, 3, 2")
    if rot is not None: a(f"v_xor_b32 v3, s{rot}, v3")
    for fb in range(4): a(f"v_xor_b32 v10, {fb}, v3\nv_lshl_add_u32 v{MTR+fb}, v10, 5, v2")
def mlp_dma(a, slot):
    a(f"s_add_u32 m0, s{S_M0}, {slot*4096}")
    for i in range(4):
        a(f"buffer_load_dwordx4 v{MDMA}, {s(S_SRD,4)}, s{S_TO} offen offset:{i*1024} lds" if i else f"s_nop 0\nbuffer_load_dwordx4 v{MDMA}, {s(S_SRD,4)}, s{S_TO} offen lds")
        a(f"s_add_u32 s{S_TO}, s{S_TO}, s{S_D8 if i < 3 else S_STEP}")
def mlp_dir(a, slot, db, ldf):
    r = MB + 20*slot + 4*db
    if db < 4: a(f"buffer_load_dwordx4 {v(r,4)}, v{MDIR}, {s(SWS,4)}, s{S_DO} offen offset:{db*1024} {ldf}")
    else: a(f"s_add_u32 s{S_T}, s{S_DO}, 4096\nbuffer_load_dwordx4 {v(r,4)}, v{MDIR}, {s(SWS,4)}, s{S_T} offen {ldf}\ns_add_u32 s{S_DO}, s{S_DO}, 5120")
def mlp_body(a, slot, wait, loads, ldf, swap=False):
    a(f"s_waitcnt vmcnt({wait})")
    for fb in range(4):
        for rd in range(2):
            if not OPT.get("m_noread"): a(f"ds_read_b64_tr_b16 {v(MA+4*fb+2*rd,2)}, v{MTR+fb} offset:{slot*4096+rd*2048}")
    a("s_waitcnt lgkmcnt(0)")
    if loads: mlp_dma(a, slot)
    for db in range(5):
        for fb in range(4):
            acc = v(MACC + (fb*5+db)*4, 4)
            A_, B_ = v(MA+4*fb,4), v(MB+20*slot+4*db,4)
            if swap: A_, B_ = B_, A_
            if not OPT.get("m_nomfma"): a(f"v_mfma_f32_16x16x32_bf16 {acc}, {A_}, {B_}, {acc}")
        if loads: mlp_dir(a, slot, db, ldf)
OPT = {"lead": 0, "leadwait": 27, "rot1": 0}
def lead_setup(a, skw, slead):
    a(f"s_lshr_b32 s{slead}, s{SJ}, 2\ns_add_u32 s{slead}, s{slead}, s{SJ}\ns_and_b32 s{slead}, s{slead}, 3\ns_cmp_eq_u32 s{slead}, s{skw}\ns_cselect_b32 s{slead}, 1, 0")
def mlp_loop(a, sphi, ldf, slead=None, flag=None):
    P = [a.newlab("mp") for _ in range(7)]; B = [a.newlab("mb") for _ in range(4)]; go = a.newlab("mgo")
    lead = OPT["lead"] and slead is not None
    if lead:
        L0 = a.newlab("ld"); L1 = a.newlab("ld")
        a(f"v_mov_b32 v12, {flag}\ns_cmp_eq_u32 s{slead}, 1\ns_cbranch_scc1 {L1}")
        for i in range(80): a(f"v_mov_b32 v{MACC+i}, 0")
        a.lab(L0)
        a(f"ds_read_b32 v13, v12\ns_waitcnt lgkmcnt(0)\nv_readfirstlane_b32 s{S_T}, v13\ns_cmp_eq_u32 s{S_T}, 0\ns_cbranch_scc1 {L0}")
        a.lab(L1)
    a(f"s_cmp_eq_u32 s{sphi}, 2\ns_cbranch_scc1 {P[2]}\ns_cmp_eq_u32 s{sphi}, 3\ns_cbranch_scc1 {P[3]}")
    for k in range(7):
        a.lab(P[k])
        mlp_dma(a, k % 4)
        for db in range(5): mlp_dir(a, k % 4, db, ldf)
        if k in (3, 5): a(f"s_cmp_eq_u32 s{sphi}, {k-3}\ns_cbranch_scc1 {go}")
    a.lab(go)
    if lead:
        L2 = a.newlab("ld")
        a(f"s_cmp_eq_u32 s{slead}, 0\ns_cbranch_scc1 {L2}")
        if OPT["lead"] > 1: a("s_setprio 3")
    for i in range(80): a(f"v_mov_b32 v{MACC+i}, 0")
    if lead:
        a(f"v_mov_b32 v13, 1\ns_waitcnt vmcnt({OPT['leadwait']})\nds_write_b32 v12, v13")
        a.lab(L2)
    a(f"s_cmp_eq_u32 s{sphi}, 2\ns_cbranch_scc1 {B[2]}\ns_cmp_eq_u32 s{sphi}, 3\ns_cbranch_scc1 {B[3]}")
    for k in range(4):
        a.lab(B[k])
        mlp_body(a, k, 27, True, ldf)
    a(f"s_sub_u32 s{S_CNT}, s{S_CNT}, 1\ns_cmp_lg_u32 s{S_CNT}, 0\ns_cbranch_scc1 {B[0]}")
    for k in range(4): mlp_body(a, k, 27-9*k, False, ldf)

def mlp1_tile(a, sdt, sft, skip):
    a(f"s_and_b32 s{sdt}, s{SXCD}, 1\ns_lshl_b32 s{sdt}, s{sdt}, 2\ns_and_b32 s47, s{SJ}, 3\ns_add_u32 s{sdt}, s{sdt}, s47")
    a(f"s_lshr_b32 s{sft}, s{SXCD}, 1\ns_mul_i32 s{sft}, s{sft}, 7\ns_lshr_b32 s47, s{SJ}, 2\ns_add_u32 s{sft}, s{sft}, s47")
    a(f"s_cmp_ge_u32 s47, 7\ns_cbranch_scc1 {skip}\ns_cmp_ge_u32 s{sft}, 27\ns_cbranch_scc1 {skip}")
def mlp1_main(a, sdt, sft, skw, ringbase, ringstride, ldf, flag=None):
    a(f"s_mul_i32 s66, s{skw}, {ringstride}\ns_add_u32 s66, s66, {ringbase}")
    a(f"s_mul_i32 s67, s{skw}, 3\ns_cmp_eq_u32 s{skw}, 3\ns_cselect_b32 s67, 8, s67")
    a(f"v_lshrrev_b32 v2, 4, v{VL}\nv_lshlrev_b32 v11, 3, v2")
    for k in range(3):
        a(f"s_add_u32 s65, s67, {k}\ns_cmp_ge_u32 s65, 5\ns_cselect_b32 s65, 64, 0\ns_lshl_b32 s68, s{sft}, 7\ns_add_u32 s65, s65, s68")
        for t in range(2): a(f"buffer_load_dwordx2 {v(192+4*k+2*t,2)}, v11, {s(SB1,4)}, s65 offen offset:{t*32}")
    mlp_setup(a, SW1, 3456, 66)
    a(f"s_mul_i32 s{S_TO}, s{skw}, {512*3456}\ns_lshl_b32 s65, s{sft}, 7\ns_add_u32 s{S_TO}, s{S_TO}, s65")
    a(f"s_mul_i32 s{S_DO}, s{sdt}, 327680\ns_mul_i32 s65, s{skw}, {16*5120}\ns_add_u32 s{S_DO}, s{S_DO}, s65\ns_add_u32 s{S_DO}, s{S_DO}, {OFF_H}")
    lead_setup(a, skw, 75)
    a(f"s_mov_b32 s{S_CNT}, 3\ns_mov_b32 s65, 0")
    mlp_loop(a, 65, ldf, 75, flag)
GC1 = -2*1.4426950408889634*0.7978845608028654
GC2 = GC1*0.044715
def mlp1_epi(a, sdt, sft, skw, ringbase, ringstride, cnt_addr, stf):
    a(f"v_add_u32 v10, s66, v{MDIR}\ns_nop 7")
    for t in range(20): a(f"ds_write_b128 v10, {v(MACC+4*t,4)} offset:{t*1024}")
    lds_sync(a, cnt_addr, 4)
    a(f"s_mul_i32 s68, s{sdt}, {54*5120}\ns_mul_i32 s65, s{sft}, 10240\ns_add_u32 s68, s68, s65\ns_lshl_b32 s65, s67, 10\ns_add_u32 s68, s68, s65\ns_add_u32 s68, s68, {OFF_G}")
    skip = a.newlab("m1e")
    for k in range(3):
        if k == 2: a(f"s_cmp_ge_u32 s{skw}, 2\ns_cbranch_scc1 {skip}_r")
        a(f"s_add_u32 s65, s67, {k}\ns_cmp_ge_u32 s65, 5\ns_cselect_b32 s69, 5, 0\ns_add_u32 s65, s65, s69\ns_lshl_b32 s65, s65, 10\ns_add_u32 s65, s65, {ringbase}")
        a(f"v_add_u32 v10, s65, v{MDIR}\nv_add_u32 v11, 5120, v10")
        for t in range(2):
            for src in range(4): a(f"ds_read_b128 {v(16+32*k+16*t+4*src,4)}, v{10+t} offset:{src*ringstride}")
    a.lab(skip + "_r")
    a(f"s_mov_b32 s70, {hexf(GC1)}\ns_mov_b32 s71, {hexf(GC1)}\ns_mov_b32 s72, {hexf(GC2)}\ns_mov_b32 s73, {hexf(GC2)}\nv_mov_b32 v14, s70\nv_mov_b32 v15, s70")
    a("s_waitcnt lgkmcnt(0)")
    for k in range(3):
        if k == 2: a(f"s_cmp_ge_u32 s{skw}, 2\ns_cbranch_scc1 {skip}")
        b = 16 + 32*k
        for t in range(2):
            for q in range(2):
                bb = 192+4*k+2*t+q
                a(f"v_lshlrev_b32 v{112+4*t+2*q}, 16, v{bb}\nv_and_b32 v{113+4*t+2*q}, 0xffff0000, v{bb}")
        for src in range(4):
            for t in range(2):
                for q in range(2): a(f"v_pk_add_f32 {v(112+4*t+2*q,2)}, {v(112+4*t+2*q,2)}, {v(b+16*t+4*src+2*q,2)}")
        for q in range(4): a(f"v_pk_mul_f32 {v(120+2*q,2)}, {v(112+2*q,2)}, {v(112+2*q,2)}")
        for q in range(4): a(f"v_pk_fma_f32 {v(120+2*q,2)}, {v(120+2*q,2)}, s[72:73], v[14:15]")
        for q in range(4): a(f"v_pk_mul_f32 {v(120+2*q,2)}, {v(120+2*q,2)}, {v(112+2*q,2)}")
        for q in range(8): a(f"v_exp_f32 v{120+q}, v{120+q}")
        for q in range(8): a(f"v_add_f32 v{120+q}, 1.0, v{120+q}")
        for q in range(8): a(f"v_rcp_f32 v{120+q}, v{120+q}")
        a("s_nop 0")
        for q in range(4): a(f"v_pk_mul_f32 {v(120+2*q,2)}, {v(120+2*q,2)}, {v(112+2*q,2)}")
        for q in range(4): a(f"v_cvt_pk_bf16_f32 v{128+4*k+q}, v{120+2*q}, v{121+2*q}")
        a(f"buffer_store_dwordx4 {v(128+4*k,4)}, v{MDIR}, {s(SWS,4)}, s68 offen offset:{k*1024} {stf}")
    a.lab(skip)

AS, AMD, AME, AO, AK, AV, AQ = 16, 160, 176, 192, 208, 226, 242
def attn_ids(a, shd, sb):
    a(f"s_lshl_b32 s{shd}, s{SXCD}, 2\ns_and_b32 s47, s{SJ}, 3\ns_add_u32 s{shd}, s{shd}, s47\ns_lshr_b32 s{sb}, s{SJ}, 2")
def attn_masks(a):
    a(f"v_and_b32 v2, 31, v{VL}\nv_lshrrev_b32 v3, 5, v{VL}\nv_lshlrev_b32 v3, 2, v3\nv_sub_u32 v2, v2, v3\nv_mov_b32 v3, {NEGINF}")
    for r0 in range(0, 16, 4):
        for r in range(r0, r0+4): a(f"v_cmp_le_i32 {s(66+2*(r-r0),2)}, {8*(r>>2)+(r&3)}, v2")
        for r in range(r0, r0+4): a(f"v_cndmask_b32 v{AMD+r}, v3, 0, {s(66+2*(r-r0),2)}\nv_cndmask_b32 v{AME+r}, 0, v3, {s(66+2*(r-r0),2)}")
def attn_loads(a, shd, sb, base, ldf):
    ws = s(SWS, 4); w = SWAVE
    KB, VB = base, base + 20480
    a(f"s_lshl_b32 s50, s{sb}, 3\ns_sub_u32 s51, s50, 8\ns_cmp_eq_u32 s{sb}, 0\ns_cselect_b32 s52, 0, s51\ns_cmp_ge_u32 s{w}, 2\ns_cselect_b32 s51, s51, s52\ns_lshl_b32 s52, s{w}, 2\ns_add_u32 s51, s51, s52\ns_mul_i32 s51, s51, 40960")
    a(f"v_and_b32 v2, 31, v{VL}\nv_lshrrev_b32 v3, 5, v{VL}\nv_lshlrev_b32 v4, 3, v2\nv_lshl_add_u32 v5, v3, 9, v4\nv_mov_b32 v6, {OOB}\nv_cmp_eq_u32 vcc, 0, v3\ns_nop 1\nv_cndmask_b32 v6, v6, v4, vcc")
    a(f"s_add_u32 s52, s50, s{w}\ns_mul_i32 s52, s52, 40960\ns_mul_i32 s53, s{shd}, 1280\ns_add_u32 s52, s52, s53\ns_add_u32 s54, s52, {OFF_Q}\ns_add_u32 s55, s54, {4*40960}")
    for t in range(2):
        a(f"buffer_load_dwordx2 {v(AQ+6*t,2)}, v5, {ws}, s{54+t} offen {ldf}\nbuffer_load_dwordx2 {v(AQ+6*t+2,2)}, v5, {ws}, s{54+t} offen offset:256 {ldf}\nbuffer_load_dwordx2 {v(AQ+6*t+4,2)}, v6, {ws}, s{54+t} offen offset:1024 {ldf}")
    a(f"s_add_u32 s56, s52, {OFF_O}")
    a(f"s_add_u32 s53, s53, s51\ns_add_u32 s53, s53, {OFF_K}\ns_mul_i32 s54, s{w}, 5120\ns_add_u32 m0, s54, {KB}\ns_mov_b32 s55, 39680")
    for i in range(5):
        a(f"v_add_u32 v7, {64*i}, v{VL}\nv_mul_u32_u24 v7, 205, v7\nv_lshrrev_b32 v7, 14, v7\nv_mul_lo_u32 v7, v7, s55\nv_lshl_add_u32 v7, v{VL}, 4, v7")
        if i == 4: a(f"s_add_u32 m0, s54, {KB+4096}\nv_add_u32 v7, 4096, v7")
        a(f"buffer_load_dwordx4 v7, {ws}, s53 offen offset:{(i&3)*1024} {ldf} lds")
    a(f"v_mul_u32_u24 v7, 49, v{VL}\nv_lshrrev_b32 v7, 10, v7\nv_mul_u32_u24 v7, {10240-336}, v7\nv_lshl_add_u32 v7, v{VL}, 4, v7")
    a(f"s_mul_i32 s53, s{shd}, 320\ns_add_u32 s53, s53, s51\ns_add_u32 s53, s53, {OFF_V}\ns_mul_i32 s54, s{w}, 5376\ns_add_u32 s54, s54, {VB}")
    for k in range(6):
        a(f"s_add_u32 m0, s54, {k*1008}")
        if k == 5: a("s_mov_b64 exec, 0x1fffff")
        else: a("s_nop 0")
        a(f"buffer_load_dwordx4 v7, {ws}, s53 offen {ldf} lds\ns_add_u32 s53, s53, 30720")
    a("s_mov_b64 exec, -1")
    a(f"s_mul_i32 s53, s{w}, 1280\ns_add_u32 s53, s53, {KB}\nv_add_u32 v8, s53, v5\nv_add_u32 v9, s53, v4")
    a(f"v_min_u32 v10, 20, v2\nv_cmp_lt_u32 vcc, 27, v2\nv_mul_u32_u24 v13, 336, v3\ns_nop 0\nv_cndmask_b32 v10, v10, 4, vcc".replace("v_cndmask_b32 v10, v10, 4, vcc", "v_cndmask_b32_e64 v10, v10, 4, vcc"))
    a(f"s_mul_i32 s53, s{w}, 1344\ns_add_u32 s53, s53, {VB}\nv_lshl_add_u32 v10, v10, 4, v13\nv_add_u32 v10, s53, v10")
    a(f"v_lshl_add_u32 v11, v3, 8, v4\nv_mov_b32 v12, v6")
    a(f"v_and_b32 v13, 15, v{VL}\nv_mul_u32_u24 v13, 336, v13\nv_add_u32 v13, s54, v13")
    a("v_mov_b32 v4, 0x3f803f80\nv_mov_b32 v5, v4\nv_mov_b32 v6, v4\nv_mov_b32 v7, v4")
    a(f"s_sub_u32 s57, 8, s{w}\ns_cmp_eq_u32 s{sb}, 0\ns_cselect_b32 s57, s57, 0\ns_cselect_b32 s58, 4, 0")
def attn_compute(a, cnt_addr, stf):
    ws = s(SWS, 4)
    a("s_waitcnt vmcnt(0)\nds_write_b128 v13, v[4:7] offset:320")
    lds_sync(a, cnt_addr, 4)
    a("s_mov_b32 s59, 0")
    if OPT.get("astamp"): stamp(a, 3)
    L = a.newlab("atask")
    if OPT.get("aalign"): a(".p2align 3")
    a.lab(L)
    def kread(p):
        b = AK + 6*(p % 3)
        a(f"ds_read_b64 {v(b,2)}, v8 offset:{p*1280}\nds_read_b64 {v(b+2,2)}, v8 offset:{p*1280+256}\nds_read_b64 {v(b+4,2)}, v9 offset:{p*1280+1024}")
    def vread(p):
        b = AV + 8*(p % 2)
        for m in range(2): a(f"ds_read_b128 {v(b+4*m,4)}, v10 offset:{p*1344+m*672}")
    def mx(p):
        sk = a.newlab("inv")
        if p < 8:
            a(f"s_cmp_le_u32 s57, {p}\ns_cbranch_scc1 {sk}")
            for r in range(16): a(f"v_mov_b32 v{AS+16*p+r}, {NEGINF}")
            a.lab(sk)
        for q in range(8):
            d = 2 + (q & 1)
            if p == 0 and q < 2: a(f"v_max_f32 v{d}, v{AS+2*q}, v{AS+2*q+1}")
            else: a(f"v_max3_f32 v{d}, v{d}, v{AS+16*p+2*q}, v{AS+16*p+2*q+1}")
    kread(0); kread(1)
    for p in range(9):
        if p + 2 < 9: kread(p+2)
        a(f"s_waitcnt lgkmcnt({min(2, 8-p)*3})")
        b = AK + 6*(p % 3); S = v(AS+16*p, 16)
        C = v(AME,16) if p == 0 else v(AMD,16) if p == 8 else "0"
        a(f"v_mfma_f32_32x32x16_bf16 {S}, {v(b,4)}, {v(AQ,4)}, {C}")
        a(f"v_mfma_f32_32x32x8bf16_1k {S}, {v(b+4,2)}, {v(AQ+4,2)}, {S}")
        if p >= 2: mx(p-2)
    vread(0)
    mx(7)
    a("s_nop 1")
    mx(8)
    a("v_max_f32 v2, v2, v3\nv_mov_b32 v3, v2\ns_nop 1\nv_permlane32_swap_b32 v2, v3\nv_max_f32 v2, v2, v3")
    if OPT.get("astamp"):
        LL = a.newlab("st"); a(f"s_cmp_eq_u32 s59, {OPT['astamp']-1}\ns_cbranch_scc0 {LL}"); stamp(a, 4); a.lab(LL)
    def pv(p):
        b = AV + 8*(p % 2)
        for m in range(2):
            C = "0" if (p == 0 and m == 0) else v(AO,16)
            a(f"v_mfma_f32_32x32x16_bf16 {v(AO,16)}, {v(b+4*m,4)}, {v(AS+16*p+4*m,4)}, {C}")
    for p in range(9):
        b = AS + 16*p
        if OPT.get("nopk"):
            for q in range(16): a(f"v_sub_f32 v{b+q}, v{b+q}, v2")
        else:
            for q in range(8): a(f"v_pk_add_f32 {v(b+2*q,2)}, {v(b+2*q,2)}, v[2:3] op_sel_hi:[1,0] neg_lo:[0,1] neg_hi:[0,1]")
        if p > 0:
            a("s_waitcnt lgkmcnt(0)"); pv(p-1)
        if p + 1 < 9 and p > 0: vread(p+1)
        if p == 0: vread(1)
        for q in range(16): a(f"v_exp_f32 v{b+q}, v{b+q}")
        a("s_nop 0")
        for q in range(8): a(f"v_cvt_pk_bf16_f32 v{b+q}, v{b+2*q}, v{b+2*q+1}")
    a("s_waitcnt lgkmcnt(0)\ns_nop 0"); pv(8)
    for r in range(6): a(f"v_mov_b32 v{AQ+r}, v{AQ+6+r}")
    a(f"v_add_u32 v8, {4*1280}, v8\nv_add_u32 v9, {4*1280}, v9\nv_add_u32 v10, {4*1344}, v10\ns_sub_u32 s57, s57, s58\ns_nop 2")
    a(f"v_mov_b32 v2, v{AO+8}\nv_mov_b32 v3, v{AO+8}\ns_nop 1\nv_permlane32_swap_b32 v2, v3\nv_rcp_f32 v2, v3\ns_nop 0")
    for q in range(6): a(f"v_pk_mul_f32 {v(AO+2*q,2)}, {v(AO+2*q,2)}, v[2:3] op_sel_hi:[1,0]")
    for q in range(6): a(f"v_cvt_pk_bf16_f32 v{AS+q}, v{AO+2*q}, v{AO+2*q+1}")
    a(f"buffer_store_dwordx2 {v(AS,2)}, v11, {ws}, s56 offen {stf}\nbuffer_store_dwordx2 {v(AS+2,2)}, v11, {ws}, s56 offen offset:512 {stf}\nbuffer_store_dwordx2 {v(AS+4,2)}, v12, {ws}, s56 offen offset:1024 {stf}")
    if OPT.get("astamp"):
        LL = a.newlab("st"); a(f"s_cmp_eq_u32 s59, 0\ns_cbranch_scc0 {LL}"); stamp(a, 5 if OPT['astamp'] == 1 else 3); a.lab(LL)
    a(f"s_add_u32 s56, s56, {4*40960}\ns_add_u32 s59, s59, 1\ns_cmp_lt_u32 s59, 2\ns_cbranch_scc1 {L}")

def fin_tile(a, sdt, sst):
    a(f"s_and_b32 s{sdt}, s{SXCD}, 1\ns_lshl_b32 s{sdt}, s{sdt}, 2\ns_and_b32 s47, s{SJ}, 3\ns_add_u32 s{sdt}, s{sdt}, s47")
    a(f"s_lshr_b32 s{sst}, s{SXCD}, 1\ns_lshl_b32 s{sst}, s{sst}, 3\ns_lshr_b32 s47, s{SJ}, 2\ns_add_u32 s{sst}, s{sst}, s47")
def fin_resid_loads(a, sdt, sst, sw):
    a(f"s_lshl_b32 s65, s{sst}, 6\ns_lshl_b32 s68, s{sw}, 4\ns_add_u32 s65, s65, s68\ns_mul_i32 s74, s65, 1280\ns_mul_i32 s68, s{sdt}, 160\ns_add_u32 s74, s74, s68\ns_lshl_b32 s65, s65, 1")
    for k in range(3):
        a(f"v_add_u32 v2, {64*k}, v{VL}\nv_mul_u32_u24 v3, 205, v2\nv_lshrrev_b32 v3, 11, v3\nv_mul_u32_u24 v10, 1120, v3\nv_lshl_add_u32 v{207+k}, v2, 4, v10\nv_lshlrev_b32 v3, 1, v3")
        if k == 2: a(f"v_cmp_gt_u32 vcc, 32, v{VL}\nv_mov_b32 v10, {OOB}\ns_nop 0\nv_cndmask_b32 v209, v10, v209, vcc\nv_cndmask_b32 v3, v10, v3, vcc")
        a(f"buffer_load_dwordx4 {v(192+4*k,4)}, v{207+k}, {s(SX,4)}, s74 offen\nbuffer_load_ushort v{204+k}, v3, {s(SB2,4)}, s65 offen")
def mlp2_main(a, sdt, sst, sw, ringbase, ringstride, ldf, flag=None):
    a(f"s_mul_i32 s66, s{sw}, {ringstride}\ns_add_u32 s66, s66, {ringbase}")
    mlp_setup(a, SW2, 4096, 66, rot=sw)
    a(f"s_mul_i32 s67, s{sw}, 14\ns_cmp_eq_u32 s{sw}, 3\ns_cselect_b32 s67, 41, s67")
    a(f"s_lshl_b32 s{S_TO}, s67, 17\ns_lshl_b32 s65, s{sst}, 7\ns_add_u32 s{S_TO}, s{S_TO}, s65")
    a(f"s_mul_i32 s{S_DO}, s{sdt}, {54*5120}\ns_mul_i32 s65, s67, 5120\ns_add_u32 s{S_DO}, s{S_DO}, s65\ns_add_u32 s{S_DO}, s{S_DO}, {OFF_G}")
    lead_setup(a, sw, 75)
    a(f"s_mov_b32 s{S_CNT}, 3\ns_cmp_ge_u32 s{sw}, 2\ns_cselect_b32 s65, 3, 2")
    mlp_loop(a, 65, ldf, 75, flag)
WB, WA = 96, 196
def wo_bloads(a, sdt, skw, ldf):
    a(f"v_lshlrev_b32 v{MDIR}, 4, v{VL}\ns_mul_i32 s50, s{sdt}, 102400\ns_mul_i32 s51, s{skw}, {5*5120}\ns_add_u32 s50, s50, s51\ns_add_u32 s50, s50, {OFF_WOF}")
    for i in range(25):
        a(f"buffer_load_dwordx4 {v(WB+4*i,4)}, v{MDIR}, {s(SWS,4)}, s50 offen offset:{(i&3)*1024} {ldf}")
        if (i & 3) == 3: a("s_add_u32 s50, s50, 4096")
def wo_main(a, sst, skw, ldf):
    a(f"v_lshrrev_b32 v2, 4, v{VL}\nv_and_b32 v3, 15, v{VL}\nv_lshlrev_b32 v3, 3, v3\nv_lshl_add_u32 v8, v2, 9, v3")
    a(f"s_mul_i32 s50, s{sst}, 81920\ns_mul_i32 s51, s{skw}, {5*2048}\ns_add_u32 s50, s50, s51\ns_add_u32 s50, s50, {OFF_O}")
    for i in range(4):
        a(f"s_xor_b32 s51, s{skw}, {i}\ns_lshr_b32 s56, s51, 1\ns_mul_i32 s56, s56, 40960\ns_and_b32 s51, s51, 1\ns_lshl_b32 s51, s51, 7\ns_add_u32 s51, s51, s56\ns_add_u32 s{52+i}, s50, s51")
    def aload(st):
        for i in range(4):
            for e in range(2): a(f"buffer_load_dwordx2 {v(WA+16*(st%3)+4*i+2*e,2)}, v8, {s(SWS,4)}, s{52+i} offen offset:{(st&1)*2048+e*256} {ldf}")
            if st & 1: a(f"s_add_u32 s{52+i}, s{52+i}, 4096")
    for st in range(3): aload(st)
    for st in range(5):
        a(f"s_waitcnt vmcnt({8*min(2, 4-st)})")
        for db in range(5):
            for i in range(4):
                acc = v(MACC+(i*5+db)*4, 4)
                a(f"v_mfma_f32_16x16x32_bf16 {acc}, {v(WA+16*(st%3)+4*i,4)}, {v(WB+20*st+4*db,4)}, {'0' if st == 0 else acc}")
        if st + 3 < 5: aload(st+3)
def fin_write(a, sbase, first):
    a(f"v_add_u32 v10, s{sbase}, v{MDIR}\ns_nop 7")
    for t in range(first, 20): a(f"ds_write_b128 v10, {v(MACC+4*t,4)} offset:{(t-first)*1024}")
    a("s_waitcnt lgkmcnt(0)")
def fin_epi(a, sw, xbase, xstride, ybase, ystride):
    for i in range(1, 4):
        a(f"s_xor_b32 s65, s{sw}, {i}\ns_mul_i32 s65, s65, {xstride}\ns_add_u32 s65, s65, {xbase+(i-1)*5120}\nv_add_u32 v10, s65, v{MDIR}")
        for db in range(5): a(f"ds_read_b128 {v(16+20*i+4*db,4)}, v10 offset:{db*1024}")
    for i in range(4):
        a(f"s_xor_b32 s65, s{sw}, {i}\ns_mul_i32 s65, s65, {ystride}\ns_add_u32 s65, s65, {ybase+i*5120}\nv_add_u32 v10, s65, v{MDIR}")
        if i == 0: a("s_mov_b32 s66, s65")
        for db in range(5): a(f"ds_read_b128 {v(96+20*i+4*db,4)}, v10 offset:{db*1024}")
        if i == 1: a("s_waitcnt lgkmcnt(10)")
    for i in range(1, 8):
        if i == 4: a("s_waitcnt lgkmcnt(0)")
        for q in range(10): a(f"v_pk_add_f32 {v(16+2*q,2)}, {v(16+2*q,2)}, {v(16+20*i+2*q,2)}")
    a(f"v_lshrrev_b32 v2, 4, v{VL}\nv_mul_u32_u24 v2, 1280, v2\nv_and_b32 v3, 15, v{VL}\nv_lshl_add_u32 v2, v3, 2, v2\nv_add_u32 v2, s66, v2\nv_lshlrev_b32 v3, 5, v{VL}\nv_add_u32 v3, s66, v3")
    for db in range(5):
        for r in range(4): a(f"ds_write_b32 v2, v{16+4*db+r} offset:{r*320+db*64}")
    a("s_waitcnt lgkmcnt(0)")
    for k in range(3): a(f"ds_read_b128 {v(40+8*k,4)}, v3 offset:{k*2048}\nds_read_b128 {v(44+8*k,4)}, v3 offset:{k*2048+16}")
    for k in range(3):
        a(f"v_lshlrev_b32 v{204+k}, 16, v{204+k}")
        for q in range(4): a(f"v_lshlrev_b32 v{64+8*k+2*q}, 16, v{192+4*k+q}\nv_and_b32 v{65+8*k+2*q}, 0xffff0000, v{192+4*k+q}")
        for q in range(8): a(f"v_add_f32 v{64+8*k+q}, v{64+8*k+q}, v{204+k}")
    for k in range(3):
        a(f"s_waitcnt lgkmcnt({4-2*k})")
        for q in range(4): a(f"v_pk_add_f32 {v(40+8*k+2*q,2)}, {v(40+8*k+2*q,2)}, {v(64+8*k+2*q,2)}")
        for q in range(4): a(f"v_cvt_pk_bf16_f32 v{96+4*k+q}, v{40+8*k+2*q}, v{41+8*k+2*q}")
        a(f"buffer_store_dwordx4 {v(96+4*k,4)}, v{207+k}, {s(SOUT,4)}, s74 offen")
```

```python
import sys
import blocks
from blocks import *
NAME = "parallel_sum__sliding_block__mixer_token_mlp__prompt_kernel"
LDS = 163840
L_LN = 131072
L_ST = 147456
L_CSP = L_ST + 1536
OFF_CSP = 0xB000
L_RS = LDS - 352
L_KN = LDS - 272
L_FULL = LDS - 256
L_FREE = L_FULL + 64
C_PUB, C_C1, C_CS = L_FULL + 128, L_FULL + 132, L_FULL + 136
L_CNT = LDS - 64
C_QA, C_AGO, C_AK, C_OA, C_MP, C_GA, C_W1, C_W2, C_GGO, C_OGO, C_AV, C_WR = [L_CNT + 4*i for i in range(12)]
M1BASE, M1STR = 65536, 20480
G_Q, G_O, G_G, G_W = OFF_FLAG, OFF_FLAG + 16*256, OFF_FLAG + 24*256, OFF_FLAG + 32*256
NCTR = 33
OFF_O1, OFF_O2 = OFF_O, OFF_O + 0x200000
ST, LD = "sc1", "sc1"
SM, SN, SROLE, SDT1, SFT, SHAS1, SDT3, SST, SHD, SBQ, SKW = 76, 77, 78, 79, 80, 81, 82, 83, 48, 49, 75

def garrive(a, srd, soff, target, doneoff, L, va=3):
    a(f"v_mov_b32 v{va}, 1\nbuffer_atomic_add v{va}, off, {s(srd,4)}, s{soff} sc0 sc1\ns_waitcnt vmcnt(0)\nv_readfirstlane_b32 s60, v{va}\ns_cmp_lg_u32 s60, {target-1}\ns_cbranch_scc1 {L}")
    a(f"v_mov_b32 v{va}, 1\nbuffer_store_dword v{va}, off, {s(srd,4)}, s{doneoff[0]} offset:{doneoff[1]} sc1")
def arrive(a, lcnt, n, goff_sgpr, target):
    L = a.newlab("arr")
    a(f"s_waitcnt vmcnt(0)\nv_mov_b32 v2, {lcnt}\nv_mov_b32 v3, 1\ns_mov_b64 exec, 1\nds_add_rtn_u32 v14, v2, v3\ns_waitcnt lgkmcnt(0)\nv_readfirstlane_b32 s60, v14\ns_cmp_lg_u32 s60, {n-1}\ns_cbranch_scc1 {L}")
    garrive(a, SWS, goff_sgpr, target, (goff_sgpr, 128), L)
    a.lab(L)
    a("s_mov_b64 exec, -1")
def lds_wait(a, addr, n, vreg=2, ls=None):
    L = a.newlab("lw")
    if addr is not None: a(f"v_mov_b32 v2, {addr}")
    a("s_mov_b32 s47, 0x80000")
    a.lab(L)
    a(f"ds_read_b32 v3, v{vreg}\ns_sub_u32 s47, s47, 1\ns_cbranch_scc1 {L}x\ns_waitcnt lgkmcnt(0)\nv_readfirstlane_b32 s60, v3\ns_cmp_ge_u32 s60, {n}\ns_cbranch_scc1 {L}x\ns_sleep {OPT.get('ls', 3) if ls is None else ls}\ns_branch {L}")
    a.lab(L + "x")
def lds_set(a, addr):
    a(f"v_mov_b32 v2, {addr}\nv_mov_b32 v3, 1\nds_write_b32 v2, v3")
def gpoll(a, vaddr, srd, soff, target, nl, vd=3, slp=None, tgt_reg=False):
    L = a.newlab("gp")
    if tgt_reg: target = hex(target)
    a(f"s_mov_b64 exec, {(1<<nl)-1}\ns_mov_b32 s47, 0x8000")
    a.lab(L)
    a(f"buffer_load_dword v{vd}, v{vaddr}, {s(srd,4)}, {soff} offen sc1\ns_sub_u32 s47, s47, 1\ns_cbranch_scc1 {L}x\ns_waitcnt vmcnt(0)\nv_cmp_ne_u32 vcc, {target}, v{vd}\ns_cbranch_vccz {L}x\ns_sleep {slp or OPT.get('slp', 2)}\ns_branch {L}")
    a.lab(L + "x")
    a("s_mov_b64 exec, -1")
def c1_poll(a, slp=None):
    a(f"v_lshlrev_b32 v2, 2, v{VL}\nv_add_u32 v2, 128, v2")
    gpoll(a, 2, SDBG, 0, 1, 2, slp=slp)

def l10(a, i, m=10):
    if OPT.get("ls9") == m: lstamp(a, i)
def est(a, i):
    if OPT.get("mst") == 3: stamp(a, i, True)
def ast(a, i, cond=None, m=5):
    if OPT.get("mst") != m: return
    if cond is None: stamp(a, i, True); return
    LL = a.newlab("as"); a(f"s_cmp_eq_u32 s59, {cond}\ns_cbranch_scc0 {LL}"); stamp(a, i, True); a.lab(LL)
def fst(a, i):
    if OPT.get("mst") == 4: stamp(a, i, True)
def ids(a):
    x, j = SXCD, SJ
    a(f"s_and_b32 s50, s{x}, 1\ns_mul_i32 s51, s50, 30\ns_add_u32 s51, s51, s{j}\ns_lshr_b32 s{SN}, s51, 2\ns_and_b32 s51, s51, 3\ns_lshr_b32 s52, s{x}, 1\ns_lshl_b32 s{SM}, s52, 2\ns_add_u32 s{SM}, s{SM}, s51")
def ids_late(a):
    x, j = SXCD, SJ
    a(f"s_and_b32 s56, s{x}, 1\ns_lshl_b32 s56, s56, 2\ns_lshr_b32 s58, s{x}, 1")
    a(f"s_mul_i32 s57, s58, 27\ns_add_u32 s57, s57, s{j}\ns_lshr_b32 s{SFT}, s57, 2\ns_and_b32 s57, s57, 3\ns_add_u32 s{SDT1}, s56, s57")
    a(f"s_and_b32 s57, s{j}, 3\ns_add_u32 s{SDT3}, s56, s57\ns_lshl_b32 s58, s58, 3\ns_lshr_b32 s57, s{j}, 2\ns_add_u32 s{SST}, s58, s57")

def ln_issue(a):
    a(f"s_lshr_b32 s50, s{SXCD}, 1\ns_lshl_b32 s50, s50, 6\ns_and_b32 s51, s{SXCD}, 1\ns_lshl_b32 s51, s51, 5\ns_add_u32 s50, s50, s51\ns_add_u32 s50, s50, s{SJ}")
    a(f"s_lshr_b32 s51, s50, 2\ns_and_b32 s52, s50, 3\ns_lshl_b32 s53, s51, 5\ns_lshl_b32 s54, s52, 2\ns_add_u32 s53, s53, s54")
    a(f"s_lshr_b32 s54, s{SWAVE}, 1\ns_lshl_b32 s54, s54, 4\ns_add_u32 s53, s53, s54\ns_and_b32 s54, s{SWAVE}, 1\ns_lshl_b32 s54, s54, 1\ns_add_u32 s53, s53, s54")
    rows_load(a, SX, SWAVE, 53, 54)
    a(f"s_mul_i32 s55, s51, 5120\ns_lshl_b32 s52, s52, 8\ns_add_u32 s55, s55, s52\ns_add_u32 s55, s55, {OFF_H}")
def init_counters(a):
    L = a.newlab("ic")
    a(f"s_cmp_lg_u32 s{SWAVE}, 0\ns_cbranch_scc1 {L}")
    a(f"v_lshlrev_b32 v6, 2, v{VL}\nv_add_u32 v6, {L_FULL}, v6\nv_mov_b32 v7, 0\nds_write_b32 v6, v7")
    a.lab(L)
def c1_arrive(a):
    L = a.newlab("c1a")
    a(f"s_and_b32 s57, s2, 1\ns_lshl_b32 s56, s57, 6\ns_lshl_b32 s57, s57, 2\ns_mov_b64 exec, 1")
    garrive(a, SDBG, 56, 128, (57, 128), L, va=15)
    a.lab(L)
    a("s_mov_b64 exec, -1")

def loader(a):
    st = 48
    lw, sxo, swo, sm0, t, ko = st, st+1, st+2, st+3, st+4, st+5
    a(f"s_sub_u32 s{lw}, s{SWAVE}, 4")
    a(f"v_lshrrev_b32 v2, 3, v{VL}\nv_mul_u32_u24 v2, 1280, v2\nv_and_b32 v3, 7, v{VL}\nv_lshrrev_b32 v4, 4, v{VL}\nv_xor_b32 v3, v3, v4\nv_lshl_add_u32 v210, v3, 4, v2\nv_xor_b32 v211, 64, v210")
    a(f"v_mul_u32_u24 v2, 3840, v4\nv_bfe_u32 v3, v{VL}, 2, 2\nv_xor_b32 v3, v3, v4\nv_lshl_add_u32 v2, v3, 6, v2\nv_and_b32 v3, 3, v{VL}\nv_lshl_add_u32 v212, v3, 4, v2")
    a(f"s_lshl_b32 s{sxo}, s{SM}, 7\ns_lshl_b32 s{t}, s{lw}, 5\ns_add_u32 s{sxo}, s{sxo}, s{t}\ns_mul_i32 s{sxo}, s{sxo}, 1280")
    a(f"s_mul_i32 s{swo}, s{lw}, {16*3840}\ns_lshl_b32 s{t}, s{SN}, 8\ns_add_u32 s{swo}, s{swo}, s{t}")
    a(f"s_lshl_b32 s{sm0}, s{lw}, 12")
    rot = 2
    G10 = OPT.get("g10", 1)
    if G10: a(f"s_mul_i32 s{ko}, s{SN}, 3\ns_add_u32 s{ko}, s{ko}, s{SM}\ns_mul_i32 s{t}, s{ko}, 205\ns_lshr_b32 s{t}, s{t}, 11\ns_mul_i32 s{t}, s{t}, 10\ns_sub_u32 s{ko}, s{ko}, s{t}")
    else: a(f"s_add_u32 s{ko}, s{SM}, s{SN}\ns_mul_i32 s{t}, s{ko}, 52\ns_lshr_b32 s{t}, s{t}, 8\ns_mul_i32 s{t}, s{t}, 5\ns_sub_u32 s{ko}, s{ko}, s{t}\ns_lshl_b32 s{ko}, s{ko}, 1")
    if OPT.get("rot0"): a(f"s_mov_b32 s{ko}, 0")
    if OPT.get("rotx"): a(f"s_lshr_b32 s{ko}, s{SXCD}, 1\ns_mul_i32 s{ko}, s{ko}, 5\ns_lshr_b32 s{ko}, s{ko}, 1")
    a(f"s_lshl_b32 s{t}, s{ko}, 7\ns_add_u32 s{sxo}, s{sxo}, s{t}\ns_mul_i32 s{t}, s{ko}, 245760\ns_add_u32 s{swo}, s{swo}, s{t}")
    t2 = 62
    a("s_movk_i32 s65, 128\ns_mov_b32 s66, 245760")
    def stage(extra="", mid=None):
        a(f"s_mov_b32 m0, s{sm0}\ns_add_u32 s{t}, s{sxo}, 9216")
        a(f"buffer_load_dwordx4 v210, {s(SX,4)}, s{sxo} offen lds")
        a(f"buffer_load_dwordx4 v211, {s(SX,4)}, s{t} offen offset:1024 lds\ns_add_u32 s{t}, s{t}, 9216\ns_add_u32 s{t2}, s{t}, 9216")
        a(f"buffer_load_dwordx4 v210, {s(SX,4)}, s{t} offen offset:2048 lds\nbuffer_load_dwordx4 v211, {s(SX,4)}, s{t2} offen offset:3072 lds")
        if mid: mid()
        a(f"s_add_u32 m0, s{sm0}, 16384\ns_add_u32 s{t}, s{swo}, 14336")
        a(f"buffer_load_dwordx4 v212, {s(SWQ,4)}, s{swo} offen lds\nbuffer_load_dwordx4 v212, {s(SWQ,4)}, s{t} offen offset:1024 lds")
        a(f"s_add_u32 s{t}, s{t}, 14336\ns_add_u32 s{t2}, s{t}, 14336")
        a(f"s_add_u32 s{sm0}, s{sm0}, 0x8000\ns_and_b32 s{sm0}, s{sm0}, 0x1ffff\ns_add_u32 s{ko}, s{ko}, 1\ns_cmp_eq_u32 s{ko}, 10\ns_cselect_b32 s63, {128-1280}, s65\ns_cselect_b32 s64, {245760-2457600}, s66\ns_add_u32 s{sxo}, s{sxo}, s63\ns_add_u32 s{swo}, s{swo}, s64")
        a(f"buffer_load_dwordx4 v212, {s(SWQ,4)}, s{t} offen offset:2048 lds")
        if extra: a(extra)
        a(f"buffer_load_dwordx4 v212, {s(SWQ,4)}, s{t2} offen offset:3072 lds")
    if OPT.get("lnfirst", 1): a("s_barrier")
    a("s_setprio 2"); stage(); a(f"s_setprio {OPT.get('priol', 0)}"); stage()
    stamp(a, 1)
    ids_late(a)
    a(f"s_cmp_lt_u32 s{SJ}, 27\ns_cselect_b32 s{SHAS1}, 1, 0\ns_mov_b32 s{SKW}, s{lw}")
    a(f"v_mov_b32 v7, {OOB}")
    trs_prep(a, lw, L_LN, 327680, 54, 214)
    a(f"s_lshr_b32 s55, s{SXCD}, 1\ns_lshl_b32 s55, s55, 6\ns_and_b32 s56, s{SXCD}, 1\ns_lshl_b32 s56, s56, 5\ns_add_u32 s55, s55, s56\ns_add_u32 s55, s55, s{SJ}")
    a(f"s_lshr_b32 s56, s55, 2\ns_and_b32 s55, s55, 3\ns_lshl_b32 s67, s56, 7\ns_lshl_b32 s57, s55, 4\ns_add_u32 s67, s67, s57")
    a(f"s_mul_i32 s68, s56, 5120\ns_lshl_b32 s55, s55, 8\ns_add_u32 s68, s68, s55\ns_add_u32 s68, s68, {OFF_H}")
    a(f"v_and_b32 v2, 15, v{VL}\nv_lshlrev_b32 v218, 2, v2\nv_add_u32 v218, {L_RS}, v218\nv_and_b32 v3, 3, v2\nv_lshlrev_b32 v3, 2, v3\nv_bfe_u32 v4, v2, 2, 1\nv_lshl_add_u32 v3, v4, 6, v3\nv_lshrrev_b32 v4, 3, v2\nv_lshl_add_u32 v219, v4, 13, v3")
    a(f"v_cmp_gt_u32 vcc, 16, v{VL}\ns_cmp_eq_u32 s{lw}, 3\ns_cselect_b64 s[56:57], -1, 0\ns_and_b64 vcc, vcc, s[56:57]\nv_cndmask_b32 v219, v7, v219, vcc")
    zz = a.newlab("zz")
    a(f"s_cmp_lg_u32 s{lw}, 0\ns_cbranch_scc1 {zz}\ns_cmp_ge_u32 s2, {NCTR}\ns_cbranch_scc1 {zz}")
    a(f"s_lshl_b32 s67, s2, 8\ns_add_u32 s67, s67, {OFF_FLAG}\nv_mov_b32 v218, {L_FULL+60}\nv_lshlrev_b32 v219, 7, v{VL}\nv_cmp_gt_u32 vcc, 2, v{VL}\ns_nop 1\nv_cndmask_b32 v219, v7, v219, vcc")
    a.lab(zz)
    a(f"v_mov_b32 v8, {L_FULL}\nv_mov_b32 v9, 1")
    a("s_barrier")
    def sig(off, st=None):
        a(f"s_mov_b64 exec, 1\nds_add_u32 v8, v9 offset:{off}\ns_mov_b64 exec, -1")
        if st is not None and OPT.get("mst") == 9 and not OPT.get("ls9"): lstamp(a, st)
    def freed(off):
        L = a.newlab("fr")
        a(f"s_waitcnt lgkmcnt(0)\nv_readfirstlane_b32 s60, v10\ns_cmp_ge_u32 s60, {0 if OPT.get('nofree') else 4}\ns_cbranch_scc1 {L}x\ns_mov_b32 s47, 0x80000")
        a.lab(L)
        a(f"ds_read_b32 v10, v8 offset:{off}\ns_sub_u32 s47, s47, 1\ns_cbranch_scc1 {L}x\ns_waitcnt lgkmcnt(0)\nv_readfirstlane_b32 s60, v10\ns_cmp_ge_u32 s60, 4\ns_cbranch_scc1 {L}x\ns_sleep {OPT.get('ls', 3)}\ns_branch {L}")
        a.lab(L + "x")
    def land(off, n=12):
        def m():
            a(f"s_waitcnt vmcnt({n})"); sig(off)
        return m
    a("ds_read_b32 v28, v218")
    for k in range(3):
        a(f"ds_read_b64_tr_b16 {v(32+4*k,2)}, v214 offset:{k*512}\nds_read_b64_tr_b16 {v(34+4*k,2)}, v214 offset:{k*512+5376}")
    a(f"s_setprio 2\ns_waitcnt lgkmcnt(6)\nbuffer_store_dword v28, v219, {s(SWS,4)}, s67 offen sc1")
    for k in range(3): a(f"s_waitcnt lgkmcnt({4-2*k})\nbuffer_store_dwordx4 {v(32+4*k,4)}, v{215+k}, {s(SWS,4)}, s68 offen sc1")
    def bar(n, st=None):
        a(f"s_waitcnt vmcnt({n})\ns_barrier")
        if st is not None and OPT.get("mst") == 9 and not OPT.get("ls9"): lstamp(a, st)
    a(f"s_setprio {OPT.get('priol', 0)}")
    B1 = OPT.get("b1", 3)
    a(f"s_mul_i32 s70, s{SXCD}, 30\ns_add_u32 s70, s70, s{SJ}\ns_lshl_b32 s70, s70, 2\ns_add_u32 s70, s70, s{lw}")
    a(f"s_mul_i32 s71, s70, 4370\ns_lshr_b32 s71, s71, 20\ns_mul_i32 s72, s71, 240\ns_sub_u32 s72, s70, s72\ns_mul_i32 s71, s71, {16*110592}\ns_lshl_b32 s70, s72, 12\ns_add_u32 s70, s70, s71\ns_add_u32 s70, s70, {0 if OPT.get('swp', 1) else 16*110592 - 240*4096}")
    a(f"s_mul_i32 s71, s72, 205\ns_lshr_b32 s71, s71, 14\nv_lshlrev_b32 v12, 7, v{VL}")
    def burst(): a(f"s_mov_b32 exec_hi, 0\nbuffer_load_dword v255, v12, {s(SW1,4)}, s70 offen\ns_mov_b64 exec, -1")
    bar(12, 0); stage()
    bar(12, 1); stage(); stage()
    bar(16, 2)
    na = a.newlab("na"); nb_ = a.newlab("nb")
    a(f"s_cmp_lg_u32 s{lw}, 3\ns_cbranch_scc1 {na}")
    a(f"s_and_b32 s57, s2, 1\ns_lshl_b32 s56, s57, 6\ns_lshl_b32 s57, s57, 2\ns_mov_b64 exec, 1\nv_mov_b32 v15, 1\ns_setprio 3\nbuffer_atomic_add v15, off, {s(SDBG,4)}, s56 sc0 sc1\ns_setprio {OPT.get('priol', 0)}\ns_mov_b64 exec, -1")
    a.lab(na)
    stage()
    bar(16); stage()
    a(f"s_cmp_lg_u32 s{lw}, 3\ns_cbranch_scc1 {nb_}\ns_waitcnt vmcnt(16)\nv_readfirstlane_b32 s60, v15\ns_cmp_lg_u32 s60, 127\ns_cbranch_scc1 {nb_}")
    a(f"s_mov_b64 exec, 1\nv_mov_b32 v15, 1\ns_setprio 3\nbuffer_store_dword v15, off, {s(SDBG,4)}, s57 offset:128 sc1\ns_setprio {OPT.get('priol', 0)}\ns_mov_b64 exec, -1")
    a.lab(nb_)
    a("s_mov_b32 s54, 0")
    L = a.newlab("ldl")
    a.lab(L)
    bar(16)
    if B1 == 3:
        nb2 = a.newlab("nb")
        a(f"s_cmp_lg_u32 s54, s71\ns_cbranch_scc1 {nb2}"); burst(); a.lab(nb2)
    stage("s_add_u32 s54, s54, 1\ns_cmp_lt_u32 s54, 3")
    a(f"s_cbranch_scc1 {L}")
    if B1 == 2: burst()
    est(a, 5)
    if OPT.get("mst") == 9 and not OPT.get("ls9"): lstamp(a, 3)
    ok = a.newlab("c1ok"); n0 = a.newlab("n0"); n1 = a.newlab("n1")
    bar(17 if B1 == 2 else 16, 4)
    if B1 == 4: burst()
    a(f"s_cmp_lg_u32 s{lw}, 0\ns_cbranch_scc1 {n0}\nv_lshlrev_b32 v2, 2, v{VL}\ns_mov_b64 exec, 3\nbuffer_load_dword v3, v2, {s(SDBG,4)}, 0 offen offset:128 sc1\ns_mov_b64 exec, -1\ns_waitcnt vmcnt({10 if B1 in (2, 4) else 9})\ns_barrier\ns_waitcnt vmcnt({2 if B1 in (2, 4) else 1})")
    sig(36)
    a(f"s_waitcnt vmcnt(0)\ns_mov_b64 exec, 3\nv_cmp_ne_u32 vcc, 1, v3\ns_mov_b64 exec, -1\ns_cbranch_vccz {n1}")
    c1_poll(a)
    a.lab(n1)
    lds_set(a, C_C1)
    a(f"s_branch {ok}")
    a.lab(n0)
    bar(9 if B1 in (2, 4) else 8); a(f"s_waitcnt vmcnt({1 if B1 in (2, 4) else 0})"); sig(36)
    lds_wait(a, C_C1, 1)
    a.lab(ok)
    est(a, 6)
    nst = a.newlab("nst")
    a(f"v_lshlrev_b32 v2, 4, v{VL}\ns_cmp_ge_u32 s{lw}, 2\ns_cbranch_scc1 {nst}")
    a(f"s_lshl_b32 s54, s{SM}, 9\ns_lshl_b32 s55, s{lw}, 13\ns_add_u32 s54, s54, s55")
    a(f"s_lshl_b32 s55, s{lw}, 9\ns_add_u32 m0, s55, {L_ST}\ns_mov_b32 exec_hi, 0\nbuffer_load_dwordx4 v2, {s(SWS,4)}, s54 offen sc1 lds\ns_mov_b64 exec, -1")
    a.lab(nst)
    a("s_waitcnt vmcnt(0)")
    sig(40, 5)
    if B1 == 1:
        a("ds_read_b32 v10, v8 offset:40"); freed(40); burst()
    est(a, 1)

def qkv_epi_lds(a, vori):
    a(f"s_lshl_b32 s50, s{SM}, 7\ns_lshl_b32 s51, s48, 6\ns_add_u32 s50, s50, s51")
    a(f"s_lshl_b32 s53, s{SN}, 7\ns_lshl_b32 s54, s49, 6\ns_add_u32 s53, s53, s54")
    a(f"s_lshl_b32 s51, s48, 8\ns_add_u32 s51, s51, {L_ST}\ns_lshl_b32 s54, s49, 8\ns_lshl_b32 s55, s48, 7\ns_add_u32 s54, s54, s55\ns_add_u32 s54, s54, {L_ST+1024}")
    a(f"v_and_b32 v14, 31, v{VL}\nv_lshrrev_b32 v15, 5, v{VL}\nv_lshlrev_b32 v4, 2, v14\nv_lshlrev_b32 v5, 4, v15")
    lds_wait(a, L_FULL+40, 4)
    if not vori:
        a("v_add_u32 v4, s51, v4\nv_add_u32 v5, s54, v5\nv_xor_b32 v8, 128, v5")
        for i in range(2): a(f"ds_read_b32 v{128+2*i}, v4 offset:{i*128}\nds_read_b32 v{132+2*i}, v4 offset:{512+i*128}")
        a("s_mov_b32 exec_lo, 1\ns_mov_b32 exec_hi, 1")
        for k in range(4): a(f"ds_write_b128 v5, {v(16+4*k,4)} offset:{k*32}")
        a("s_mov_b64 exec, -1")
        for k in range(16): a(f"v_mov_b32 v{136+k}, v{16+k}")
        lds_sync(a, C_CS, 4)
        for k in range(4): a(f"ds_read_b128 {v(152+4*k,4)}, v8 offset:{k*32}")
    else:
        a("v_add_u32 v4, s54, v4\nv_add_u32 v5, s51, v5\nv_xor_b32 v8, 128, v4")
        for k in range(8): a(f"ds_read_b128 {v(136+4*k,4)}, v5 offset:{k*32}\nds_read_b128 {v(168+4*k,4)}, v5 offset:{512+k*32}")
        a("ds_write_b32 v4, v16\nv_mov_b32 v128, v16")
        lds_sync(a, C_CS, 4)
        a("ds_read_b32 v130, v8")
    a("v_mov_b32 v2, v14\nv_mov_b32 v3, v15\ns_waitcnt lgkmcnt(0)")

def consumer_loop(a, vori):
    L = a.newlab("qloop"); last = a.newlab("qlast"); s9 = a.newlab("qs9"); s9b = a.newlab("qs9b")
    def csum(buf):
        if OPT.get("nocs"): return
        Wf = v(QF+16*buf+8, 4)
        a(f"v_mfma_f32_32x32x16_bf16 v[16:31], {'v[200:203], '+Wf if vori else Wf+', v[200:203]'}, v[16:31]")
    for w in ("x0", "w0", "w1", "x1"): qkv_rd(a, 0, 0, 0, w)
    a("s_mov_b32 s50, 0")
    a(".p2align 3")
    a.lab(L)
    for slot in range(2):
        for ks in range(4):
            buf = ks & 1; nb = buf ^ 1
            if ks < 3:
                a("s_waitcnt lgkmcnt(3)"); qkv_mf(a, buf, vori, 0, 0); qkv_rd(a, ks+1, nb, slot, "x0"); qkv_rd(a, ks+1, nb, slot, "w0")
                a("s_waitcnt lgkmcnt(4)"); qkv_mf(a, buf, vori, 0, 1); qkv_rd(a, ks+1, nb, slot, "w1")
                a("s_waitcnt lgkmcnt(5)"); qkv_mf(a, buf, vori, 1, 0); qkv_rd(a, ks+1, nb, slot, "x1")
                qkv_mf(a, buf, vori, 1, 1); csum(buf)
            else:
                a("s_waitcnt lgkmcnt(3)"); qkv_mf(a, buf, vori, 0, 0)
                a(f"s_cmp_eq_u32 s50, 4\ns_cbranch_scc1 {last if slot else s9}")
                if slot == 1:
                    for r in range(8, 14): a(f"v_xor_b32 v{r}, 0x10000, v{r}")
                a("s_waitcnt lgkmcnt(0)"); csum(buf); a("s_barrier")
                if slot == 0: a.lab(s9b)
                ns = slot ^ 1
                qkv_rd(a, 0, nb, ns, "x0"); qkv_rd(a, 0, nb, ns, "w0")
                qkv_mf(a, buf, vori, 0, 1); qkv_rd(a, 0, nb, ns, "w1")
                qkv_mf(a, buf, vori, 1, 0); qkv_rd(a, 0, nb, ns, "x1")
                if slot == 1: a("s_add_u32 s50, s50, 1")
                qkv_mf(a, buf, vori, 1, 1)
                if slot == 1 and OPT.get("mst") == 9 and not OPT.get("ls9"):
                    for c in range(1, 5):
                        LL = a.newlab("cs"); a(f"s_cmp_eq_u32 s50, {c}\ns_cbranch_scc0 {LL}"); lstamp(a, c); a.lab(LL)
    a(f"s_branch {L}")
    a.lab(s9)
    csum(1)
    lds_wait(a, L_FULL+36, 4)
    a(f"s_branch {s9b}")
    a.lab(last)
    a("s_waitcnt lgkmcnt(0)")
    csum(1); qkv_mf(a, 1, vori, 0, 1); qkv_mf(a, 1, vori, 1, 0); qkv_mf(a, 1, vori, 1, 1)

NB1, NB2 = 16*56, 14*64
def prefetch(a, sid, nw, n0, n1, thr=None):
    L = a.newlab("pf"); w2 = a.newlab("pfw"); nx = a.newlab("pfn"); done = a.newlab("pfd")
    a(f"v_lshlrev_b32 v4, 7, v{VL}\ns_add_u32 s50, s{sid}, {n0}")
    a.lab(L)
    a(f"s_cmp_ge_u32 s50, {n1}\ns_cbranch_scc1 {done}\ns_cmp_ge_u32 s50, {NB1}\ns_cbranch_scc1 {w2}")
    a(f"s_mul_i32 s51, s50, 1171\ns_lshr_b32 s51, s51, 16\ns_mul_i32 s52, s51, 56\ns_sub_u32 s52, s50, s52")
    a(f"s_mul_i32 s53, s52, 37\ns_lshr_b32 s53, s53, 9\ns_mul_i32 s54, s53, 14\ns_sub_u32 s52, s52, s54")
    a(f"s_lshl_b32 s53, s53, 4\ns_add_u32 s51, s51, s53\ns_mul_i32 s51, s51, 110592\ns_lshl_b32 s52, s52, 13\ns_add_u32 s51, s51, s52")
    a(f"buffer_load_dword v255, v4, {s(SW1,4)}, s51 offen\ns_branch {nx}")
    a.lab(w2)
    a(f"s_sub_u32 s51, s50, {NB1}\ns_lshr_b32 s52, s51, 6\ns_bfe_u32 s53, s51, 0x20004\ns_and_b32 s51, s51, 15")
    a(f"s_mul_i32 s54, s53, 14\ns_cmp_eq_u32 s53, 3\ns_cselect_b32 s54, 41, s54\ns_add_u32 s52, s52, s54\ns_lshl_b32 s52, s52, 4\ns_add_u32 s51, s51, s52\ns_lshl_b32 s51, s51, 13")
    a(f"buffer_load_dword v255, v4, {s(SW2,4)}, s51 offen")
    a.lab(nx)
    if thr is not None: a(f"s_waitcnt vmcnt({thr})")
    a(f"s_add_u32 s50, s50, {nw}\ns_branch {L}")
    a.lab(done)

def wof(a, mid):
    a(f"s_mul_i32 s61, s{SXCD}, 5\ns_add_u32 s61, s61, s{SJ}\ns_sub_u32 s61, s61, 27\ns_lshl_b32 s61, s61, 1")
    a(f"v_lshrrev_b32 v2, 5, v{VL}\nv_and_b32 v3, 31, v{VL}\nv_mul_u32_u24 v6, 1280, v2\nv_lshl_add_u32 v7, v3, 3, v6\nv_lshl_add_u32 v6, v3, 4, v6")
    for g in range(2):
        a(f"s_add_u32 s50, s61, {g}\ns_lshr_b32 s51, s50, 2\ns_and_b32 s52, s50, 3\ns_mul_i32 s53, s51, 52\ns_lshr_b32 s53, s53, 8\ns_mul_i32 s54, s53, 5\ns_sub_u32 s54, s51, s54")
        a(f"s_lshl_b32 s56, s53, 4\ns_lshl_b32 s57, s54, 2\ns_add_u32 s56, s56, s57\ns_add_u32 s56, s56, s52")
        a(f"s_lshr_b32 s57, s56, 1\ns_mul_i32 s57, s57, 20\ns_and_b32 s56, s56, 1\ns_lshl_b32 s56, s56, 2\ns_add_u32 s56, s56, s57")
        a(f"s_lshl_b32 s57, s53, 3\ns_lshl_b32 s58, s52, 1\ns_add_u32 s57, s57, s58\ns_mul_i32 s57, s57, 20\ns_add_u32 s57, s57, 16")
        a(f"s_cmp_eq_u32 s54, 4\ns_cselect_b32 s56, s57, s56\ns_cselect_b32 s57, 20, 8\ns_cmp_ge_u32 s{SKW}, 2\ns_cselect_b32 s57, s57, 0\ns_add_u32 s56, s56, s57")
        a(f"s_and_b32 s57, s{SKW}, 1\ns_lshl_b32 s57, s57, 1\ns_add_u32 s53, s56, s57\ns_mul_i32 s54, s53, 1280")
        b = 32 + 12*g
        a(f"buffer_load_dwordx4 {v(b,4)}, v6, {s(SWO,4)}, s54 offen\nbuffer_load_dwordx4 {v(b+4,4)}, v6, {s(SWO,4)}, s54 offen offset:512\nbuffer_load_dwordx2 {v(b+8,2)}, v7, {s(SWO,4)}, s54 offen offset:1024")
        a(f"s_mul_i32 s55, s51, 5120\ns_lshl_b32 s52, s52, 8\ns_add_u32 s55, s55, s52\ns_add_u32 s{62+g}, s55, {OFF_WOF}")
    mid()
    trs_prep(a, SKW, M1BASE, 102400, 54, 214)
    a(f"v_lshrrev_b32 v2, 5, v{VL}\nv_and_b32 v3, 31, v{VL}")
    a(f"s_mul_i32 s54, s{SKW}, 2688\ns_add_u32 s54, s54, {M1BASE}\nv_mul_u32_u24 v4, 1344, v2\nv_add_u32 v4, s54, v4\nv_lshl_add_u32 v5, v3, 3, v4\nv_lshl_add_u32 v4, v3, 4, v4\ns_waitcnt vmcnt(0)")
    for g in range(2):
        b = 32 + 12*g
        a(f"ds_write_b128 v4, {v(b,4)} offset:{g*16384}\nds_write_b128 v4, {v(b+4,4)} offset:{g*16384+512}\nds_write_b64 v5, {v(b+8,2)} offset:{g*16384+1024}")
    lds_sync(a, C_MP, 4)
    trs_go(a, SKW, 62, 214)
    a("s_waitcnt lgkmcnt(0)\nv_add_u32 v214, 16384, v214\ns_nop 0")
    trs_go(a, SKW, 63, 214, 32)
    a(f"s_mov_b32 s61, {G_W}")
    arrive(a, C_W1, 4, 61, 40)

def attn_setup(a):
    pass
def attn2(a):
    ws = s(SWS, 4); w = SWAVE; shd, sb = SHD, SBQ
    KB, VB = 0, 20480
    attn_ids(a, shd, sb)
    a(f"s_lshl_b32 s50, s{sb}, 3\ns_sub_u32 s51, s50, 8\ns_cmp_eq_u32 s{sb}, 0\ns_cselect_b32 s52, 0, s51\ns_cmp_ge_u32 s{w}, 2\ns_cselect_b32 s51, s51, s52\ns_lshl_b32 s52, s{w}, 2\ns_add_u32 s51, s51, s52\ns_mul_i32 s51, s51, 40960")
    attn_masks(a)
    a(f"v_and_b32 v2, 31, v{VL}\nv_lshrrev_b32 v3, 5, v{VL}\nv_lshlrev_b32 v4, 3, v2\nv_lshl_add_u32 v5, v3, 9, v4\nv_mov_b32 v6, {OOB}\nv_cmp_eq_u32 vcc, 0, v3\ns_nop 1\nv_cndmask_b32 v6, v6, v4, vcc")
    a(f"s_add_u32 s52, s50, s{w}\ns_mul_i32 s53, s52, 40960\ns_mul_i32 s54, s{shd}, 1280\ns_add_u32 s53, s53, s54\ns_add_u32 s62, s53, {OFF_Q}\ns_add_u32 s63, s62, {4*40960}")
    a(f"s_lshl_b32 s56, s52, 15\ns_lshl_b32 s53, s{shd}, 10\ns_add_u32 s56, s56, s53\ns_add_u32 s56, s56, {OFF_O1}")
    a(f"s_lshl_b32 s61, s52, 13\ns_lshl_b32 s53, s{shd}, 8\ns_add_u32 s61, s61, s53\ns_add_u32 s61, s61, {OFF_O2}")
    a(f"s_add_u32 s64, s54, s51\ns_add_u32 s64, s64, {OFF_K}\ns_mov_b32 s55, 39680")
    for i in range(5):
        a(f"v_add_u32 v{16+i}, {64*i}, v{VL}\nv_mul_u32_u24 v{16+i}, 205, v{16+i}\nv_lshrrev_b32 v{16+i}, 14, v{16+i}\nv_mul_u32_u24 v{16+i}, s55, v{16+i}\nv_lshl_add_u32 v{16+i}, v{VL}, 4, v{16+i}")
    a("v_add_u32 v20, 4096, v20")
    a(f"v_mul_u32_u24 v7, 49, v{VL}\nv_lshrrev_b32 v7, 10, v7\nv_mul_u32_u24 v7, {10240-336}, v7\nv_lshl_add_u32 v7, v{VL}, 4, v7")
    a(f"s_mul_i32 s65, s{shd}, 320\ns_add_u32 s65, s65, s51\ns_add_u32 s65, s65, {OFF_V}\ns_mul_i32 s54, s{w}, 5376\ns_add_u32 s54, s54, {VB}\ns_mul_i32 s66, s{w}, 5120")
    a(f"s_mul_i32 s53, s{w}, 1280\ns_add_u32 s53, s53, {KB}\nv_add_u32 v8, s53, v5\nv_add_u32 v9, s53, v4")
    a(f"v_min_u32 v10, 20, v2\nv_cmp_lt_u32 vcc, 27, v2\nv_mul_u32_u24 v13, 336, v3\ns_nop 0\nv_cndmask_b32_e64 v10, v10, 4, vcc")
    a(f"s_mul_i32 s53, s{w}, 1344\ns_add_u32 s53, s53, {VB}\nv_lshl_add_u32 v10, v10, 4, v13\nv_add_u32 v10, s53, v10")
    a(f"v_lshlrev_b32 v11, 4, v2\nv_lshl_add_u32 v11, v3, 9, v11\nv_mov_b32 v12, v6")
    a(f"v_and_b32 v13, 15, v{VL}\nv_mul_u32_u24 v13, 336, v13\nv_add_u32 v13, s54, v13")
    a("v_mov_b32 v24, 0x3f803f80\nv_mov_b32 v25, v24\nv_mov_b32 v26, v24\nv_mov_b32 v27, v24")
    a(f"s_sub_u32 s57, 8, s{w}\ns_cmp_eq_u32 s{sb}, 0\ns_cselect_b32 s57, s57, 0\ns_cselect_b32 s58, 4, 0")
    stamp(a, 4)
    oth = a.newlab("aw"); go = a.newlab("ag")
    a(f"s_cmp_lg_u32 s{w}, 0\ns_cbranch_scc1 {oth}")
    lds_wait(a, C_QA, 4)
    a(f"s_lshl_b32 s53, s{sb}, 1\ns_sub_u32 s53, s53, 2\nv_add_u32 v2, s53, v{VL}\nv_max_i32 v2, 0, v2\nv_lshlrev_b32 v2, 8, v2\ns_mov_b32 s53, {G_Q+128}")
    gpoll(a, 2, SWS, "s53", 1, 4)
    lds_set(a, C_AGO)
    a(f"s_branch {go}")
    a.lab(oth)
    lds_wait(a, C_AGO, 1)
    a.lab(go)
    stamp(a, 5, OPT.get("mst") == 5)
    a(f"s_mov_b32 m0, s66")
    a(f"buffer_load_dwordx2 {v(AQ,2)}, v5, {ws}, s62 offen {LD}\nbuffer_load_dwordx2 {v(AQ+2,2)}, v5, {ws}, s62 offen offset:256 {LD}\nbuffer_load_dwordx2 {v(AQ+4,2)}, v6, {ws}, s62 offen offset:1024 {LD}")
    for i in range(5):
        if i == 4: a(f"s_add_u32 m0, s66, 4096\ns_nop 0")
        a(f"buffer_load_dwordx4 v{16+i}, {ws}, s64 offen offset:{(i&3)*1024} {LD} lds")
    for k in range(6):
        a(f"s_add_u32 m0, s54, {k*1008}")
        a("s_mov_b64 exec, 0x1fffff" if k == 5 else "s_nop 0")
        a(f"buffer_load_dwordx4 v7, {ws}, s65 offen {LD} lds\ns_add_u32 s65, s65, 30720")
    a("s_mov_b64 exec, -1")
    a(f"buffer_load_dwordx2 {v(AQ+6,2)}, v5, {ws}, s63 offen {LD}\nbuffer_load_dwordx2 {v(AQ+8,2)}, v5, {ws}, s63 offen offset:256 {LD}\nbuffer_load_dwordx2 {v(AQ+10,2)}, v6, {ws}, s63 offen offset:1024 {LD}")
    a(f"s_setprio {OPT.get('prioa', 0)}")
    FAST = OPT.get("fast", 1)
    if FAST:
        a(f"v_and_b32 v2, 31, v{VL}\nv_lshrrev_b32 v3, 5, v{VL}\nv_mul_u32_u24 v3, 1280, v3\nv_lshl_add_u32 v2, v2, 3, v3\nv_add_u32 v2, s66, v2\ns_waitcnt vmcnt(9)")
        for t in range(2):
            for u in range(5): a(f"ds_read_b64 {v(28+10*t+2*u,2)}, v2 offset:{t*2560+u*256}")
        for t in range(2):
            a(f"s_waitcnt lgkmcnt({5-5*t})\nv_mov_b32 v{14+t}, 0")
            for u in range(10): a(f"v_dot2_f32_bf16 v{14+t}, v{28+10*t+u}, v{28+10*t+u}, v{14+t}")
        a("s_nop 2\nv_max_f32 v14, v14, v15")
        for sh in (8, 4, 2, 1): a(f"s_nop 1\nv_max_f32_dpp v14, v14, v14 row_ror:{sh} row_mask:0xf bank_mask:0xf")
        for sw in ("v_permlane16_swap_b32", "v_permlane32_swap_b32"): a(f"v_mov_b32 v15, v14\ns_nop 1\n{sw} v14, v15\nv_max_f32 v14, v14, v15")
        a(f"s_lshl_b32 s53, s{w}, 2\ns_add_u32 s53, s53, {L_KN}\nv_mov_b32 v15, s53\nds_write_b32 v15, v14")
    else:
        a("s_waitcnt vmcnt(9)")
    lds_sync(a, C_AK, 4)
    if FAST:
        a(f"v_mov_b32 v2, {L_KN}\nds_read_b128 v[28:31], v2\ns_waitcnt lgkmcnt(0)\nv_max3_f32 v28, v28, v29, v30\nv_max_f32 v254, v28, v31")
    ast(a, 1)
    a("s_mov_b32 s59, 0")
    fin = a.newlab("afin")
    if OPT.get("noac"):
        lds_sync(a, C_AV, 4, vt=14); a(f"s_branch {fin}")
    L = a.newlab("atask"); vw = a.newlab("avw"); vwb = a.newlab("avb")
    inv = [a.newlab("inv") for _ in range(8)]; invb = [a.newlab("invb") for _ in range(8)]
    a(".p2align 3")
    a.lab(L)
    def kread(p):
        b = AK + 6*(p % 3)
        a(f"ds_read_b64 {v(b,2)}, v8 offset:{p*1280}\nds_read_b64 {v(b+2,2)}, v8 offset:{p*1280+256}\nds_read_b64 {v(b+4,2)}, v9 offset:{p*1280+1024}")
    def vread(p):
        b = AV + 8*(p % 2)
        for m in range(2): a(f"ds_read_b128 {v(b+4*m,4)}, v10 offset:{p*1344+m*672}")
    def mx(p):
        if p < 8:
            a(f"s_cmp_gt_u32 s57, {p}\ns_cbranch_scc1 {inv[p]}")
            a.lab(invb[p])
        for q in range(8):
            d = 2 + (q & 1)
            if p == 0 and q < 2: a(f"v_max_f32 v{d}, v{AS+2*q}, v{AS+2*q+1}")
            else: a(f"v_max3_f32 v{d}, v{d}, v{AS+16*p+2*q}, v{AS+16*p+2*q+1}")
    def m1(p):
        b = AK + 6*(p % 3); S = v(AS+16*p, 16)
        C = v(AME,16) if p == 0 else v(AMD,16) if p == 8 else "0"
        a(f"v_mfma_f32_32x32x16_bf16 {S}, {v(b,4)}, {v(AQ,4)}, {C}")
    def m2(p):
        b = AK + 6*(p % 3); S = v(AS+16*p, 16)
        a(f"v_mfma_f32_32x32x8bf16_1k {S}, {v(b+4,2)}, {v(AQ+4,2)}, {S}")
    def pv(p, S=None, ms=(0, 1)):
        b = AV + 8*(p % 2); S = AS+16*p if S is None else S
        for m in ms:
            C = "0" if (p == 0 and m == 0) else v(AO,16)
            a(f"v_mfma_f32_32x32x16_bf16 {v(AO,16)}, {v(b+4*m,4)}, {v(S+4*m,4)}, {C}")
    kread(0); kread(1); kread(2)
    join = a.newlab("ajoin")
    if FAST:
        slow = a.newlab("aslow"); fvw = a.newlab("afv"); fvb = a.newlab("afb")
        finv = [a.newlab("finv") for _ in range(8)]; finvb = [a.newlab("finvb") for _ in range(8)]
        a("v_mov_b32 v2, 0")
        for r in range(6): a(f"v_dot2_f32_bf16 v2, v{AQ+r}, v{AQ+r}, v2")
        a(f"s_nop 2\nv_mov_b32 v3, v2\ns_nop 1\nv_permlane32_swap_b32 v2, v3\nv_add_f32 v2, v2, v3\nv_mul_f32 v2, v2, v254\nv_cmp_nge_f32 vcc, {hexf(3600.0)}, v2\ns_cbranch_vccnz {slow}")
        def SB(p): return AS + 16*(p % 3)
        def fm1(p):
            b = AK + 6*(p % 3); C = v(AME,16) if p == 0 else v(AMD,16) if p == 8 else "0"
            a(f"v_mfma_f32_32x32x16_bf16 {v(SB(p),16)}, {v(b,4)}, {v(AQ,4)}, {C}")
        def fm2(p):
            b = AK + 6*(p % 3)
            a(f"v_mfma_f32_32x32x8bf16_1k {v(SB(p),16)}, {v(b+4,2)}, {v(AQ+4,2)}, {v(SB(p),16)}")
        a("s_waitcnt lgkmcnt(6)"); fm1(0); fm2(0)
        a(f"s_cmp_eq_u32 s59, 0\ns_cbranch_scc1 {fvw}")
        a.lab(fvb)
        vread(0); kread(3)
        a("s_waitcnt lgkmcnt(8)"); fm1(1); fm2(1)
        a("s_nop 7")
        ast(a, 2, 1, 7)
        for p in range(9):
            S = SB(p)
            if p < 8:
                a(f"s_cmp_gt_u32 s57, {p}\ns_cbranch_scc1 {finv[p]}")
                a.lab(finvb[p])
            ex = [f"v_exp_f32 v{S+q}, v{S+q}" for q in range(16)]
            for q in range(0, 4): a(ex[q])
            if p > 0: pv(p-1, SB(p-1), (0,))
            for q in range(4, 8): a(ex[q])
            if p > 0: pv(p-1, SB(p-1), (1,))
            if p + 1 < 9: vread(p+1)
            for q in range(8, 12): a(ex[q])
            if p + 2 < 9:
                a(f"s_waitcnt lgkmcnt({(5 if p + 3 < 9 else 2) + 2})"); fm1(p+2)
            for q in range(12, 16): a(ex[q])
            if p + 2 < 9: fm2(p+2)
            else: a("s_nop 0")
            if p + 4 < 9: kread(p+4)
            for q in range(8): a(f"v_cvt_pk_bf16_f32 v{S+q}, v{S+2*q}, v{S+2*q+1}")
            n = (2 if p + 1 < 9 else 0) + (3 if p + 3 < 9 else 0) + (3 if p + 4 < 9 else 0)
            a(f"s_waitcnt lgkmcnt({n})")
        ast(a, 3, 1, 7)
        a("s_nop 0"); pv(8, SB(8))
        a(f"s_branch {join}")
        for p in range(8):
            a.lab(finv[p])
            for r in range(16): a(f"v_mov_b32 v{SB(p)+r}, {NEGINF}")
            a(f"s_branch {finvb[p]}")
        a.lab(fvw)
        a("s_waitcnt vmcnt(0)\nv_mov_b32 v4, 0x3f803f80\nv_mov_b32 v5, v4\nv_mov_b32 v6, v4\nv_mov_b32 v7, v4\nds_write_b128 v13, v[4:7] offset:320")
        lds_sync(a, C_AV, 4, vt=14)
        a(f"s_branch {fvb}")
        a.lab(slow)
    a("s_waitcnt lgkmcnt(6)"); m1(0)
    for p in range(9):
        if p + 1 < 9:
            a(f"s_waitcnt lgkmcnt({3 if p + 2 < 9 else 0})"); m1(p+1)
        m2(p)
        if p + 3 < 9: kread(p+3)
        if p >= 2: mx(p-2)
    a(f"s_cmp_eq_u32 s59, 0\ns_cbranch_scc1 {vw}")
    a.lab(vwb)
    ast(a, 2, 0)
    vread(0)
    mx(7)
    a("s_nop 0")
    mx(8)
    a("v_max_f32 v2, v2, v3\nv_mov_b32 v3, v2\ns_nop 1\nv_permlane32_swap_b32 v2, v3\nv_max_f32 v2, v2, v3")
    for p in range(9):
        b = AS + 16*p
        for q in range(8): a(f"v_pk_add_f32 {v(b+2*q,2)}, {v(b+2*q,2)}, v[2:3] op_sel_hi:[1,0] neg_lo:[0,1] neg_hi:[0,1]")
        if p > 0:
            a("s_waitcnt lgkmcnt(0)"); pv(p-1)
        if p + 1 < 9 and p > 0: vread(p+1)
        if p == 0: vread(1)
        for q in range(16): a(f"v_exp_f32 v{b+q}, v{b+q}")
        a("s_nop 0")
        for q in range(8): a(f"v_cvt_pk_bf16_f32 v{b+q}, v{b+2*q}, v{b+2*q+1}")
    a("s_waitcnt lgkmcnt(0)\ns_nop 0"); pv(8)
    a.lab(join)
    for r in range(6): a(f"v_mov_b32 v{AQ+r}, v{AQ+6+r}")
    a(f"v_add_u32 v8, {4*1280}, v8\nv_add_u32 v9, {4*1280}, v9\nv_add_u32 v10, {4*1344}, v10\ns_sub_u32 s57, s57, s58\ns_nop 2")
    a(f"v_mov_b32 v2, v{AO+8}\nv_mov_b32 v3, v{AO+8}\ns_nop 1\nv_permlane32_swap_b32 v2, v3\nv_rcp_f32 v2, v3\ns_nop 0")
    for q in range(6): a(f"v_pk_mul_f32 {v(AO+2*q,2)}, {v(AO+2*q,2)}, v[2:3] op_sel_hi:[1,0]")
    for q in range(6): a(f"v_cvt_pk_bf16_f32 v{4+q if q < 4 else 10+q}, v{AO+2*q}, v{AO+2*q+1}")
    a(f"s_setprio 2\nbuffer_store_dwordx4 v[4:7], v11, {ws}, s56 offen {ST}\nbuffer_store_dwordx2 v[14:15], v12, {ws}, s61 offen {ST}\ns_setprio {OPT.get('prioa', 0)}")
    ast(a, 3, 0); ast(a, 4, 1); ast(a, 1, 0, 7); ast(a, 4, 1, 7)
    a(f"s_add_u32 s56, s56, {4*32768}\ns_add_u32 s61, s61, {4*8192}\ns_add_u32 s59, s59, 1\ns_cmp_lt_u32 s59, 2\ns_cbranch_scc1 {L}")
    a(f"s_branch {fin}")
    for p in range(8):
        a.lab(inv[p])
        for r in range(16): a(f"v_mov_b32 v{AS+16*p+r}, {NEGINF}")
        a(f"s_branch {invb[p]}")
    a.lab(vw)
    a("s_waitcnt vmcnt(0)\nv_mov_b32 v4, 0x3f803f80\nv_mov_b32 v5, v4\nv_mov_b32 v6, v4\nv_mov_b32 v7, v4\nds_write_b128 v13, v[4:7] offset:320")
    lds_sync(a, C_AV, 4, vt=14)
    a(f"s_branch {vwb}")
    a.lab(fin)

def wo2(a):
    skw = SKW; ws = s(SWS, 4)
    a(f"v_lshrrev_b32 v2, 4, v{VL}\nv_and_b32 v3, 15, v{VL}\nv_lshlrev_b32 v8, 4, v3\nv_lshl_add_u32 v8, v2, 9, v8\nv_lshlrev_b32 v10, 3, v3\nv_lshl_add_u32 v10, v2, 9, v10")
    a(f"s_lshl_b32 s50, s{SST}, 16\ns_lshl_b32 s51, s{skw}, 13\ns_add_u32 s50, s50, s51\ns_add_u32 s50, s50, {OFF_O1}")
    a(f"s_lshl_b32 s61, s{SST}, 14\ns_lshl_b32 s51, s{skw}, 11\ns_add_u32 s61, s61, s51\ns_add_u32 s61, s61, {OFF_O2}")
    for i in range(4):
        a(f"s_xor_b32 s51, s{skw}, {i}\ns_lshr_b32 s56, s51, 1\ns_and_b32 s51, s51, 1\ns_lshl_b32 s57, s56, 15\ns_lshl_b32 s58, s51, 8\ns_add_u32 s57, s57, s58\ns_add_u32 s{52+i}, s50, s57")
        a(f"s_lshl_b32 s57, s56, 13\ns_lshl_b32 s58, s51, 7\ns_add_u32 s57, s57, s58\ns_add_u32 s{62+i}, s61, s57")
    oth = a.newlab("ow"); go = a.newlab("og")
    a(f"s_cmp_lg_u32 s{skw}, 0\ns_cbranch_scc1 {oth}")
    a(f"s_lshr_b32 s51, s{SST}, 2\ns_lshl_b32 s51, s51, 8\ns_add_u32 s51, s51, {G_O+128}\nv_mov_b32 v2, 0")
    gpoll(a, 2, SWS, "s51", 1, 1)
    lds_set(a, C_OGO)
    a(f"s_branch {go}")
    a.lab(oth)
    lds_wait(a, C_OGO, 1)
    a.lab(go)
    stamp(a, 2)
    def aload(st):
        for i in range(4):
            r = WA+16*(st%3)+4*i
            if st < 4:
                a(f"buffer_load_dwordx4 {v(r,4)}, v8, {ws}, s{52+i} offen offset:{(st&1)*2048} {LD}")
                if st == 1: a(f"s_add_u32 s{52+i}, s{52+i}, 4096")
            else:
                for e in range(2): a(f"buffer_load_dwordx2 {v(r+2*e,2)}, v10, {ws}, s{62+i} offen offset:{e*256} {LD}")
    for st in range(3): aload(st)
    for st in range(5):
        a(f"s_waitcnt vmcnt({[8, 8, 12, 8, 0][st]})")
        for db in range(5):
            for i in range(4):
                acc = v(MACC+(i*5+db)*4, 4)
                a(f"v_mfma_f32_16x16x32_bf16 {acc}, {v(WA+16*(st%3)+4*i,4)}, {v(WB+20*st+4*db,4)}, {'0' if st == 0 else acc}")
        if st + 3 < 5: aload(st+3)

def colsum4(a, snt, ldsbase, st):
    a(f"v_lshrrev_b32 v2, 4, v{VL}\nv_and_b32 v3, 15, v{VL}\nv_mul_u32_u24 v4, 3840, v2\nv_lshl_add_u32 v4, v3, 4, v4")
    a(f"s_mul_i32 s{st}, s{SKW}, {160*3840}\ns_lshl_b32 s{st+1}, s{snt}, 8\ns_add_u32 s{st}, s{st}, s{st+1}")
    a(f"s_cmp_eq_u32 s{snt}, 15\ns_cbranch_scc0 L_cs_go\ns_barrier\ns_branch L_cs_end")
    a.lab("L_cs_go")
    for i in range(40):
        a(f"buffer_load_dwordx4 v[{32+4*i}:{35+4*i}], v4, {s(SWQ,4)}, s{st} offen\ns_add_u32 s{st}, s{st}, {4*3840}")
        if i == 9: a("s_barrier")
    for c in range(8): a(f"v_mov_b32 v{16+c}, 0")
    for i in range(40):
        a(f"s_waitcnt vmcnt({39-i})")
        for c in range(4):
            a(f"v_lshlrev_b32 v24, 16, v{32+4*i+c}\nv_and_b32 v25, 0xffff0000, v{32+4*i+c}\nv_pk_add_f32 v[{16+2*c}:{17+2*c}], v[{16+2*c}:{17+2*c}], v[24:25]")
    for sw in ("v_permlane32_swap_b32", "v_permlane16_swap_b32"):
        for c in range(8): a(f"v_mov_b32 v{24+c}, v{16+c}")
        a("s_nop 0")
        for c in range(8): a(f"{sw} v{16+c}, v{24+c}")
        for c in range(8): a(f"v_add_f32 v{16+c}, v{16+c}, v{24+c}")
    a(f"s_lshl_b32 s{st}, s{SKW}, 9\ns_add_u32 s{st}, s{st}, {ldsbase}\nv_lshlrev_b32 v4, 5, v3\nv_add_u32 v4, s{st}, v4")
    a("ds_write_b128 v4, v[16:19]\nds_write_b128 v4, v[20:23] offset:16")
    lds_sync(a, C_W2, 4)
    a(f"s_cmp_ge_u32 s{SKW}, 2\ns_cbranch_scc1 L_cs_end")
    a(f"s_lshl_b32 s{st}, s{SKW}, 8\nv_lshlrev_b32 v4, 2, v{VL}\nv_add_u32 v4, s{st}, v4\nv_add_u32 v5, {ldsbase}, v4")
    for w in range(4): a(f"ds_read_b32 v{16+w}, v5 offset:{w*512}")
    a("s_waitcnt lgkmcnt(0)")
    for w in range(1, 4): a(f"v_add_f32 v16, v16, v{16+w}")
    a(f"s_lshl_b32 s{st}, s{snt}, 9\ns_add_u32 s{st}, s{st}, {OFF_CS}")
    a(f"buffer_store_dword v16, v4, {s(SWS,4)}, s{st} offen {ST}")
    a.lab("L_cs_end")

def prologue2(a):
    a(f".globl {NAME}\n.p2align 8\n.type {NAME},@function")
    a.lab(NAME)
    a(f"s_load_dwordx4 s[64:67], s[0:1], 0\ns_load_dwordx4 s[68:71], s[0:1], 72\ns_cmp_ge_u32 s2, 256\ns_cbranch_scc1 L_end")
    if blocks.STAMP:
        for i in range(16): a(f"s_mov_b32 s{84+i}, 0")
    stamp(a, 0)
    if OPT.get("cpf", 1):
        a(f"s_getpc_b64 s[50:51]\ns_sub_u32 s50, s50, .-{NAME}\ns_subb_u32 s51, s51, 0")
        a(f"s_lshr_b32 s52, s2, 3\ns_and_b32 s52, s52, 3\ns_add_u32 s52, s52, 1\ns_lshl_b32 s52, s52, 13\nv_and_b32 v2, 63, v0\nv_lshlrev_b32 v2, 7, v2")
        a(f"v_cmp_le_u32 vcc, 256, v0\nv_mov_b32 v3, s52\nv_and_b32 v4, 0xc0, v0\nv_cndmask_b32 v3, 0, v3, vcc\nv_add_u32 v2, v2, v3\nv_cmp_eq_u32 vcc, 0, v4\ns_mov_b32 s54, L_end-{NAME}\nv_cmp_gt_u32 s[52:53], s54, v2\ns_nop 0\ns_and_b64 vcc, vcc, s[52:53]")
        a(f"s_and_saveexec_b64 s[52:53], vcc\ns_cbranch_execz L_nocpf\nglobal_load_dword v255, v2, s[50:51]")
        a.lab("L_nocpf")
        a("s_mov_b64 exec, -1")
    a(f"s_load_dwordx8 s[56:63], s[0:1], 32\ns_load_dwordx2 {s(SWO,2)}, s[0:1], 16\ns_load_dwordx2 {s(SOUT,2)}, s[0:1], 64")
    a(f"v_lshrrev_b32 v2, 6, v0\nv_and_b32 v{VL}, 63, v0")
    a(f"s_and_b32 s{SXCD}, s2, 7\ns_lshr_b32 s{SJ}, s2, 3")
    a(f"v_readfirstlane_b32 s{SWAVE}, v2")
    for r in SRDS: a(f"s_mov_b32 s{r+2}, {SRDS[r][1]}\ns_mov_b32 s{r+3}, 0x20000")
    ids(a)
    a("s_waitcnt lgkmcnt(0)")
    for r, src in ((SX, 64), (SWQ, 66), (SDBG, 68), (SWS, 70), (SW1, 56), (SB1, 58), (SW2, 60), (SB2, 62)): a(f"s_mov_b64 {s(r,2)}, {s(src,2)}")

def trs_prep(a, sw, ldsbase, dt, st, vb):
    a(f"v_lshrrev_b32 v2, 4, v{VL}\nv_and_b32 v3, 15, v{VL}")
    a(f"v_lshrrev_b32 v4, 2, v3\nv_mul_u32_u24 v4, 1344, v4\nv_lshl_add_u32 v4, v2, 5, v4\nv_and_b32 v5, 3, v3\nv_lshl_add_u32 v4, v5, 3, v4")
    a(f"s_lshl_b32 s{st}, s{sw}, 7\ns_add_u32 s{st}, s{st}, {ldsbase}\nv_add_u32 v{vb}, s{st}, v4\ns_mov_b32 s{st+1}, {dt-5120}")
    for k in range(3):
        a(f"s_lshl_b32 s{st}, s{sw}, 2\ns_add_u32 s{st}, s{st}, {16*k}\nv_add_u32 v5, s{st}, v2")
        a(f"v_mul_u32_u24 v6, 52, v5\nv_lshrrev_b32 v6, 8, v6\nv_mul_u32_u24 v6, s{st+1}, v6\nv_lshl_add_u32 v6, v5, 10, v6\nv_lshl_add_u32 v{vb+1+k}, v3, 4, v6")
    a(f"s_cmp_ge_u32 s{sw}, 2\ns_cselect_b64 vcc, -1, 0\nv_mov_b32 v5, {OOB}\nv_cndmask_b32 v{vb+3}, v{vb+3}, v5, vcc")
def trs_go(a, sw, sdst, vb, d=16):
    for k in range(3):
        a(f"ds_read_b64_tr_b16 v[{d+4*k}:{d+1+4*k}], v{vb} offset:{k*512}\nds_read_b64_tr_b16 v[{d+2+4*k}:{d+3+4*k}], v{vb} offset:{k*512+5376}")
    sk = a.newlab("tg")
    for k in range(3):
        if k == 2: a(f"s_cmp_ge_u32 s{sw}, 2\ns_cbranch_scc1 {sk}")
        a(f"s_waitcnt lgkmcnt({4-2*k})\nbuffer_store_dwordx4 v[{d+4*k}:{d+3+4*k}], v{vb+1+k}, {s(SWS,4)}, s{sdst} offen {ST}")
    a.lab(sk)

def m1_bias_init(a):
    z = a.newlab("bz"); d = a.newlab("bd")
    a(f"s_cmp_lg_u32 s{SKW}, 0\ns_cbranch_scc1 {z}\ns_waitcnt vmcnt(36)")
    for fb in range(4):
        for q in range(2):
            a(f"v_lshlrev_b32 v{MACC+fb*20+2*q}, 16, v{192+2*fb+q}\nv_and_b32 v{MACC+fb*20+2*q+1}, 0xffff0000, v{192+2*fb+q}")
        for db in range(1, 5):
            for r in range(4): a(f"v_mov_b32 v{MACC+(fb*5+db)*4+r}, v{MACC+fb*20+r}")
    a(f"s_branch {d}")
    a.lab(z)
    for i in range(80): a(f"v_mov_b32 v{MACC+i}, 0")
    a.lab(d)
def m1_epi(a):
    kw = SKW; ws = s(SWS, 4)
    odd = a.newlab("eo"); j1 = a.newlab("ej"); j2 = a.newlab("ej")
    a(f"v_add_u32 v10, s66, v{MDIR}\ns_and_b32 s65, s{kw}, 1\ns_cmp_eq_u32 s65, 1\ns_nop 3")
    for t in range(10, 20): a(f"ds_write_b128 v10, {v(MACC+4*t,4)} offset:{t*1024}")
    a(f"s_cbranch_scc1 {odd}")
    for t in (3, 4, 8, 9): a(f"ds_write_b128 v10, {v(MACC+4*t,4)} offset:{t*1024}")
    a(f"s_branch {j1}")
    a.lab(odd)
    for t in (0, 1, 2, 5, 6, 7): a(f"ds_write_b128 v10, {v(MACC+4*t,4)} offset:{t*1024}")
    for g in range(2):
        for r in range(8): a(f"v_mov_b32 v{MACC+20*g+r}, v{MACC+20*g+12+r}")
    a.lab(j1)
    l10(a, 1)
    a(f"s_mul_i32 s65, s65, 3072")
    for n_, x_ in enumerate((1, 2, 3)):
        a(f"s_xor_b32 s68, s{kw}, {x_}\ns_mul_i32 s68, s68, {M1STR}\ns_add_u32 s68, s68, s65\ns_add_u32 s68, s68, {M1BASE + (0 if x_ == 1 else 10240)}\nv_add_u32 v{11+n_}, s68, v{MDIR}")
    a(f"s_mul_i32 s68, s{SDT1}, {54*5120}\ns_mul_i32 s69, s{SFT}, 10240\ns_add_u32 s68, s68, s69\ns_lshr_b32 s69, s{kw}, 1\ns_mul_i32 s69, s69, 5120\ns_add_u32 s68, s68, s69\ns_add_u32 s68, s68, s65\ns_add_u32 s68, s68, {OFF_G}")
    a(f"s_mov_b32 s72, {hexf(GC2)}\ns_mov_b32 s73, {hexf(GC2)}\nv_mov_b32 v14, {hexf(GC1)}\nv_mov_b32 v15, v14")
    lds_sync(a, C_MP, 4, ls=0)
    l10(a, 2)
    def rd(k):
        for n_ in range(3):
            for g in range(2): a(f"ds_read_b128 {v(112+24*k+8*n_+4*g,4)}, v{11+n_} offset:{g*5120+k*1024}")
    rd(0); rd(1)
    for k in range(3):
        if k == 0:
            a(f"s_cmp_lg_u32 s65, 0\ns_cbranch_scc1 {j2}_r"); rd(2); a(f"s_waitcnt lgkmcnt(12)\ns_branch {j2}_w")
            a.lab(j2 + "_r"); a("s_waitcnt lgkmcnt(6)"); a.lab(j2 + "_w")
        elif k == 1:
            a(f"s_waitcnt lgkmcnt(6)\ns_cmp_eq_u32 s65, 0\ns_cbranch_scc1 {j2}_x\ns_waitcnt lgkmcnt(0)"); a.lab(j2 + "_x")
        else: a(f"s_cmp_lg_u32 s65, 0\ns_cbranch_scc1 {j2}\ns_waitcnt lgkmcnt(0)")
        U = [MACC+4*k, MACC+4*k+2, MACC+20+4*k, MACC+20+4*k+2]
        for n_ in range(3):
            for q in range(4): a(f"v_pk_add_f32 {v(U[q],2)}, {v(U[q],2)}, {v(112+24*k+8*n_+2*q,2)}")
        T = 96
        for q in range(4): a(f"v_pk_mul_f32 {v(T+2*q,2)}, {v(U[q],2)}, {v(U[q],2)}")
        for q in range(4): a(f"v_pk_fma_f32 {v(T+2*q,2)}, {v(T+2*q,2)}, s[72:73], v[14:15]")
        for q in range(4): a(f"v_pk_mul_f32 {v(T+2*q,2)}, {v(T+2*q,2)}, {v(U[q],2)}")
        for q in range(8): a(f"v_exp_f32 v{T+q}, v{T+q}")
        a("s_nop 0")
        for q in range(4): a(f"v_pk_add_f32 {v(T+2*q,2)}, {v(T+2*q,2)}, 1.0 op_sel_hi:[1,0]")
        for q in range(8): a(f"v_rcp_f32 v{T+q}, v{T+q}")
        a("s_nop 0")
        for q in range(4): a(f"v_pk_mul_f32 {v(T+2*q,2)}, {v(T+2*q,2)}, {v(U[q],2)}")
        for q in range(4): a(f"v_cvt_pk_bf16_f32 v{104+4*(k&1)+q}, v{T+2*q}, v{T+2*q+1}")
        a(f"buffer_store_dwordx4 {v(104+4*(k&1),4)}, v{MDIR}, {ws}, s68 offen offset:{k*1024} {ST}")
        if k < 2: l10(a, 3+k)
    a.lab(j2)

def gen():
    a = Asm()
    a(f"; @launch grid=(256,1,1) block=(512,1,1) lds={LDS}")
    a('.amdgcn_target "amdgcn-amd-amdhsa--gfx950"\n.text')
    prologue2(a)
    a(f"s_cmp_ge_u32 s{SJ}, 30\ns_cbranch_scc1 L_spare\ns_cmp_ge_u32 s{SWAVE}, 4\ns_cbranch_scc0 L_cons")
    loader(a)
    a(f"s_cmp_eq_u32 s{SHAS1}, 0\ns_cbranch_scc1 L_idle9")
    a(f"s_mul_i32 s66, s{SKW}, {M1STR}\ns_add_u32 s66, s66, {M1BASE}")
    a(f"s_and_b32 s67, s{SKW}, 2")
    mlp_setup(a, SW1, 3456, 66, rot=67)
    a(f"v_lshrrev_b32 v2, 4, v{VL}\nv_lshlrev_b32 v11, 3, v2\ns_lshl_b32 s65, s{SFT}, 7\ns_cmp_lg_u32 s{SKW}, 0\ns_cbranch_scc1 L_nobias")
    for fb in range(4): a(f"buffer_load_dwordx2 {v(192+2*fb,2)}, v11, {s(SB1,4)}, s65 offen offset:{fb*32}")
    a.lab("L_nobias")
    a(f"s_mul_i32 s{S_TO}, s{SKW}, {512*3456}\ns_lshl_b32 s65, s{SFT}, 7\ns_add_u32 s{S_TO}, s{S_TO}, s65")
    a(f"s_mul_i32 s{S_DO}, s{SDT1}, 327680\ns_mul_i32 s65, s{SKW}, {16*5120}\ns_add_u32 s{S_DO}, s{S_DO}, s65\ns_add_u32 s{S_DO}, s{S_DO}, {OFF_H}")
    def blk(k):
        mlp_dma(a, k)
        for db in range(5): mlp_dir(a, k, db, LD)
    stamp(a, 2)
    for k in range(4):
        a(f"s_setprio {3-k}")
        blk(k)
    m1_bias_init(a)
    if OPT.get("hold", 0): lds_wait(a, C_QA, 4)
    a(f"s_mov_b32 s{S_CNT}, 3\ns_setprio {OPT.get('prio1', 1)}")
    a(".p2align 3")
    a.lab("L_m1")
    for k in range(4): mlp_body(a, k, 27, True, LD)
    if OPT.get("mst") == 1:
        for c, i in ((3, 1), (2, 5), (1, 6)):
            LL = a.newlab("mst"); a(f"s_cmp_eq_u32 s{S_CNT}, {c}\ns_cbranch_scc0 {LL}"); stamp(a, i, True); a.lab(LL)
    a(f"s_sub_u32 s{S_CNT}, s{S_CNT}, 1\ns_cmp_lg_u32 s{S_CNT}, 0\ns_cbranch_scc1 L_m1")
    b2 = OPT.get("b2", 0)
    if b2:
        a(f"s_mul_i32 s50, s{SXCD}, 27\ns_add_u32 s50, s50, s{SJ}\ns_lshl_b32 s50, s50, 2\ns_add_u32 s50, s50, s{SKW}")
        a(f"s_mul_i32 s51, s50, 4855\ns_lshr_b32 s51, s51, 20\ns_mul_i32 s65, s51, 216\ns_sub_u32 s50, s50, s65\ns_add_u32 s51, s51, 1\ns_mul_i32 s65, s51, 14\ns_cmp_ge_u32 s51, 3\ns_subb_u32 s65, s65, 0\ns_cmp_ge_u32 s51, 4\ns_subb_u32 s65, s65, 0")
        a(f"s_lshl_b32 s65, s65, 17\ns_lshl_b32 s50, s50, 12\ns_add_u32 s65, s65, s50\ns_sub_u32 s65, s65, {216*4096}")
        a(f"v_lshlrev_b32 v2, 7, v{VL}\ns_mov_b32 exec_hi, 0\nbuffer_load_dword v255, v2, {s(SW2,4)}, s65 offen\ns_mov_b64 exec, -1")
    for k in range(4): mlp_body(a, k, [27, 18, 9, 0][k] + b2, False, LD)
    stamp(a, 3)
    a("s_setprio 3")
    l10(a, 0)
    m1_epi(a)
    l10(a, 5)
    stamp(a, 4)
    a(f"s_lshl_b32 s61, s{SDT1}, 8\ns_add_u32 s61, s61, {G_G}")
    arrive(a, C_GA, 4, 61, 27)
    l10(a, 6)
    a(f"s_mov_b32 s61, {C_GA}")
    a.lab("L_m2")
    w = SKW
    a(f"s_setprio {OPT.get('prio2', 1)}\ns_mul_i32 s66, s{w}, {M1STR}\ns_add_u32 s66, s66, {M1BASE}\nv_mov_b32 v12, s61")
    mlp_setup(a, SW2, 4096, 66)
    a(f"s_mul_i32 s67, s{w}, 14\ns_cmp_eq_u32 s{w}, 3\ns_cselect_b32 s67, 41, s67")
    a(f"s_lshl_b32 s{S_TO}, s67, 17\ns_lshl_b32 s65, s{SST}, 7\ns_add_u32 s{S_TO}, s{S_TO}, s65")
    a(f"s_mul_i32 s{S_DO}, s{SDT3}, {54*5120}\ns_mul_i32 s65, s67, 5120\ns_add_u32 s{S_DO}, s{S_DO}, s65\ns_add_u32 s{S_DO}, s{S_DO}, {OFF_G}")
    for i in range(80): a(f"v_mov_b32 v{MACC+i}, 0")
    lds_wait(a, None, 4, vreg=12)
    a(f"s_cmp_ge_u32 s{w}, 2\ns_cbranch_scc1 L_p3")
    mlp_dma(a, 2)
    a.lab("L_p3")
    for k in (3, 0, 1): mlp_dma(a, k)
    a(f"s_cmp_ge_u32 s{w}, 2\ns_cbranch_scc0 L_p3b")
    mlp_dma(a, 2)
    a.lab("L_p3b")
    a(f"v_and_b32 v2, 15, v{VL}\nv_mul_u32_u24 v12, 10, v2\nv_lshrrev_b32 v3, 5, v{VL}\nv_add_u32 v12, v12, v3\nv_bfe_u32 v2, v{VL}, 2, 1\nv_xor_b32 v12, v12, v2\nv_lshlrev_b32 v12, 4, v12\nv_bfe_u32 v2, v{VL}, 4, 1\nv_mul_u32_u24 v2, 2560, v2\nv_add3_u32 v12, v12, v2, s66")
    oth = a.newlab("gw"); go = a.newlab("gg")
    a(f"s_cmp_lg_u32 s{w}, 0\ns_cbranch_scc1 {oth}")
    a(f"s_lshl_b32 s51, s{SDT3}, 8\ns_add_u32 s51, s51, {G_G+128}\nv_mov_b32 v2, 0\ns_setprio 3")
    gpoll(a, 2, SWS, "s51", 1, 1)
    lds_set(a, C_GGO)
    a(f"s_setprio {OPT.get('prio2', 1)}\ns_branch {go}")
    a.lab(oth)
    lds_wait(a, C_GGO, 1, ls=1)
    a.lab(go)
    stamp(a, 5); l10(a, 7)
    SM_ = OPT.get("smaj", 1)
    a(f"s_mov_b32 s{S_CNT}, 3\ns_mov_b32 s69, 3\ns_cmp_ge_u32 s{w}, 2\ns_cbranch_scc1 L_d3")
    for lab, order, ent in ((None, (2, 3, 0, 1), "L_mb2"), ("L_d3", (3, 0, 1, 2), "L_mb3")):
        if lab: a.lab(lab)
        for n_, k in enumerate(order):
            if SM_: a(f"s_setprio {3-n_}")
            for db in range(5): mlp_dir(a, k, db, LD)
        a(f"s_setprio {OPT.get('prio2', 1)}\ns_branch {ent}" if SM_ else f"s_waitcnt vmcnt(0)\ns_branch {ent}")
    if SM_:
        for k in range(4):
            a.lab(f"L_fw{k}")
            a(f"s_sub_u32 s69, s69, 1\ns_cmp_eq_u32 s69, 0\ns_cbranch_scc1 L_fw{k}c\ns_cmp_eq_u32 s69, 1\ns_cbranch_scc1 L_fw{k}b\ns_waitcnt vmcnt(15)\ns_branch L_fb{k}")
            a.lab(f"L_fw{k}b"); a(f"s_waitcnt vmcnt(19)\ns_branch L_fb{k}")
            a.lab(f"L_fw{k}c"); a(f"s_waitcnt vmcnt(23)\ns_branch L_fb{k}")
    a(".p2align 3")
    for k in range(4):
        a.lab(f"L_mb{k}")
        if SM_:
            a(f"s_cmp_lg_u32 s69, 0\ns_cbranch_scc1 L_fw{k}")
            a.lab(f"L_fb{k}")
        mlp_body(a, k, 27, True, LD, swap=True)
    a(f"s_sub_u32 s{S_CNT}, s{S_CNT}, 1\ns_cmp_lg_u32 s{S_CNT}, 0\ns_cbranch_scc1 L_mb0")
    for k in range(4): mlp_body(a, k, 27-9*k, False, LD, swap=True)
    stamp(a, 6); l10(a, 0, 11)
    a("s_nop 4")
    for db in range(5):
        for sb in range(4): a(f"ds_write_b128 v12, {v(MACC+(sb*5+db)*4,4)} offset:{sb*5120+db*32}")
    l10(a, 1, 11)
    a("s_waitcnt lgkmcnt(0)")
    l10(a, 2, 11)
    a("s_barrier")
    l10(a, 3, 11)
    stamp_dump(a, 0)
    a("s_endpgm")
    a.lab("L_idle9")
    a.lab("L_idle")
    lds_wait(a, C_QA, 4)
    stamp(a, 2)
    def pid(): a(f"s_mul_i32 s61, s{SXCD}, 5\ns_add_u32 s61, s61, s{SJ}\ns_sub_u32 s61, s61, 27\ns_lshl_b32 s61, s61, 2\ns_add_u32 s61, s61, s{SKW}")
    def mid():
        if OPT.get("pf", 1) and not OPT.get("b1", 1):
            pid(); prefetch(a, 61, 160, OPT.get("np1", 8*56), NB1)
    wof(a, mid)
    stamp(a, 3)
    if OPT.get("pf", 1):
        pid()
        if OPT.get("w2wait", 0): lds_wait(a, C_AV, 4)
        prefetch(a, 61, 160, NB1, NB1 + (8*64 if OPT.get('b2', 0) else NB2), OPT.get("thr", 0))
    stamp(a, 4)
    a(f"s_waitcnt vmcnt(0)\ns_mov_b32 s61, {C_W1}\ns_branch L_m2")
    a.lab("L_cons")
    est(a, 1)
    a("s_setprio 3")
    ln_issue(a)
    if OPT.get("lnfirst", 1): a("s_barrier")
    a("s_mov_b32 s62, s53\ns_mov_b32 s63, s55")
    qkv_consumer_setup(a)
    a(f"v_lshrrev_b32 v2, 5, v{VL}\nv_and_b32 v3, 31, v{VL}")
    for r in range(8, 14): a(f"v_mov_b32 v{200+r}, v{r}")
    est(a, 4)
    a("s_waitcnt vmcnt(0)")
    est(a, 5)
    init_counters(a)
    rows_ln(a, 62, 54, ST, L_RS)
    rows_to_lds(a, SWAVE, L_LN, 54)
    est(a, 6)
    a("s_waitcnt lgkmcnt(0)\ns_barrier")
    a(f"s_setprio {OPT.get('prioc', 2)}")
    for r in range(8, 14): a(f"v_mov_b32 v{r}, v{200+r}")
    for r in range(16): a(f"v_mov_b32 v{16+r}, 0")
    for r in range(4): a(f"v_mov_b32 v{200+r}, 0x3f803f80")
    a("s_barrier")
    stamp(a, 2)
    if OPT.get("mst") == 9 and not OPT.get("ls9"): lstamp(a, 0)
    a(f"s_cmp_ge_u32 s{SN}, 10\ns_cbranch_scc1 L_consv")
    for vori in (0, 1):
        if vori: a.lab("L_consv")
        consumer_loop(a, vori)
        stamp(a, 3)
        if OPT.get("mst") == 9 and not OPT.get("ls9"): lstamp(a, 5)
        a(f"s_setprio {OPT.get('prioe', 1)}")
        qkv_epi_lds(a, vori)
        qkv_epi(a, SM, SN, vori, ST)
        if not vori: a("s_branch L_qdone")
    a.lab("L_qdone")
    ids_late(a)
    a(f"s_lshl_b32 s61, s{SM}, 8\ns_add_u32 s61, s61, {G_Q}")
    arrive(a, C_QA, 4, 61, 15)
    a.lab("L_attn")
    attn2(a)
    a("s_setprio 2")
    a(f"s_lshl_b32 s61, s{SBQ}, 8\ns_add_u32 s61, s61, {G_O}")
    arrive(a, C_OA, 4, 61, 32)
    w = SWAVE
    a(f"s_mov_b32 s{SKW}, s{w}\ns_setprio {OPT.get('priow', 2)}")
    oth = a.newlab("ww"); go = a.newlab("wg")
    a(f"s_cmp_lg_u32 s{w}, 0\ns_cbranch_scc1 {oth}\ns_mov_b32 s51, {G_W+128}\nv_mov_b32 v2, 0")
    gpoll(a, 2, SWS, "s51", 1, 1)
    lds_set(a, C_W2)
    a(f"s_branch {go}")
    a.lab(oth)
    lds_wait(a, C_W2, 1)
    a.lab(go)
    ast(a, 6)
    wo_bloads(a, SDT3, SKW, LD)
    wo2(a)
    stamp(a, 6)
    fin_resid_loads(a, SDT3, SST, w)
    lds_wait(a, C_OA, 4)
    a(f"s_lshl_b32 s66, s{w}, 14")
    fin_write(a, 66, 5)
    lds_sync(a, C_WR, 4)
    for i in range(1, 4):
        a(f"s_xor_b32 s65, s{w}, {i}\ns_lshl_b32 s65, s65, 14\ns_add_u32 s65, s65, {(i-1)*5120}\nv_add_u32 v10, s65, v{MDIR}")
        for db in range(5): a(f"ds_read_b128 {v(16+20*i+4*db,4)}, v10 offset:{db*1024}")
    for i in range(1, 4):
        a(f"s_waitcnt lgkmcnt({15-5*i})")
        for q in range(10): a(f"v_pk_add_f32 {v(16+2*q,2)}, {v(16+2*q,2)}, {v(16+20*i+2*q,2)}")
    lds_sync(a, C_WR, 8)
    a(f"v_lshrrev_b32 v2, 4, v{VL}\nv_mul_u32_u24 v2, 1280, v2\nv_and_b32 v3, 15, v{VL}\nv_lshl_add_u32 v2, v3, 2, v2\nv_add_u32 v2, s66, v2\nv_lshlrev_b32 v3, 5, v{VL}\nv_add_u32 v3, s66, v3")
    for db in range(5):
        for r in range(4): a(f"ds_write_b32 v2, v{16+4*db+r} offset:{r*320+db*64}")
    a("s_waitcnt lgkmcnt(0)")
    for k in range(3): a(f"ds_read_b128 {v(40+8*k,4)}, v3 offset:{k*2048}\nds_read_b128 {v(44+8*k,4)}, v3 offset:{k*2048+16}")
    a(f"s_mul_i32 s65, s{w}, 5120\ns_add_u32 s65, s65, {M1BASE}")
    for k in range(3):
        a(f"v_add_u32 v2, {64*k}, v{VL}\nv_min_u32 v2, 159, v2\nv_mul_u32_u24 v3, 205, v2\nv_bfe_u32 v4, v3, 13, 1\nv_xor_b32 v2, v2, v4\nv_lshlrev_b32 v2, 4, v2\nv_add_u32 v{210+2*k}, s65, v2\nv_add_u32 v{211+2*k}, 2560, v{210+2*k}")
    a("s_waitcnt vmcnt(0)")
    for k in range(3):
        a(f"v_lshlrev_b32 v{204+k}, 16, v{204+k}")
        for q in range(4): a(f"v_lshlrev_b32 v{64+8*k+2*q}, 16, v{192+4*k+q}\nv_and_b32 v{65+8*k+2*q}, 0xffff0000, v{192+4*k+q}")
        for q in range(8): a(f"v_add_f32 v{64+8*k+q}, v{64+8*k+q}, v{204+k}")
    a("s_waitcnt lgkmcnt(0)")
    for q in range(12): a(f"v_pk_add_f32 {v(40+2*q,2)}, {v(40+2*q,2)}, {v(64+2*q,2)}")
    stamp(a, 1)
    a("s_setprio 3\ns_barrier")
    stamp(a, 2, OPT.get("mst") == 6); l10(a, 0, 11)
    for k in range(3):
        for src in range(4): a(f"ds_read_b128 {v(96+32*k+8*src,4)}, v{210+2*k} offset:{src*M1STR}\nds_read_b128 {v(100+32*k+8*src,4)}, v{211+2*k} offset:{src*M1STR}")
        if k >= 1:
            a("s_waitcnt lgkmcnt(8)")
            for src in range(4):
                for q in range(4): a(f"v_pk_add_f32 {v(40+8*(k-1)+2*q,2)}, {v(40+8*(k-1)+2*q,2)}, {v(96+32*(k-1)+8*src+2*q,2)}")
            for q in range(4): a(f"v_cvt_pk_bf16_f32 v{16+4*(k-1)+q}, v{40+8*(k-1)+2*q}, v{41+8*(k-1)+2*q}")
            a(f"buffer_store_dwordx4 {v(16+4*(k-1),4)}, v{207+k-1}, {s(SOUT,4)}, s74 offen {OPT.get('outf', 1) and 'sc1' or ''}")
        if k == 1: pass
    a("s_waitcnt lgkmcnt(0)")
    for src in range(4):
        for q in range(4): a(f"v_pk_add_f32 {v(56+2*q,2)}, {v(56+2*q,2)}, {v(160+8*src+2*q,2)}")
    for q in range(4): a(f"v_cvt_pk_bf16_f32 v{24+q}, v{56+2*q}, v{57+2*q}")
    l10(a, 1, 11)
    a(f"buffer_store_dwordx4 v[24:27], v209, {s(SOUT,4)}, s74 offen {OPT.get('outf', 1) and 'sc1' or ''}")
    l10(a, 2, 11)
    if blocks.STAMP: a("s_waitcnt vmcnt(0)")
    l10(a, 3, 11)
    stamp_dump(a, 0)
    a("s_endpgm")
    a.lab("L_spare")
    ids_late(a)
    a(f"s_mov_b32 s{SHAS1}, 0\ns_sub_u32 s{SKW}, s{SWAVE}, 4\ns_cmp_ge_u32 s{SWAVE}, 4\ns_cbranch_scc0 L_sp_ln")
    a(f"s_sub_u32 s61, s2, 240\ns_lshl_b32 s61, s61, 2\ns_add_u32 s61, s61, s{SKW}")
    a("s_barrier\ns_barrier")
    if OPT.get("spw", 0): lds_wait(a, C_PUB, 1)
    if OPT.get("pf", 1): (prefetch(a, 61, 64, 8*56, NB1) if OPT.get("swp", 1) else prefetch(a, 61, 64, 0, 8*56))
    stamp(a, 1)
    a("s_waitcnt vmcnt(0)\ns_branch L_idle")
    a.lab("L_sp_ln")
    ln_issue(a)
    a("s_waitcnt vmcnt(0)")
    init_counters(a)
    rows_ln(a, 53, 54, ST)
    rows_to_lds(a, SWAVE, L_LN, 54)
    a("s_waitcnt lgkmcnt(0)\ns_barrier")
    rows_tr_store(a, SWAVE, L_LN, 55, 327680, 54, ST)
    a(f"s_waitcnt vmcnt(0)\ns_barrier\ns_cmp_lg_u32 s{SWAVE}, 0\ns_cbranch_scc1 L_sp_na")
    c1_arrive(a)
    lds_set(a, C_PUB)
    c1_poll(a, 8)
    a(f"v_mov_b32 v2, {C_QA}\nv_mov_b32 v3, 4\nds_write_b32 v2, v3")
    a.lab("L_sp_na")
    stamp(a, 1)
    a("s_branch L_attn")
    a.lab("L_end"); a("s_endpgm")
    a('.section .rodata,"a"')
    return a.text() + kd(NAME)
if __name__ == "__main__":
    blocks.STAMP = "stamp" in sys.argv
    for x in sys.argv[2:]:
        if "=" in x: k, val = x.split("="); blocks.OPT[k] = int(val)
    t = gen()
    print("hazards:", hazard_check(t))
    open(sys.argv[1], "w").write(open("hdr.txt").read() + t)
    import subprocess
    r = subprocess.run(["clang", "-x", "assembler", "-target", "amdgcn-amd-amdhsa", "-mcpu=gfx950", "-c", sys.argv[1], "-o", "x.o"], capture_output=True, text=True)
    if r.returncode: print(r.stderr[:1500]); sys.exit(1)
```

```python
import sys
import blocks
from blocks import *
NAME = "parallel_sum__sliding_block__mixer_token_mlp__prompt_kernel"
LDS = 163840
L_LN = 131072
L_ST = 147456
L_CSP = L_ST + 1536
OFF_CSP = 0xB000
L_RS = LDS - 352
L_KN = LDS - 272
L_FULL = LDS - 256
L_FREE = L_FULL + 64
C_PUB, C_C1, C_CS = L_FULL + 128, L_FULL + 132, L_FULL + 136
L_CNT = LDS - 64
C_QA, C_AGO, C_AK, C_OA, C_MP, C_GA, C_W1, C_W2, C_GGO, C_OGO, C_AV, C_WR = [L_CNT + 4*i for i in range(12)]
M1BASE, M1STR = 65536, 20480
G_Q, G_O, G_G, G_W = OFF_FLAG, OFF_FLAG + 16*256, OFF_FLAG + 24*256, OFF_FLAG + 32*256
NCTR = 33
OFF_O1, OFF_O2 = OFF_O, OFF_O + 0x200000
ST, LD = "sc1", "sc1"
SM, SN, SROLE, SDT1, SFT, SHAS1, SDT3, SST, SHD, SBQ, SKW = 76, 77, 78, 79, 80, 81, 82, 83, 48, 49, 75

def garrive(a, srd, soff, target, doneoff, L, va=3):
    a(f"v_mov_b32 v{va}, 1\nbuffer_atomic_add v{va}, off, {s(srd,4)}, s{soff} sc0 sc1\ns_waitcnt vmcnt(0)\nv_readfirstlane_b32 s60, v{va}\ns_cmp_lg_u32 s60, {target-1}\ns_cbranch_scc1 {L}")
    a(f"v_mov_b32 v{va}, 1\nbuffer_store_dword v{va}, off, {s(srd,4)}, s{doneoff[0]} offset:{doneoff[1]} sc1")
def arrive(a, lcnt, n, goff_sgpr, target):
    L = a.newlab("arr")
    a(f"s_waitcnt vmcnt(0)\nv_mov_b32 v2, {lcnt}\nv_mov_b32 v3, 1\ns_mov_b64 exec, 1\nds_add_rtn_u32 v14, v2, v3\ns_waitcnt lgkmcnt(0)\nv_readfirstlane_b32 s60, v14\ns_cmp_lg_u32 s60, {n-1}\ns_cbranch_scc1 {L}")
    garrive(a, SWS, goff_sgpr, target, (goff_sgpr, 128), L)
    a.lab(L)
    a("s_mov_b64 exec, -1")
def lds_wait(a, addr, n, vreg=2, ls=None):
    L = a.newlab("lw")
    if addr is not None: a(f"v_mov_b32 v2, {addr}")
    a("s_mov_b32 s47, 0x80000")
    a.lab(L)
    a(f"ds_read_b32 v3, v{vreg}\ns_sub_u32 s47, s47, 1\ns_cbranch_scc1 {L}x\ns_waitcnt lgkmcnt(0)\nv_readfirstlane_b32 s60, v3\ns_cmp_ge_u32 s60, {n}\ns_cbranch_scc1 {L}x\ns_sleep {OPT.get('ls', 3) if ls is None else ls}\ns_branch {L}")
    a.lab(L + "x")
def lds_set(a, addr):
    a(f"v_mov_b32 v2, {addr}\nv_mov_b32 v3, 1\nds_write_b32 v2, v3")
def gpoll(a, vaddr, srd, soff, target, nl, vd=3, slp=None, tgt_reg=False):
    L = a.newlab("gp")
    if tgt_reg: target = hex(target)
    a(f"s_mov_b64 exec, {(1<<nl)-1}\ns_mov_b32 s47, 0x8000")
    a.lab(L)
    a(f"buffer_load_dword v{vd}, v{vaddr}, {s(srd,4)}, {soff} offen sc1\ns_sub_u32 s47, s47, 1\ns_cbranch_scc1 {L}x\ns_waitcnt vmcnt(0)\nv_cmp_ne_u32 vcc, {target}, v{vd}\ns_cbranch_vccz {L}x\ns_sleep {slp or OPT.get('slp', 2)}\ns_branch {L}")
    a.lab(L + "x")
    a("s_mov_b64 exec, -1")
def c1_poll(a, slp=None):
    a(f"v_lshlrev_b32 v2, 2, v{VL}\nv_add_u32 v2, 128, v2")
    gpoll(a, 2, SDBG, 0, 1, 2, slp=slp)

def l10(a, i, m=10):
    if OPT.get("ls9") == m: lstamp(a, i)
def est(a, i):
    if OPT.get("mst") == 3: stamp(a, i, True)
def ast(a, i, cond=None, m=5):
    if OPT.get("mst") != m: return
    if cond is None: stamp(a, i, True); return
    LL = a.newlab("as"); a(f"s_cmp_eq_u32 s59, {cond}\ns_cbranch_scc0 {LL}"); stamp(a, i, True); a.lab(LL)
def fst(a, i):
    if OPT.get("mst") == 4: stamp(a, i, True)
def ids(a):
    x, j = SXCD, SJ
    a(f"s_and_b32 s50, s{x}, 1\ns_mul_i32 s51, s50, 30\ns_add_u32 s51, s51, s{j}\ns_lshr_b32 s{SN}, s51, 2\ns_and_b32 s51, s51, 3\ns_lshr_b32 s52, s{x}, 1\ns_lshl_b32 s{SM}, s52, 2\ns_add_u32 s{SM}, s{SM}, s51")
def ids_late(a):
    x, j = SXCD, SJ
    a(f"s_and_b32 s56, s{x}, 1\ns_lshl_b32 s56, s56, 2\ns_lshr_b32 s58, s{x}, 1")
    a(f"s_mul_i32 s57, s58, 27\ns_add_u32 s57, s57, s{j}\ns_lshr_b32 s{SFT}, s57, 2\ns_and_b32 s57, s57, 3\ns_add_u32 s{SDT1}, s56, s57")
    a(f"s_and_b32 s57, s{j}, 3\ns_add_u32 s{SDT3}, s56, s57\ns_lshl_b32 s58, s58, 3\ns_lshr_b32 s57, s{j}, 2\ns_add_u32 s{SST}, s58, s57")

def ln_issue(a):
    a(f"s_lshr_b32 s50, s{SXCD}, 1\ns_lshl_b32 s50, s50, 6\ns_and_b32 s51, s{SXCD}, 1\ns_lshl_b32 s51, s51, 5\ns_add_u32 s50, s50, s51\ns_add_u32 s50, s50, s{SJ}")
    a(f"s_lshr_b32 s51, s50, 2\ns_and_b32 s52, s50, 3\ns_lshl_b32 s53, s51, 5\ns_lshl_b32 s54, s52, 2\ns_add_u32 s53, s53, s54")
    a(f"s_lshr_b32 s54, s{SWAVE}, 1\ns_lshl_b32 s54, s54, 4\ns_add_u32 s53, s53, s54\ns_and_b32 s54, s{SWAVE}, 1\ns_lshl_b32 s54, s54, 1\ns_add_u32 s53, s53, s54")
    rows_load(a, SX, SWAVE, 53, 54)
    a(f"s_mul_i32 s55, s51, 5120\ns_lshl_b32 s52, s52, 8\ns_add_u32 s55, s55, s52\ns_add_u32 s55, s55, {OFF_H}")
def init_counters(a):
    L = a.newlab("ic")
    a(f"s_cmp_lg_u32 s{SWAVE}, 0\ns_cbranch_scc1 {L}")
    a(f"v_lshlrev_b32 v6, 2, v{VL}\nv_add_u32 v6, {L_FULL}, v6\nv_mov_b32 v7, 0\nds_write_b32 v6, v7")
    a.lab(L)
def c1_arrive(a):
    L = a.newlab("c1a")
    a(f"s_and_b32 s57, s2, 1\ns_lshl_b32 s56, s57, 6\ns_lshl_b32 s57, s57, 2\ns_mov_b64 exec, 1")
    garrive(a, SDBG, 56, 128, (57, 128), L, va=15)
    a.lab(L)
    a("s_mov_b64 exec, -1")

def loader(a):
    st = 48
    lw, sxo, swo, sm0, t, ko = st, st+1, st+2, st+3, st+4, st+5
    a(f"s_sub_u32 s{lw}, s{SWAVE}, 4")
    a(f"v_lshrrev_b32 v2, 3, v{VL}\nv_mul_u32_u24 v2, 1280, v2\nv_and_b32 v3, 7, v{VL}\nv_lshrrev_b32 v4, 4, v{VL}\nv_xor_b32 v3, v3, v4\nv_lshl_add_u32 v210, v3, 4, v2\nv_xor_b32 v211, 64, v210")
    a(f"v_mul_u32_u24 v2, 3840, v4\nv_bfe_u32 v3, v{VL}, 2, 2\nv_xor_b32 v3, v3, v4\nv_lshl_add_u32 v2, v3, 6, v2\nv_and_b32 v3, 3, v{VL}\nv_lshl_add_u32 v212, v3, 4, v2")
    a(f"s_lshl_b32 s{sxo}, s{SM}, 7\ns_lshl_b32 s{t}, s{lw}, 5\ns_add_u32 s{sxo}, s{sxo}, s{t}\ns_mul_i32 s{sxo}, s{sxo}, 1280")
    a(f"s_mul_i32 s{swo}, s{lw}, {16*3840}\ns_lshl_b32 s{t}, s{SN}, 8\ns_add_u32 s{swo}, s{swo}, s{t}")
    a(f"s_lshl_b32 s{sm0}, s{lw}, 12")
    rot = 2
    G10 = OPT.get("g10", 1)
    if G10: a(f"s_mul_i32 s{ko}, s{SN}, 3\ns_add_u32 s{ko}, s{ko}, s{SM}\ns_mul_i32 s{t}, s{ko}, 205\ns_lshr_b32 s{t}, s{t}, 11\ns_mul_i32 s{t}, s{t}, 10\ns_sub_u32 s{ko}, s{ko}, s{t}")
    else: a(f"s_add_u32 s{ko}, s{SM}, s{SN}\ns_mul_i32 s{t}, s{ko}, 52\ns_lshr_b32 s{t}, s{t}, 8\ns_mul_i32 s{t}, s{t}, 5\ns_sub_u32 s{ko}, s{ko}, s{t}\ns_lshl_b32 s{ko}, s{ko}, 1")
    if OPT.get("rot0"): a(f"s_mov_b32 s{ko}, 0")
    if OPT.get("rotx"): a(f"s_lshr_b32 s{ko}, s{SXCD}, 1\ns_mul_i32 s{ko}, s{ko}, 5\ns_lshr_b32 s{ko}, s{ko}, 1")
    a(f"s_lshl_b32 s{t}, s{ko}, 7\ns_add_u32 s{sxo}, s{sxo}, s{t}\ns_mul_i32 s{t}, s{ko}, 245760\ns_add_u32 s{swo}, s{swo}, s{t}")
    t2 = 62
    a("s_movk_i32 s65, 128\ns_mov_b32 s66, 245760")
    def stage(extra="", mid=None):
        a(f"s_mov_b32 m0, s{sm0}\ns_add_u32 s{t}, s{sxo}, 9216")
        a(f"buffer_load_dwordx4 v210, {s(SX,4)}, s{sxo} offen lds")
        a(f"buffer_load_dwordx4 v211, {s(SX,4)}, s{t} offen offset:1024 lds\ns_add_u32 s{t}, s{t}, 9216\ns_add_u32 s{t2}, s{t}, 9216")
        a(f"buffer_load_dwordx4 v210, {s(SX,4)}, s{t} offen offset:2048 lds\nbuffer_load_dwordx4 v211, {s(SX,4)}, s{t2} offen offset:3072 lds")
        if mid: mid()
        a(f"s_add_u32 m0, s{sm0}, 16384\ns_add_u32 s{t}, s{swo}, 14336")
        a(f"buffer_load_dwordx4 v212, {s(SWQ,4)}, s{swo} offen lds\nbuffer_load_dwordx4 v212, {s(SWQ,4)}, s{t} offen offset:1024 lds")
        a(f"s_add_u32 s{t}, s{t}, 14336\ns_add_u32 s{t2}, s{t}, 14336")
        a(f"s_add_u32 s{sm0}, s{sm0}, 0x8000\ns_and_b32 s{sm0}, s{sm0}, 0x1ffff\ns_add_u32 s{ko}, s{ko}, 1\ns_cmp_eq_u32 s{ko}, 10\ns_cselect_b32 s63, {128-1280}, s65\ns_cselect_b32 s64, {245760-2457600}, s66\ns_add_u32 s{sxo}, s{sxo}, s63\ns_add_u32 s{swo}, s{swo}, s64")
        a(f"buffer_load_dwordx4 v212, {s(SWQ,4)}, s{t} offen offset:2048 lds")
        if extra: a(extra)
        a(f"buffer_load_dwordx4 v212, {s(SWQ,4)}, s{t2} offen offset:3072 lds")
    if OPT.get("lnfirst", 1): a("s_barrier")
    a("s_setprio 2"); stage(); a(f"s_setprio {OPT.get('priol', 0)}"); stage()
    stamp(a, 1)
    ids_late(a)
    a(f"s_cmp_lt_u32 s{SJ}, 27\ns_cselect_b32 s{SHAS1}, 1, 0\ns_mov_b32 s{SKW}, s{lw}")
    a(f"v_mov_b32 v7, {OOB}")
    trs_prep(a, lw, L_LN, 327680, 54, 214)
    a(f"s_lshr_b32 s55, s{SXCD}, 1\ns_lshl_b32 s55, s55, 6\ns_and_b32 s56, s{SXCD}, 1\ns_lshl_b32 s56, s56, 5\ns_add_u32 s55, s55, s56\ns_add_u32 s55, s55, s{SJ}")
    a(f"s_lshr_b32 s56, s55, 2\ns_and_b32 s55, s55, 3\ns_lshl_b32 s67, s56, 7\ns_lshl_b32 s57, s55, 4\ns_add_u32 s67, s67, s57")
    a(f"s_mul_i32 s68, s56, 5120\ns_lshl_b32 s55, s55, 8\ns_add_u32 s68, s68, s55\ns_add_u32 s68, s68, {OFF_H}")
    a(f"v_and_b32 v2, 15, v{VL}\nv_lshlrev_b32 v218, 2, v2\nv_add_u32 v218, {L_RS}, v218\nv_and_b32 v3, 3, v2\nv_lshlrev_b32 v3, 2, v3\nv_bfe_u32 v4, v2, 2, 1\nv_lshl_add_u32 v3, v4, 6, v3\nv_lshrrev_b32 v4, 3, v2\nv_lshl_add_u32 v219, v4, 13, v3")
    a(f"v_cmp_gt_u32 vcc, 16, v{VL}\ns_cmp_eq_u32 s{lw}, 3\ns_cselect_b64 s[56:57], -1, 0\ns_and_b64 vcc, vcc, s[56:57]\nv_cndmask_b32 v219, v7, v219, vcc")
    zz = a.newlab("zz")
    a(f"s_cmp_lg_u32 s{lw}, 0\ns_cbranch_scc1 {zz}\ns_cmp_ge_u32 s2, {NCTR}\ns_cbranch_scc1 {zz}")
    a(f"s_lshl_b32 s67, s2, 8\ns_add_u32 s67, s67, {OFF_FLAG}\nv_mov_b32 v218, {L_FULL+60}\nv_lshlrev_b32 v219, 7, v{VL}\nv_cmp_gt_u32 vcc, 2, v{VL}\ns_nop 1\nv_cndmask_b32 v219, v7, v219, vcc")
    a.lab(zz)
    a(f"v_mov_b32 v8, {L_FULL}\nv_mov_b32 v9, 1")
    a("s_barrier")
    def sig(off, st=None):
        a(f"s_mov_b64 exec, 1\nds_add_u32 v8, v9 offset:{off}\ns_mov_b64 exec, -1")
        if st is not None and OPT.get("mst") == 9 and not OPT.get("ls9"): lstamp(a, st)
    def freed(off):
        L = a.newlab("fr")
        a(f"s_waitcnt lgkmcnt(0)\nv_readfirstlane_b32 s60, v10\ns_cmp_ge_u32 s60, {0 if OPT.get('nofree') else 4}\ns_cbranch_scc1 {L}x\ns_mov_b32 s47, 0x80000")
        a.lab(L)
        a(f"ds_read_b32 v10, v8 offset:{off}\ns_sub_u32 s47, s47, 1\ns_cbranch_scc1 {L}x\ns_waitcnt lgkmcnt(0)\nv_readfirstlane_b32 s60, v10\ns_cmp_ge_u32 s60, 4\ns_cbranch_scc1 {L}x\ns_sleep {OPT.get('ls', 3)}\ns_branch {L}")
        a.lab(L + "x")
    def land(off, n=12):
        def m():
            a(f"s_waitcnt vmcnt({n})"); sig(off)
        return m
    a("ds_read_b32 v28, v218")
    for k in range(3):
        a(f"ds_read_b64_tr_b16 {v(32+4*k,2)}, v214 offset:{k*512}\nds_read_b64_tr_b16 {v(34+4*k,2)}, v214 offset:{k*512+5376}")
    a(f"s_setprio 2\ns_waitcnt lgkmcnt(6)\nbuffer_store_dword v28, v219, {s(SWS,4)}, s67 offen sc1")
    for k in range(3): a(f"s_waitcnt lgkmcnt({4-2*k})\nbuffer_store_dwordx4 {v(32+4*k,4)}, v{215+k}, {s(SWS,4)}, s68 offen sc1")
    def bar(n, st=None):
        a(f"s_waitcnt vmcnt({n})\ns_barrier")
        if st is not None and OPT.get("mst") == 9 and not OPT.get("ls9"): lstamp(a, st)
    a(f"s_setprio {OPT.get('priol', 0)}")
    B1 = OPT.get("b1", 3)
    a(f"s_mul_i32 s70, s{SXCD}, 30\ns_add_u32 s70, s70, s{SJ}\ns_lshl_b32 s70, s70, 2\ns_add_u32 s70, s70, s{lw}")
    a(f"s_mul_i32 s71, s70, 4370\ns_lshr_b32 s71, s71, 20\ns_mul_i32 s72, s71, 240\ns_sub_u32 s72, s70, s72\ns_mul_i32 s71, s71, {16*110592}\ns_lshl_b32 s70, s72, 12\ns_add_u32 s70, s70, s71\ns_add_u32 s70, s70, {0 if OPT.get('swp', 1) else 16*110592 - 240*4096}")
    a(f"s_mul_i32 s71, s72, 205\ns_lshr_b32 s71, s71, 14\nv_lshlrev_b32 v12, 7, v{VL}")
    def burst(): a(f"s_mov_b32 exec_hi, 0\nbuffer_load_dword v255, v12, {s(SW1,4)}, s70 offen\ns_mov_b64 exec, -1")
    bar(12, 0); stage()
    bar(12, 1); stage(); stage()
    bar(16, 2)
    na = a.newlab("na"); nb_ = a.newlab("nb")
    a(f"s_cmp_lg_u32 s{lw}, 3\ns_cbranch_scc1 {na}")
    a(f"s_and_b32 s57, s2, 1\ns_lshl_b32 s56, s57, 6\ns_lshl_b32 s57, s57, 2\ns_mov_b64 exec, 1\nv_mov_b32 v15, 1\ns_setprio 3\nbuffer_atomic_add v15, off, {s(SDBG,4)}, s56 sc0 sc1\ns_setprio {OPT.get('priol', 0)}\ns_mov_b64 exec, -1")
    a.lab(na)
    stage()
    bar(16); stage()
    a(f"s_cmp_lg_u32 s{lw}, 3\ns_cbranch_scc1 {nb_}\ns_waitcnt vmcnt(16)\nv_readfirstlane_b32 s60, v15\ns_cmp_lg_u32 s60, 127\ns_cbranch_scc1 {nb_}")
    a(f"s_mov_b64 exec, 1\nv_mov_b32 v15, 1\ns_setprio 3\nbuffer_store_dword v15, off, {s(SDBG,4)}, s57 offset:128 sc1\ns_setprio {OPT.get('priol', 0)}\ns_mov_b64 exec, -1")
    a.lab(nb_)
    a("s_mov_b32 s54, 0")
    L = a.newlab("ldl")
    a.lab(L)
    bar(16)
    if B1 == 3:
        nb2 = a.newlab("nb")
        a(f"s_cmp_lg_u32 s54, s71\ns_cbranch_scc1 {nb2}"); burst(); a.lab(nb2)
    stage("s_add_u32 s54, s54, 1\ns_cmp_lt_u32 s54, 3")
    a(f"s_cbranch_scc1 {L}")
    if B1 == 2: burst()
    est(a, 5)
    if OPT.get("mst") == 9 and not OPT.get("ls9"): lstamp(a, 3)
    ok = a.newlab("c1ok"); n0 = a.newlab("n0"); n1 = a.newlab("n1")
    bar(17 if B1 == 2 else 16, 4)
    if B1 == 4: burst()
    a(f"s_cmp_lg_u32 s{lw}, 0\ns_cbranch_scc1 {n0}\nv_lshlrev_b32 v2, 2, v{VL}\ns_mov_b64 exec, 3\nbuffer_load_dword v3, v2, {s(SDBG,4)}, 0 offen offset:128 sc1\ns_mov_b64 exec, -1\ns_waitcnt vmcnt({10 if B1 in (2, 4) else 9})\ns_barrier\ns_waitcnt vmcnt({2 if B1 in (2, 4) else 1})")
    sig(36)
    a(f"s_waitcnt vmcnt(0)\ns_mov_b64 exec, 3\nv_cmp_ne_u32 vcc, 1, v3\ns_mov_b64 exec, -1\ns_cbranch_vccz {n1}")
    c1_poll(a)
    a.lab(n1)
    lds_set(a, C_C1)
    a(f"s_branch {ok}")
    a.lab(n0)
    bar(9 if B1 in (2, 4) else 8); a(f"s_waitcnt vmcnt({1 if B1 in (2, 4) else 0})"); sig(36)
    lds_wait(a, C_C1, 1)
    a.lab(ok)
    est(a, 6)
    nst = a.newlab("nst")
    a(f"v_lshlrev_b32 v2, 4, v{VL}\ns_cmp_ge_u32 s{lw}, 2\ns_cbranch_scc1 {nst}")
    a(f"s_lshl_b32 s54, s{SM}, 9\ns_lshl_b32 s55, s{lw}, 13\ns_add_u32 s54, s54, s55")
    a(f"s_lshl_b32 s55, s{lw}, 9\ns_add_u32 m0, s55, {L_ST}\ns_mov_b32 exec_hi, 0\nbuffer_load_dwordx4 v2, {s(SWS,4)}, s54 offen sc1 lds\ns_mov_b64 exec, -1")
    a.lab(nst)
    a("s_waitcnt vmcnt(0)")
    sig(40, 5)
    if B1 == 1:
        a("ds_read_b32 v10, v8 offset:40"); freed(40); burst()
    est(a, 1)

def qkv_epi_lds(a, vori):
    a(f"s_lshl_b32 s50, s{SM}, 7\ns_lshl_b32 s51, s48, 6\ns_add_u32 s50, s50, s51")
    a(f"s_lshl_b32 s53, s{SN}, 7\ns_lshl_b32 s54, s49, 6\ns_add_u32 s53, s53, s54")
    a(f"s_lshl_b32 s51, s48, 8\ns_add_u32 s51, s51, {L_ST}\ns_lshl_b32 s54, s49, 8\ns_lshl_b32 s55, s48, 7\ns_add_u32 s54, s54, s55\ns_add_u32 s54, s54, {L_ST+1024}")
    a(f"v_and_b32 v14, 31, v{VL}\nv_lshrrev_b32 v15, 5, v{VL}\nv_lshlrev_b32 v4, 2, v14\nv_lshlrev_b32 v5, 4, v15")
    lds_wait(a, L_FULL+40, 4)
    if not vori:
        a("v_add_u32 v4, s51, v4\nv_add_u32 v5, s54, v5\nv_xor_b32 v8, 128, v5")
        for i in range(2): a(f"ds_read_b32 v{128+2*i}, v4 offset:{i*128}\nds_read_b32 v{132+2*i}, v4 offset:{512+i*128}")
        a("s_mov_b32 exec_lo, 1\ns_mov_b32 exec_hi, 1")
        for k in range(4): a(f"ds_write_b128 v5, {v(16+4*k,4)} offset:{k*32}")
        a("s_mov_b64 exec, -1")
        for k in range(16): a(f"v_mov_b32 v{136+k}, v{16+k}")
        lds_sync(a, C_CS, 4)
        for k in range(4): a(f"ds_read_b128 {v(152+4*k,4)}, v8 offset:{k*32}")
    else:
        a("v_add_u32 v4, s54, v4\nv_add_u32 v5, s51, v5\nv_xor_b32 v8, 128, v4")
        for k in range(8): a(f"ds_read_b128 {v(136+4*k,4)}, v5 offset:{k*32}\nds_read_b128 {v(168+4*k,4)}, v5 offset:{512+k*32}")
        a("ds_write_b32 v4, v16\nv_mov_b32 v128, v16")
        lds_sync(a, C_CS, 4)
        a("ds_read_b32 v130, v8")
    a("v_mov_b32 v2, v14\nv_mov_b32 v3, v15\ns_waitcnt lgkmcnt(0)")

def consumer_loop(a, vori):
    L = a.newlab("qloop"); last = a.newlab("qlast"); s9 = a.newlab("qs9"); s9b = a.newlab("qs9b")
    def csum(buf):
        if OPT.get("nocs"): return
        Wf = v(QF+16*buf+8, 4)
        a(f"v_mfma_f32_32x32x16_bf16 v[16:31], {'v[200:203], '+Wf if vori else Wf+', v[200:203]'}, v[16:31]")
    for w in ("x0", "w0", "w1", "x1"): qkv_rd(a, 0, 0, 0, w)
    a("s_mov_b32 s50, 0")
    a(".p2align 3")
    a.lab(L)
    for slot in range(2):
        for ks in range(4):
            buf = ks & 1; nb = buf ^ 1
            if ks < 3:
                a("s_waitcnt lgkmcnt(3)"); qkv_mf(a, buf, vori, 0, 0); qkv_rd(a, ks+1, nb, slot, "x0"); qkv_rd(a, ks+1, nb, slot, "w0")
                a("s_waitcnt lgkmcnt(4)"); qkv_mf(a, buf, vori, 0, 1); qkv_rd(a, ks+1, nb, slot, "w1")
                a("s_waitcnt lgkmcnt(5)"); qkv_mf(a, buf, vori, 1, 0); qkv_rd(a, ks+1, nb, slot, "x1")
                qkv_mf(a, buf, vori, 1, 1); csum(buf)
            else:
                a("s_waitcnt lgkmcnt(3)"); qkv_mf(a, buf, vori, 0, 0)
                a(f"s_cmp_eq_u32 s50, 4\ns_cbranch_scc1 {last if slot else s9}")
                if slot == 1:
                    for r in range(8, 14): a(f"v_xor_b32 v{r}, 0x10000, v{r}")
                a("s_waitcnt lgkmcnt(0)"); csum(buf); a("s_barrier")
                if slot == 0: a.lab(s9b)
                ns = slot ^ 1
                qkv_rd(a, 0, nb, ns, "x0"); qkv_rd(a, 0, nb, ns, "w0")
                qkv_mf(a, buf, vori, 0, 1); qkv_rd(a, 0, nb, ns, "w1")
                qkv_mf(a, buf, vori, 1, 0); qkv_rd(a, 0, nb, ns, "x1")
                if slot == 1: a("s_add_u32 s50, s50, 1")
                qkv_mf(a, buf, vori, 1, 1)
                if slot == 1 and OPT.get("mst") == 9 and not OPT.get("ls9"):
                    for c in range(1, 5):
                        LL = a.newlab("cs"); a(f"s_cmp_eq_u32 s50, {c}\ns_cbranch_scc0 {LL}"); lstamp(a, c); a.lab(LL)
    a(f"s_branch {L}")
    a.lab(s9)
    csum(1)
    lds_wait(a, L_FULL+36, 4)
    a(f"s_branch {s9b}")
    a.lab(last)
    a("s_waitcnt lgkmcnt(0)")
    csum(1); qkv_mf(a, 1, vori, 0, 1); qkv_mf(a, 1, vori, 1, 0); qkv_mf(a, 1, vori, 1, 1)

NB1, NB2 = 16*56, 14*64
def prefetch(a, sid, nw, n0, n1, thr=None):
    L = a.newlab("pf"); w2 = a.newlab("pfw"); nx = a.newlab("pfn"); done = a.newlab("pfd")
    a(f"v_lshlrev_b32 v4, 7, v{VL}\ns_add_u32 s50, s{sid}, {n0}")
    a.lab(L)
    a(f"s_cmp_ge_u32 s50, {n1}\ns_cbranch_scc1 {done}\ns_cmp_ge_u32 s50, {NB1}\ns_cbranch_scc1 {w2}")
    a(f"s_mul_i32 s51, s50, 1171\ns_lshr_b32 s51, s51, 16\ns_mul_i32 s52, s51, 56\ns_sub_u32 s52, s50, s52")
    a(f"s_mul_i32 s53, s52, 37\ns_lshr_b32 s53, s53, 9\ns_mul_i32 s54, s53, 14\ns_sub_u32 s52, s52, s54")
    a(f"s_lshl_b32 s53, s53, 4\ns_add_u32 s51, s51, s53\ns_mul_i32 s51, s51, 110592\ns_lshl_b32 s52, s52, 13\ns_add_u32 s51, s51, s52")
    a(f"buffer_load_dword v255, v4, {s(SW1,4)}, s51 offen\ns_branch {nx}")
    a.lab(w2)
    a(f"s_sub_u32 s51, s50, {NB1}\ns_lshr_b32 s52, s51, 6\ns_bfe_u32 s53, s51, 0x20004\ns_and_b32 s51, s51, 15")
    a(f"s_mul_i32 s54, s53, 14\ns_cmp_eq_u32 s53, 3\ns_cselect_b32 s54, 41, s54\ns_add_u32 s52, s52, s54\ns_lshl_b32 s52, s52, 4\ns_add_u32 s51, s51, s52\ns_lshl_b32 s51, s51, 13")
    a(f"buffer_load_dword v255, v4, {s(SW2,4)}, s51 offen")
    a.lab(nx)
    if thr is not None: a(f"s_waitcnt vmcnt({thr})")
    a(f"s_add_u32 s50, s50, {nw}\ns_branch {L}")
    a.lab(done)

def wof(a, mid):
    a(f"s_mul_i32 s61, s{SXCD}, 5\ns_add_u32 s61, s61, s{SJ}\ns_sub_u32 s61, s61, 27\ns_lshl_b32 s61, s61, 1")
    a(f"v_lshrrev_b32 v2, 5, v{VL}\nv_and_b32 v3, 31, v{VL}\nv_mul_u32_u24 v6, 1280, v2\nv_lshl_add_u32 v7, v3, 3, v6\nv_lshl_add_u32 v6, v3, 4, v6")
    for g in range(2):
        a(f"s_add_u32 s50, s61, {g}\ns_lshr_b32 s51, s50, 2\ns_and_b32 s52, s50, 3\ns_mul_i32 s53, s51, 52\ns_lshr_b32 s53, s53, 8\ns_mul_i32 s54, s53, 5\ns_sub_u32 s54, s51, s54")
        a(f"s_lshl_b32 s56, s53, 4\ns_lshl_b32 s57, s54, 2\ns_add_u32 s56, s56, s57\ns_add_u32 s56, s56, s52")
        a(f"s_lshr_b32 s57, s56, 1\ns_mul_i32 s57, s57, 20\ns_and_b32 s56, s56, 1\ns_lshl_b32 s56, s56, 2\ns_add_u32 s56, s56, s57")
        a(f"s_lshl_b32 s57, s53, 3\ns_lshl_b32 s58, s52, 1\ns_add_u32 s57, s57, s58\ns_mul_i32 s57, s57, 20\ns_add_u32 s57, s57, 16")
        a(f"s_cmp_eq_u32 s54, 4\ns_cselect_b32 s56, s57, s56\ns_cselect_b32 s57, 20, 8\ns_cmp_ge_u32 s{SKW}, 2\ns_cselect_b32 s57, s57, 0\ns_add_u32 s56, s56, s57")
        a(f"s_and_b32 s57, s{SKW}, 1\ns_lshl_b32 s57, s57, 1\ns_add_u32 s53, s56, s57\ns_mul_i32 s54, s53, 1280")
        b = 32 + 12*g
        a(f"buffer_load_dwordx4 {v(b,4)}, v6, {s(SWO,4)}, s54 offen\nbuffer_load_dwordx4 {v(b+4,4)}, v6, {s(SWO,4)}, s54 offen offset:512\nbuffer_load_dwordx2 {v(b+8,2)}, v7, {s(SWO,4)}, s54 offen offset:1024")
        a(f"s_mul_i32 s55, s51, 5120\ns_lshl_b32 s52, s52, 8\ns_add_u32 s55, s55, s52\ns_add_u32 s{62+g}, s55, {OFF_WOF}")
    mid()
    trs_prep(a, SKW, M1BASE, 102400, 54, 214)
    a(f"v_lshrrev_b32 v2, 5, v{VL}\nv_and_b32 v3, 31, v{VL}")
    a(f"s_mul_i32 s54, s{SKW}, 2688\ns_add_u32 s54, s54, {M1BASE}\nv_mul_u32_u24 v4, 1344, v2\nv_add_u32 v4, s54, v4\nv_lshl_add_u32 v5, v3, 3, v4\nv_lshl_add_u32 v4, v3, 4, v4\ns_waitcnt vmcnt(0)")
    for g in range(2):
        b = 32 + 12*g
        a(f"ds_write_b128 v4, {v(b,4)} offset:{g*16384}\nds_write_b128 v4, {v(b+4,4)} offset:{g*16384+512}\nds_write_b64 v5, {v(b+8,2)} offset:{g*16384+1024}")
    lds_sync(a, C_MP, 4)
    trs_go(a, SKW, 62, 214)
    a("s_waitcnt lgkmcnt(0)\nv_add_u32 v214, 16384, v214\ns_nop 0")
    trs_go(a, SKW, 63, 214, 32)
    a(f"s_mov_b32 s61, {G_W}")
    arrive(a, C_W1, 4, 61, 40)

def attn_setup(a):
    pass
def attn2(a):
    ws = s(SWS, 4); w = SWAVE; shd, sb = SHD, SBQ
    KB, VB = 0, 20480
    attn_ids(a, shd, sb)
    a(f"s_lshl_b32 s50, s{sb}, 3\ns_sub_u32 s51, s50, 8\ns_cmp_eq_u32 s{sb}, 0\ns_cselect_b32 s52, 0, s51\ns_cmp_ge_u32 s{w}, 2\ns_cselect_b32 s51, s51, s52\ns_lshl_b32 s52, s{w}, 2\ns_add_u32 s51, s51, s52\ns_mul_i32 s51, s51, 40960")
    attn_masks(a)
    a(f"v_and_b32 v2, 31, v{VL}\nv_lshrrev_b32 v3, 5, v{VL}\nv_lshlrev_b32 v4, 3, v2\nv_lshl_add_u32 v5, v3, 9, v4\nv_mov_b32 v6, {OOB}\nv_cmp_eq_u32 vcc, 0, v3\ns_nop 1\nv_cndmask_b32 v6, v6, v4, vcc")
    a(f"s_add_u32 s52, s50, s{w}\ns_mul_i32 s53, s52, 40960\ns_mul_i32 s54, s{shd}, 1280\ns_add_u32 s53, s53, s54\ns_add_u32 s62, s53, {OFF_Q}\ns_add_u32 s63, s62, {4*40960}")
    a(f"s_lshl_b32 s56, s52, 15\ns_lshl_b32 s53, s{shd}, 10\ns_add_u32 s56, s56, s53\ns_add_u32 s56, s56, {OFF_O1}")
    a(f"s_lshl_b32 s61, s52, 13\ns_lshl_b32 s53, s{shd}, 8\ns_add_u32 s61, s61, s53\ns_add_u32 s61, s61, {OFF_O2}")
    a(f"s_add_u32 s64, s54, s51\ns_add_u32 s64, s64, {OFF_K}\ns_mov_b32 s55, 39680")
    for i in range(5):
        a(f"v_add_u32 v{16+i}, {64*i}, v{VL}\nv_mul_u32_u24 v{16+i}, 205, v{16+i}\nv_lshrrev_b32 v{16+i}, 14, v{16+i}\nv_mul_u32_u24 v{16+i}, s55, v{16+i}\nv_lshl_add_u32 v{16+i}, v{VL}, 4, v{16+i}")
    a("v_add_u32 v20, 4096, v20")
    a(f"v_mul_u32_u24 v7, 49, v{VL}\nv_lshrrev_b32 v7, 10, v7\nv_mul_u32_u24 v7, {10240-336}, v7\nv_lshl_add_u32 v7, v{VL}, 4, v7")
    a(f"s_mul_i32 s65, s{shd}, 320\ns_add_u32 s65, s65, s51\ns_add_u32 s65, s65, {OFF_V}\ns_mul_i32 s54, s{w}, 5376\ns_add_u32 s54, s54, {VB}\ns_mul_i32 s66, s{w}, 5120")
    a(f"s_mul_i32 s53, s{w}, 1280\ns_add_u32 s53, s53, {KB}\nv_add_u32 v8, s53, v5\nv_add_u32 v9, s53, v4")
    a(f"v_min_u32 v10, 20, v2\nv_cmp_lt_u32 vcc, 27, v2\nv_mul_u32_u24 v13, 336, v3\ns_nop 0\nv_cndmask_b32_e64 v10, v10, 4, vcc")
    a(f"s_mul_i32 s53, s{w}, 1344\ns_add_u32 s53, s53, {VB}\nv_lshl_add_u32 v10, v10, 4, v13\nv_add_u32 v10, s53, v10")
    a(f"v_lshlrev_b32 v11, 4, v2\nv_lshl_add_u32 v11, v3, 9, v11\nv_mov_b32 v12, v6")
    a(f"v_and_b32 v13, 15, v{VL}\nv_mul_u32_u24 v13, 336, v13\nv_add_u32 v13, s54, v13")
    a("v_mov_b32 v24, 0x3f803f80\nv_mov_b32 v25, v24\nv_mov_b32 v26, v24\nv_mov_b32 v27, v24")
    a(f"s_sub_u32 s57, 8, s{w}\ns_cmp_eq_u32 s{sb}, 0\ns_cselect_b32 s57, s57, 0\ns_cselect_b32 s58, 4, 0")
    stamp(a, 4)
    oth = a.newlab("aw"); go = a.newlab("ag")
    a(f"s_cmp_lg_u32 s{w}, 0\ns_cbranch_scc1 {oth}")
    lds_wait(a, C_QA, 4)
    a(f"s_lshl_b32 s53, s{sb}, 1\ns_sub_u32 s53, s53, 2\nv_add_u32 v2, s53, v{VL}\nv_max_i32 v2, 0, v2\nv_lshlrev_b32 v2, 8, v2\ns_mov_b32 s53, {G_Q+128}")
    gpoll(a, 2, SWS, "s53", 1, 4)
    lds_set(a, C_AGO)
    a(f"s_branch {go}")
    a.lab(oth)
    lds_wait(a, C_AGO, 1)
    a.lab(go)
    stamp(a, 5, OPT.get("mst") == 5)
    a(f"s_mov_b32 m0, s66")
    a(f"buffer_load_dwordx2 {v(AQ,2)}, v5, {ws}, s62 offen {LD}\nbuffer_load_dwordx2 {v(AQ+2,2)}, v5, {ws}, s62 offen offset:256 {LD}\nbuffer_load_dwordx2 {v(AQ+4,2)}, v6, {ws}, s62 offen offset:1024 {LD}")
    for i in range(5):
        if i == 4: a(f"s_add_u32 m0, s66, 4096\ns_nop 0")
        a(f"buffer_load_dwordx4 v{16+i}, {ws}, s64 offen offset:{(i&3)*1024} {LD} lds")
    for k in range(6):
        a(f"s_add_u32 m0, s54, {k*1008}")
        a("s_mov_b64 exec, 0x1fffff" if k == 5 else "s_nop 0")
        a(f"buffer_load_dwordx4 v7, {ws}, s65 offen {LD} lds\ns_add_u32 s65, s65, 30720")
    a("s_mov_b64 exec, -1")
    a(f"buffer_load_dwordx2 {v(AQ+6,2)}, v5, {ws}, s63 offen {LD}\nbuffer_load_dwordx2 {v(AQ+8,2)}, v5, {ws}, s63 offen offset:256 {LD}\nbuffer_load_dwordx2 {v(AQ+10,2)}, v6, {ws}, s63 offen offset:1024 {LD}")
    a(f"s_setprio {OPT.get('prioa', 0)}")
    FAST = OPT.get("fast", 1)
    if FAST:
        a(f"v_and_b32 v2, 31, v{VL}\nv_lshrrev_b32 v3, 5, v{VL}\nv_mul_u32_u24 v3, 1280, v3\nv_lshl_add_u32 v2, v2, 3, v3\nv_add_u32 v2, s66, v2\ns_waitcnt vmcnt(9)")
        for t in range(2):
            for u in range(5): a(f"ds_read_b64 {v(28+10*t+2*u,2)}, v2 offset:{t*2560+u*256}")
        for t in range(2):
            a(f"s_waitcnt lgkmcnt({5-5*t})\nv_mov_b32 v{14+t}, 0")
            for u in range(10): a(f"v_dot2_f32_bf16 v{14+t}, v{28+10*t+u}, v{28+10*t+u}, v{14+t}")
        a("s_nop 2\nv_max_f32 v14, v14, v15")
        for sh in (8, 4, 2, 1): a(f"s_nop 1\nv_max_f32_dpp v14, v14, v14 row_ror:{sh} row_mask:0xf bank_mask:0xf")
        for sw in ("v_permlane16_swap_b32", "v_permlane32_swap_b32"): a(f"v_mov_b32 v15, v14\ns_nop 1\n{sw} v14, v15\nv_max_f32 v14, v14, v15")
        a(f"s_lshl_b32 s53, s{w}, 2\ns_add_u32 s53, s53, {L_KN}\nv_mov_b32 v15, s53\nds_write_b32 v15, v14")
    else:
        a("s_waitcnt vmcnt(9)")
    lds_sync(a, C_AK, 4)
    if FAST:
        a(f"v_mov_b32 v2, {L_KN}\nds_read_b128 v[28:31], v2\ns_waitcnt lgkmcnt(0)\nv_max3_f32 v28, v28, v29, v30\nv_max_f32 v254, v28, v31")
    ast(a, 1)
    a("s_mov_b32 s59, 0")
    fin = a.newlab("afin")
    if OPT.get("noac"):
        lds_sync(a, C_AV, 4, vt=14); a(f"s_branch {fin}")
    L = a.newlab("atask"); vw = a.newlab("avw"); vwb = a.newlab("avb")
    inv = [a.newlab("inv") for _ in range(8)]; invb = [a.newlab("invb") for _ in range(8)]
    a(".p2align 3")
    a.lab(L)
    def kread(p):
        b = AK + 6*(p % 3)
        a(f"ds_read_b64 {v(b,2)}, v8 offset:{p*1280}\nds_read_b64 {v(b+2,2)}, v8 offset:{p*1280+256}\nds_read_b64 {v(b+4,2)}, v9 offset:{p*1280+1024}")
    def vread(p):
        b = AV + 8*(p % 2)
        for m in range(2): a(f"ds_read_b128 {v(b+4*m,4)}, v10 offset:{p*1344+m*672}")
    def mx(p):
        if p < 8:
            a(f"s_cmp_gt_u32 s57, {p}\ns_cbranch_scc1 {inv[p]}")
            a.lab(invb[p])
        for q in range(8):
            d = 2 + (q & 1)
            if p == 0 and q < 2: a(f"v_max_f32 v{d}, v{AS+2*q}, v{AS+2*q+1}")
            else: a(f"v_max3_f32 v{d}, v{d}, v{AS+16*p+2*q}, v{AS+16*p+2*q+1}")
    def m1(p):
        b = AK + 6*(p % 3); S = v(AS+16*p, 16)
        C = v(AME,16) if p == 0 else v(AMD,16) if p == 8 else "0"
        a(f"v_mfma_f32_32x32x16_bf16 {S}, {v(b,4)}, {v(AQ,4)}, {C}")
    def m2(p):
        b = AK + 6*(p % 3); S = v(AS+16*p, 16)
        a(f"v_mfma_f32_32x32x8bf16_1k {S}, {v(b+4,2)}, {v(AQ+4,2)}, {S}")
    def pv(p, S=None, ms=(0, 1)):
        b = AV + 8*(p % 2); S = AS+16*p if S is None else S
        for m in ms:
            C = "0" if (p == 0 and m == 0) else v(AO,16)
            a(f"v_mfma_f32_32x32x16_bf16 {v(AO,16)}, {v(b+4*m,4)}, {v(S+4*m,4)}, {C}")
    kread(0); kread(1); kread(2)
    join = a.newlab("ajoin")
    if FAST:
        slow = a.newlab("aslow"); fvw = a.newlab("afv"); fvb = a.newlab("afb")
        finv = [a.newlab("finv") for _ in range(8)]; finvb = [a.newlab("finvb") for _ in range(8)]
        a("v_mov_b32 v2, 0")
        for r in range(6): a(f"v_dot2_f32_bf16 v2, v{AQ+r}, v{AQ+r}, v2")
        a(f"s_nop 2\nv_mov_b32 v3, v2\ns_nop 1\nv_permlane32_swap_b32 v2, v3\nv_add_f32 v2, v2, v3\nv_mul_f32 v2, v2, v254\nv_cmp_nge_f32 vcc, {hexf(3600.0)}, v2\ns_cbranch_vccnz {slow}")
        def SB(p): return AS + 16*(p % 3)
        def fm1(p):
            b = AK + 6*(p % 3); C = v(AME,16) if p == 0 else v(AMD,16) if p == 8 else "0"
            a(f"v_mfma_f32_32x32x16_bf16 {v(SB(p),16)}, {v(b,4)}, {v(AQ,4)}, {C}")
        def fm2(p):
            b = AK + 6*(p % 3)
            a(f"v_mfma_f32_32x32x8bf16_1k {v(SB(p),16)}, {v(b+4,2)}, {v(AQ+4,2)}, {v(SB(p),16)}")
        a("s_waitcnt lgkmcnt(6)"); fm1(0); fm2(0)
        a(f"s_cmp_eq_u32 s59, 0\ns_cbranch_scc1 {fvw}")
        a.lab(fvb)
        vread(0); kread(3)
        a("s_waitcnt lgkmcnt(8)"); fm1(1); fm2(1)
        a("s_nop 7")
        ast(a, 2, 1, 7)
        for p in range(9):
            S = SB(p)
            if p < 8:
                a(f"s_cmp_gt_u32 s57, {p}\ns_cbranch_scc1 {finv[p]}")
                a.lab(finvb[p])
            ex = [f"v_exp_f32 v{S+q}, v{S+q}" for q in range(16)]
            for q in range(0, 4): a(ex[q])
            if p > 0: pv(p-1, SB(p-1), (0,))
            for q in range(4, 8): a(ex[q])
            if p > 0: pv(p-1, SB(p-1), (1,))
            if p + 1 < 9: vread(p+1)
            for q in range(8, 12): a(ex[q])
            if p + 2 < 9:
                a(f"s_waitcnt lgkmcnt({(5 if p + 3 < 9 else 2) + 2})"); fm1(p+2)
            for q in range(12, 16): a(ex[q])
            if p + 2 < 9: fm2(p+2)
            else: a("s_nop 0")
            if p + 4 < 9: kread(p+4)
            for q in range(8): a(f"v_cvt_pk_bf16_f32 v{S+q}, v{S+2*q}, v{S+2*q+1}")
            n = (2 if p + 1 < 9 else 0) + (3 if p + 3 < 9 else 0) + (3 if p + 4 < 9 else 0)
            a(f"s_waitcnt lgkmcnt({n})")
        ast(a, 3, 1, 7)
        a("s_nop 0"); pv(8, SB(8))
        a(f"s_branch {join}")
        for p in range(8):
            a.lab(finv[p])
            for r in range(16): a(f"v_mov_b32 v{SB(p)+r}, {NEGINF}")
            a(f"s_branch {finvb[p]}")
        a.lab(fvw)
        a("s_waitcnt vmcnt(0)\nv_mov_b32 v4, 0x3f803f80\nv_mov_b32 v5, v4\nv_mov_b32 v6, v4\nv_mov_b32 v7, v4\nds_write_b128 v13, v[4:7] offset:320")
        lds_sync(a, C_AV, 4, vt=14)
        a(f"s_branch {fvb}")
        a.lab(slow)
    a("s_waitcnt lgkmcnt(6)"); m1(0)
    for p in range(9):
        if p + 1 < 9:
            a(f"s_waitcnt lgkmcnt({3 if p + 2 < 9 else 0})"); m1(p+1)
        m2(p)
        if p + 3 < 9: kread(p+3)
        if p >= 2: mx(p-2)
    a(f"s_cmp_eq_u32 s59, 0\ns_cbranch_scc1 {vw}")
    a.lab(vwb)
    ast(a, 2, 0)
    vread(0)
    mx(7)
    a("s_nop 0")
    mx(8)
    a("v_max_f32 v2, v2, v3\nv_mov_b32 v3, v2\ns_nop 1\nv_permlane32_swap_b32 v2, v3\nv_max_f32 v2, v2, v3")
    for p in range(9):
        b = AS + 16*p
        for q in range(8): a(f"v_pk_add_f32 {v(b+2*q,2)}, {v(b+2*q,2)}, v[2:3] op_sel_hi:[1,0] neg_lo:[0,1] neg_hi:[0,1]")
        if p > 0:
            a("s_waitcnt lgkmcnt(0)"); pv(p-1)
        if p + 1 < 9 and p > 0: vread(p+1)
        if p == 0: vread(1)
        for q in range(16): a(f"v_exp_f32 v{b+q}, v{b+q}")
        a("s_nop 0")
        for q in range(8): a(f"v_cvt_pk_bf16_f32 v{b+q}, v{b+2*q}, v{b+2*q+1}")
    a("s_waitcnt lgkmcnt(0)\ns_nop 0"); pv(8)
    a.lab(join)
    for r in range(6): a(f"v_mov_b32 v{AQ+r}, v{AQ+6+r}")
    a(f"v_add_u32 v8, {4*1280}, v8\nv_add_u32 v9, {4*1280}, v9\nv_add_u32 v10, {4*1344}, v10\ns_sub_u32 s57, s57, s58\ns_nop 2")
    a(f"v_mov_b32 v2, v{AO+8}\nv_mov_b32 v3, v{AO+8}\ns_nop 1\nv_permlane32_swap_b32 v2, v3\nv_rcp_f32 v2, v3\ns_nop 0")
    for q in range(6): a(f"v_pk_mul_f32 {v(AO+2*q,2)}, {v(AO+2*q,2)}, v[2:3] op_sel_hi:[1,0]")
    for q in range(6): a(f"v_cvt_pk_bf16_f32 v{4+q if q < 4 else 10+q}, v{AO+2*q}, v{AO+2*q+1}")
    a(f"s_setprio 2\nbuffer_store_dwordx4 v[4:7], v11, {ws}, s56 offen {ST}\nbuffer_store_dwordx2 v[14:15], v12, {ws}, s61 offen {ST}\ns_setprio {OPT.get('prioa', 0)}")
    ast(a, 3, 0); ast(a, 4, 1); ast(a, 1, 0, 7); ast(a, 4, 1, 7)
    a(f"s_add_u32 s56, s56, {4*32768}\ns_add_u32 s61, s61, {4*8192}\ns_add_u32 s59, s59, 1\ns_cmp_lt_u32 s59, 2\ns_cbranch_scc1 {L}")
    a(f"s_branch {fin}")
    for p in range(8):
        a.lab(inv[p])
        for r in range(16): a(f"v_mov_b32 v{AS+16*p+r}, {NEGINF}")
        a(f"s_branch {invb[p]}")
    a.lab(vw)
    a("s_waitcnt vmcnt(0)\nv_mov_b32 v4, 0x3f803f80\nv_mov_b32 v5, v4\nv_mov_b32 v6, v4\nv_mov_b32 v7, v4\nds_write_b128 v13, v[4:7] offset:320")
    lds_sync(a, C_AV, 4, vt=14)
    a(f"s_branch {vwb}")
    a.lab(fin)

def wo2(a):
    skw = SKW; ws = s(SWS, 4)
    a(f"v_lshrrev_b32 v2, 4, v{VL}\nv_and_b32 v3, 15, v{VL}\nv_lshlrev_b32 v8, 4, v3\nv_lshl_add_u32 v8, v2, 9, v8\nv_lshlrev_b32 v10, 3, v3\nv_lshl_add_u32 v10, v2, 9, v10")
    a(f"s_lshl_b32 s50, s{SST}, 16\ns_lshl_b32 s51, s{skw}, 13\ns_add_u32 s50, s50, s51\ns_add_u32 s50, s50, {OFF_O1}")
    a(f"s_lshl_b32 s61, s{SST}, 14\ns_lshl_b32 s51, s{skw}, 11\ns_add_u32 s61, s61, s51\ns_add_u32 s61, s61, {OFF_O2}")
    for i in range(4):
        a(f"s_xor_b32 s51, s{skw}, {i}\ns_lshr_b32 s56, s51, 1\ns_and_b32 s51, s51, 1\ns_lshl_b32 s57, s56, 15\ns_lshl_b32 s58, s51, 8\ns_add_u32 s57, s57, s58\ns_add_u32 s{52+i}, s50, s57")
        a(f"s_lshl_b32 s57, s56, 13\ns_lshl_b32 s58, s51, 7\ns_add_u32 s57, s57, s58\ns_add_u32 s{62+i}, s61, s57")
    oth = a.newlab("ow"); go = a.newlab("og")
    a(f"s_cmp_lg_u32 s{skw}, 0\ns_cbranch_scc1 {oth}")
    a(f"s_lshr_b32 s51, s{SST}, 2\ns_lshl_b32 s51, s51, 8\ns_add_u32 s51, s51, {G_O+128}\nv_mov_b32 v2, 0")
    gpoll(a, 2, SWS, "s51", 1, 1)
    lds_set(a, C_OGO)
    a(f"s_branch {go}")
    a.lab(oth)
    lds_wait(a, C_OGO, 1)
    a.lab(go)
    stamp(a, 2)
    def aload(st):
        for i in range(4):
            r = WA+16*(st%3)+4*i
            if st < 4:
                a(f"buffer_load_dwordx4 {v(r,4)}, v8, {ws}, s{52+i} offen offset:{(st&1)*2048} {LD}")
                if st == 1: a(f"s_add_u32 s{52+i}, s{52+i}, 4096")
            else:
                for e in range(2): a(f"buffer_load_dwordx2 {v(r+2*e,2)}, v10, {ws}, s{62+i} offen offset:{e*256} {LD}")
    for st in range(3): aload(st)
    for st in range(5):
        a(f"s_waitcnt vmcnt({[8, 8, 12, 8, 0][st]})")
        for db in range(5):
            for i in range(4):
                acc = v(MACC+(i*5+db)*4, 4)
                a(f"v_mfma_f32_16x16x32_bf16 {acc}, {v(WA+16*(st%3)+4*i,4)}, {v(WB+20*st+4*db,4)}, {'0' if st == 0 else acc}")
        if st + 3 < 5: aload(st+3)

def colsum4(a, snt, ldsbase, st):
    a(f"v_lshrrev_b32 v2, 4, v{VL}\nv_and_b32 v3, 15, v{VL}\nv_mul_u32_u24 v4, 3840, v2\nv_lshl_add_u32 v4, v3, 4, v4")
    a(f"s_mul_i32 s{st}, s{SKW}, {160*3840}\ns_lshl_b32 s{st+1}, s{snt}, 8\ns_add_u32 s{st}, s{st}, s{st+1}")
    a(f"s_cmp_eq_u32 s{snt}, 15\ns_cbranch_scc0 L_cs_go\ns_barrier\ns_branch L_cs_end")
    a.lab("L_cs_go")
    for i in range(40):
        a(f"buffer_load_dwordx4 v[{32+4*i}:{35+4*i}], v4, {s(SWQ,4)}, s{st} offen\ns_add_u32 s{st}, s{st}, {4*3840}")
        if i == 9: a("s_barrier")
    for c in range(8): a(f"v_mov_b32 v{16+c}, 0")
    for i in range(40):
        a(f"s_waitcnt vmcnt({39-i})")
        for c in range(4):
            a(f"v_lshlrev_b32 v24, 16, v{32+4*i+c}\nv_and_b32 v25, 0xffff0000, v{32+4*i+c}\nv_pk_add_f32 v[{16+2*c}:{17+2*c}], v[{16+2*c}:{17+2*c}], v[24:25]")
    for sw in ("v_permlane32_swap_b32", "v_permlane16_swap_b32"):
        for c in range(8): a(f"v_mov_b32 v{24+c}, v{16+c}")
        a("s_nop 0")
        for c in range(8): a(f"{sw} v{16+c}, v{24+c}")
        for c in range(8): a(f"v_add_f32 v{16+c}, v{16+c}, v{24+c}")
    a(f"s_lshl_b32 s{st}, s{SKW}, 9\ns_add_u32 s{st}, s{st}, {ldsbase}\nv_lshlrev_b32 v4, 5, v3\nv_add_u32 v4, s{st}, v4")
    a("ds_write_b128 v4, v[16:19]\nds_write_b128 v4, v[20:23] offset:16")
    lds_sync(a, C_W2, 4)
    a(f"s_cmp_ge_u32 s{SKW}, 2\ns_cbranch_scc1 L_cs_end")
    a(f"s_lshl_b32 s{st}, s{SKW}, 8\nv_lshlrev_b32 v4, 2, v{VL}\nv_add_u32 v4, s{st}, v4\nv_add_u32 v5, {ldsbase}, v4")
    for w in range(4): a(f"ds_read_b32 v{16+w}, v5 offset:{w*512}")
    a("s_waitcnt lgkmcnt(0)")
    for w in range(1, 4): a(f"v_add_f32 v16, v16, v{16+w}")
    a(f"s_lshl_b32 s{st}, s{snt}, 9\ns_add_u32 s{st}, s{st}, {OFF_CS}")
    a(f"buffer_store_dword v16, v4, {s(SWS,4)}, s{st} offen {ST}")
    a.lab("L_cs_end")

def prologue2(a):
    a(f".globl {NAME}\n.p2align 8\n.type {NAME},@function")
    a.lab(NAME)
    a(f"s_load_dwordx4 s[64:67], s[0:1], 0\ns_load_dwordx4 s[68:71], s[0:1], 72\ns_cmp_ge_u32 s2, 256\ns_cbranch_scc1 L_end")
    if blocks.STAMP:
        for i in range(16): a(f"s_mov_b32 s{84+i}, 0")
    stamp(a, 0)
    if OPT.get("cpf", 1):
        a(f"s_getpc_b64 s[50:51]\ns_sub_u32 s50, s50, .-{NAME}\ns_subb_u32 s51, s51, 0")
        a(f"s_lshr_b32 s52, s2, 3\ns_and_b32 s52, s52, 3\ns_add_u32 s52, s52, 1\ns_lshl_b32 s52, s52, 13\nv_and_b32 v2, 63, v0\nv_lshlrev_b32 v2, 7, v2")
        a(f"v_cmp_le_u32 vcc, 256, v0\nv_mov_b32 v3, s52\nv_and_b32 v4, 0xc0, v0\nv_cndmask_b32 v3, 0, v3, vcc\nv_add_u32 v2, v2, v3\nv_cmp_eq_u32 vcc, 0, v4\ns_mov_b32 s54, L_end-{NAME}\nv_cmp_gt_u32 s[52:53], s54, v2\ns_nop 0\ns_and_b64 vcc, vcc, s[52:53]")
        a(f"s_and_saveexec_b64 s[52:53], vcc\ns_cbranch_execz L_nocpf\nglobal_load_dword v255, v2, s[50:51]")
        a.lab("L_nocpf")
        a("s_mov_b64 exec, -1")
    a(f"s_load_dwordx8 s[56:63], s[0:1], 32\ns_load_dwordx2 {s(SWO,2)}, s[0:1], 16\ns_load_dwordx2 {s(SOUT,2)}, s[0:1], 64")
    a(f"v_lshrrev_b32 v2, 6, v0\nv_and_b32 v{VL}, 63, v0")
    a(f"s_and_b32 s{SXCD}, s2, 7\ns_lshr_b32 s{SJ}, s2, 3")
    a(f"v_readfirstlane_b32 s{SWAVE}, v2")
    for r in SRDS: a(f"s_mov_b32 s{r+2}, {SRDS[r][1]}\ns_mov_b32 s{r+3}, 0x20000")
    ids(a)
    a("s_waitcnt lgkmcnt(0)")
    for r, src in ((SX, 64), (SWQ, 66), (SDBG, 68), (SWS, 70), (SW1, 56), (SB1, 58), (SW2, 60), (SB2, 62)): a(f"s_mov_b64 {s(r,2)}, {s(src,2)}")

def trs_prep(a, sw, ldsbase, dt, st, vb):
    a(f"v_lshrrev_b32 v2, 4, v{VL}\nv_and_b32 v3, 15, v{VL}")
    a(f"v_lshrrev_b32 v4, 2, v3\nv_mul_u32_u24 v4, 1344, v4\nv_lshl_add_u32 v4, v2, 5, v4\nv_and_b32 v5, 3, v3\nv_lshl_add_u32 v4, v5, 3, v4")
    a(f"s_lshl_b32 s{st}, s{sw}, 7\ns_add_u32 s{st}, s{st}, {ldsbase}\nv_add_u32 v{vb}, s{st}, v4\ns_mov_b32 s{st+1}, {dt-5120}")
    for k in range(3):
        a(f"s_lshl_b32 s{st}, s{sw}, 2\ns_add_u32 s{st}, s{st}, {16*k}\nv_add_u32 v5, s{st}, v2")
        a(f"v_mul_u32_u24 v6, 52, v5\nv_lshrrev_b32 v6, 8, v6\nv_mul_u32_u24 v6, s{st+1}, v6\nv_lshl_add_u32 v6, v5, 10, v6\nv_lshl_add_u32 v{vb+1+k}, v3, 4, v6")
    a(f"s_cmp_ge_u32 s{sw}, 2\ns_cselect_b64 vcc, -1, 0\nv_mov_b32 v5, {OOB}\nv_cndmask_b32 v{vb+3}, v{vb+3}, v5, vcc")
def trs_go(a, sw, sdst, vb, d=16):
    for k in range(3):
        a(f"ds_read_b64_tr_b16 v[{d+4*k}:{d+1+4*k}], v{vb} offset:{k*512}\nds_read_b64_tr_b16 v[{d+2+4*k}:{d+3+4*k}], v{vb} offset:{k*512+5376}")
    sk = a.newlab("tg")
    for k in range(3):
        if k == 2: a(f"s_cmp_ge_u32 s{sw}, 2\ns_cbranch_scc1 {sk}")
        a(f"s_waitcnt lgkmcnt({4-2*k})\nbuffer_store_dwordx4 v[{d+4*k}:{d+3+4*k}], v{vb+1+k}, {s(SWS,4)}, s{sdst} offen {ST}")
    a.lab(sk)

def m1_bias_init(a):
    z = a.newlab("bz"); d = a.newlab("bd")
    a(f"s_cmp_lg_u32 s{SKW}, 0\ns_cbranch_scc1 {z}\ns_waitcnt vmcnt(36)")
    for fb in range(4):
        for q in range(2):
            a(f"v_lshlrev_b32 v{MACC+fb*20+2*q}, 16, v{192+2*fb+q}\nv_and_b32 v{MACC+fb*20+2*q+1}, 0xffff0000, v{192+2*fb+q}")
        for db in range(1, 5):
            for r in range(4): a(f"v_mov_b32 v{MACC+(fb*5+db)*4+r}, v{MACC+fb*20+r}")
    a(f"s_branch {d}")
    a.lab(z)
    for i in range(80): a(f"v_mov_b32 v{MACC+i}, 0")
    a.lab(d)
def m1_epi(a):
    kw = SKW; ws = s(SWS, 4)
    odd = a.newlab("eo"); j1 = a.newlab("ej"); j2 = a.newlab("ej")
    a(f"v_add_u32 v10, s66, v{MDIR}\ns_and_b32 s65, s{kw}, 1\ns_cmp_eq_u32 s65, 1\ns_nop 3")
    for t in range(10, 20): a(f"ds_write_b128 v10, {v(MACC+4*t,4)} offset:{t*1024}")
    a(f"s_cbranch_scc1 {odd}")
    for t in (3, 4, 8, 9): a(f"ds_write_b128 v10, {v(MACC+4*t,4)} offset:{t*1024}")
    a(f"s_branch {j1}")
    a.lab(odd)
    for t in (0, 1, 2, 5, 6, 7): a(f"ds_write_b128 v10, {v(MACC+4*t,4)} offset:{t*1024}")
    for g in range(2):
        for r in range(8): a(f"v_mov_b32 v{MACC+20*g+r}, v{MACC+20*g+12+r}")
    a.lab(j1)
    l10(a, 1)
    a(f"s_mul_i32 s65, s65, 3072")
    for n_, x_ in enumerate((1, 2, 3)):
        a(f"s_xor_b32 s68, s{kw}, {x_}\ns_mul_i32 s68, s68, {M1STR}\ns_add_u32 s68, s68, s65\ns_add_u32 s68, s68, {M1BASE + (0 if x_ == 1 else 10240)}\nv_add_u32 v{11+n_}, s68, v{MDIR}")
    a(f"s_mul_i32 s68, s{SDT1}, {54*5120}\ns_mul_i32 s69, s{SFT}, 10240\ns_add_u32 s68, s68, s69\ns_lshr_b32 s69, s{kw}, 1\ns_mul_i32 s69, s69, 5120\ns_add_u32 s68, s68, s69\ns_add_u32 s68, s68, s65\ns_add_u32 s68, s68, {OFF_G}")
    a(f"s_mov_b32 s72, {hexf(GC2)}\ns_mov_b32 s73, {hexf(GC2)}\nv_mov_b32 v14, {hexf(GC1)}\nv_mov_b32 v15, v14")
    lds_sync(a, C_MP, 4, ls=0)
    l10(a, 2)
    def rd(k):
        for n_ in range(3):
            for g in range(2): a(f"ds_read_b128 {v(112+24*k+8*n_+4*g,4)}, v{11+n_} offset:{g*5120+k*1024}")
    rd(0); rd(1)
    for k in range(3):
        if k == 0:
            a(f"s_cmp_lg_u32 s65, 0\ns_cbranch_scc1 {j2}_r"); rd(2); a(f"s_waitcnt lgkmcnt(12)\ns_branch {j2}_w")
            a.lab(j2 + "_r"); a("s_waitcnt lgkmcnt(6)"); a.lab(j2 + "_w")
        elif k == 1:
            a(f"s_waitcnt lgkmcnt(6)\ns_cmp_eq_u32 s65, 0\ns_cbranch_scc1 {j2}_x\ns_waitcnt lgkmcnt(0)"); a.lab(j2 + "_x")
        else: a(f"s_cmp_lg_u32 s65, 0\ns_cbranch_scc1 {j2}\ns_waitcnt lgkmcnt(0)")
        U = [MACC+4*k, MACC+4*k+2, MACC+20+4*k, MACC+20+4*k+2]
        for n_ in range(3):
            for q in range(4): a(f"v_pk_add_f32 {v(U[q],2)}, {v(U[q],2)}, {v(112+24*k+8*n_+2*q,2)}")
        T = 96
        for q in range(4): a(f"v_pk_mul_f32 {v(T+2*q,2)}, {v(U[q],2)}, {v(U[q],2)}")
        for q in range(4): a(f"v_pk_fma_f32 {v(T+2*q,2)}, {v(T+2*q,2)}, s[72:73], v[14:15]")
        for q in range(4): a(f"v_pk_mul_f32 {v(T+2*q,2)}, {v(T+2*q,2)}, {v(U[q],2)}")
        for q in range(8): a(f"v_exp_f32 v{T+q}, v{T+q}")
        a("s_nop 0")
        for q in range(4): a(f"v_pk_add_f32 {v(T+2*q,2)}, {v(T+2*q,2)}, 1.0 op_sel_hi:[1,0]")
        for q in range(8): a(f"v_rcp_f32 v{T+q}, v{T+q}")
        a("s_nop 0")
        for q in range(4): a(f"v_pk_mul_f32 {v(T+2*q,2)}, {v(T+2*q,2)}, {v(U[q],2)}")
        for q in range(4): a(f"v_cvt_pk_bf16_f32 v{104+4*(k&1)+q}, v{T+2*q}, v{T+2*q+1}")
        a(f"buffer_store_dwordx4 {v(104+4*(k&1),4)}, v{MDIR}, {ws}, s68 offen offset:{k*1024} {ST}")
        if k < 2: l10(a, 3+k)
    a.lab(j2)

def gen():
    a = Asm()
    a(f"; @launch grid=(256,1,1) block=(512,1,1) lds={LDS}")
    a('.amdgcn_target "amdgcn-amd-amdhsa--gfx950"\n.text')
    prologue2(a)
    a(f"s_cmp_ge_u32 s{SJ}, 30\ns_cbranch_scc1 L_spare\ns_cmp_ge_u32 s{SWAVE}, 4\ns_cbranch_scc0 L_cons")
    loader(a)
    a(f"s_cmp_eq_u32 s{SHAS1}, 0\ns_cbranch_scc1 L_idle9")
    a(f"s_mul_i32 s66, s{SKW}, {M1STR}\ns_add_u32 s66, s66, {M1BASE}")
    a(f"s_and_b32 s67, s{SKW}, 2")
    mlp_setup(a, SW1, 3456, 66, rot=67)
    a(f"v_lshrrev_b32 v2, 4, v{VL}\nv_lshlrev_b32 v11, 3, v2\ns_lshl_b32 s65, s{SFT}, 7\ns_cmp_lg_u32 s{SKW}, 0\ns_cbranch_scc1 L_nobias")
    for fb in range(4): a(f"buffer_load_dwordx2 {v(192+2*fb,2)}, v11, {s(SB1,4)}, s65 offen offset:{fb*32}")
    a.lab("L_nobias")
    a(f"s_mul_i32 s{S_TO}, s{SKW}, {512*3456}\ns_lshl_b32 s65, s{SFT}, 7\ns_add_u32 s{S_TO}, s{S_TO}, s65")
    a(f"s_mul_i32 s{S_DO}, s{SDT1}, 327680\ns_mul_i32 s65, s{SKW}, {16*5120}\ns_add_u32 s{S_DO}, s{S_DO}, s65\ns_add_u32 s{S_DO}, s{S_DO}, {OFF_H}")
    def blk(k):
        mlp_dma(a, k)
        for db in range(5): mlp_dir(a, k, db, LD)
    stamp(a, 2)
    for k in range(4):
        a(f"s_setprio {3-k}")
        blk(k)
    m1_bias_init(a)
    if OPT.get("hold", 0): lds_wait(a, C_QA, 4)
    a(f"s_mov_b32 s{S_CNT}, 3\ns_setprio {OPT.get('prio1', 1)}")
    a(".p2align 3")
    a.lab("L_m1")
    for k in range(4): mlp_body(a, k, 27, True, LD)
    if OPT.get("mst") == 1:
        for c, i in ((3, 1), (2, 5), (1, 6)):
            LL = a.newlab("mst"); a(f"s_cmp_eq_u32 s{S_CNT}, {c}\ns_cbranch_scc0 {LL}"); stamp(a, i, True); a.lab(LL)
    a(f"s_sub_u32 s{S_CNT}, s{S_CNT}, 1\ns_cmp_lg_u32 s{S_CNT}, 0\ns_cbranch_scc1 L_m1")
    b2 = OPT.get("b2", 0)
    if b2:
        a(f"s_mul_i32 s50, s{SXCD}, 27\ns_add_u32 s50, s50, s{SJ}\ns_lshl_b32 s50, s50, 2\ns_add_u32 s50, s50, s{SKW}")
        a(f"s_mul_i32 s51, s50, 4855\ns_lshr_b32 s51, s51, 20\ns_mul_i32 s65, s51, 216\ns_sub_u32 s50, s50, s65\ns_add_u32 s51, s51, 1\ns_mul_i32 s65, s51, 14\ns_cmp_ge_u32 s51, 3\ns_subb_u32 s65, s65, 0\ns_cmp_ge_u32 s51, 4\ns_subb_u32 s65, s65, 0")
        a(f"s_lshl_b32 s65, s65, 17\ns_lshl_b32 s50, s50, 12\ns_add_u32 s65, s65, s50\ns_sub_u32 s65, s65, {216*4096}")
        a(f"v_lshlrev_b32 v2, 7, v{VL}\ns_mov_b32 exec_hi, 0\nbuffer_load_dword v255, v2, {s(SW2,4)}, s65 offen\ns_mov_b64 exec, -1")
    for k in range(4): mlp_body(a, k, [27, 18, 9, 0][k] + b2, False, LD)
    stamp(a, 3)
    a("s_setprio 3")
    l10(a, 0)
    m1_epi(a)
    l10(a, 5)
    stamp(a, 4)
    a(f"s_lshl_b32 s61, s{SDT1}, 8\ns_add_u32 s61, s61, {G_G}")
    arrive(a, C_GA, 4, 61, 27)
    l10(a, 6)
    a(f"s_mov_b32 s61, {C_GA}")
    a.lab("L_m2")
    w = SKW
    a(f"s_setprio {OPT.get('prio2', 1)}\ns_mul_i32 s66, s{w}, {M1STR}\ns_add_u32 s66, s66, {M1BASE}\nv_mov_b32 v12, s61")
    mlp_setup(a, SW2, 4096, 66)
    a(f"s_mul_i32 s67, s{w}, 14\ns_cmp_eq_u32 s{w}, 3\ns_cselect_b32 s67, 41, s67")
    a(f"s_lshl_b32 s{S_TO}, s67, 17\ns_lshl_b32 s65, s{SST}, 7\ns_add_u32 s{S_TO}, s{S_TO}, s65")
    a(f"s_mul_i32 s{S_DO}, s{SDT3}, {54*5120}\ns_mul_i32 s65, s67, 5120\ns_add_u32 s{S_DO}, s{S_DO}, s65\ns_add_u32 s{S_DO}, s{S_DO}, {OFF_G}")
    for i in range(80): a(f"v_mov_b32 v{MACC+i}, 0")
    lds_wait(a, None, 4, vreg=12)
    a(f"s_cmp_ge_u32 s{w}, 2\ns_cbranch_scc1 L_p3")
    mlp_dma(a, 2)
    a.lab("L_p3")
    for k in (3, 0, 1): mlp_dma(a, k)
    a(f"s_cmp_ge_u32 s{w}, 2\ns_cbranch_scc0 L_p3b")
    mlp_dma(a, 2)
    a.lab("L_p3b")
    a(f"v_and_b32 v2, 15, v{VL}\nv_mul_u32_u24 v12, 10, v2\nv_lshrrev_b32 v3, 5, v{VL}\nv_add_u32 v12, v12, v3\nv_bfe_u32 v2, v{VL}, 2, 1\nv_xor_b32 v12, v12, v2\nv_lshlrev_b32 v12, 4, v12\nv_bfe_u32 v2, v{VL}, 4, 1\nv_mul_u32_u24 v2, 2560, v2\nv_add3_u32 v12, v12, v2, s66")
    oth = a.newlab("gw"); go = a.newlab("gg")
    a(f"s_cmp_lg_u32 s{w}, 0\ns_cbranch_scc1 {oth}")
    a(f"s_lshl_b32 s51, s{SDT3}, 8\ns_add_u32 s51, s51, {G_G+128}\nv_mov_b32 v2, 0\ns_setprio 3")
    gpoll(a, 2, SWS, "s51", 1, 1)
    lds_set(a, C_GGO)
    a(f"s_setprio {OPT.get('prio2', 1)}\ns_branch {go}")
    a.lab(oth)
    lds_wait(a, C_GGO, 1, ls=1)
    a.lab(go)
    stamp(a, 5); l10(a, 7)
    SM_ = OPT.get("smaj", 1)
    a(f"s_mov_b32 s{S_CNT}, 3\ns_mov_b32 s69, 3\ns_cmp_ge_u32 s{w}, 2\ns_cbranch_scc1 L_d3")
    for lab, order, ent in ((None, (2, 3, 0, 1), "L_mb2"), ("L_d3", (3, 0, 1, 2), "L_mb3")):
        if lab: a.lab(lab)
        for n_, k in enumerate(order):
            if SM_: a(f"s_setprio {3-n_}")
            for db in range(5): mlp_dir(a, k, db, LD)
        a(f"s_setprio {OPT.get('prio2', 1)}\ns_branch {ent}" if SM_ else f"s_waitcnt vmcnt(0)\ns_branch {ent}")
    if SM_:
        for k in range(4):
            a.lab(f"L_fw{k}")
            a(f"s_sub_u32 s69, s69, 1\ns_cmp_eq_u32 s69, 0\ns_cbranch_scc1 L_fw{k}c\ns_cmp_eq_u32 s69, 1\ns_cbranch_scc1 L_fw{k}b\ns_waitcnt vmcnt(15)\ns_branch L_fb{k}")
            a.lab(f"L_fw{k}b"); a(f"s_waitcnt vmcnt(19)\ns_branch L_fb{k}")
            a.lab(f"L_fw{k}c"); a(f"s_waitcnt vmcnt(23)\ns_branch L_fb{k}")
    a(".p2align 3")
    for k in range(4):
        a.lab(f"L_mb{k}")
        if SM_:
            a(f"s_cmp_lg_u32 s69, 0\ns_cbranch_scc1 L_fw{k}")
            a.lab(f"L_fb{k}")
        mlp_body(a, k, 27, True, LD, swap=True)
    a(f"s_sub_u32 s{S_CNT}, s{S_CNT}, 1\ns_cmp_lg_u32 s{S_CNT}, 0\ns_cbranch_scc1 L_mb0")
    for k in range(4): mlp_body(a, k, 27-9*k, False, LD, swap=True)
    stamp(a, 6); l10(a, 0, 11)
    a("s_nop 4")
    for db in range(5):
        for sb in range(4): a(f"ds_write_b128 v12, {v(MACC+(sb*5+db)*4,4)} offset:{sb*5120+db*32}")
    l10(a, 1, 11)
    a("s_waitcnt lgkmcnt(0)")
    l10(a, 2, 11)
    a("s_barrier")
    l10(a, 3, 11)
    stamp_dump(a, 0)
    a("s_endpgm")
    a.lab("L_idle9")
    a.lab("L_idle")
    lds_wait(a, C_QA, 4)
    stamp(a, 2)
    def pid(): a(f"s_mul_i32 s61, s{SXCD}, 5\ns_add_u32 s61, s61, s{SJ}\ns_sub_u32 s61, s61, 27\ns_lshl_b32 s61, s61, 2\ns_add_u32 s61, s61, s{SKW}")
    def mid():
        if OPT.get("pf", 1) and not OPT.get("b1", 1):
            pid(); prefetch(a, 61, 160, OPT.get("np1", 8*56), NB1)
    wof(a, mid)
    stamp(a, 3)
    if OPT.get("pf", 1):
        pid()
        if OPT.get("w2wait", 0): lds_wait(a, C_AV, 4)
        prefetch(a, 61, 160, NB1, NB1 + (8*64 if OPT.get('b2', 0) else NB2), OPT.get("thr", 0))
    stamp(a, 4)
    a(f"s_waitcnt vmcnt(0)\ns_mov_b32 s61, {C_W1}\ns_branch L_m2")
    a.lab("L_cons")
    est(a, 1)
    a("s_setprio 3")
    ln_issue(a)
    if OPT.get("lnfirst", 1): a("s_barrier")
    a("s_mov_b32 s62, s53\ns_mov_b32 s63, s55")
    qkv_consumer_setup(a)
    a(f"v_lshrrev_b32 v2, 5, v{VL}\nv_and_b32 v3, 31, v{VL}")
    for r in range(8, 14): a(f"v_mov_b32 v{200+r}, v{r}")
    est(a, 4)
    a("s_waitcnt vmcnt(0)")
    est(a, 5)
    init_counters(a)
    rows_ln(a, 62, 54, ST, L_RS)
    rows_to_lds(a, SWAVE, L_LN, 54)
    est(a, 6)
    a("s_waitcnt lgkmcnt(0)\ns_barrier")
    a(f"s_setprio {OPT.get('prioc', 2)}")
    for r in range(8, 14): a(f"v_mov_b32 v{r}, v{200+r}")
    for r in range(16): a(f"v_mov_b32 v{16+r}, 0")
    for r in range(4): a(f"v_mov_b32 v{200+r}, 0x3f803f80")
    a("s_barrier")
    stamp(a, 2)
    if OPT.get("mst") == 9 and not OPT.get("ls9"): lstamp(a, 0)
    a(f"s_cmp_ge_u32 s{SN}, 10\ns_cbranch_scc1 L_consv")
    for vori in (0, 1):
        if vori: a.lab("L_consv")
        consumer_loop(a, vori)
        stamp(a, 3)
        if OPT.get("mst") == 9 and not OPT.get("ls9"): lstamp(a, 5)
        a(f"s_setprio {OPT.get('prioe', 1)}")
        qkv_epi_lds(a, vori)
        qkv_epi(a, SM, SN, vori, ST)
        if not vori: a("s_branch L_qdone")
    a.lab("L_qdone")
    ids_late(a)
    a(f"s_lshl_b32 s61, s{SM}, 8\ns_add_u32 s61, s61, {G_Q}")
    arrive(a, C_QA, 4, 61, 15)
    a.lab("L_attn")
    attn2(a)
    a("s_setprio 2")
    a(f"s_lshl_b32 s61, s{SBQ}, 8\ns_add_u32 s61, s61, {G_O}")
    arrive(a, C_OA, 4, 61, 32)
    w = SWAVE
    a(f"s_mov_b32 s{SKW}, s{w}\ns_setprio {OPT.get('priow', 2)}")
    oth = a.newlab("ww"); go = a.newlab("wg")
    a(f"s_cmp_lg_u32 s{w}, 0\ns_cbranch_scc1 {oth}\ns_mov_b32 s51, {G_W+128}\nv_mov_b32 v2, 0")
    gpoll(a, 2, SWS, "s51", 1, 1)
    lds_set(a, C_W2)
    a(f"s_branch {go}")
    a.lab(oth)
    lds_wait(a, C_W2, 1)
    a.lab(go)
    ast(a, 6)
    wo_bloads(a, SDT3, SKW, LD)
    wo2(a)
    stamp(a, 6)
    fin_resid_loads(a, SDT3, SST, w)
    lds_wait(a, C_OA, 4)
    a(f"s_lshl_b32 s66, s{w}, 14")
    fin_write(a, 66, 5)
    lds_sync(a, C_WR, 4)
    for i in range(1, 4):
        a(f"s_xor_b32 s65, s{w}, {i}\ns_lshl_b32 s65, s65, 14\ns_add_u32 s65, s65, {(i-1)*5120}\nv_add_u32 v10, s65, v{MDIR}")
        for db in range(5): a(f"ds_read_b128 {v(16+20*i+4*db,4)}, v10 offset:{db*1024}")
    for i in range(1, 4):
        a(f"s_waitcnt lgkmcnt({15-5*i})")
        for q in range(10): a(f"v_pk_add_f32 {v(16+2*q,2)}, {v(16+2*q,2)}, {v(16+20*i+2*q,2)}")
    lds_sync(a, C_WR, 8)
    a(f"v_lshrrev_b32 v2, 4, v{VL}\nv_mul_u32_u24 v2, 1280, v2\nv_and_b32 v3, 15, v{VL}\nv_lshl_add_u32 v2, v3, 2, v2\nv_add_u32 v2, s66, v2\nv_lshlrev_b32 v3, 5, v{VL}\nv_add_u32 v3, s66, v3")
    for db in range(5):
        for r in range(4): a(f"ds_write_b32 v2, v{16+4*db+r} offset:{r*320+db*64}")
    a("s_waitcnt lgkmcnt(0)")
    for k in range(3): a(f"ds_read_b128 {v(40+8*k,4)}, v3 offset:{k*2048}\nds_read_b128 {v(44+8*k,4)}, v3 offset:{k*2048+16}")
    a(f"s_mul_i32 s65, s{w}, 5120\ns_add_u32 s65, s65, {M1BASE}")
    for k in range(3):
        a(f"v_add_u32 v2, {64*k}, v{VL}\nv_min_u32 v2, 159, v2\nv_mul_u32_u24 v3, 205, v2\nv_bfe_u32 v4, v3, 13, 1\nv_xor_b32 v2, v2, v4\nv_lshlrev_b32 v2, 4, v2\nv_add_u32 v{210+2*k}, s65, v2\nv_add_u32 v{211+2*k}, 2560, v{210+2*k}")
    a("s_waitcnt vmcnt(0)")
    for k in range(3):
        a(f"v_lshlrev_b32 v{204+k}, 16, v{204+k}")
        for q in range(4): a(f"v_lshlrev_b32 v{64+8*k+2*q}, 16, v{192+4*k+q}\nv_and_b32 v{65+8*k+2*q}, 0xffff0000, v{192+4*k+q}")
        for q in range(8): a(f"v_add_f32 v{64+8*k+q}, v{64+8*k+q}, v{204+k}")
    a("s_waitcnt lgkmcnt(0)")
    for q in range(12): a(f"v_pk_add_f32 {v(40+2*q,2)}, {v(40+2*q,2)}, {v(64+2*q,2)}")
    stamp(a, 1)
    a("s_setprio 3\ns_barrier")
    stamp(a, 2, OPT.get("mst") == 6); l10(a, 0, 11)
    for k in range(3):
        for src in range(4): a(f"ds_read_b128 {v(96+32*k+8*src,4)}, v{210+2*k} offset:{src*M1STR}\nds_read_b128 {v(100+32*k+8*src,4)}, v{211+2*k} offset:{src*M1STR}")
        if k >= 1:
            a("s_waitcnt lgkmcnt(8)")
            for src in range(4):
                for q in range(4): a(f"v_pk_add_f32 {v(40+8*(k-1)+2*q,2)}, {v(40+8*(k-1)+2*q,2)}, {v(96+32*(k-1)+8*src+2*q,2)}")
            for q in range(4): a(f"v_cvt_pk_bf16_f32 v{16+4*(k-1)+q}, v{40+8*(k-1)+2*q}, v{41+8*(k-1)+2*q}")
            a(f"buffer_store_dwordx4 {v(16+4*(k-1),4)}, v{207+k-1}, {s(SOUT,4)}, s74 offen {OPT.get('outf', 1) and 'sc1' or ''}")
        if k == 1: pass
    a("s_waitcnt lgkmcnt(0)")
    for src in range(4):
        for q in range(4): a(f"v_pk_add_f32 {v(56+2*q,2)}, {v(56+2*q,2)}, {v(160+8*src+2*q,2)}")
    for q in range(4): a(f"v_cvt_pk_bf16_f32 v{24+q}, v{56+2*q}, v{57+2*q}")
    l10(a, 1, 11)
    a(f"buffer_store_dwordx4 v[24:27], v209, {s(SOUT,4)}, s74 offen {OPT.get('outf', 1) and 'sc1' or ''}")
    l10(a, 2, 11)
    if blocks.STAMP: a("s_waitcnt vmcnt(0)")
    l10(a, 3, 11)
    stamp_dump(a, 0)
    a("s_endpgm")
    a.lab("L_spare")
    ids_late(a)
    a(f"s_mov_b32 s{SHAS1}, 0\ns_sub_u32 s{SKW}, s{SWAVE}, 4\ns_cmp_ge_u32 s{SWAVE}, 4\ns_cbranch_scc0 L_sp_ln")
    if OPT.get("tlb"):
        g = OPT["tlb"]
        a(f"s_sub_u32 s50, s{SJ}, 30\ns_lshl_b32 s50, s50, 2\ns_add_u32 s50, s50, s{SKW}\ns_lshl_b32 s50, s50, {6+g}\nv_lshlrev_b32 v2, {g}, v{VL}")
        for srd, n in ((SWS, OFF_STAMP), (SW1, 7077888), (SW2, 7077888), (SOUT, 2621440), (SWO, 819200)):
            for k in range(-(-n // (512 << g))):
                a(f"s_add_u32 s51, s50, {k*(512 << g)}\nbuffer_load_dword v255, v2, {s(srd,4)}, s51 offen sc1")
        a(f"buffer_load_dword v255, off, {s(SB1,4)}, 0\nbuffer_load_dword v255, off, {s(SB2,4)}, 0")
    a(f"s_sub_u32 s61, s2, 240\ns_lshl_b32 s61, s61, 2\ns_add_u32 s61, s61, s{SKW}")
    a("s_barrier\ns_barrier")
    if OPT.get("spw", 0): lds_wait(a, C_PUB, 1)
    if OPT.get("pf", 1): (prefetch(a, 61, 64, 8*56, NB1) if OPT.get("swp", 1) else prefetch(a, 61, 64, 0, 8*56))
    stamp(a, 1)
    a("s_waitcnt vmcnt(0)\ns_branch L_idle")
    a.lab("L_sp_ln")
    ln_issue(a)
    a("s_waitcnt vmcnt(0)")
    init_counters(a)
    rows_ln(a, 53, 54, ST)
    rows_to_lds(a, SWAVE, L_LN, 54)
    a("s_waitcnt lgkmcnt(0)\ns_barrier")
    rows_tr_store(a, SWAVE, L_LN, 55, 327680, 54, ST)
    a(f"s_waitcnt vmcnt(0)\ns_barrier\ns_cmp_lg_u32 s{SWAVE}, 0\ns_cbranch_scc1 L_sp_na")
    c1_arrive(a)
    lds_set(a, C_PUB)
    c1_poll(a, 8)
    a(f"v_mov_b32 v2, {C_QA}\nv_mov_b32 v3, 4\nds_write_b32 v2, v3")
    a.lab("L_sp_na")
    stamp(a, 1)
    a("s_branch L_attn")
    a.lab("L_end"); a("s_endpgm")
    a('.section .rodata,"a"')
    return a.text() + kd(NAME)
if __name__ == "__main__":
    blocks.STAMP = "stamp" in sys.argv
    for x in sys.argv[2:]:
        if "=" in x: k, val = x.split("="); blocks.OPT[k] = int(val)
    t = gen()
    print("hazards:", hazard_check(t))
    open(sys.argv[1], "w").write(open("hdr.txt").read() + t)
    import subprocess
    r = subprocess.run(["clang", "-x", "assembler", "-target", "amdgcn-amd-amdhsa", "-mcpu=gfx950", "-c", sys.argv[1], "-o", "x.o"], capture_output=True, text=True)
    if r.returncode: print(r.stderr[:1500]); sys.exit(1)
```

```python
import sys
import blocks
from blocks import *
NAME = "parallel_sum__sliding_block__mixer_token_mlp__prompt_kernel"
LDS = 163840
L_LN = 0
L_ST = 147456
L_CSP = L_ST + 2560
OFF_CSP = 0xB000
L_RS = LDS - 352
L_KN = LDS - 272
L_FULL = LDS - 256
L_FREE = L_FULL + 64
C_PUB, C_C1, C_CS, C_QD = L_FULL + 128, L_FULL + 132, L_FULL + 136, L_FULL + 140
L_CNT = LDS - 64
C_QA, C_AGO, C_AK, C_OA, C_MP, C_GA, C_W1, C_W2, C_GGO, C_OGO, C_AV, C_WR = [L_CNT + 4*i for i in range(12)]
M1BASE, M1STR = 65536, 20480
G_Q, G_O, G_G, G_W = OFF_FLAG, OFF_FLAG + 8*256, OFF_FLAG + 16*256, OFF_FLAG + 21*256
G_CS = OFF_FLAG + 22*256
NCTR = 23
XB, XSTR = 49152, 24576
QS = 49152
OFF_O1, OFF_O2 = OFF_O, OFF_O + 0x200000
ST, LD = "sc1", "sc1"
SM, SN, SROLE, SDT1, SFT, SHAS1, SDT3, SST, SHD, SBQ, SKW = 76, 77, 78, 79, 80, 81, 82, 83, 48, 49, 75

def garrive(a, srd, soff, target, doneoff, L, va=3):
    a(f"v_mov_b32 v{va}, 1\nbuffer_atomic_add v{va}, off, {s(srd,4)}, s{soff} sc0 sc1\ns_waitcnt vmcnt(0)\nv_readfirstlane_b32 s60, v{va}\ns_cmp_lg_u32 s60, {target-1}\ns_cbranch_scc1 {L}")
    a(f"v_mov_b32 v{va}, 1\nbuffer_store_dword v{va}, off, {s(srd,4)}, s{doneoff[0]} offset:{doneoff[1]} sc1")
def arrive(a, lcnt, n, goff_sgpr, target, fin=None):
    L = a.newlab("arr")
    a(f"s_waitcnt vmcnt(0)\nv_mov_b32 v2, {lcnt}\nv_mov_b32 v3, 1\ns_mov_b64 exec, 1\nds_add_rtn_u32 v14, v2, v3\ns_waitcnt lgkmcnt(0)\nv_readfirstlane_b32 s60, v14\ns_cmp_lg_u32 s60, {n-1}\ns_cbranch_scc1 {L}")
    if fin is None: garrive(a, SWS, goff_sgpr, target, (goff_sgpr, 128), L)
    else:
        garrive(a, SWS, goff_sgpr, target, (goff_sgpr, 128), L + "f")
        a.lab(L + "f")
        lds_set(a, fin)
    a.lab(L)
    a("s_mov_b64 exec, -1")
def lds_wait(a, addr, n, vreg=2, ls=None):
    L = a.newlab("lw")
    if addr is not None: a(f"v_mov_b32 v2, {addr}")
    a("s_mov_b32 s47, 0x80000")
    a.lab(L)
    a(f"ds_read_b32 v3, v{vreg}\ns_sub_u32 s47, s47, 1\ns_cbranch_scc1 {L}x\ns_waitcnt lgkmcnt(0)\nv_readfirstlane_b32 s60, v3\ns_cmp_ge_u32 s60, {n}\ns_cbranch_scc1 {L}x\ns_sleep {OPT.get('ls', 3) if ls is None else ls}\ns_branch {L}")
    a.lab(L + "x")
def lds_set(a, addr):
    a(f"v_mov_b32 v2, {addr}\nv_mov_b32 v3, 1\nds_write_b32 v2, v3")
def gpoll(a, vaddr, srd, soff, target, nl, vd=3, slp=None, tgt_reg=False):
    L = a.newlab("gp")
    if tgt_reg: target = hex(target)
    a(f"s_mov_b64 exec, {(1<<nl)-1}\ns_mov_b32 s47, 0x8000")
    a.lab(L)
    a(f"buffer_load_dword v{vd}, v{vaddr}, {s(srd,4)}, {soff} offen sc1\ns_sub_u32 s47, s47, 1\ns_cbranch_scc1 {L}x\ns_waitcnt vmcnt(0)\nv_cmp_ne_u32 vcc, {target}, v{vd}\ns_cbranch_vccz {L}x\ns_sleep {slp or OPT.get('slp', 2)}\ns_branch {L}")
    a.lab(L + "x")
    a("s_mov_b64 exec, -1")
def c1_poll(a, slp=None):
    a(f"v_lshlrev_b32 v2, 2, v{VL}\nv_add_u32 v2, 128, v2")
    gpoll(a, 2, SDBG, 0, 1, 2, slp=slp)

def l10(a, i, m=10):
    if OPT.get("ls9") == m: lstamp(a, i)
def est(a, i):
    if OPT.get("mst") == 3: stamp(a, i, True)
def ast(a, i, cond=None, m=5):
    if OPT.get("mst") != m: return
    if cond is None: stamp(a, i, True); return
    LL = a.newlab("as"); a(f"s_cmp_eq_u32 s59, {cond}\ns_cbranch_scc0 {LL}"); stamp(a, i, True); a.lab(LL)
def fst(a, i):
    if OPT.get("mst") == 4: stamp(a, i, True)
def ids(a):
    x, j = SXCD, SJ
    a(f"s_and_b32 s50, s{x}, 1\ns_mul_i32 s51, s50, 15\ns_add_u32 s51, s51, s{j}\ns_lshr_b32 s{SN}, s51, 1\ns_and_b32 s51, s51, 1\ns_and_b32 s{SM}, s{x}, 6\ns_add_u32 s{SM}, s{SM}, s51")
def ids_late(a):
    x, j = SXCD, SJ
    a(f"s_mul_i32 s57, s{x}, 17\ns_add_u32 s57, s57, s{j}\ns_sub_u32 s57, s57, 15\ns_mul_i32 s{SFT}, s57, 205\ns_lshr_b32 s{SFT}, s{SFT}, 10\ns_mul_i32 s58, s{SFT}, 5\ns_sub_u32 s{SDT1}, s57, s58")
    a(f"s_and_b32 s56, s{x}, 1\ns_lshl_b32 s56, s56, 2\ns_lshr_b32 s58, s{x}, 1")
    a(f"s_and_b32 s57, s{j}, 3\ns_add_u32 s{SDT3}, s56, s57\ns_lshl_b32 s58, s58, 3\ns_lshr_b32 s57, s{j}, 2\ns_add_u32 s{SST}, s58, s57")

def ln_issue(a):
    a(f"s_lshr_b32 s50, s{SXCD}, 1\ns_lshl_b32 s50, s50, 6\ns_and_b32 s51, s{SXCD}, 1\ns_lshl_b32 s51, s51, 5\ns_add_u32 s50, s50, s51\ns_add_u32 s50, s50, s{SJ}")
    a(f"s_lshr_b32 s51, s50, 2\ns_and_b32 s52, s50, 3\ns_lshl_b32 s53, s51, 5\ns_lshl_b32 s54, s52, 2\ns_add_u32 s53, s53, s54")
    a(f"s_lshr_b32 s54, s{SWAVE}, 1\ns_lshl_b32 s54, s54, 4\ns_add_u32 s53, s53, s54\ns_and_b32 s54, s{SWAVE}, 1\ns_lshl_b32 s54, s54, 1\ns_add_u32 s53, s53, s54")
    rows_load(a, SX, SWAVE, 53, 54)
    a(f"s_mul_i32 s55, s51, 5120\ns_lshl_b32 s52, s52, 8\ns_add_u32 s55, s55, s52\ns_add_u32 s55, s55, {OFF_H}")
def init_counters(a):
    L = a.newlab("ic")
    a(f"s_cmp_lg_u32 s{SWAVE}, 0\ns_cbranch_scc1 {L}")
    a(f"v_lshlrev_b32 v6, 2, v{VL}\nv_add_u32 v6, {L_FULL}, v6\nv_mov_b32 v7, 0\nds_write_b32 v6, v7")
    a.lab(L)
def c1_arrive(a):
    L = a.newlab("c1a")
    a(f"s_and_b32 s57, s2, 1\ns_lshl_b32 s56, s57, 6\ns_lshl_b32 s57, s57, 2\ns_mov_b64 exec, 1")
    garrive(a, SDBG, 56, 128, (57, 128), L, va=15)
    a.lab(L)
    a("s_mov_b64 exec, -1")

def loader(a):
    st = 48
    lw, sxo, swo, sm0, t, ko, t2 = st, st+1, st+2, st+3, st+4, st+5, 62
    a(f"s_sub_u32 s{lw}, s{SWAVE}, 4")
    a(f"v_lshrrev_b32 v2, 3, v{VL}\nv_mul_u32_u24 v2, 1280, v2\nv_and_b32 v3, 7, v{VL}\nv_lshrrev_b32 v4, 4, v{VL}\nv_xor_b32 v3, v3, v4\nv_lshl_add_u32 v210, v3, 4, v2\nv_xor_b32 v211, 64, v210")
    a(f"v_mul_u32_u24 v2, 3840, v4\nv_bfe_u32 v3, v{VL}, 2, 2\nv_xor_b32 v3, v3, v4\nv_lshl_add_u32 v2, v3, 6, v2\nv_and_b32 v3, 3, v{VL}\nv_lshl_add_u32 v212, v3, 4, v2")
    a(f"s_lshl_b32 s{sxo}, s{SM}, 8\ns_lshl_b32 s{t}, s{lw}, 6\ns_add_u32 s{sxo}, s{sxo}, s{t}\ns_mul_i32 s{sxo}, s{sxo}, 1280")
    a(f"s_mul_i32 s{swo}, s{lw}, {16*3840}\ns_lshl_b32 s{t}, s{SN}, 8\ns_add_u32 s{swo}, s{swo}, s{t}")
    a(f"s_lshl_b32 s{sm0}, s{lw}, 13\ns_lshl_b32 s67, s{lw}, 12\ns_sub_u32 s67, 32768, s67")
    R = OPT.get("rot", 5)
    if R == 10: a(f"s_mul_i32 s{ko}, s{SM}, 3\ns_add_u32 s{ko}, s{ko}, s{SN}\ns_mul_i32 s{t}, s{ko}, 205\ns_lshr_b32 s{t}, s{t}, 11\ns_mul_i32 s{t}, s{t}, 10\ns_sub_u32 s{ko}, s{ko}, s{t}")
    elif R == 5: a(f"s_add_u32 s{ko}, s{SM}, s{SN}\ns_mul_i32 s{t}, s{ko}, 52\ns_lshr_b32 s{t}, s{t}, 8\ns_mul_i32 s{t}, s{t}, 5\ns_sub_u32 s{ko}, s{ko}, s{t}\ns_lshl_b32 s{ko}, s{ko}, 1")
    else: a(f"s_mov_b32 s{ko}, 0")
    a(f"s_lshl_b32 s{t}, s{ko}, 7\ns_add_u32 s{sxo}, s{sxo}, s{t}\ns_mul_i32 s{t}, s{ko}, 245760\ns_add_u32 s{swo}, s{swo}, s{t}")
    a("s_movk_i32 s65, 128\ns_mov_b32 s66, 245760\ns_mov_b32 s68, 0")
    def stage(extra=""):
        a(f"s_mov_b32 m0, s{sm0}\ns_mov_b32 s{t}, s{sxo}")
        for i in range(8):
            if i == 4: a(f"s_add_u32 m0, s{sm0}, 4096\ns_add_u32 s{t}, s{t}, 4096")
            a(f"buffer_load_dwordx4 v{210+(i&1)}, {s(SX,4)}, s{t} offen offset:{(i&3)*1024} lds")
            if i < 7: a(f"s_add_u32 s{t}, s{t}, 9216")
        a(f"s_add_u32 m0, s{sm0}, s67\ns_add_u32 s{t}, s{swo}, 14336")
        a(f"buffer_load_dwordx4 v212, {s(SWQ,4)}, s{swo} offen lds\nbuffer_load_dwordx4 v212, {s(SWQ,4)}, s{t} offen offset:1024 lds")
        a(f"s_add_u32 s{t}, s{t}, 14336\ns_add_u32 s{t2}, s{t}, 14336")
        a(f"s_add_u32 s68, s68, 1\ns_cmp_eq_u32 s68, 3\ns_cselect_b32 s68, 0, s68\ns_cselect_b32 s63, {-2*QS}, s69\ns_add_u32 s{sm0}, s{sm0}, s63")
        a(f"s_add_u32 s{ko}, s{ko}, 1\ns_cmp_eq_u32 s{ko}, 10\ns_cselect_b32 s63, {128-1280}, s65\ns_cselect_b32 s64, {245760-2457600}, s66\ns_add_u32 s{sxo}, s{sxo}, s63\ns_add_u32 s{swo}, s{swo}, s64")
        a(f"buffer_load_dwordx4 v212, {s(SWQ,4)}, s{t} offen offset:2048 lds")
        if extra: a(extra)
        a(f"buffer_load_dwordx4 v212, {s(SWQ,4)}, s{t2} offen offset:3072 lds")
    a(f"s_mov_b32 s69, {QS}\ns_mul_i32 s59, s{SN}, 2560\ns_lshl_b32 s{t}, s{ko}, 8\ns_add_u32 s59, s59, s{t}\ns_lshl_b32 s{t}, s{lw}, 7\ns_add_u32 s59, s59, s{t}\ns_add_u32 s59, s59, {OFF_CSP}")
    a("s_setprio 2"); stage(); a("s_setprio 0"); stage()
    stamp(a, 1)
    ids_late(a)
    a(f"s_mov_b32 s{SKW}, s{lw}\nv_mov_b32 v8, {L_FULL}\nv_mov_b32 v9, 1")
    a(f"s_mul_i32 s70, s{SXCD}, 15\ns_add_u32 s70, s70, s{SJ}\ns_lshl_b32 s70, s70, 2\ns_add_u32 s70, s70, s{lw}")
    a(f"s_mul_i32 s71, s70, 8739\ns_lshr_b32 s71, s71, 20\ns_mul_i32 s72, s71, 120\ns_sub_u32 s72, s70, s72\ns_mul_i32 s71, s71, {16*110592}\ns_lshl_b32 s70, s72, 13\ns_add_u32 s70, s70, s71\ns_add_u32 s70, s70, {16*110592 - 120*8192}")
    a(f"s_mul_i32 s71, s72, {OPT.get('bm', 410)}\ns_lshr_b32 s71, s71, 14\ns_add_u32 s71, s71, {OPT.get('b0', 2) if OPT.get('pf', 1) else 99}\nv_lshlrev_b32 v12, 7, v{VL}")
    a(f"s_lshl_b32 s54, s{lw}, 12\ns_add_u32 s54, s54, 32768\nv_lshlrev_b32 v2, 4, v{VL}\nv_add_u32 v13, s54, v2")
    a(f"v_lshrrev_b32 v4, 4, v{VL}\nv_bfe_u32 v3, v{VL}, 2, 2\nv_xor_b32 v3, v3, v4\nv_lshlrev_b32 v3, 7, v3\nv_and_b32 v5, 3, v{VL}\nv_lshl_add_u32 v3, v5, 5, v3\nv_lshl_add_u32 v3, v4, 9, v3\ns_lshl_b32 s54, s{lw}, 11\ns_add_u32 s54, s54, {L_CSP}\nv_add_u32 v14, s54, v3")
    a(f"v_and_b32 v5, 31, v{VL}\nv_lshlrev_b32 v5, 2, v5\nv_lshrrev_b32 v6, 5, v{VL}\nv_lshl_add_u32 v6, v6, 12, v5\ns_lshl_b32 s54, s{lw}, 7\ns_add_u32 s54, s54, {L_CSP}\nv_add_u32 v6, s54, v6")
    def job(slot):
        sk = a.newlab("cj")
        a(f"s_cmp_ge_u32 s{SM}, 5\ns_cbranch_scc1 {sk}")
        for i in range(4): a(f"ds_read_b128 {v(32+4*i,4)}, v13 offset:{slot*QS+i*1024}")
        for i in range(4):
            a(f"s_waitcnt lgkmcnt({3-i})")
            for c in range(4):
                if i == 0 and slot == 0: a(f"v_lshlrev_b32 v{16+2*c}, 16, v{32+c}\nv_and_b32 v{17+2*c}, 0xffff0000, v{32+c}")
                else: a(f"v_lshlrev_b32 v24, 16, v{32+4*i+c}\nv_and_b32 v25, 0xffff0000, v{32+4*i+c}\nv_pk_add_f32 {v(16+2*c,2)}, {v(16+2*c,2)}, v[24:25]")
        if slot == 1: a("ds_write_b128 v14, v[16:19]\nds_write_b128 v14, v[20:23] offset:16\ns_waitcnt lgkmcnt(0)")
        a.lab(sk)
    def bar(k):
        x_ = a.newlab("bw"); y_ = a.newlab("bw")
        a(f"s_cmp_eq_u32 s71, {k-2}\ns_cbranch_scc1 {x_}\ns_waitcnt vmcnt(12)")
        a.lab(x_)
        a("s_waitcnt vmcnt(13)\ns_barrier")
    def after(k):
        x_ = a.newlab("bu")
        a(f"s_cmp_lg_u32 s71, {k}\ns_cbranch_scc1 {x_}\nbuffer_load_dword v255, v12, {s(SW1,4)}, s70 offen")
        a.lab(x_)
    a("s_waitcnt vmcnt(12)\ns_barrier"); stage(); job(0)
    a("s_waitcnt vmcnt(12)\ns_barrier"); stage(); after(1); job(1)
    a("s_waitcnt vmcnt(12)\ns_barrier"); stage(); after(2)
    sk = a.newlab("cb")
    a(f"s_cmp_ge_u32 s{SM}, 5\ns_cbranch_scc1 {sk}")
    for k in range(8): a(f"ds_read_b32 v{16+k}, v6 offset:{k*512}")
    a("s_waitcnt lgkmcnt(0)")
    for k in range(1, 8): a(f"v_add_f32 v16, v16, v{16+k}")
    a(f"v_mov_b32 v17, v16\ns_nop 1\nv_permlane32_swap_b32 v16, v17\nv_add_f32 v16, v16, v17")
    a.lab(sk)
    bar(3)
    sk = a.newlab("cb")
    a(f"s_cmp_ge_u32 s{SM}, 5\ns_cbranch_scc1 {sk}\ns_mov_b32 exec_hi, 0\nbuffer_store_dword v16, v5, {s(SWS,4)}, s59 offen sc1\ns_mov_b64 exec, -1")
    a.lab(sk)
    stage(); after(3)
    bar(4)
    n0 = a.newlab("n0"); n2 = a.newlab("n0")
    a(f"s_cmp_lg_u32 s{lw}, 0\ns_cbranch_scc1 {n0}\nv_lshlrev_b32 v2, 2, v{VL}\ns_mov_b64 exec, 3\nbuffer_load_dword v3, v2, {s(SDBG,4)}, 0 offen offset:128 sc1\ns_mov_b64 exec, -1")
    a.lab(n0)
    stage(); after(4)
    a(f"s_cmp_lg_u32 s{lw}, 0\ns_cbranch_scc1 {n2}\ns_waitcnt vmcnt(13)\ns_cmp_eq_u32 s71, 4\ns_cbranch_scc1 {n2}w\ns_waitcnt vmcnt(12)")
    a.lab(n2 + "w")
    a(f"s_mov_b64 exec, 3\nv_cmp_ne_u32 vcc, 1, v3\ns_mov_b64 exec, -1\ns_cbranch_vccz {n2}")
    c1_poll(a)
    a.lab(n2)
    bar(5)
    nst = a.newlab("nst"); n1 = a.newlab("n1")
    a(f"v_lshlrev_b32 v4, 4, v{VL}\ns_cmp_ge_u32 s{lw}, 2\ns_cbranch_scc1 {nst}")
    a(f"s_lshl_b32 s54, s{SM}, 10\ns_lshl_b32 s55, s{lw}, 13\ns_add_u32 s54, s54, s55\ns_lshl_b32 s55, s{lw}, 10\ns_add_u32 m0, s55, {L_ST}\ns_nop 0\nbuffer_load_dwordx4 v4, {s(SWS,4)}, s54 offen sc1 lds")
    a.lab(nst)
    a(f"s_cmp_lg_u32 s{lw}, 3\ns_cbranch_scc1 {n1}\ns_cmp_ge_u32 s{SM}, 5\ns_cbranch_scc1 {n1}\ns_mov_b32 s54, {G_CS}\ns_mov_b64 exec, 1")
    garrive(a, SWS, 54, 75, (54, 128), n1)
    a.lab(n1)
    a("s_mov_b64 exec, -1")
    stage()
    bar(6); stage()
    a("s_waitcnt vmcnt(12)\ns_barrier"); stage()
    sk = a.newlab("sk")
    a(f"s_waitcnt vmcnt(12)\ns_barrier\ns_cmp_lg_u32 s{lw}, 2\ns_cbranch_scc1 {sk}")
    a(f"s_mov_b32 s54, {G_CS+128}\nv_mov_b32 v2, 0")
    gpoll(a, 2, SWS, "s54", 1, 1)
    a(f"s_mul_i32 s54, s{SN}, 2560\ns_add_u32 s54, s54, {OFF_CSP}\nv_cmp_gt_u32 vcc, 32, v{VL}\nv_mov_b32 v5, {OOB}\ns_nop 0\nv_cndmask_b32 v5, v5, v4, vcc")
    for k in range(3): a(f"buffer_load_dwordx4 {v(16+4*k,4)}, v{4 if k < 2 else 5}, {s(SWS,4)}, s54 offen offset:{k*1024} sc1")
    a(f"v_and_b32 v2, 31, v{VL}\nv_lshlrev_b32 v2, 4, v2\nv_add_u32 v2, {L_ST+2048}, v2\ns_waitcnt vmcnt(0)")
    for k in range(1, 3):
        for q in range(2): a(f"v_pk_add_f32 {v(16+2*q,2)}, {v(16+2*q,2)}, {v(16+4*k+2*q,2)}")
    for q in range(4): a(f"v_mov_b32 v{20+q}, v{16+q}")
    a("s_nop 0")
    for q in range(4): a(f"v_permlane32_swap_b32 v{16+q}, v{20+q}")
    for q in range(2): a(f"v_pk_add_f32 {v(16+2*q,2)}, {v(16+2*q,2)}, {v(20+2*q,2)}")
    a("ds_write_b128 v2, v[16:19]\ns_waitcnt lgkmcnt(0)")
    a.lab(sk)
    wof_issue(a)
    W2 = OPT.get("w2m", 0)
    if W2 in (1, 3):
        a(f"s_lshl_b32 s63, s61, 2\ns_add_u32 s63, s63, s{SKW}")
        prefetch(a, 63, 480, NB1, NB1 + 480)
    a(f"s_waitcnt vmcnt({4 if W2 in (1, 3) else 3})\ns_barrier")

CA, CF, CS_, CONE = 64, 16, 192, 208
L_CSX = L_ST + 2048
def cons_setup(a):
    a(f"s_lshr_b32 s48, s{SWAVE}, 1\ns_and_b32 s49, s{SWAVE}, 1")
    a(f"v_and_b32 v2, 31, v{VL}\nv_lshrrev_b32 v3, 5, v{VL}\nv_bfe_u32 v4, v{VL}, 1, 3")
    a(f"s_lshl_b32 s50, s48, 14\nv_lshlrev_b32 v5, 7, v2\nv_add_u32 v5, s50, v5")
    for ks in range(4): a(f"v_or_b32 v6, {2*ks}, v3\nv_xor_b32 v6, v6, v4\nv_lshl_add_u32 v{8+ks}, v6, 4, v5")
    a(f"v_bfe_u32 v4, v{VL}, 2, 2\nv_lshl_add_u32 v5, v3, 3, v4\nv_lshlrev_b32 v5, 8, v5\nv_bfe_u32 v6, v{VL}, 4, 1\nv_lshl_add_u32 v5, v6, 5, v5\nv_and_b32 v6, 3, v{VL}\nv_lshl_add_u32 v5, v6, 3, v5\nv_add_u32 v5, 32768, v5\ns_lshl_b32 s50, s49, 1")
    for cf in range(2): a(f"s_xor_b32 s51, s48, {cf}\ns_add_u32 s51, s50, s51\nv_xor_b32 v6, s51, v4\nv_lshl_add_u32 v{12+cf}, v6, 6, v5")
    for i in range(128): a(f"v_mov_b32 v{CA+i}, 0")
def cons_loop(a, vori):
    L = a.newlab("qloop"); last = a.newlab("qlast"); s9 = a.newlab("qs9"); s9b = a.newlab("qs9b")
    def rd(ks, buf, which, half=None):
        b = CF + 24*buf; i = int(which[1])
        if which[0] == "x": a(f"ds_read_b128 {v(b+4*i,4)}, v{8+ks} offset:{i*4096}")
        else:
            for r in (range(2) if half is None else (half,)): a(f"ds_read_b64_tr_b16 {v(b+16+4*i+2*r,2)}, v{12+i} offset:{ks*4096+r*1024}")
    def mf(buf, i, cf):
        b = CF + 24*buf; acc = v(CA + 16*(2*i+cf), 16); X = v(b+4*i, 4); W = v(b+16+4*cf, 4)
        a(f"v_mfma_f32_32x32x16_bf16 {acc}, {X+', '+W if vori else W+', '+X}, {acc}")
    def csum(buf):
        return
        W = v(CF+24*buf+16, 4); O = v(CONE, 4)
        a(f"v_mfma_f32_32x32x16_bf16 {v(CS_,16)}, {O+', '+W if vori else W+', '+O}, {v(CS_,16)}")
    order = ("x0", "w0", "w1", "x1", "x2", "x3")
    for w in order: rd(0, 0, w)
    a(f"s_mov_b32 s50, 0\ns_mov_b32 s51, 0\ns_mov_b32 s52, {QS}")
    a(".p2align 3")
    a.lab(L)
    for ks in range(4):
        buf = ks & 1; nb = buf ^ 1
        if ks < 3:
            n = ks + 1
            a("s_waitcnt lgkmcnt(5)"); mf(buf, 0, 0); rd(n, nb, "x0")
            a("s_waitcnt lgkmcnt(4)"); mf(buf, 0, 1); rd(n, nb, "w0", 0)
            a("s_waitcnt lgkmcnt(4)"); mf(buf, 1, 0); rd(n, nb, "w0", 1); mf(buf, 1, 1); rd(n, nb, "w1", 0)
            a("s_waitcnt lgkmcnt(5)"); mf(buf, 2, 0); rd(n, nb, "w1", 1); mf(buf, 2, 1); rd(n, nb, "x1")
            a("s_waitcnt lgkmcnt(6)"); mf(buf, 3, 0); rd(n, nb, "x2"); mf(buf, 3, 1); rd(n, nb, "x3"); csum(buf)
        else:
            a("s_waitcnt lgkmcnt(5)"); mf(buf, 0, 0)
            a(f"s_cmp_eq_u32 s50, 9\ns_cbranch_scc1 {last}\ns_add_u32 s51, s51, 1\ns_cmp_eq_u32 s51, 3")
            a("s_waitcnt lgkmcnt(3)"); mf(buf, 0, 1)
            a(f"s_cselect_b32 s51, 0, s51\ns_cselect_b32 s53, {-2*QS}, s52")
            for r in range(8, 11): a(f"v_add_u32 v{r}, s53, v{r}")
            a("s_waitcnt lgkmcnt(2)"); mf(buf, 1, 0)
            for r in range(11, 14): a(f"v_add_u32 v{r}, s53, v{r}")
            a("s_waitcnt lgkmcnt(0)"); mf(buf, 1, 1)
            a("s_barrier")
            rd(0, nb, "x0"); rd(0, nb, "w0", 0); mf(buf, 2, 0); rd(0, nb, "w0", 1); rd(0, nb, "w1", 0); mf(buf, 2, 1); rd(0, nb, "w1", 1); rd(0, nb, "x1")
            mf(buf, 3, 0); rd(0, nb, "x2"); rd(0, nb, "x3"); a("s_add_u32 s50, s50, 1"); mf(buf, 3, 1); csum(buf)
            if OPT.get("ls9") == 12:
                for c in range(1, 5):
                    LL = a.newlab("cs"); a(f"s_cmp_eq_u32 s50, {2*c}\ns_cbranch_scc0 {LL}"); lstamp(a, c); a.lab(LL)
    a(f"s_branch {L}")
    a.lab(last)
    a("s_waitcnt lgkmcnt(0)")
    csum(1)
    for i, cf in ((0, 1), (1, 0), (1, 1), (2, 0), (2, 1), (3, 0), (3, 1)): mf(1, i, cf)
def cons_epi(a, vori):
    ws = s(SWS, 4)
    a(f"s_lshl_b32 s50, s{SM}, 3\ns_lshl_b32 s51, s48, 2\ns_add_u32 s50, s50, s51\ns_mul_i32 s50, s50, 40960")
    a(f"s_lshl_b32 s53, s{SN}, 7\ns_lshl_b32 s54, s49, 6\ns_add_u32 s53, s53, s54")
    a(f"s_lshl_b32 s51, s48, 9\ns_add_u32 s51, s51, {L_ST}\ns_lshl_b32 s54, s49, 8\ns_lshl_b32 s55, s48, 7\ns_add_u32 s54, s54, s55\ns_add_u32 s54, s54, {L_CSX}")
    a(f"v_and_b32 v14, 31, v{VL}\nv_lshrrev_b32 v15, 5, v{VL}\nv_lshlrev_b32 v4, 2, v14\nv_lshlrev_b32 v5, 4, v15")
    if not vori:
        a("v_add_u32 v4, s51, v4\nv_add_u32 v5, s54, v5\nv_xor_b32 v8, 128, v5")
        for k in range(4): a(f"ds_read_b128 {v(CS_+4*k,4)}, v5 offset:{k*32}\nds_read_b128 {v(32+4*k,4)}, v8 offset:{k*32}")
        for i in range(4): a(f"ds_read_b32 v{16+2*i}, v4 offset:{i*128}\nds_read_b32 v{24+2*i}, v4 offset:{1024+i*128}")
        a(f"s_cmp_lt_u32 s{SN}, 5\ns_cselect_b32 s55, {hexf(QSCALE)}, 1.0\ns_cselect_b32 s56, 0, {OFF_K - OFF_Q - 160*256}\ns_add_u32 s56, s56, {OFF_Q}\ns_add_u32 s56, s56, s50\ns_lshl_b32 s57, s53, 6\ns_add_u32 s56, s56, s57")
        a("v_lshlrev_b32 v4, 3, v14\nv_lshl_add_u32 v4, v15, 8, v4\ns_lshl_b32 s57, s48, 11\nv_add_u32 v4, s57, v4\nv_xor_b32 v5, 2048, v4\ns_waitcnt lgkmcnt(0)")
        for r in range(16, 32, 2): a(f"v_mul_f32 v{r}, s55, v{r}")
        for i in range(4):
            for cf in range(2):
                b = CA + 16*(2*i+cf); cs = CS_ if cf == 0 else 32
                for p in range(8): a(f"v_pk_mul_f32 {v(b+2*p,2)}, {v(b+2*p,2)}, {v(16+2*i,2)} op_sel_hi:[1,0]")
                for p in range(8): a(f"v_pk_fma_f32 {v(b+2*p,2)}, {v(cs+2*p,2)}, {v(24+2*i,2)}, {v(b+2*p,2)} op_sel_hi:[1,0,1] neg_lo:[0,1,0] neg_hi:[0,1,0]")
                for p in range(8): a(f"v_cvt_pk_bf16_f32 v{b+p}, v{b+2*p}, v{b+2*p+1}")
                for q in range(4): a(f"buffer_store_dwordx2 {v(b+2*q,2)}, v{4+cf}, {ws}, s56 offen offset:{(2*q)*256} {ST}")
            if i < 3: a("s_add_u32 s56, s56, 40960")
    else:
        a(f"v_add_u32 v4, s54, v4\nv_add_u32 v9, s51, v5\nv_xor_b32 v8, 128, v4")
        a(f"ds_read_b32 v{CS_}, v4\nds_read_b32 v{CS_+2}, v8")
        a(f"s_lshl_b32 s56, s53, 4\ns_add_u32 s56, s56, s50\ns_add_u32 s56, s56, {OFF_V - 1280*16}\ns_add_u32 s57, s56, 20480")
        a("v_mul_u32_u24 v4, 10240, v15\nv_lshl_add_u32 v4, v14, 4, v4\ns_lshl_b32 s55, s48, 9\nv_add_u32 v4, s55, v4\nv_xor_b32 v5, 512, v4")
        def st(i):
            for k in range(4): a(f"ds_read_b128 {v(16+4*k,4) if not i & 1 else v(212+4*k,4)}, v9 offset:{i*128+k*32}\nds_read_b128 {v(32+4*k,4) if not i & 1 else v(228+4*k,4)}, v9 offset:{1024+i*128+k*32}")
        st(0)
        for i in range(4):
            if i < 3: st(i+1)
            a(f"s_waitcnt lgkmcnt({8 if i < 3 else 0})")
            Rr, RM = (16, 32) if not i & 1 else (212, 228)
            for cf in range(2):
                b = CA + 16*(2*i+cf)
                for p in range(8): a(f"v_pk_mul_f32 {v(b+2*p,2)}, {v(b+2*p,2)}, {v(Rr+2*p,2)}")
                for p in range(8): a(f"v_pk_fma_f32 {v(b+2*p,2)}, {v(RM+2*p,2)}, {v(CS_+2*cf,2)}, {v(b+2*p,2)} op_sel_hi:[1,0,1] neg_lo:[0,1,0] neg_hi:[0,1,0]")
                for p in range(8): a(f"v_cvt_pk_bf16_f32 v{b+p}, v{b+2*p}, v{b+2*p+1}")
                for m in range(2): a(f"buffer_store_dwordx4 {v(b+4*m,4)}, v{4+cf}, {ws}, s{56+m} offen {ST}")
            if i < 3: a("s_add_u32 s56, s56, 40960\ns_add_u32 s57, s57, 40960")

NA, NB_ = 144, 160
def n_dir(a, slot, c):
    r = NB_ + 32*slot + 4*c
    if c == 4: a(f"s_add_u32 s{S_DO}, s{S_DO}, s70")
    a(f"buffer_load_dwordx4 {v(r,4)}, v{MDIR}, {s(SWS,4)}, s{S_DO} offen offset:{(c&3)*1024} {LD}")
    if c == 7: a(f"s_add_u32 s{S_DO}, s{S_DO}, s71")
def n_last(a, slot):
    a("s_waitcnt vmcnt(0)")
    for fb in range(4):
        for rd in range(2): a(f"ds_read_b64_tr_b16 {v(NA+4*fb+2*rd,2)}, v{MTR+fb} offset:{slot*4096+rd*2048}")
    a(f"v_add_u32 v10, s66, v{MDIR}\ns_setprio 3\ns_waitcnt lgkmcnt(0)")
    out = [(g, c, (g*4+c-4)*1024) for g in range(2) for c in range(4, 8)] + [(g, c, 8192+((g-2)*8+c)*1024) for g in range(2, 4) for c in range(8)]
    own = [(g, c, None) for g in range(2) for c in range(4)]
    seq = out + own
    LAG = 5
    for n_ in range(len(seq) + LAG):
        if n_ < len(seq):
            g, c, _ = seq[n_]; acc = v(16 + (g*8+c)*4, 4)
            a(f"v_mfma_f32_16x16x32_bf16 {acc}, {v(NA+4*g,4)}, {v(NB_+32*slot+4*c,4)}, {acc}")
        if LAG <= n_ < len(out) + LAG:
            g, c, off = seq[n_-LAG]
            if n_ == LAG: a("s_nop 3")
            a(f"ds_write_b128 v10, {v(16+(g*8+c)*4,4)} offset:{off}")
def n_body(a, slot, wait, loads):
    a(f"s_waitcnt vmcnt({wait})")
    for fb in range(4):
        for rd in range(2): a(f"ds_read_b64_tr_b16 {v(NA+4*fb+2*rd,2)}, v{MTR+fb} offset:{slot*4096+rd*2048}")
    a("s_waitcnt lgkmcnt(0)")
    if loads: mlp_dma(a, slot)
    for c in range(8):
        for fb in range(4):
            acc = v(16 + (fb*8+c)*4, 4)
            a(f"v_mfma_f32_16x16x32_bf16 {acc}, {v(NA+4*fb,4)}, {v(NB_+32*slot+4*c,4)}, {acc}")
        if loads: n_dir(a, slot, c)
def n_epi(a):
    kw = SKW; ws = s(SWS, 4)
    l10(a, 1)
    for n_, (x_, off) in enumerate(((1, 0), (2, 8192), (3, 8192+4096))):
        a(f"s_xor_b32 s68, s{kw}, {x_}\ns_mul_i32 s68, s68, {XSTR}\ns_add_u32 s68, s68, {XB+off}\nv_add_u32 v{11+n_}, s68, v{MDIR}")
    a(f"s_lshl_b32 s65, s{SFT}, 1\ns_lshr_b32 s69, s{kw}, 1\ns_add_u32 s65, s65, s69\ns_mul_i32 s65, s65, 5120\ns_add_u32 s65, s65, {OFF_G}")
    a(f"s_lshl_b32 s69, s{SDT1}, 3\ns_and_b32 s68, s{kw}, 1\ns_lshl_b32 s68, s68, 2\ns_add_u32 s69, s69, s68")
    for k in range(4):
        a(f"s_add_u32 s68, s69, {k}\ns_mul_i32 s70, s68, 52\ns_lshr_b32 s70, s70, 8\ns_mul_i32 s70, s70, {54*5120-5120}\ns_lshl_b32 s68, s68, 10\ns_add_u32 s70, s70, s68\ns_add_u32 s{50+k}, s70, s65")
    a(f"s_mov_b32 s72, {hexf(GC2)}\ns_mov_b32 s73, {hexf(GC2)}\nv_mov_b32 v14, {hexf(GC1)}\nv_mov_b32 v15, v14")
    lds_sync(a, C_MP, 4, ls=0)
    l10(a, 2)
    def rd(k):
        for n_ in range(3):
            for g in range(2): a(f"ds_read_b128 {v(160+24*k+8*n_+4*g,4)}, v{11+n_} offset:{g*(4096 if n_ == 0 else 8192)+k*1024}")
    rd(0); rd(1)
    for k in range(4):
        if k < 2: rd(k+2)
        a(f"s_waitcnt lgkmcnt({[12, 12, 6, 0][k]})")
        U = [16+4*k, 16+4*k+2, 48+4*k, 48+4*k+2]; T = 144
        for n_ in range(3):
            for q in range(4): a(f"v_pk_add_f32 {v(U[q],2)}, {v(U[q],2)}, {v(160+24*k+8*n_+2*q,2)}")
        for q in range(4): a(f"v_pk_mul_f32 {v(T+2*q,2)}, {v(U[q],2)}, {v(U[q],2)}")
        for q in range(4): a(f"v_pk_fma_f32 {v(T+2*q,2)}, {v(T+2*q,2)}, s[72:73], v[14:15]")
        for q in range(4): a(f"v_pk_mul_f32 {v(T+2*q,2)}, {v(T+2*q,2)}, {v(U[q],2)}")
        for q in range(8): a(f"v_exp_f32 v{T+q}, v{T+q}")
        a("s_nop 0")
        for q in range(4): a(f"v_pk_add_f32 {v(T+2*q,2)}, {v(T+2*q,2)}, 1.0 op_sel_hi:[1,0]")
        for q in range(8): a(f"v_rcp_f32 v{T+q}, v{T+q}")
        a("s_nop 0")
        for q in range(4): a(f"v_pk_mul_f32 {v(T+2*q,2)}, {v(T+2*q,2)}, {v(U[q],2)}")
        for q in range(4): a(f"v_cvt_pk_bf16_f32 v{152+4*(k&1)+q}, v{T+2*q}, v{T+2*q+1}")
        a(f"buffer_store_dwordx4 {v(152+4*(k&1),4)}, v{MDIR}, {ws}, s{50+k} offen {ST}")
        if k == 1: l10(a, 3)

NB1, NB2 = 16*56, 14*64
def prefetch(a, sid, nw, n0, n1, thr=None):
    L = a.newlab("pf"); w2 = a.newlab("pfw"); nx = a.newlab("pfn"); done = a.newlab("pfd")
    a(f"v_lshlrev_b32 v4, 7, v{VL}\ns_add_u32 s50, s{sid}, {n0}")
    a.lab(L)
    a(f"s_cmp_ge_u32 s50, {n1}\ns_cbranch_scc1 {done}\ns_cmp_ge_u32 s50, {NB1}\ns_cbranch_scc1 {w2}")
    a(f"s_mul_i32 s51, s50, 1171\ns_lshr_b32 s51, s51, 16\ns_mul_i32 s52, s51, 56\ns_sub_u32 s52, s50, s52")
    a(f"s_mul_i32 s53, s52, 37\ns_lshr_b32 s53, s53, 9\ns_mul_i32 s54, s53, 14\ns_sub_u32 s52, s52, s54")
    a(f"s_lshl_b32 s53, s53, 4\ns_add_u32 s51, s51, s53\ns_mul_i32 s51, s51, 110592\ns_lshl_b32 s52, s52, 13\ns_add_u32 s51, s51, s52")
    a(f"buffer_load_dword v255, v4, {s(SW1,4)}, s51 offen\ns_branch {nx}")
    a.lab(w2)
    a(f"s_sub_u32 s51, s50, {NB1}\ns_lshr_b32 s52, s51, 6\ns_bfe_u32 s53, s51, 0x20004\ns_and_b32 s51, s51, 15")
    a(f"s_mul_i32 s54, s53, 14\ns_cmp_eq_u32 s53, 3\ns_cselect_b32 s54, 41, s54\ns_add_u32 s52, s52, s54\ns_lshl_b32 s52, s52, 4\ns_add_u32 s51, s51, s52\ns_lshl_b32 s51, s51, 13")
    a(f"buffer_load_dword v255, v4, {s(SW2,4)}, s51 offen")
    a.lab(nx)
    if thr is not None: a(f"s_waitcnt vmcnt({thr})")
    a(f"s_add_u32 s50, s50, {nw}\ns_branch {L}")
    a.lab(done)

L_WS = L_ST + 2560
def wof_issue(a):
    a(f"s_mul_i32 s61, s{SXCD}, 15\ns_add_u32 s61, s61, s{SJ}")
    a(f"s_lshr_b32 s51, s61, 2\ns_and_b32 s52, s61, 3\ns_mul_i32 s53, s51, 52\ns_lshr_b32 s53, s53, 8\ns_mul_i32 s54, s53, 5\ns_sub_u32 s54, s51, s54")
    a(f"s_lshl_b32 s56, s53, 4\ns_lshl_b32 s57, s54, 2\ns_add_u32 s56, s56, s57\ns_add_u32 s56, s56, s52")
    a(f"s_lshr_b32 s57, s56, 1\ns_mul_i32 s57, s57, 20\ns_and_b32 s56, s56, 1\ns_lshl_b32 s56, s56, 2\ns_add_u32 s56, s56, s57")
    a(f"s_lshl_b32 s57, s53, 3\ns_lshl_b32 s58, s52, 1\ns_add_u32 s57, s57, s58\ns_mul_i32 s57, s57, 20\ns_add_u32 s57, s57, 16")
    a(f"s_cmp_eq_u32 s54, 4\ns_cselect_b32 s56, s57, s56\ns_cselect_b32 s57, 20, 8\ns_cmp_ge_u32 s{SKW}, 2\ns_cselect_b32 s57, s57, 0\ns_add_u32 s56, s56, s57")
    a(f"s_and_b32 s57, s{SKW}, 1\ns_lshl_b32 s57, s57, 1\ns_add_u32 s53, s56, s57\ns_mul_i32 s54, s53, 1280")
    a(f"v_lshrrev_b32 v2, 5, v{VL}\nv_and_b32 v3, 31, v{VL}\nv_mul_u32_u24 v6, 1280, v2\nv_lshl_add_u32 v7, v3, 3, v6\nv_lshl_add_u32 v6, v3, 4, v6")
    a(f"buffer_load_dwordx4 v[32:35], v6, {s(SWO,4)}, s54 offen\nbuffer_load_dwordx4 v[36:39], v6, {s(SWO,4)}, s54 offen offset:512\nbuffer_load_dwordx2 v[40:41], v7, {s(SWO,4)}, s54 offen offset:1024")
    a(f"s_mul_i32 s55, s51, 5120\ns_lshl_b32 s52, s52, 8\ns_add_u32 s55, s55, s52\ns_add_u32 s62, s55, {OFF_WOF}")
def wof_finish(a):
    trs_prep(a, SKW, L_WS, 102400, 54, 214)
    a(f"v_lshrrev_b32 v2, 5, v{VL}\nv_and_b32 v3, 31, v{VL}")
    a(f"s_mul_i32 s54, s{SKW}, 2688\ns_add_u32 s54, s54, {L_WS}\nv_mul_u32_u24 v4, 1344, v2\nv_add_u32 v4, s54, v4\nv_lshl_add_u32 v5, v3, 3, v4\nv_lshl_add_u32 v4, v3, 4, v4\ns_waitcnt vmcnt({1 if OPT.get('w2m', 0) in (1, 3) else 0})")
    a("ds_write_b128 v4, v[32:35]\nds_write_b128 v4, v[36:39] offset:512\nds_write_b64 v5, v[40:41] offset:1024")
    lds_sync(a, C_MP, 4, ls=1)
    trs_go(a, SKW, 62, 214)
    a(f"s_mov_b32 s61, {G_W}")
    arrive(a, C_W1, 4, 61, 80)

def attn_setup(a):
    pass
def attn2(a):
    ws = s(SWS, 4); w = SWAVE; shd, sb = SHD, SBQ
    KB, VB = 0, 20480
    attn_ids(a, shd, sb)
    a(f"s_lshl_b32 s50, s{sb}, 3\ns_sub_u32 s51, s50, 8\ns_cmp_eq_u32 s{sb}, 0\ns_cselect_b32 s52, 0, s51\ns_cmp_ge_u32 s{w}, 2\ns_cselect_b32 s51, s51, s52\ns_lshl_b32 s52, s{w}, 2\ns_add_u32 s51, s51, s52\ns_mul_i32 s51, s51, 40960")
    attn_masks(a)
    a(f"v_and_b32 v2, 31, v{VL}\nv_lshrrev_b32 v3, 5, v{VL}\nv_lshlrev_b32 v4, 3, v2\nv_lshl_add_u32 v5, v3, 9, v4\nv_mov_b32 v6, {OOB}\nv_cmp_eq_u32 vcc, 0, v3\ns_nop 1\nv_cndmask_b32 v6, v6, v4, vcc")
    a(f"s_add_u32 s52, s50, s{w}\ns_mul_i32 s53, s52, 40960\ns_mul_i32 s54, s{shd}, 1280\ns_add_u32 s53, s53, s54\ns_add_u32 s62, s53, {OFF_Q}\ns_add_u32 s63, s62, {4*40960}")
    a(f"s_lshl_b32 s56, s52, 15\ns_lshl_b32 s53, s{shd}, 10\ns_add_u32 s56, s56, s53\ns_add_u32 s56, s56, {OFF_O1}")
    a(f"s_lshl_b32 s61, s52, 13\ns_lshl_b32 s53, s{shd}, 8\ns_add_u32 s61, s61, s53\ns_add_u32 s61, s61, {OFF_O2}")
    a(f"s_add_u32 s64, s54, s51\ns_add_u32 s64, s64, {OFF_K}\ns_mov_b32 s55, 39680")
    for i in range(5):
        a(f"v_add_u32 v{16+i}, {64*i}, v{VL}\nv_mul_u32_u24 v{16+i}, 205, v{16+i}\nv_lshrrev_b32 v{16+i}, 14, v{16+i}\nv_mul_u32_u24 v{16+i}, s55, v{16+i}\nv_lshl_add_u32 v{16+i}, v{VL}, 4, v{16+i}")
    a("v_add_u32 v20, 4096, v20")
    a(f"v_mul_u32_u24 v7, 49, v{VL}\nv_lshrrev_b32 v7, 10, v7\nv_mul_u32_u24 v7, {10240-336}, v7\nv_lshl_add_u32 v7, v{VL}, 4, v7")
    a(f"s_mul_i32 s65, s{shd}, 320\ns_add_u32 s65, s65, s51\ns_add_u32 s65, s65, {OFF_V}\ns_mul_i32 s54, s{w}, 5376\ns_add_u32 s54, s54, {VB}\ns_mul_i32 s66, s{w}, 5120")
    a(f"s_mul_i32 s53, s{w}, 1280\ns_add_u32 s53, s53, {KB}\nv_add_u32 v8, s53, v5\nv_add_u32 v9, s53, v4")
    a(f"v_min_u32 v10, 20, v2\nv_cmp_lt_u32 vcc, 27, v2\nv_mul_u32_u24 v13, 336, v3\ns_nop 0\nv_cndmask_b32_e64 v10, v10, 4, vcc")
    a(f"s_mul_i32 s53, s{w}, 1344\ns_add_u32 s53, s53, {VB}\nv_lshl_add_u32 v10, v10, 4, v13\nv_add_u32 v10, s53, v10")
    a(f"v_lshlrev_b32 v11, 4, v2\nv_lshl_add_u32 v11, v3, 9, v11\nv_mov_b32 v12, v6")
    a(f"v_and_b32 v13, 15, v{VL}\nv_mul_u32_u24 v13, 336, v13\nv_add_u32 v13, s54, v13")
    a("v_mov_b32 v24, 0x3f803f80\nv_mov_b32 v25, v24\nv_mov_b32 v26, v24\nv_mov_b32 v27, v24")
    a(f"s_sub_u32 s57, 8, s{w}\ns_cmp_eq_u32 s{sb}, 0\ns_cselect_b32 s57, s57, 0\ns_cselect_b32 s58, 4, 0")
    stamp(a, 4)
    oth = a.newlab("aw"); go = a.newlab("ag")
    a(f"s_cmp_lg_u32 s{w}, 0\ns_cbranch_scc1 {oth}")
    lds_wait(a, C_QA, 4)
    if OPT.get("al"):
        nh = a.newlab("al")
        a(f"s_cmp_eq_u32 s{SHAS1}, 0\ns_cbranch_scc1 {nh}")
        lds_wait(a, C_MP if OPT["al"] == 1 else C_GA, 4)
        a.lab(nh)
    a(f"s_sub_u32 s53, s{sb}, 1\nv_add_u32 v2, s53, v{VL}\nv_max_i32 v2, 0, v2\nv_lshlrev_b32 v2, 8, v2\ns_mov_b32 s53, {G_Q+128}")
    gpoll(a, 2, SWS, "s53", 1, 2)
    lds_set(a, C_AGO)
    a(f"s_branch {go}")
    a.lab(oth)
    lds_wait(a, C_AGO, 1, ls=1)
    a.lab(go)
    stamp(a, 5, OPT.get("mst") == 5)
    a(f"s_mov_b32 m0, s66")
    a(f"buffer_load_dwordx2 {v(AQ,2)}, v5, {ws}, s62 offen {LD}\nbuffer_load_dwordx2 {v(AQ+2,2)}, v5, {ws}, s62 offen offset:256 {LD}\nbuffer_load_dwordx2 {v(AQ+4,2)}, v6, {ws}, s62 offen offset:1024 {LD}")
    for i in range(5):
        if i == 4: a(f"s_add_u32 m0, s66, 4096\ns_nop 0")
        a(f"buffer_load_dwordx4 v{16+i}, {ws}, s64 offen offset:{(i&3)*1024} {LD} lds")
    for k in range(6):
        a(f"s_add_u32 m0, s54, {k*1008}")
        a("s_mov_b64 exec, 0x1fffff" if k == 5 else "s_nop 0")
        a(f"buffer_load_dwordx4 v7, {ws}, s65 offen {LD} lds\ns_add_u32 s65, s65, 30720")
    a("s_mov_b64 exec, -1")
    a(f"buffer_load_dwordx2 {v(AQ+6,2)}, v5, {ws}, s63 offen {LD}\nbuffer_load_dwordx2 {v(AQ+8,2)}, v5, {ws}, s63 offen offset:256 {LD}\nbuffer_load_dwordx2 {v(AQ+10,2)}, v6, {ws}, s63 offen offset:1024 {LD}")
    a(f"s_setprio {OPT.get('prioa', 0)}")
    FAST = OPT.get("fast", 1)
    if FAST:
        a(f"v_and_b32 v2, 31, v{VL}\nv_lshrrev_b32 v3, 5, v{VL}\nv_mul_u32_u24 v3, 1280, v3\nv_lshl_add_u32 v2, v2, 3, v3\nv_add_u32 v2, s66, v2\ns_waitcnt vmcnt(9)")
        for t in range(2):
            for u in range(5): a(f"ds_read_b64 {v(28+10*t+2*u,2)}, v2 offset:{t*2560+u*256}")
        for t in range(2):
            a(f"s_waitcnt lgkmcnt({5-5*t})\nv_mov_b32 v{14+t}, 0")
            for u in range(10): a(f"v_dot2_f32_bf16 v{14+t}, v{28+10*t+u}, v{28+10*t+u}, v{14+t}")
        a("s_nop 2\nv_max_f32 v14, v14, v15")
        for sh in (8, 4, 2, 1): a(f"s_nop 1\nv_max_f32_dpp v14, v14, v14 row_ror:{sh} row_mask:0xf bank_mask:0xf")
        for sw in ("v_permlane16_swap_b32", "v_permlane32_swap_b32"): a(f"v_mov_b32 v15, v14\ns_nop 1\n{sw} v14, v15\nv_max_f32 v14, v14, v15")
        a(f"s_lshl_b32 s53, s{w}, 2\ns_add_u32 s53, s53, {L_KN}\nv_mov_b32 v15, s53\nds_write_b32 v15, v14")
    else:
        a("s_waitcnt vmcnt(9)")
    lds_sync(a, C_AK, 4, ls=0)
    if FAST:
        a(f"v_mov_b32 v2, {L_KN}\nds_read_b128 v[28:31], v2\ns_waitcnt lgkmcnt(0)\nv_max3_f32 v28, v28, v29, v30\nv_max_f32 v254, v28, v31")
    ast(a, 1)
    if OPT.get("ah"):
        nh = a.newlab("ah")
        a(f"s_cmp_eq_u32 s{SHAS1}, 0\ns_cbranch_scc1 {nh}")
        lds_wait(a, C_GA, OPT["ah"])
        a.lab(nh)
    a("s_mov_b32 s59, 0")
    fin = a.newlab("afin")
    if OPT.get("noac"):
        lds_sync(a, C_AV, 4, vt=14, ls=0); a(f"s_branch {fin}")
    L = a.newlab("atask"); vw = a.newlab("avw"); vwb = a.newlab("avb")
    inv = [a.newlab("inv") for _ in range(8)]; invb = [a.newlab("invb") for _ in range(8)]
    a(".p2align 3")
    a.lab(L)
    def kread(p):
        b = AK + 6*(p % 3)
        a(f"ds_read_b64 {v(b,2)}, v8 offset:{p*1280}\nds_read_b64 {v(b+2,2)}, v8 offset:{p*1280+256}\nds_read_b64 {v(b+4,2)}, v9 offset:{p*1280+1024}")
    def vread(p):
        b = AV + 8*(p % 2)
        for m in range(2): a(f"ds_read_b128 {v(b+4*m,4)}, v10 offset:{p*1344+m*672}")
    def mx(p):
        if p < 8:
            a(f"s_cmp_gt_u32 s57, {p}\ns_cbranch_scc1 {inv[p]}")
            a.lab(invb[p])
        for q in range(8):
            d = 2 + (q & 1)
            if p == 0 and q < 2: a(f"v_max_f32 v{d}, v{AS+2*q}, v{AS+2*q+1}")
            else: a(f"v_max3_f32 v{d}, v{d}, v{AS+16*p+2*q}, v{AS+16*p+2*q+1}")
    def m1(p):
        b = AK + 6*(p % 3); S = v(AS+16*p, 16)
        C = v(AME,16) if p == 0 else v(AMD,16) if p == 8 else "0"
        a(f"v_mfma_f32_32x32x16_bf16 {S}, {v(b,4)}, {v(AQ,4)}, {C}")
    def m2(p):
        b = AK + 6*(p % 3); S = v(AS+16*p, 16)
        a(f"v_mfma_f32_32x32x8bf16_1k {S}, {v(b+4,2)}, {v(AQ+4,2)}, {S}")
    def pv(p, S=None, ms=(0, 1)):
        b = AV + 8*(p % 2); S = AS+16*p if S is None else S
        for m in ms:
            C = "0" if (p == 0 and m == 0) else v(AO,16)
            a(f"v_mfma_f32_32x32x16_bf16 {v(AO,16)}, {v(b+4*m,4)}, {v(S+4*m,4)}, {C}")
    kread(0); kread(1); kread(2)
    join = a.newlab("ajoin")
    if FAST:
        slow = a.newlab("aslow"); fvw = a.newlab("afv"); fvb = a.newlab("afb")
        finv = [a.newlab("finv") for _ in range(8)]; finvb = [a.newlab("finvb") for _ in range(8)]
        a("v_mov_b32 v2, 0")
        for r in range(6): a(f"v_dot2_f32_bf16 v2, v{AQ+r}, v{AQ+r}, v2")
        a(f"s_nop 2\nv_mov_b32 v3, v2\ns_nop 1\nv_permlane32_swap_b32 v2, v3\nv_add_f32 v2, v2, v3\nv_mul_f32 v2, v2, v254\nv_cmp_nge_f32 vcc, {hexf(3600.0)}, v2\ns_cbranch_vccnz {slow}")
        def SB(p): return AS + 16*(p % 3)
        def fm1(p):
            b = AK + 6*(p % 3); C = v(AME,16) if p == 0 else v(AMD,16) if p == 8 else "0"
            a(f"v_mfma_f32_32x32x16_bf16 {v(SB(p),16)}, {v(b,4)}, {v(AQ,4)}, {C}")
        def fm2(p):
            b = AK + 6*(p % 3)
            a(f"v_mfma_f32_32x32x8bf16_1k {v(SB(p),16)}, {v(b+4,2)}, {v(AQ+4,2)}, {v(SB(p),16)}")
        a("s_waitcnt lgkmcnt(6)"); fm1(0); fm2(0)
        a(f"s_cmp_eq_u32 s59, 0\ns_cbranch_scc1 {fvw}")
        a.lab(fvb)
        vread(0); kread(3)
        a("s_waitcnt lgkmcnt(8)"); fm1(1); fm2(1)
        a("s_nop 7")
        ast(a, 2, 1, 7)
        for p in range(9):
            S = SB(p)
            if p < 8:
                a(f"s_cmp_gt_u32 s57, {p}\ns_cbranch_scc1 {finv[p]}")
                a.lab(finvb[p])
            ex = [f"v_exp_f32 v{S+q}, v{S+q}" for q in range(16)]
            for q in range(0, 4): a(ex[q])
            if p > 0: pv(p-1, SB(p-1), (0,))
            for q in range(4, 8): a(ex[q])
            if p > 0: pv(p-1, SB(p-1), (1,))
            if p + 1 < 9: vread(p+1)
            for q in range(8, 12): a(ex[q])
            if p + 2 < 9:
                a(f"s_waitcnt lgkmcnt({(5 if p + 3 < 9 else 2) + 2})"); fm1(p+2)
            for q in range(12, 16): a(ex[q])
            if p + 2 < 9: fm2(p+2)
            else: a("s_nop 0")
            if p + 4 < 9: kread(p+4)
            for q in range(8): a(f"v_cvt_pk_bf16_f32 v{S+q}, v{S+2*q}, v{S+2*q+1}")
            n = (2 if p + 1 < 9 else 0) + (3 if p + 3 < 9 else 0) + (3 if p + 4 < 9 else 0)
            a(f"s_waitcnt lgkmcnt({n})")
        ast(a, 3, 1, 7)
        a("s_nop 0"); pv(8, SB(8))
        a(f"s_branch {join}")
        for p in range(8):
            a.lab(finv[p])
            for r in range(16): a(f"v_mov_b32 v{SB(p)+r}, {NEGINF}")
            a(f"s_branch {finvb[p]}")
        a.lab(fvw)
        a("s_waitcnt vmcnt(0)\nv_mov_b32 v4, 0x3f803f80\nv_mov_b32 v5, v4\nv_mov_b32 v6, v4\nv_mov_b32 v7, v4\nds_write_b128 v13, v[4:7] offset:320")
        lds_sync(a, C_AV, 4, vt=14, ls=0)
        a(f"s_branch {fvb}")
        a.lab(slow)
    a("s_waitcnt lgkmcnt(6)"); m1(0)
    for p in range(9):
        if p + 1 < 9:
            a(f"s_waitcnt lgkmcnt({3 if p + 2 < 9 else 0})"); m1(p+1)
        m2(p)
        if p + 3 < 9: kread(p+3)
        if p >= 2: mx(p-2)
    a(f"s_cmp_eq_u32 s59, 0\ns_cbranch_scc1 {vw}")
    a.lab(vwb)
    vread(0)
    mx(7)
    a("s_nop 0")
    mx(8)
    a("v_max_f32 v2, v2, v3\nv_mov_b32 v3, v2\ns_nop 1\nv_permlane32_swap_b32 v2, v3\nv_max_f32 v2, v2, v3")
    for p in range(9):
        b = AS + 16*p
        for q in range(8): a(f"v_pk_add_f32 {v(b+2*q,2)}, {v(b+2*q,2)}, v[2:3] op_sel_hi:[1,0] neg_lo:[0,1] neg_hi:[0,1]")
        if p > 0:
            a("s_waitcnt lgkmcnt(0)"); pv(p-1)
        if p + 1 < 9 and p > 0: vread(p+1)
        if p == 0: vread(1)
        for q in range(16): a(f"v_exp_f32 v{b+q}, v{b+q}")
        a("s_nop 0")
        for q in range(8): a(f"v_cvt_pk_bf16_f32 v{b+q}, v{b+2*q}, v{b+2*q+1}")
    a("s_waitcnt lgkmcnt(0)\ns_nop 0"); pv(8)
    a.lab(join)
    for r in range(6): a(f"v_mov_b32 v{AQ+r}, v{AQ+6+r}")
    a(f"v_add_u32 v8, {4*1280}, v8\nv_add_u32 v9, {4*1280}, v9\nv_add_u32 v10, {4*1344}, v10\ns_sub_u32 s57, s57, s58\ns_nop 2")
    a(f"v_mov_b32 v2, v{AO+8}\nv_mov_b32 v3, v{AO+8}\ns_nop 1\nv_permlane32_swap_b32 v2, v3\nv_rcp_f32 v2, v3\ns_nop 0")
    for q in range(6): a(f"v_pk_mul_f32 {v(AO+2*q,2)}, {v(AO+2*q,2)}, v[2:3] op_sel_hi:[1,0]")
    for q in range(6): a(f"v_cvt_pk_bf16_f32 v{4+q if q < 4 else 10+q}, v{AO+2*q}, v{AO+2*q+1}")
    a(f"s_setprio 2\nbuffer_store_dwordx4 v[4:7], v11, {ws}, s56 offen {ST}\nbuffer_store_dwordx2 v[14:15], v12, {ws}, s61 offen {ST}\ns_setprio {OPT.get('prioa', 0)}")
    ast(a, 3, 0); ast(a, 4, 1); ast(a, 1, 0, 7); ast(a, 4, 1, 7)
    a(f"s_add_u32 s56, s56, {4*32768}\ns_add_u32 s61, s61, {4*8192}\ns_add_u32 s59, s59, 1\ns_cmp_lt_u32 s59, 2\ns_cbranch_scc1 {L}")
    a(f"s_branch {fin}")
    for p in range(8):
        a.lab(inv[p])
        for r in range(16): a(f"v_mov_b32 v{AS+16*p+r}, {NEGINF}")
        a(f"s_branch {invb[p]}")
    a.lab(vw)
    a("s_waitcnt vmcnt(0)\nv_mov_b32 v4, 0x3f803f80\nv_mov_b32 v5, v4\nv_mov_b32 v6, v4\nv_mov_b32 v7, v4\nds_write_b128 v13, v[4:7] offset:320")
    lds_sync(a, C_AV, 4, vt=14, ls=0)
    a(f"s_branch {vwb}")
    a.lab(fin)

def wo2(a):
    skw = SKW; ws = s(SWS, 4)
    a(f"v_lshrrev_b32 v2, 4, v{VL}\nv_and_b32 v3, 15, v{VL}\nv_lshlrev_b32 v8, 4, v3\nv_lshl_add_u32 v8, v2, 9, v8\nv_lshlrev_b32 v10, 3, v3\nv_lshl_add_u32 v10, v2, 9, v10")
    a(f"s_lshl_b32 s50, s{SST}, 16\ns_lshl_b32 s51, s{skw}, 13\ns_add_u32 s50, s50, s51\ns_add_u32 s50, s50, {OFF_O1}")
    a(f"s_lshl_b32 s61, s{SST}, 14\ns_lshl_b32 s51, s{skw}, 11\ns_add_u32 s61, s61, s51\ns_add_u32 s61, s61, {OFF_O2}")
    for i in range(4):
        a(f"s_xor_b32 s51, s{skw}, {i}\ns_lshr_b32 s56, s51, 1\ns_and_b32 s51, s51, 1\ns_lshl_b32 s57, s56, 15\ns_lshl_b32 s58, s51, 8\ns_add_u32 s57, s57, s58\ns_add_u32 s{52+i}, s50, s57")
        a(f"s_lshl_b32 s57, s56, 13\ns_lshl_b32 s58, s51, 7\ns_add_u32 s57, s57, s58\ns_add_u32 s{62+i}, s61, s57")
    oth = a.newlab("ow"); go = a.newlab("og")
    a(f"s_cmp_lg_u32 s{skw}, 0\ns_cbranch_scc1 {oth}")
    a(f"s_lshr_b32 s51, s{SST}, 2\ns_lshl_b32 s51, s51, 8\ns_add_u32 s51, s51, {G_O+128}\nv_mov_b32 v2, 0")
    gpoll(a, 2, SWS, "s51", 1, 1)
    lds_set(a, C_OGO)
    a(f"s_branch {go}")
    a.lab(oth)
    lds_wait(a, C_OGO, 1, ls=1)
    a.lab(go)
    stamp(a, 2, OPT.get("mst") == 5)
    def aload(st):
        for i in range(4):
            r = WA+16*(st%3)+4*i
            if st < 4:
                a(f"buffer_load_dwordx4 {v(r,4)}, v8, {ws}, s{52+i} offen offset:{(st&1)*2048} {LD}")
                if st == 1: a(f"s_add_u32 s{52+i}, s{52+i}, 4096")
            else:
                for e in range(2): a(f"buffer_load_dwordx2 {v(r+2*e,2)}, v10, {ws}, s{62+i} offen offset:{e*256} {LD}")
    for st in range(3): aload(st)
    for st in range(5):
        a(f"s_waitcnt vmcnt({[8, 8, 12, 8, 0][st]})")
        for db in range(5):
            for i in range(4):
                acc = v(MACC+(i*5+db)*4, 4)
                a(f"v_mfma_f32_16x16x32_bf16 {acc}, {v(WB+20*st+4*db,4)}, {v(WA+16*(st%3)+4*i,4)}, {'0' if st == 0 else acc}")
        if st + 3 < 5: aload(st+3)

def colsum4(a, snt, ldsbase, st):
    a(f"v_lshrrev_b32 v2, 4, v{VL}\nv_and_b32 v3, 15, v{VL}\nv_mul_u32_u24 v4, 3840, v2\nv_lshl_add_u32 v4, v3, 4, v4")
    a(f"s_mul_i32 s{st}, s{SKW}, {160*3840}\ns_lshl_b32 s{st+1}, s{snt}, 8\ns_add_u32 s{st}, s{st}, s{st+1}")
    a(f"s_cmp_eq_u32 s{snt}, 15\ns_cbranch_scc0 L_cs_go\ns_barrier\ns_branch L_cs_end")
    a.lab("L_cs_go")
    for i in range(40):
        a(f"buffer_load_dwordx4 v[{32+4*i}:{35+4*i}], v4, {s(SWQ,4)}, s{st} offen\ns_add_u32 s{st}, s{st}, {4*3840}")
        if i == 9: a("s_barrier")
    for c in range(8): a(f"v_mov_b32 v{16+c}, 0")
    for i in range(40):
        a(f"s_waitcnt vmcnt({39-i})")
        for c in range(4):
            a(f"v_lshlrev_b32 v24, 16, v{32+4*i+c}\nv_and_b32 v25, 0xffff0000, v{32+4*i+c}\nv_pk_add_f32 v[{16+2*c}:{17+2*c}], v[{16+2*c}:{17+2*c}], v[24:25]")
    for sw in ("v_permlane32_swap_b32", "v_permlane16_swap_b32"):
        for c in range(8): a(f"v_mov_b32 v{24+c}, v{16+c}")
        a("s_nop 0")
        for c in range(8): a(f"{sw} v{16+c}, v{24+c}")
        for c in range(8): a(f"v_add_f32 v{16+c}, v{16+c}, v{24+c}")
    a(f"s_lshl_b32 s{st}, s{SKW}, 9\ns_add_u32 s{st}, s{st}, {ldsbase}\nv_lshlrev_b32 v4, 5, v3\nv_add_u32 v4, s{st}, v4")
    a("ds_write_b128 v4, v[16:19]\nds_write_b128 v4, v[20:23] offset:16")
    lds_sync(a, C_W2, 4)
    a(f"s_cmp_ge_u32 s{SKW}, 2\ns_cbranch_scc1 L_cs_end")
    a(f"s_lshl_b32 s{st}, s{SKW}, 8\nv_lshlrev_b32 v4, 2, v{VL}\nv_add_u32 v4, s{st}, v4\nv_add_u32 v5, {ldsbase}, v4")
    for w in range(4): a(f"ds_read_b32 v{16+w}, v5 offset:{w*512}")
    a("s_waitcnt lgkmcnt(0)")
    for w in range(1, 4): a(f"v_add_f32 v16, v16, v{16+w}")
    a(f"s_lshl_b32 s{st}, s{snt}, 9\ns_add_u32 s{st}, s{st}, {OFF_CS}")
    a(f"buffer_store_dword v16, v4, {s(SWS,4)}, s{st} offen {ST}")
    a.lab("L_cs_end")

def prologue2(a):
    a(f".globl {NAME}\n.p2align 8\n.type {NAME},@function")
    a.lab(NAME)
    a(f"s_load_dwordx4 s[64:67], s[0:1], 0\ns_load_dwordx4 s[68:71], s[0:1], 72\ns_cmp_ge_u32 s2, 256\ns_cbranch_scc1 L_end")
    if blocks.STAMP:
        for i in range(16): a(f"s_mov_b32 s{84+i}, 0")
    stamp(a, 0)
    if OPT.get("cpf", 1):
        a(f"s_getpc_b64 s[50:51]\ns_sub_u32 s50, s50, .-{NAME}\ns_subb_u32 s51, s51, 0")
        a(f"s_lshr_b32 s52, s2, 3\ns_and_b32 s52, s52, 3\ns_add_u32 s52, s52, 1\ns_lshl_b32 s52, s52, 13\nv_and_b32 v2, 63, v0\nv_lshlrev_b32 v2, 7, v2")
        a(f"v_cmp_le_u32 vcc, 256, v0\nv_mov_b32 v3, s52\nv_and_b32 v4, 0xc0, v0\nv_cndmask_b32 v3, 0, v3, vcc\nv_add_u32 v2, v2, v3\nv_cmp_eq_u32 vcc, 0, v4\ns_mov_b32 s54, L_end-{NAME}\nv_cmp_gt_u32 s[52:53], s54, v2\ns_nop 0\ns_and_b64 vcc, vcc, s[52:53]")
        a(f"s_and_saveexec_b64 s[52:53], vcc\ns_cbranch_execz L_nocpf\nglobal_load_dword v255, v2, s[50:51]")
        a.lab("L_nocpf")
        a("s_mov_b64 exec, -1")
    a(f"s_load_dwordx8 s[56:63], s[0:1], 32\ns_load_dwordx2 {s(SWO,2)}, s[0:1], 16\ns_load_dwordx2 {s(SOUT,2)}, s[0:1], 64")
    a(f"v_lshrrev_b32 v2, 6, v0\nv_and_b32 v{VL}, 63, v0")
    a(f"s_and_b32 s{SXCD}, s2, 7\ns_lshr_b32 s{SJ}, s2, 3")
    a(f"v_readfirstlane_b32 s{SWAVE}, v2")
    for r in SRDS: a(f"s_mov_b32 s{r+2}, {SRDS[r][1]}\ns_mov_b32 s{r+3}, 0x20000")
    ids(a)
    a("s_waitcnt lgkmcnt(0)")
    for r, src in ((SX, 64), (SWQ, 66), (SDBG, 68), (SWS, 70), (SW1, 56), (SB1, 58), (SW2, 60), (SB2, 62)): a(f"s_mov_b64 {s(r,2)}, {s(src,2)}")

def trs_prep8(a, sw, sbase, st, vb):
    a(f"v_lshrrev_b32 v2, 4, v{VL}\nv_and_b32 v3, 15, v{VL}")
    a(f"v_lshrrev_b32 v4, 2, v3\nv_mul_u32_u24 v4, 1344, v4\nv_lshl_add_u32 v4, v2, 5, v4\nv_and_b32 v5, 3, v3\nv_lshl_add_u32 v4, v5, 3, v4")
    a(f"s_lshl_b32 s{st}, s{sw}, 7\ns_add_u32 s{st}, s{st}, s{sbase}\nv_add_u32 v{vb}, s{st}, v4")
    for k in range(3):
        a(f"s_lshl_b32 s{st}, s{sw}, 2\ns_add_u32 s{st}, s{st}, {16*k}\nv_add_u32 v5, s{st}, v2")
        a(f"v_lshrrev_b32 v6, 3, v5\nv_lshlrev_b32 v6, 19, v6\nv_and_b32 v5, 7, v5\nv_lshl_add_u32 v6, v5, 10, v6\nv_lshl_add_u32 v{vb+1+k}, v3, 4, v6")
def trs_prep(a, sw, ldsbase, dt, st, vb):
    a(f"v_lshrrev_b32 v2, 4, v{VL}\nv_and_b32 v3, 15, v{VL}")
    a(f"v_lshrrev_b32 v4, 2, v3\nv_mul_u32_u24 v4, 1344, v4\nv_lshl_add_u32 v4, v2, 5, v4\nv_and_b32 v5, 3, v3\nv_lshl_add_u32 v4, v5, 3, v4")
    a(f"s_lshl_b32 s{st}, s{sw}, 7\ns_add_u32 s{st}, s{st}, {ldsbase}\nv_add_u32 v{vb}, s{st}, v4\ns_mov_b32 s{st+1}, {dt-5120}")
    for k in range(3):
        a(f"s_lshl_b32 s{st}, s{sw}, 2\ns_add_u32 s{st}, s{st}, {16*k}\nv_add_u32 v5, s{st}, v2")
        a(f"v_mul_u32_u24 v6, 52, v5\nv_lshrrev_b32 v6, 8, v6\nv_mul_u32_u24 v6, s{st+1}, v6\nv_lshl_add_u32 v6, v5, 10, v6\nv_lshl_add_u32 v{vb+1+k}, v3, 4, v6")
    a(f"s_cmp_ge_u32 s{sw}, 2\ns_cselect_b64 vcc, -1, 0\nv_mov_b32 v5, {OOB}\nv_cndmask_b32 v{vb+3}, v{vb+3}, v5, vcc")
def trs_go(a, sw, sdst, vb, d=16):
    for k in range(3):
        a(f"ds_read_b64_tr_b16 v[{d+4*k}:{d+1+4*k}], v{vb} offset:{k*512}\nds_read_b64_tr_b16 v[{d+2+4*k}:{d+3+4*k}], v{vb} offset:{k*512+5376}")
    sk = a.newlab("tg")
    for k in range(3):
        if k == 2: a(f"s_cmp_ge_u32 s{sw}, 2\ns_cbranch_scc1 {sk}")
        a(f"s_waitcnt lgkmcnt({4-2*k})\nbuffer_store_dwordx4 v[{d+4*k}:{d+3+4*k}], v{vb+1+k}, {s(SWS,4)}, s{sdst} offen {ST}")
    a.lab(sk)

def m1_bias_init(a):
    z = a.newlab("bz"); d = a.newlab("bd")
    a(f"s_cmp_lg_u32 s{SKW}, 0\ns_cbranch_scc1 {z}\ns_waitcnt vmcnt(36)")
    for fb in range(4):
        for q in range(2):
            a(f"v_lshlrev_b32 v{MACC+fb*20+2*q}, 16, v{192+2*fb+q}\nv_and_b32 v{MACC+fb*20+2*q+1}, 0xffff0000, v{192+2*fb+q}")
        for db in range(1, 5):
            for r in range(4): a(f"v_mov_b32 v{MACC+(fb*5+db)*4+r}, v{MACC+fb*20+r}")
    a(f"s_branch {d}")
    a.lab(z)
    for i in range(80): a(f"v_mov_b32 v{MACC+i}, 0")
    a.lab(d)
def m1_epi(a):
    kw = SKW; ws = s(SWS, 4)
    odd = a.newlab("eo"); j1 = a.newlab("ej"); j2 = a.newlab("ej")
    a(f"v_add_u32 v10, s66, v{MDIR}\ns_and_b32 s65, s{kw}, 1\ns_cmp_eq_u32 s65, 1\ns_nop 3")
    for t in range(10, 20): a(f"ds_write_b128 v10, {v(MACC+4*t,4)} offset:{t*1024}")
    a(f"s_cbranch_scc1 {odd}")
    for t in (3, 4, 8, 9): a(f"ds_write_b128 v10, {v(MACC+4*t,4)} offset:{t*1024}")
    a(f"s_branch {j1}")
    a.lab(odd)
    for t in (0, 1, 2, 5, 6, 7): a(f"ds_write_b128 v10, {v(MACC+4*t,4)} offset:{t*1024}")
    for g in range(2):
        for r in range(8): a(f"v_mov_b32 v{MACC+20*g+r}, v{MACC+20*g+12+r}")
    a.lab(j1)
    l10(a, 1)
    a(f"s_mul_i32 s65, s65, 3072")
    for n_, x_ in enumerate((1, 2, 3)):
        a(f"s_xor_b32 s68, s{kw}, {x_}\ns_mul_i32 s68, s68, {M1STR}\ns_add_u32 s68, s68, s65\ns_add_u32 s68, s68, {M1BASE + (0 if x_ == 1 else 10240)}\nv_add_u32 v{11+n_}, s68, v{MDIR}")
    a(f"s_mul_i32 s68, s{SDT1}, {54*5120}\ns_mul_i32 s69, s{SFT}, 10240\ns_add_u32 s68, s68, s69\ns_lshr_b32 s69, s{kw}, 1\ns_mul_i32 s69, s69, 5120\ns_add_u32 s68, s68, s69\ns_add_u32 s68, s68, s65\ns_add_u32 s68, s68, {OFF_G}")
    a(f"s_mov_b32 s72, {hexf(GC2)}\ns_mov_b32 s73, {hexf(GC2)}\nv_mov_b32 v14, {hexf(GC1)}\nv_mov_b32 v15, v14")
    lds_sync(a, C_MP, 4, ls=0)
    l10(a, 2)
    def rd(k):
        for n_ in range(3):
            for g in range(2): a(f"ds_read_b128 {v(112+24*k+8*n_+4*g,4)}, v{11+n_} offset:{g*5120+k*1024}")
    rd(0); rd(1)
    for k in range(3):
        if k == 0:
            a(f"s_cmp_lg_u32 s65, 0\ns_cbranch_scc1 {j2}_r"); rd(2); a(f"s_waitcnt lgkmcnt(12)\ns_branch {j2}_w")
            a.lab(j2 + "_r"); a("s_waitcnt lgkmcnt(6)"); a.lab(j2 + "_w")
        elif k == 1:
            a(f"s_waitcnt lgkmcnt(6)\ns_cmp_eq_u32 s65, 0\ns_cbranch_scc1 {j2}_x\ns_waitcnt lgkmcnt(0)"); a.lab(j2 + "_x")
        else: a(f"s_cmp_lg_u32 s65, 0\ns_cbranch_scc1 {j2}\ns_waitcnt lgkmcnt(0)")
        U = [MACC+4*k, MACC+4*k+2, MACC+20+4*k, MACC+20+4*k+2]
        T = 96
        if OPT.get("gpk", 1):
            for n_ in range(3):
                for q in range(4): a(f"v_pk_add_f32 {v(U[q],2)}, {v(U[q],2)}, {v(112+24*k+8*n_+2*q,2)}")
            for q in range(4): a(f"v_pk_mul_f32 {v(T+2*q,2)}, {v(U[q],2)}, {v(U[q],2)}")
            for q in range(4): a(f"v_pk_fma_f32 {v(T+2*q,2)}, {v(T+2*q,2)}, s[72:73], v[14:15]")
            for q in range(4): a(f"v_pk_mul_f32 {v(T+2*q,2)}, {v(T+2*q,2)}, {v(U[q],2)}")
            for q in range(8): a(f"v_exp_f32 v{T+q}, v{T+q}")
            a("s_nop 0")
            for q in range(4): a(f"v_pk_add_f32 {v(T+2*q,2)}, {v(T+2*q,2)}, 1.0 op_sel_hi:[1,0]")
            for q in range(8): a(f"v_rcp_f32 v{T+q}, v{T+q}")
            a("s_nop 0")
            for q in range(4): a(f"v_pk_mul_f32 {v(T+2*q,2)}, {v(T+2*q,2)}, {v(U[q],2)}")
        else:
            R = [U[q>>1] + (q & 1) for q in range(8)]
            for n_ in range(3):
                for q in range(8): a(f"v_add_f32 v{R[q]}, v{R[q]}, v{112+24*k+8*n_+q}")
            for q in range(8): a(f"v_mul_f32 v{T+q}, v{R[q]}, v{R[q]}")
            for q in range(8): a(f"v_fmaak_f32 v{T+q}, s72, v{T+q}, {hexf(GC1)}" if False else f"v_fma_f32 v{T+q}, v{T+q}, s72, v14")
            for q in range(8): a(f"v_mul_f32 v{T+q}, v{T+q}, v{R[q]}")
            for q in range(8): a(f"v_exp_f32 v{T+q}, v{T+q}")
            for q in range(8): a(f"v_add_f32 v{T+q}, 1.0, v{T+q}")
            for q in range(8): a(f"v_rcp_f32 v{T+q}, v{T+q}")
            for q in range(8): a(f"v_mul_f32 v{T+q}, v{T+q}, v{R[q]}")
        for q in range(4): a(f"v_cvt_pk_bf16_f32 v{104+4*(k&1)+q}, v{T+2*q}, v{T+2*q+1}")
        a(f"buffer_store_dwordx4 {v(104+4*(k&1),4)}, v{MDIR}, {ws}, s68 offen offset:{k*1024} {ST}")
        if k < 2: l10(a, 3+k)
    a.lab(j2)

def gen():
    NPB = OPT.get('npb', 8*56)
    a = Asm()
    a(f"; @launch grid=(256,1,1) block=(512,1,1) lds={LDS}")
    a('.amdgcn_target "amdgcn-amd-amdhsa--gfx950"\n.text')
    prologue2(a)
    a(f"s_cmp_ge_u32 s{SJ}, 15\ns_cbranch_scc1 L_b\ns_cmp_ge_u32 s{SWAVE}, 4\ns_cbranch_scc0 L_cons")
    loader(a)
    stamp(a, 2)
    a("s_cmp_ge_u32 s61, 80\ns_cbranch_scc1 L_nowof")
    wof_finish(a)
    a.lab("L_nowof")
    stamp(a, 3)
    if OPT.get("pf", 1):
        W2 = OPT.get("w2m", 0)
        if W2 == 2:
            a(f"s_cmp_ge_u32 s{SKW}, 2\ns_cbranch_scc1 L_nopf2\ns_mul_i32 s61, s{SXCD}, 15\ns_add_u32 s61, s61, s{SJ}\ns_lshl_b32 s61, s61, 1\ns_add_u32 s61, s61, s{SKW}")
            prefetch(a, 61, 240, NB1, NB1 + NB2, 0)
            a.lab("L_nopf2")
        elif W2 == 4:
            lds_wait(a, C_QD, 1)
            a(f"s_cmp_ge_u32 s{SKW}, 2\ns_cbranch_scc1 L_nopf2\ns_mul_i32 s61, s{SXCD}, 15\ns_add_u32 s61, s61, s{SJ}\ns_lshl_b32 s61, s61, 1\ns_add_u32 s61, s61, s{SKW}")
            prefetch(a, 61, 240, NB1, NB1 + NB2, 0)
            a.lab("L_nopf2")
        else:
            lds_wait(a, C_QD if W2 == 3 else C_AV, 1 if W2 == 3 else 4)
            a(f"s_mul_i32 s61, s{SXCD}, 15\ns_add_u32 s61, s61, s{SJ}\ns_lshl_b32 s61, s61, 2\ns_add_u32 s61, s61, s{SKW}")
            prefetch(a, 61, 480, NB1 + (480 if W2 else 0), NB1 + NB2)
    stamp(a, 4)
    a(f"s_waitcnt vmcnt(0)\ns_mov_b32 s61, {C_QA}\ns_branch L_m2")
    a.lab("L_b")
    a(f"s_and_b32 s{SKW}, s{SWAVE}, 3\ns_lshr_b32 s64, s{SWAVE}, 2\ns_cmp_eq_u32 s{SJ}, 31\ns_cbranch_scc1 L_b_noln")
    a(f"s_lshr_b32 s63, s{SXCD}, 1\ns_lshl_b32 s63, s63, 5\ns_and_b32 s51, s{SXCD}, 1\ns_lshl_b32 s51, s51, 4\ns_add_u32 s63, s63, s51\ns_add_u32 s63, s63, s{SJ}\ns_sub_u32 s63, s63, 15\ns_lshl_b32 s50, s63, 1\ns_add_u32 s50, s50, s64")
    a(f"s_lshr_b32 s51, s50, 2\ns_and_b32 s52, s50, 3\ns_lshl_b32 s53, s51, 5\ns_lshl_b32 s54, s52, 2\ns_add_u32 s53, s53, s54")
    a(f"s_lshr_b32 s54, s{SKW}, 1\ns_lshl_b32 s54, s54, 4\ns_add_u32 s53, s53, s54\ns_and_b32 s54, s{SKW}, 1\ns_lshl_b32 s54, s54, 1\ns_add_u32 s53, s53, s54")
    rows_load(a, SX, SKW, 53, 54)
    a(f"s_lshl_b32 s62, s51, 13\ns_lshl_b32 s52, s52, 8\ns_add_u32 s62, s62, s52\ns_add_u32 s62, s62, {OFF_H}\ns_mul_i32 s64, s64, 10752")
    ids_late(a)
    trs_prep8(a, SKW, 64, 54, 214)
    init_counters(a)
    a(f"v_lshrrev_b32 v2, 5, v{VL}\nv_and_b32 v3, 31, v{VL}\ns_waitcnt vmcnt(0)")
    rows_ln(a, 53, 54, ST)
    a(f"s_mul_i32 s54, s{SKW}, 2688\ns_add_u32 s54, s54, s64\nv_mul_u32_u24 v4, 1344, v2\nv_add_u32 v4, s54, v4\nv_lshl_add_u32 v5, v3, 3, v4\nv_lshl_add_u32 v4, v3, 4, v4")
    a("ds_write_b128 v4, v[16:19]\nds_write_b128 v4, v[20:23] offset:512\nds_write_b64 v5, v[24:25] offset:1024")
    zz = a.newlab("zz")
    a(f"s_cmp_lg_u32 s{SWAVE}, 3\ns_cbranch_scc1 {zz}\ns_cmp_ge_u32 s63, {NCTR}\ns_cbranch_scc1 {zz}")
    a(f"s_lshl_b32 s56, s63, 8\ns_add_u32 s56, s56, {OFF_FLAG}\nv_lshlrev_b32 v6, 7, v{VL}\nv_mov_b32 v7, 0\ns_mov_b64 exec, 3\nbuffer_store_dword v7, v6, {s(SWS,4)}, s56 offen sc1\ns_mov_b64 exec, -1")
    a.lab(zz)
    a("s_waitcnt lgkmcnt(0)\ns_barrier")
    trs_go(a, SKW, 62, 214)
    a(f"s_waitcnt vmcnt(0) lgkmcnt(0)\ns_barrier\ns_cmp_lg_u32 s{SWAVE}, 0\ns_cbranch_scc1 L_b_pf")
    L = a.newlab("c1a")
    a(f"s_and_b32 s57, s63, 1\ns_lshl_b32 s56, s57, 6\ns_lshl_b32 s57, s57, 2\ns_mov_b64 exec, 1\ns_setprio 3")
    garrive(a, SDBG, 56, 64, (57, 128), L, va=15)
    a.lab(L)
    a("s_mov_b64 exec, -1\ns_setprio 0")
    lds_set(a, C_PUB)
    a("s_branch L_b_pf")
    a.lab("L_b_noln")
    ids_late(a)
    init_counters(a)
    a("s_waitcnt lgkmcnt(0)\ns_barrier")
    lds_set(a, C_PUB)
    a.lab("L_b_pf")
    stamp(a, 1)
    a(f"s_cmp_lt_u32 s{SFT}, 27\ns_cselect_b32 s{SHAS1}, 1, 0")
    a(f"s_cmp_ge_u32 s{SWAVE}, 4\ns_cbranch_scc1 L_b_hi")
    lds_wait(a, C_PUB, 1, ls=1)
    if OPT.get("pf", 1):
        a(f"s_sub_u32 s62, s{SJ}, 15\ns_lshl_b32 s62, s62, 3\ns_add_u32 s62, s62, s{SXCD}\ns_mul_i32 s61, s{SWAVE}, 136\ns_add_u32 s61, s61, s62")
        prefetch(a, 61, 544, 0, NPB)
    a("s_waitcnt vmcnt(0)\ns_setprio 3\ns_branch L_attn")
    a.lab("L_b_hi")
    a(f"s_cmp_eq_u32 s{SHAS1}, 0\ns_cbranch_scc1 L_b_c1")
    a(f"v_lshrrev_b32 v2, 4, v{VL}\nv_lshlrev_b32 v11, 3, v2\ns_lshl_b32 s65, s{SFT}, 7\ns_cmp_lg_u32 s{SKW}, 0\ns_cbranch_scc1 L_nobias")
    for fb in range(4): a(f"buffer_load_dwordx2 {v(160+2*fb,2)}, v11, {s(SB1,4)}, s65 offen offset:{fb*32}")
    a.lab("L_nobias")
    a(f"s_mul_i32 s66, s{SKW}, {XSTR}\ns_add_u32 s66, s66, {XB}\ns_and_b32 s67, s{SKW}, 2")
    mlp_setup(a, SW1, 3456, 66, rot=67)
    a(f"s_mul_i32 s{S_TO}, s{SKW}, {512*3456}\ns_lshl_b32 s65, s{SFT}, 7\ns_add_u32 s{S_TO}, s{S_TO}, s65")
    a(f"s_lshl_b32 s{S_DO}, s{SDT1}, 19\ns_lshl_b32 s65, s{SKW}, 17\ns_add_u32 s{S_DO}, s{S_DO}, s65\ns_and_b32 s65, s{SKW}, 1\ns_lshl_b32 s68, s65, 12\ns_add_u32 s{S_DO}, s{S_DO}, s68\ns_add_u32 s{S_DO}, s{S_DO}, {OFF_H}")
    a("s_cmp_eq_u32 s65, 1\ns_movk_i32 s68, 0x1000\ns_cselect_b32 s70, -4096, s68\ns_cselect_b32 s71, 12288, s68")
    z = a.newlab("bz"); d = a.newlab("bd")
    a(f"s_cmp_lg_u32 s{SKW}, 0\ns_cbranch_scc1 {z}\ns_waitcnt vmcnt(0)")
    for fb in range(4):
        for q in range(2): a(f"v_lshlrev_b32 v{16+fb*32+2*q}, 16, v{160+2*fb+q}\nv_and_b32 v{16+fb*32+2*q+1}, 0xffff0000, v{160+2*fb+q}")
        for c in range(1, 8):
            for r in range(4): a(f"v_mov_b32 v{16+(fb*8+c)*4+r}, v{16+fb*32+r}")
    a(f"s_branch {d}")
    a.lab(z)
    for i in range(128): a(f"v_mov_b32 v{16+i}, 0")
    a.lab(d)
    a.lab("L_b_c1")
    oth = a.newlab("cw"); go = a.newlab("cg")
    a(f"s_cmp_lg_u32 s{SKW}, 0\ns_cbranch_scc1 {oth}")
    c1_poll(a)
    a(f"v_mov_b32 v2, {C_QA}\nv_mov_b32 v3, 4\nds_write_b32 v2, v3\ns_branch {go}")
    a.lab(oth)
    lds_wait(a, C_QA, 4, ls=1)
    a.lab(go)
    stamp(a, 2)
    a(f"s_cmp_eq_u32 s{SHAS1}, 0\ns_cselect_b32 s61, {C_QA}, s61\ns_cbranch_scc1 L_m2")
    for n_, k in enumerate((2, 0, 1)):
        a(f"s_setprio {3-n_}")
        mlp_dma(a, k)
        for c in range(8): n_dir(a, k, c)
    a(f"s_mov_b32 s{S_CNT}, 5\ns_setprio {OPT.get('prio1', 1)}\ns_branch L_n2")
    a(".p2align 3")
    for k in range(3):
        a.lab(f"L_n{k}")
        n_body(a, k, 24, True)
    a(f"s_sub_u32 s{S_CNT}, s{S_CNT}, 1\ns_cmp_lg_u32 s{S_CNT}, 0\ns_cbranch_scc1 L_n0")
    for k in range(2): n_body(a, k, 24-12*k, False)
    n_last(a, 2)
    stamp(a, 3)
    a("s_setprio 3")
    l10(a, 0)
    n_epi(a)
    l10(a, 4)
    stamp(a, 4)
    a(f"s_lshl_b32 s61, s{SDT1}, 8\ns_add_u32 s61, s61, {G_G}")
    arrive(a, C_GA, 4, 61, 27)
    l10(a, 5)
    a(f"s_mov_b32 s61, {C_GA}")
    a.lab("L_m2")
    w = SKW
    a(f"s_setprio {OPT.get('prio2', 1)}\ns_mul_i32 s66, s{w}, {M1STR}\ns_add_u32 s66, s66, {M1BASE}\nv_mov_b32 v12, s61")
    mlp_setup(a, SW2, 4096, 66)
    a(f"s_mul_i32 s67, s{w}, 14\ns_cmp_eq_u32 s{w}, 3\ns_cselect_b32 s67, 41, s67")
    a(f"s_lshl_b32 s{S_TO}, s67, 17\ns_lshl_b32 s65, s{SST}, 7\ns_add_u32 s{S_TO}, s{S_TO}, s65")
    a(f"s_mul_i32 s{S_DO}, s{SDT3}, {54*5120}\ns_mul_i32 s65, s67, 5120\ns_add_u32 s{S_DO}, s{S_DO}, s65\ns_add_u32 s{S_DO}, s{S_DO}, {OFF_G}")
    for i in range(80): a(f"v_mov_b32 v{MACC+i}, 0")
    lds_wait(a, None, 4, vreg=12)
    a(f"s_cmp_ge_u32 s{w}, 2\ns_cbranch_scc1 L_p3")
    mlp_dma(a, 2)
    a.lab("L_p3")
    for k in (3, 0, 1): mlp_dma(a, k)
    a(f"s_cmp_ge_u32 s{w}, 2\ns_cbranch_scc0 L_p3b")
    mlp_dma(a, 2)
    a.lab("L_p3b")
    a(f"v_and_b32 v2, 15, v{VL}\nv_mul_u32_u24 v12, 10, v2\nv_lshrrev_b32 v3, 5, v{VL}\nv_add_u32 v12, v12, v3\nv_bfe_u32 v2, v{VL}, 2, 1\nv_xor_b32 v12, v12, v2\nv_lshlrev_b32 v12, 4, v12\nv_bfe_u32 v2, v{VL}, 4, 1\nv_mul_u32_u24 v2, 2560, v2\nv_add3_u32 v12, v12, v2, s66")
    a(f"v_lshrrev_b32 v2, 4, v{VL}\nv_and_b32 v3, 15, v{VL}\nv_lshlrev_b32 v13, 4, v3\nv_lshl_add_u32 v13, v2, 9, v13\nv_lshlrev_b32 v14, 3, v3\nv_lshl_add_u32 v14, v2, 9, v14")
    a(f"s_lshl_b32 s70, s{SST}, 16\ns_lshl_b32 s51, s{w}, 13\ns_add_u32 s70, s70, s51\ns_add_u32 s70, s70, {OFF_O1}\ns_add_u32 s71, s70, 32768\ns_add_u32 s72, s70, 4096\ns_add_u32 s73, s71, 4096")
    a(f"s_lshl_b32 s49, s{SST}, 14\ns_lshl_b32 s51, s{w}, 11\ns_add_u32 s49, s49, s51\ns_add_u32 s49, s49, {OFF_O2}\ns_add_u32 s50, s49, 8192")
    a(f"s_mul_i32 s48, s{SDT3}, 102400\ns_mul_i32 s51, s{w}, 25600\ns_add_u32 s48, s48, s51\ns_add_u32 s48, s48, {OFF_WOF}")
    oth = a.newlab("ww"); go = a.newlab("wg")
    a(f"s_cmp_lg_u32 s{w}, 0\ns_cbranch_scc1 {oth}\ns_mov_b32 s51, {G_W+128}\nv_mov_b32 v2, 0")
    gpoll(a, 2, SWS, "s51", 1, 1)
    lds_set(a, C_W2)
    a(f"s_branch {go}")
    a.lab(oth)
    lds_wait(a, C_W2, 1, ls=1)
    a.lab(go)
    def wof_ld(r):
        for db in range(5):
            a(f"buffer_load_dwordx4 {v(r+4*db,4)}, v{MDIR}, {s(SWS,4)}, s48 offen offset:{(db&3)*1024} {LD}")
            if db >= 3: a(f"s_add_u32 s48, s48, {4096 if db == 3 else 1024}")
    for st in range(3): wof_ld(192+20*st)
    l10(a, 6)
    oth = a.newlab("gw"); go = a.newlab("gg")
    a(f"s_cmp_lg_u32 s{w}, 0\ns_cbranch_scc1 {oth}")
    a(f"s_mul_i32 s51, s{SDT3}, 5\nv_lshlrev_b32 v2, 2, v{VL}\nv_add_u32 v2, s51, v2\nv_lshrrev_b32 v2, 3, v2\nv_lshlrev_b32 v2, 8, v2\ns_mov_b32 s51, {G_G+128}\ns_setprio 3")
    gpoll(a, 2, SWS, "s51", 1, 2)
    lds_set(a, C_GGO)
    a(f"s_setprio {OPT.get('prio2', 1)}\ns_branch {go}")
    a.lab(oth)
    lds_wait(a, C_GGO, 1, ls=1)
    a.lab(go)
    stamp(a, 5); l10(a, 7)
    SM_ = OPT.get("smaj", 1)
    a(f"s_mov_b32 s{S_CNT}, 3\ns_mov_b32 s69, 3\ns_cmp_ge_u32 s{w}, 2\ns_cbranch_scc1 L_d3")
    for lab, order, ent in ((None, (2, 3, 0, 1), "L_mb2"), ("L_d3", (3, 0, 1, 2), "L_mb3")):
        if lab: a.lab(lab)
        for n_, k in enumerate(order):
            if SM_: a(f"s_setprio {3-n_}")
            for db in range(5): mlp_dir(a, k, db, LD)
        a(f"s_setprio {OPT.get('prio2', 1)}\ns_branch {ent}" if SM_ else f"s_waitcnt vmcnt(0)\ns_branch {ent}")
    if SM_:
        for k in range(4):
            a.lab(f"L_fw{k}")
            a(f"s_sub_u32 s69, s69, 1\ns_cmp_eq_u32 s69, 0\ns_cbranch_scc1 L_fw{k}c\ns_cmp_eq_u32 s69, 1\ns_cbranch_scc1 L_fw{k}b\ns_waitcnt vmcnt(15)\ns_branch L_fb{k}")
            a.lab(f"L_fw{k}b"); a(f"s_waitcnt vmcnt(19)\ns_branch L_fb{k}")
            a.lab(f"L_fw{k}c"); a(f"s_waitcnt vmcnt(23)\ns_branch L_fb{k}")
    a(".p2align 3")
    for k in range(4):
        a.lab(f"L_mb{k}")
        if SM_:
            a(f"s_cmp_lg_u32 s69, 0\ns_cbranch_scc1 L_fw{k}")
            a.lab(f"L_fb{k}")
        mlp_body(a, k, 27, True, LD, swap=True)
    a(f"s_sub_u32 s{S_CNT}, s{S_CNT}, 1\ns_cmp_lg_u32 s{S_CNT}, 0\ns_cbranch_scc1 L_mb0")
    def o_ld(st):
        r = MB + 20*(st & 3)
        for sb in range(4):
            if st < 4: a(f"buffer_load_dwordx4 {v(r+4*sb,4)}, v13, {s(SWS,4)}, s{70+(sb>>1)+2*(st>>1)} offen offset:{(sb&1)*256+(st&1)*2048} {LD}")
            else:
                for e in range(2): a(f"buffer_load_dwordx2 {v(r+4*sb+2*e,2)}, v14, {s(SWS,4)}, s{49+(sb>>1)} offen offset:{(sb&1)*128+e*256} {LD}")
    for k in range(4):
        mlp_body(a, k, 27-5*k, False, LD, swap=True)
        if k == 0:
            lds_wait(a, C_OGO, 1, ls=1)
            stamp(a, 2)
        o_ld(k)
    for st in range(5):
        a(f"s_waitcnt vmcnt({[12, 21, 22, 13, 0][st]})")
        for db in range(5):
            for sb in range(4):
                acc = v(MACC+(sb*5+db)*4, 4)
                a(f"v_mfma_f32_16x16x32_bf16 {acc}, {v(192+20*(st%3)+4*db,4)}, {v(MB+20*(st&3)+4*sb,4)}, {acc}")
        if st == 0: wof_ld(192); o_ld(4)
        if st == 1: wof_ld(212)
    stamp(a, 6); l10(a, 0, 11)
    a("s_nop 4")
    for db in range(5):
        for sb in range(4): a(f"ds_write_b128 v12, {v(MACC+(sb*5+db)*4,4)} offset:{sb*5120+db*32}")
    l10(a, 1, 11)
    a("s_waitcnt lgkmcnt(0)")
    l10(a, 2, 11)
    a("s_barrier")
    l10(a, 3, 11)
    stamp_dump(a, 0)
    a("s_endpgm")
    a.lab("L_cons")
    init_counters(a)
    cons_setup(a)
    a(f"s_setprio {OPT.get('prioc', 2)}\ns_waitcnt lgkmcnt(0)\ns_barrier")
    stamp(a, 2); l10(a, 0, 12)
    a(f"s_cmp_ge_u32 s{SN}, 10\ns_cbranch_scc1 L_consv")
    for vori in (0, 1):
        if vori: a.lab("L_consv")
        cons_loop(a, vori)
        stamp(a, 3); l10(a, 5, 12)
        a("s_setprio 3")
        cons_epi(a, vori)
        l10(a, 6, 12)
        if not vori: a("s_branch L_qdone")
    a.lab("L_qdone")
    ids_late(a)
    a(f"s_mov_b32 s{SHAS1}, 0\ns_lshl_b32 s61, s{SM}, 8\ns_add_u32 s61, s61, {G_Q}")
    arrive(a, C_QA, 4, 61, 15, C_QD)
    l10(a, 7, 12)
    a.lab("L_attn")
    attn2(a)
    a("s_setprio 2")
    a(f"s_lshl_b32 s61, s{SBQ}, 8\ns_add_u32 s61, s61, {G_O}")
    arrive(a, C_OA, 4, 61, 32)
    w = SWAVE
    a(f"s_mov_b32 s{SKW}, s{w}\ns_setprio {OPT.get('priow', 2)}")
    a(f"s_lshl_b32 s65, s{SST}, 6\ns_lshl_b32 s68, s{w}, 4\ns_add_u32 s65, s65, s68\ns_mul_i32 s74, s65, 1280\ns_mul_i32 s68, s{SDT3}, 160\ns_add_u32 s74, s74, s68\ns_lshl_b32 s65, s65, 1")
    for k in range(3):
        a(f"v_add_u32 v2, {64*k}, v{VL}\nv_mul_u32_u24 v3, 205, v2\nv_lshrrev_b32 v3, 11, v3\nv_mul_u32_u24 v4, 1120, v3\nv_lshl_add_u32 v{207+k}, v2, 4, v4\nv_lshlrev_b32 v3, 1, v3")
        if k == 2: a(f"v_cmp_gt_u32 vcc, 32, v{VL}\nv_mov_b32 v4, {OOB}\ns_nop 0\nv_cndmask_b32 v209, v4, v209, vcc\nv_cndmask_b32 v3, v4, v3, vcc")
        a(f"buffer_load_dwordx4 {v(192+4*k,4)}, v{207+k}, {s(SX,4)}, s74 offen\nbuffer_load_ushort v{204+k}, v3, {s(SB2,4)}, s65 offen")
    go = a.newlab("og")
    a(f"s_cmp_lg_u32 s{w}, 0\ns_cbranch_scc1 {go}")
    a(f"s_lshr_b32 s51, s{SST}, 2\ns_lshl_b32 s51, s51, 8\ns_add_u32 s51, s51, {G_O+128}\nv_mov_b32 v2, 0")
    gpoll(a, 2, SWS, "s51", 1, 1, slp=8)
    lds_set(a, C_OGO)
    a.lab(go)
    stamp(a, 6)
    a(f"s_mul_i32 s65, s{w}, 5120\ns_add_u32 s65, s65, {M1BASE}")
    for k in range(3):
        a(f"v_add_u32 v2, {64*k}, v{VL}\nv_min_u32 v2, 159, v2\nv_mul_u32_u24 v3, 205, v2\nv_bfe_u32 v4, v3, 13, 1\nv_xor_b32 v2, v2, v4\nv_lshlrev_b32 v2, 4, v2\nv_add_u32 v{210+2*k}, s65, v2\nv_add_u32 v{211+2*k}, 2560, v{210+2*k}")
    a("s_waitcnt vmcnt(0)")
    for k in range(3):
        a(f"v_lshlrev_b32 v{204+k}, 16, v{204+k}")
        for q in range(4): a(f"v_lshlrev_b32 v{40+8*k+2*q}, 16, v{192+4*k+q}\nv_and_b32 v{41+8*k+2*q}, 0xffff0000, v{192+4*k+q}")
        for q in range(8): a(f"v_add_f32 v{40+8*k+q}, v{40+8*k+q}, v{204+k}")
    stamp(a, 1)
    a("s_setprio 3\ns_barrier")
    stamp(a, 2, False) if OPT.get("fin") else None; l10(a, 0, 11)
    for k in range(3):
        for src in range(4): a(f"ds_read_b128 {v(96+32*k+8*src,4)}, v{210+2*k} offset:{src*M1STR}\nds_read_b128 {v(100+32*k+8*src,4)}, v{211+2*k} offset:{src*M1STR}")
        if k >= 1:
            a("s_waitcnt lgkmcnt(8)")
            for src in range(4):
                for q in range(4): a(f"v_pk_add_f32 {v(40+8*(k-1)+2*q,2)}, {v(40+8*(k-1)+2*q,2)}, {v(96+32*(k-1)+8*src+2*q,2)}")
            for q in range(4): a(f"v_cvt_pk_bf16_f32 v{16+4*(k-1)+q}, v{40+8*(k-1)+2*q}, v{41+8*(k-1)+2*q}")
            a(f"buffer_store_dwordx4 {v(16+4*(k-1),4)}, v{207+k-1}, {s(SOUT,4)}, s74 offen {OPT.get('outf', 1) and 'sc1' or ''}")
        if k == 1: pass
    a("s_waitcnt lgkmcnt(0)")
    for src in range(4):
        for q in range(4): a(f"v_pk_add_f32 {v(56+2*q,2)}, {v(56+2*q,2)}, {v(160+8*src+2*q,2)}")
    for q in range(4): a(f"v_cvt_pk_bf16_f32 v{24+q}, v{56+2*q}, v{57+2*q}")
    l10(a, 1, 11)
    a(f"buffer_store_dwordx4 v[24:27], v209, {s(SOUT,4)}, s74 offen {OPT.get('outf', 1) and 'sc1' or ''}")
    l10(a, 2, 11)
    if blocks.STAMP: a("s_waitcnt vmcnt(0)")
    l10(a, 3, 11)
    stamp_dump(a, 0)
    a("s_endpgm")
    a.lab("L_end"); a("s_endpgm")
    a('.section .rodata,"a"')
    return a.text() + kd(NAME)
if __name__ == "__main__":
    blocks.STAMP = "stamp" in sys.argv
    for x in sys.argv[2:]:
        if "=" in x: k, val = x.split("="); blocks.OPT[k] = int(val)
    t = gen()
    print("hazards:", hazard_check(t))
    open(sys.argv[1], "w").write(open("hdr.txt").read() + t)
    import subprocess
    r = subprocess.run(["clang", "-x", "assembler", "-target", "amdgcn-amd-amdhsa", "-mcpu=gfx950", "-c", sys.argv[1], "-o", "x.o"], capture_output=True, text=True)
    if r.returncode: print(r.stderr[:1500]); sys.exit(1)
```

```python
from asmlib import *
OFF_R, OFF_RM, OFF_CS = 0, 8192, 16384
OFF_FLAG = 32768
OFF_H = 0x20000
SZ = 0x280000
OFF_WOF = OFF_H + 2*SZ
OFF_Q = OFF_WOF + 0xC8000
OFF_K = OFF_Q + SZ
OFF_V = OFF_K + SZ
OFF_O = OFF_V + SZ + 0x1000
OFF_G = OFF_O + SZ
OFF_W2C = OFF_G + 2*0x21C000
OFF_STAMP = OFF_W2C + 0x1B0000
WS_USED = OFF_STAMP + 0x100000
SX, SWQ, SWO, SW1, SW2, SWS, SOUT, SB1, SB2, SDBG = 4, 8, 12, 16, 20, 24, 28, 32, 36, 40
SWAVE, SXCD, SJ = 44, 45, 46
SRDS = {SX: (0, 2621440), SWQ: (8, 2457600), SWO: (16, 819200), SW1: (32, 7077888), SW2: (48, 7077888),
        SWS: (80, WS_USED), SOUT: (64, 2621440), SB1: (40, 3456), SB2: (56, 4096), SDBG: (72, 256)}
VL = 1
NEGINF = "0xff800000"
OOB = "0x7fff0000"

STAMP = False
def stamp(a, i, force=False):
    if STAMP and OPT.get("mst") == 13 and i not in (0, 7): return
    if STAMP and OPT.get("mst") != 9 and (force or not OPT.get("mst") or i not in ((1, 4, 5, 6) if OPT["mst"] == 3 else (1, 2, 3, 4, 5, 6) if OPT["mst"] in (4, 5, 7, 8) else (1, 5, 6))): a(f"s_waitcnt lgkmcnt(0)\ns_memrealtime s[100:101]\ns_waitcnt lgkmcnt(0)\ns_mov_b32 s{84+i}, s100\ns_memtime s[100:101]\ns_waitcnt lgkmcnt(0)\ns_mov_b32 s{92+i}, s100")
def lstamp(a, i):
    if STAMP: a(f"s_memtime s[{86+2*i}:{87+2*i}]")
def stamp_dump(a, k):
    if STAMP and OPT.get("mst") == 9:
        a(f"s_waitcnt lgkmcnt(0)\ns_lshl_b32 s83, s2, 3\ns_add_u32 s83, s83, s{SWAVE}\ns_lshl_b32 s83, s83, 6\ns_add_u32 s83, s83, {OFF_STAMP}\ns_mov_b64 exec, 1")
        for i in range(8): a(f"v_mov_b32 v2, s{86+2*i}\nbuffer_store_dword v2, off, {s(SWS,4)}, s83 offset:{4*i}")
        return
    if not STAMP: return
    stamp(a, 7)
    if OPT.get("dbgout"):
        LL = a.newlab("dbo")
        a(f"s_cmp_lg_u32 s2, {OPT['dbgout']-1}\ns_cbranch_scc1 {LL}\ns_and_b32 s100, s{SWAVE}, 3\ns_cmp_lg_u32 s100, 0\ns_cbranch_scc1 {LL}\ns_lshl_b32 s100, s{SWAVE}, 3\ns_mov_b64 exec, 1")
        for i in range(1, 8): a(f"s_sub_u32 s101, s{84+i}, s84\nv_mov_b32 v2, s101\nbuffer_store_dword v2, off, {s(SDBG,4)}, s100 offset:{4*i}")
        a.lab(LL)
    a(f"s_lshl_b32 s100, s2, 3\ns_add_u32 s100, s100, s{SWAVE}\ns_lshl_b32 s100, s100, 6\ns_add_u32 s100, s100, {OFF_STAMP + k*131072}\ns_mov_b64 exec, 1")
    for i in range(16): a(f"v_mov_b32 v2, s{84+i}\nbuffer_store_dword v2, off, {s(SWS,4)}, s100 offset:{4*i}")
def prologue(a, name, nwg, srds, end):
    a(f".globl {name}\n.p2align 8\n.type {name},@function")
    a.lab(name)
    a(f"s_cmp_ge_u32 s2, {nwg}\ns_cbranch_scc1 {end}")
    if STAMP:
        for i in range(16): a(f"s_mov_b32 s{84+i}, 0")
    stamp(a, 0)
    for r in srds: a(f"s_load_dwordx2 {s(r,2)}, s[0:1], {SRDS[r][0]}")
    a(f"v_lshrrev_b32 v2, 6, v0\nv_and_b32 v{VL}, 63, v0")
    a(f"s_and_b32 s{SXCD}, s2, 7\ns_lshr_b32 s{SJ}, s2, 3")
    a(f"v_readfirstlane_b32 s{SWAVE}, v2")
    for r in srds: a(f"s_mov_b32 s{r+2}, {SRDS[r][1]}\ns_mov_b32 s{r+3}, 0x20000")
    a("s_waitcnt lgkmcnt(0)")

def kd(name, vg=256):
    return f""".p2align 6
.amdhsa_kernel {name}
  .amdhsa_next_free_vgpr {vg}
  .amdhsa_next_free_sgpr 102
  .amdhsa_accum_offset {vg}
  .amdhsa_group_segment_fixed_size 0
  .amdhsa_kernarg_size 88
  .amdhsa_user_sgpr_count 2
  .amdhsa_user_sgpr_kernarg_segment_ptr 1
  .amdhsa_system_sgpr_workgroup_id_x 1
.end_amdhsa_kernel
"""

def reduce32(a, r, t):
    for sh in (8, 4, 2, 1):
        a(f"s_nop 1\nv_add_f32_dpp v{r}, v{r}, v{r} row_ror:{sh} row_mask:0xf bank_mask:0xf")
    a(f"v_mov_b32 v{t}, v{r}\ns_nop 1\nv_permlane16_swap_b32 v{r}, v{t}\nv_add_f32 v{r}, v{r}, v{t}")

def rows_load(a, srd, sw, srow, st):
    a(f"v_lshrrev_b32 v2, 5, v{VL}\nv_and_b32 v3, 31, v{VL}")
    a(f"v_mul_u32_u24 v4, 1280, v2\nv_lshl_add_u32 v5, v3, 3, v4\nv_lshl_add_u32 v4, v3, 4, v4")
    a(f"s_mul_i32 s{st}, s{srow}, 1280")
    a(f"buffer_load_dwordx4 v[16:19], v4, {s(srd,4)}, s{st} offen")
    a(f"buffer_load_dwordx4 v[20:23], v4, {s(srd,4)}, s{st} offen offset:512")
    a(f"buffer_load_dwordx2 v[24:25], v5, {s(srd,4)}, s{st} offen offset:1024")
def rows_ln(a, srow, st, stf, lds=None):
    for i in range(10):
        a(f"v_lshlrev_b32 v{28+2*i}, 16, v{16+i}\nv_and_b32 v{29+2*i}, 0xffff0000, v{16+i}")
    a("v_pk_add_f32 v[6:7], v[28:29], v[30:31]")
    for i in range(2, 10): a(f"v_pk_add_f32 v[6:7], v[6:7], v[{28+2*i}:{29+2*i}]")
    a("v_add_f32 v6, v6, v7")
    reduce32(a, 6, 7)
    a(f"v_mul_f32 v6, {hexf(1/640)}, v6")
    for i in range(10): a(f"v_pk_add_f32 v[{28+2*i}:{29+2*i}], v[{28+2*i}:{29+2*i}], v[6:7] op_sel_hi:[1,0] neg_lo:[0,1] neg_hi:[0,1]")
    a("v_pk_mul_f32 v[8:9], v[28:29], v[28:29]")
    for i in range(1, 10): a(f"v_pk_fma_f32 v[8:9], v[{28+2*i}:{29+2*i}], v[{28+2*i}:{29+2*i}], v[8:9]")
    a("v_add_f32 v8, v8, v9")
    reduce32(a, 8, 9)
    a(f"v_mul_f32 v8, {hexf(1/640)}, v8")
    a(f"v_add_f32 v9, {hexf(1e-5)}, v8\nv_rsq_f32 v9, v9")
    a(f"v_mov_b32 v11, {hexf(1e-5)}\nv_mul_f32 v10, v9, v9\nv_fma_f32 v10, v10, v8, v11\nv_rsq_f32 v10, v10")
    a("v_mul_f32 v11, v9, v6\nv_mul_f32 v10, v10, v9")
    if lds is None:
        a(f"s_lshl_b32 s{st}, s{srow}, 2")
        a(f"v_lshlrev_b32 v12, 2, v2\nv_cmp_eq_u32 vcc, 0, v3\nv_mov_b32 v13, {OOB}\ns_nop 0\nv_cndmask_b32 v12, v13, v12, vcc")
        a(f"buffer_store_dword v9, v12, {s(SWS,4)}, s{st} offen {stf}")
        a(f"s_add_u32 s{st}, s{st}, {OFF_RM}")
        a(f"buffer_store_dword v11, v12, {s(SWS,4)}, s{st} offen {stf}")
    else:
        a(f"s_lshl_b32 s{st}, s{SWAVE}, 3\ns_add_u32 s{st}, s{st}, {lds}\nv_lshlrev_b32 v12, 2, v2\nv_add_u32 v12, s{st}, v12\nds_write_b32 v12, v9\nds_write_b32 v12, v11 offset:32")
    for i in range(10): a(f"v_pk_mul_f32 v[{28+2*i}:{29+2*i}], v[{28+2*i}:{29+2*i}], v[10:11] op_sel_hi:[1,0]")
    for i in range(10): a(f"v_cvt_pk_bf16_f32 v{16+i}, v{28+2*i}, v{29+2*i}")
def rows_to_lds(a, sw, ldsbase, st):
    a(f"s_mul_i32 s{st}, s{sw}, 2688\ns_add_u32 s{st}, s{st}, {ldsbase}")
    a(f"v_mul_u32_u24 v4, 1344, v2\nv_add_u32 v4, s{st}, v4\nv_lshl_add_u32 v5, v3, 3, v4\nv_lshl_add_u32 v4, v3, 4, v4")
    a("ds_write_b128 v4, v[16:19]\nds_write_b128 v4, v[20:23] offset:512\nds_write_b64 v5, v[24:25] offset:1024")
def rows_tr_store(a, sw, ldsbase, sdst, dt, st, stf):
    a(f"v_lshrrev_b32 v2, 4, v{VL}\nv_and_b32 v3, 15, v{VL}")
    a(f"v_lshrrev_b32 v4, 2, v3\nv_mul_u32_u24 v4, 1344, v4\nv_lshl_add_u32 v4, v2, 5, v4\nv_and_b32 v5, 3, v3\nv_lshl_add_u32 v4, v5, 3, v4")
    a(f"s_lshl_b32 s{st}, s{sw}, 7\ns_add_u32 s{st}, s{st}, {ldsbase}\nv_add_u32 v4, s{st}, v4")
    skip = a.newlab("trs")
    for k in range(3):
        if k == 2: a(f"s_cmp_ge_u32 s{sw}, 2\ns_cbranch_scc1 {skip}")
        a(f"ds_read_b64_tr_b16 v[{16+4*k}:{17+4*k}], v4 offset:{k*512}\nds_read_b64_tr_b16 v[{18+4*k}:{19+4*k}], v4 offset:{k*512+5376}")
        a(f"s_lshl_b32 s{st}, s{sw}, 2\ns_add_u32 s{st}, s{st}, {16*k}\nv_add_u32 v5, s{st}, v2")
        a(f"v_mul_u32_u24 v6, 52, v5\nv_lshrrev_b32 v6, 8, v6\ns_mov_b32 s{st}, {dt-5120}\nv_mul_lo_u32 v6, v6, s{st}\nv_lshl_add_u32 v6, v5, 10, v6\nv_lshl_add_u32 v6, v3, 4, v6")
        a(f"s_waitcnt lgkmcnt(0)\nbuffer_store_dwordx4 v[{16+4*k}:{19+4*k}], v6, {s(SWS,4)}, s{sdst} offen {stf}")
    a.lab(skip)

import struct
def hexf(x): return "0x%08x" % struct.unpack("<I", struct.pack("<f", x))[0]

def colsum(a, snt, ldsbase, st, stf):
    a(f"v_lshrrev_b32 v2, 4, v{VL}\nv_and_b32 v3, 15, v{VL}\nv_mul_u32_u24 v4, 3840, v2\nv_lshl_add_u32 v4, v3, 4, v4")
    a(f"s_mul_i32 s{st}, s{SWAVE}, {80*3840}\ns_lshl_b32 s{st+1}, s{snt}, 8\ns_add_u32 s{st}, s{st}, s{st+1}")
    for i in range(20):
        a(f"buffer_load_dwordx4 v[{32+4*i}:{35+4*i}], v4, {s(SWQ,4)}, s{st} offen\ns_add_u32 s{st}, s{st}, {4*3840}")
    for c in range(8): a(f"v_mov_b32 v{16+c}, 0")
    for i in range(20):
        a(f"s_waitcnt vmcnt({19-i})")
        for c in range(4):
            a(f"v_lshlrev_b32 v24, 16, v{32+4*i+c}\nv_and_b32 v25, 0xffff0000, v{32+4*i+c}\nv_pk_add_f32 v[{16+2*c}:{17+2*c}], v[{16+2*c}:{17+2*c}], v[24:25]")
    for sw in ("v_permlane32_swap_b32", "v_permlane16_swap_b32"):
        for c in range(8): a(f"v_mov_b32 v{24+c}, v{16+c}")
        a("s_nop 0")
        for c in range(8): a(f"{sw} v{16+c}, v{24+c}")
        for c in range(8): a(f"v_add_f32 v{16+c}, v{16+c}, v{24+c}")
    a(f"s_lshl_b32 s{st}, s{SWAVE}, 9\ns_add_u32 s{st}, s{st}, {ldsbase}\nv_lshlrev_b32 v4, 5, v3\nv_add_u32 v4, s{st}, v4")
    a("ds_write_b128 v4, v[16:19]\nds_write_b128 v4, v[20:23] offset:16\ns_waitcnt lgkmcnt(0)\ns_barrier")
    skip = a.newlab("cs")
    a(f"s_cmp_ge_u32 s{SWAVE}, 2\ns_cbranch_scc1 {skip}")
    a(f"v_lshlrev_b32 v4, 2, v0\nv_add_u32 v5, {ldsbase}, v4")
    for w in range(8): a(f"ds_read_b32 v{16+w}, v5 offset:{w*512}")
    a("s_waitcnt lgkmcnt(0)")
    for w in range(1, 8): a(f"v_add_f32 v16, v16, v{16+w}")
    a(f"s_lshl_b32 s{st}, s{snt}, 9\ns_add_u32 s{st}, s{st}, {OFF_CS}")
    a(f"buffer_store_dword v16, v4, {s(SWS,4)}, s{st} offen {stf}")
    a.lab(skip)

def qkv_tile(a, sm, sn):
    a(f"s_lshr_b32 s{sm}, s{SXCD}, 1\ns_lshl_b32 s{sm}, s{sm}, 2\ns_and_b32 s{sn}, s{SJ}, 3\ns_add_u32 s{sm}, s{sm}, s{sn}")
    a(f"s_and_b32 s{sn}, s{SXCD}, 1\ns_lshl_b32 s{sn}, s{sn}, 3\ns_lshr_b32 s47, s{SJ}, 2\ns_add_u32 s{sn}, s{sn}, s47")
def qkv_loader(a, sm, sn, st):
    lw, sxo, swo, sm0, t = st, st+1, st+2, st+3, st+4
    a(f"s_sub_u32 s{lw}, s{SWAVE}, 4")
    a(f"v_lshrrev_b32 v2, 3, v{VL}\nv_mul_u32_u24 v2, 1280, v2\nv_and_b32 v3, 7, v{VL}\nv_lshrrev_b32 v4, 4, v{VL}\nv_xor_b32 v3, v3, v4\nv_lshl_add_u32 v6, v3, 4, v2\nv_xor_b32 v7, 64, v6")
    a(f"v_mul_u32_u24 v2, 3840, v4\nv_bfe_u32 v3, v{VL}, 2, 2\nv_xor_b32 v3, v3, v4\nv_lshl_add_u32 v2, v3, 6, v2\nv_and_b32 v3, 3, v{VL}\nv_lshl_add_u32 v8, v3, 4, v2")
    a(f"s_lshl_b32 s{sxo}, s{sm}, 7\ns_lshl_b32 s{t}, s{lw}, 5\ns_add_u32 s{sxo}, s{sxo}, s{t}\ns_mul_i32 s{sxo}, s{sxo}, 1280")
    a(f"s_mul_i32 s{swo}, s{lw}, {16*3840}\ns_lshl_b32 s{t}, s{sn}, 8\ns_add_u32 s{swo}, s{swo}, s{t}")
    a(f"s_lshl_b32 s{sm0}, s{lw}, 12")
    ko = st+5
    if OPT["rot1"]:
        a(f"s_and_b32 s{ko}, s{SJ}, 3\ns_lshl_b32 s{ko}, s{ko}, 1\ns_lshr_b32 s{t}, s{SJ}, 2\ns_add_u32 s{ko}, s{ko}, s{t}")
        if OPT["rot1"] > 1: a(f"s_add_u32 s{ko}, s{ko}, s{SXCD}")
        for _ in range(2): a(f"s_cmp_ge_u32 s{ko}, 10\ns_cselect_b32 s{t}, 10, 0\ns_sub_u32 s{ko}, s{ko}, s{t}")
        a(f"s_lshl_b32 s{t}, s{ko}, 7\ns_add_u32 s{sxo}, s{sxo}, s{t}\ns_mul_i32 s{t}, s{ko}, 245760\ns_add_u32 s{swo}, s{swo}, s{t}")
    def stage(sidx):
        slot = sidx % 4
        if OPT.get("k1_noload"): return
        if OPT["rot1"] and sidx:
            a(f"s_add_u32 s{ko}, s{ko}, 1\ns_cmp_eq_u32 s{ko}, 10\ns_cselect_b32 s{t}, 1280, 0\ns_sub_u32 s{sxo}, s{sxo}, s{t}\ns_cmp_eq_u32 s{ko}, 10\ns_cselect_b32 s{t}, 2457600, 0\ns_sub_u32 s{swo}, s{swo}, s{t}")
        a(f"s_add_u32 m0, s{sm0}, {slot*32768}")
        for i in range(4):
            a(f"s_add_u32 s{t}, s{sxo}, {i*9216 + sidx*128}")
            a(f"buffer_load_dwordx4 v{6+(i&1)}, {s(SX,4)}, s{t} offen offset:{i*1024} lds")
        a(f"s_add_u32 m0, s{sm0}, {slot*32768+16384}")
        for i in range(4):
            a(f"s_add_u32 s{t}, s{swo}, {i*14336 + sidx*245760}")
            a(f"buffer_load_dwordx4 v8, {s(SWQ,4)}, s{t} offen offset:{i*1024} lds")
    LA = OPT.get("la", 2)
    for sidx in range(LA):
        a(f"s_setprio {3-sidx}"); stage(sidx)
    a("s_setprio 0")
    for sidx in range(10):
        n = 8*min(LA-1, 9-sidx)
        a(f"s_waitcnt vmcnt({n})\ns_barrier")
        if sidx + LA <= 9: stage(sidx + LA)

QACC, QF = 64, 32
def qkv_consumer_setup(a):
    a(f"s_lshr_b32 s48, s{SWAVE}, 1\ns_and_b32 s49, s{SWAVE}, 1")
    a(f"v_and_b32 v2, 31, v{VL}\nv_lshrrev_b32 v3, 5, v{VL}")
    a(f"v_bfe_u32 v4, v{VL}, 1, 3")
    a(f"s_lshl_b32 s50, s48, 13\nv_lshlrev_b32 v5, 7, v2\nv_add_u32 v5, s50, v5")
    for ks in range(4):
        a(f"v_or_b32 v6, {2*ks}, v3\nv_xor_b32 v6, v6, v4\nv_lshl_add_u32 v{8+ks}, v6, 4, v5")
    a(f"v_bfe_u32 v4, v{VL}, 2, 2\nv_lshl_add_u32 v5, v3, 3, v4\nv_lshlrev_b32 v5, 8, v5\nv_bfe_u32 v6, v{VL}, 4, 1\nv_lshl_add_u32 v5, v6, 5, v5\nv_and_b32 v6, 3, v{VL}\nv_lshl_add_u32 v5, v6, 3, v5\nv_add_u32 v5, 16384, v5")
    a(f"s_lshl_b32 s50, s49, 1")
    for cf in range(2):
        a(f"s_xor_b32 s51, s48, {cf}\ns_add_u32 s51, s50, s51\nv_xor_b32 v6, s51, v4\nv_lshl_add_u32 v{12+cf}, v6, 6, v5")
    for i in range(64): a(f"v_mov_b32 v{QACC+i}, 0")
def qkv_rd(a, ks, buf, slot, which):
    if OPT.get("k1_noread"): return
    b = QF + 16*buf; o = slot*32768
    if which[0] == "x":
        i = int(which[1]); a(f"ds_read_b128 {v(b+4*i,4)}, v{8+ks} offset:{o+i*4096}")
    else:
        cf = int(which[1])
        for rd in range(2): a(f"ds_read_b64_tr_b16 {v(b+8+4*cf+2*rd,2)}, v{12+cf} offset:{o+ks*4096+rd*1024}")
def qkv_mf(a, buf, vori, i, cf):
    if OPT.get("k1_nomfma"): return
    b = QF + 16*buf
    acc = v(QACC + 16*(2*i+cf), 16); X = v(b+4*i, 4); Wf = v(b+8+4*cf, 4)
    if vori: a(f"v_mfma_f32_32x32x16_bf16 {acc}, {X}, {Wf}, {acc}")
    else: a(f"v_mfma_f32_32x32x16_bf16 {acc}, {Wf}, {X}, {acc}")
def qkv_consumer_loop(a, vori, first_barrier=True):
    L = a.newlab("qloop"); last = a.newlab("qlast"); done = a.newlab("qdone")
    if first_barrier: a("s_barrier")
    for w in ("x0", "w0", "w1", "x1"): qkv_rd(a, 0, 0, 0, w)
    a("s_mov_b32 s50, 0")
    a(".p2align 3")
    a.lab(L)
    for slot in range(2):
        for ks in range(4):
            buf = ks & 1; nb = buf ^ 1
            if ks < 3:
                a("s_waitcnt lgkmcnt(3)"); qkv_mf(a, buf, vori, 0, 0); qkv_rd(a, ks+1, nb, slot, "x0"); qkv_rd(a, ks+1, nb, slot, "w0")
                a("s_waitcnt lgkmcnt(4)"); qkv_mf(a, buf, vori, 0, 1); qkv_rd(a, ks+1, nb, slot, "w1")
                a("s_waitcnt lgkmcnt(5)"); qkv_mf(a, buf, vori, 1, 0); qkv_rd(a, ks+1, nb, slot, "x1")
                qkv_mf(a, buf, vori, 1, 1)
            else:
                a("s_waitcnt lgkmcnt(3)"); qkv_mf(a, buf, vori, 0, 0)
                if slot == 1:
                    a(f"s_cmp_eq_u32 s50, 4\ns_cbranch_scc1 {last}")
                    for r in range(8, 14): a(f"v_xor_b32 v{r}, 0x10000, v{r}")
                a("s_waitcnt lgkmcnt(0)\ns_barrier")
                ns = slot ^ 1
                qkv_rd(a, 0, nb, ns, "x0"); qkv_rd(a, 0, nb, ns, "w0")
                qkv_mf(a, buf, vori, 0, 1); qkv_rd(a, 0, nb, ns, "w1")
                qkv_mf(a, buf, vori, 1, 0); qkv_rd(a, 0, nb, ns, "x1")
                qkv_mf(a, buf, vori, 1, 1)
    a(f"s_add_u32 s50, s50, 1\ns_branch {L}")
    a.lab(last)
    a("s_waitcnt lgkmcnt(0)")
    qkv_mf(a, 1, vori, 0, 1); qkv_mf(a, 1, vori, 1, 0); qkv_mf(a, 1, vori, 1, 1)
QSCALE = (20 ** -0.5) * 1.4426950408889634
def qkv_epi_loads(a, sm, sn, vori, ldf):
    a(f"s_lshl_b32 s50, s{sm}, 7\ns_lshl_b32 s51, s48, 6\ns_add_u32 s50, s50, s51\ns_lshl_b32 s51, s50, 2")
    a(f"s_add_u32 s52, s51, {OFF_RM}")
    a(f"s_lshl_b32 s53, s{sn}, 7\ns_lshl_b32 s54, s49, 6\ns_add_u32 s53, s53, s54\ns_lshl_b32 s54, s53, 2\ns_add_u32 s54, s54, {OFF_CS}")
    a(f"v_and_b32 v2, 31, v{VL}\nv_lshrrev_b32 v3, 5, v{VL}\nv_lshlrev_b32 v4, 2, v2\nv_lshlrev_b32 v5, 4, v3")
    ws = s(SWS, 4)
    if not vori:
        for i in range(2):
            a(f"buffer_load_dword v{128+2*i}, v4, {ws}, s51 offen offset:{i*128} {ldf}")
            a(f"buffer_load_dword v{132+2*i}, v4, {ws}, s52 offen offset:{i*128} {ldf}")
        for k in range(8): a(f"buffer_load_dwordx4 {v(136+4*k,4)}, v5, {ws}, s54 offen offset:{k*32} {ldf}")
    else:
        for cf in range(2): a(f"buffer_load_dword v{128+2*cf}, v4, {ws}, s54 offen offset:{cf*128} {ldf}")
        for k in range(8):
            a(f"buffer_load_dwordx4 {v(136+4*k,4)}, v5, {ws}, s51 offen offset:{k*32} {ldf}")
            a(f"buffer_load_dwordx4 {v(168+4*k,4)}, v5, {ws}, s52 offen offset:{k*32} {ldf}")
def qkv_epi(a, sm, sn, vori, stf):
    ws = s(SWS, 4)
    a("s_waitcnt vmcnt(0)")
    if not vori:
        a(f"s_cmp_lt_u32 s{sn}, 5\ns_cselect_b32 s55, {hexf(QSCALE)}, 1.0")
        for r in (128, 130, 132, 134): a(f"v_mul_f32 v{r}, s55, v{r}")
        a(f"s_cselect_b32 s56, 0, {OFF_K - OFF_Q - 160*256}\ns_add_u32 s56, s56, {OFF_Q}")
        a(f"s_lshr_b32 s55, s50, 5\ns_mul_i32 s55, s55, 40960\ns_add_u32 s56, s56, s55\ns_lshl_b32 s55, s53, 6\ns_add_u32 s56, s56, s55\ns_add_u32 s57, s56, 40960")
        a("v_lshlrev_b32 v4, 3, v2\nv_lshl_add_u32 v4, v3, 8, v4\ns_lshl_b32 s55, s48, 11\nv_add_u32 v4, s55, v4\nv_xor_b32 v5, 2048, v4")
        for i in range(2):
            for cf in range(2):
                b = QACC + 16*(2*i+cf)
                for p in range(8):
                    a(f"v_pk_mul_f32 {v(b+2*p,2)}, {v(b+2*p,2)}, {v(128+2*i,2)} op_sel_hi:[1,0]")
                for p in range(8):
                    a(f"v_pk_fma_f32 {v(b+2*p,2)}, {v(136+16*cf+2*p,2)}, {v(132+2*i,2)}, {v(b+2*p,2)} op_sel_hi:[1,0,1] neg_lo:[0,1,0] neg_hi:[0,1,0]")
                for p in range(8): a(f"v_cvt_pk_bf16_f32 v{b+p}, v{b+2*p}, v{b+2*p+1}")
                for q in range(4):
                    a(f"buffer_store_dwordx2 {v(b+2*q,2)}, v{4+cf}, {ws}, s{56+i} offen offset:{(2*q)*256} {stf}")
    else:
        a(f"s_lshr_b32 s55, s50, 5\ns_mul_i32 s55, s55, 40960\ns_lshl_b32 s56, s53, 4\ns_add_u32 s56, s56, s55\ns_add_u32 s56, s56, {OFF_V - 1280*16}")
        for k in range(1, 4): a(f"s_add_u32 s{56+k}, s56, {k*20480}")
        a("v_mul_u32_u24 v4, 10240, v3\nv_lshl_add_u32 v4, v2, 4, v4\ns_lshl_b32 s55, s48, 9\nv_add_u32 v4, s55, v4\nv_xor_b32 v5, 512, v4")
        for i in range(2):
            for cf in range(2):
                b = QACC + 16*(2*i+cf)
                for p in range(8):
                    a(f"v_pk_mul_f32 {v(b+2*p,2)}, {v(b+2*p,2)}, {v(136+16*i+2*p,2)}")
                for p in range(8):
                    a(f"v_pk_fma_f32 {v(b+2*p,2)}, {v(168+16*i+2*p,2)}, {v(128+2*cf,2)}, {v(b+2*p,2)} op_sel_hi:[1,0,1] neg_lo:[0,1,0] neg_hi:[0,1,0]")
                for p in range(8): a(f"v_cvt_pk_bf16_f32 v{b+p}, v{b+2*p}, v{b+2*p+1}")
                for m in range(2):
                    a(f"buffer_store_dwordx4 {v(b+4*m,4)}, v{4+cf}, {ws}, s{56+2*i+m} offen {stf}")

def lds_sync(a, addr, n, vt=2, st=60, ls=None):
    L = a.newlab("sync")
    a(f"s_waitcnt lgkmcnt(0)\nv_mov_b32 v{vt}, {addr}\nv_mov_b32 v{vt+1}, 1\ns_mov_b64 exec, 1\nds_add_u32 v{vt}, v{vt+1}\ns_mov_b64 exec, -1\ns_mov_b32 s47, 0x80000")
    a.lab(L)
    a(f"ds_read_b32 v{vt+1}, v{vt}\ns_sub_u32 s47, s47, 1\ns_cbranch_scc1 {L}x\ns_waitcnt lgkmcnt(0)\nv_readfirstlane_b32 s{st}, v{vt+1}\ns_cmp_ge_u32 s{st}, {n}\ns_cbranch_scc1 {L}x\ns_sleep {OPT.get('ls', 3) if ls is None else ls}\ns_branch {L}")
    a.lab(L + "x")

MACC, MA, MB = 16, 96, 112
MTR, MDMA, MDIR = 4, 8, 9
S_SRD, S_TO, S_D8, S_STEP, S_DO, S_M0, S_CNT, S_T, S_T2 = 52, 56, 57, 58, 59, 61, 62, 63, 64
def mlp_setup(a, srd, stride, sring, rot=None):
    for k in range(3): a(f"s_mov_b32 s{S_SRD+k}, s{srd+k}")
    a(f"s_mov_b32 s{S_SRD+3}, 0x20000")
    a(f"s_mov_b32 s{S_D8}, {8*stride-1024}\ns_mov_b32 s{S_STEP}, {32*stride - 3*(8*stride-1024)}\ns_mov_b32 s{S_M0}, s{sring}")
    a(f"v_lshrrev_b32 v2, 3, v{VL}\nv_mul_u32_u24 v2, {stride}, v2\nv_bfe_u32 v3, v{VL}, 1, 2\nv_lshrrev_b32 v10, 4, v{VL}\nv_xor_b32 v3, v3, v10\nv_lshl_add_u32 v2, v3, 5, v2\nv_and_b32 v3, 1, v{VL}\nv_lshl_add_u32 v{MDMA}, v3, 4, v2")
    a(f"v_lshlrev_b32 v{MDIR}, 4, v{VL}")
    a(f"v_lshrrev_b32 v2, 2, v{VL}\nv_lshlrev_b32 v2, 7, v2\nv_and_b32 v3, 3, v{VL}\nv_lshl_add_u32 v2, v3, 3, v2\nv_add_u32 v2, s{sring}, v2\nv_bfe_u32 v3, v{VL}, 3, 2")
    if rot is not None: a(f"v_xor_b32 v3, s{rot}, v3")
    for fb in range(4): a(f"v_xor_b32 v10, {fb}, v3\nv_lshl_add_u32 v{MTR+fb}, v10, 5, v2")
def mlp_dma(a, slot, fl=''):
    a(f"s_add_u32 m0, s{S_M0}, {slot*4096}")
    for i in range(4):
        a(f"buffer_load_dwordx4 v{MDMA}, {s(S_SRD,4)}, s{S_TO} offen offset:{i*1024} {fl} lds" if i else f"s_nop 0\nbuffer_load_dwordx4 v{MDMA}, {s(S_SRD,4)}, s{S_TO} offen {fl} lds")
        a(f"s_add_u32 s{S_TO}, s{S_TO}, s{S_D8 if i < 3 else S_STEP}")
MSK = 11
def skip_off(a, r):
    a(f"v_lshlrev_b32 v{r}, 4, v{VL}\nv_cmp_le_u32 vcc, 56, v{VL}\nv_add_u32 v{r}, 512, v{r}\nv_add_u32 v2, 128, v{r}\nv_cndmask_b32 v{r}, v{r}, v2, vcc")
def mlp_dir(a, slot, db, ldf):
    r = MB + 20*slot + 4*db
    a(f"buffer_load_dwordx4 {v(r,4)}, v{MSK}, {s(SWS,4)}, s{S_DO} offen offset:{(db&1)*2048} {ldf}")
    if db & 1 or db == 4: a(f"s_add_u32 s{S_DO}, s{S_DO}, {4096 if db < 4 else 2048}")
def mlp_body(a, slot, wait, loads, ldf, swap=False):
    a(f"s_waitcnt vmcnt({wait})")
    for fb in range(4):
        for rd in range(2):
            if not OPT.get("m_noread"): a(f"ds_read_b64_tr_b16 {v(MA+4*fb+2*rd,2)}, v{MTR+fb} offset:{slot*4096+rd*2048}")
    a("s_waitcnt lgkmcnt(0)")
    if loads: mlp_dma(a, slot)
    for db in range(5):
        for fb in range(4):
            acc = v(MACC + (fb*5+db)*4, 4)
            A_, B_ = v(MA+4*fb,4), v(MB+20*slot+4*db,4)
            if swap: A_, B_ = B_, A_
            if not OPT.get("m_nomfma"): a(f"v_mfma_f32_16x16x32_bf16 {acc}, {A_}, {B_}, {acc}")
        if loads: mlp_dir(a, slot, db, ldf)
OPT = {"lead": 0, "leadwait": 27, "rot1": 0}
def lead_setup(a, skw, slead):
    a(f"s_lshr_b32 s{slead}, s{SJ}, 2\ns_add_u32 s{slead}, s{slead}, s{SJ}\ns_and_b32 s{slead}, s{slead}, 3\ns_cmp_eq_u32 s{slead}, s{skw}\ns_cselect_b32 s{slead}, 1, 0")
def mlp_loop(a, sphi, ldf, slead=None, flag=None):
    P = [a.newlab("mp") for _ in range(7)]; B = [a.newlab("mb") for _ in range(4)]; go = a.newlab("mgo")
    lead = OPT["lead"] and slead is not None
    if lead:
        L0 = a.newlab("ld"); L1 = a.newlab("ld")
        a(f"v_mov_b32 v12, {flag}\ns_cmp_eq_u32 s{slead}, 1\ns_cbranch_scc1 {L1}")
        for i in range(80): a(f"v_mov_b32 v{MACC+i}, 0")
        a.lab(L0)
        a(f"ds_read_b32 v13, v12\ns_waitcnt lgkmcnt(0)\nv_readfirstlane_b32 s{S_T}, v13\ns_cmp_eq_u32 s{S_T}, 0\ns_cbranch_scc1 {L0}")
        a.lab(L1)
    a(f"s_cmp_eq_u32 s{sphi}, 2\ns_cbranch_scc1 {P[2]}\ns_cmp_eq_u32 s{sphi}, 3\ns_cbranch_scc1 {P[3]}")
    for k in range(7):
        a.lab(P[k])
        mlp_dma(a, k % 4)
        for db in range(5): mlp_dir(a, k % 4, db, ldf)
        if k in (3, 5): a(f"s_cmp_eq_u32 s{sphi}, {k-3}\ns_cbranch_scc1 {go}")
    a.lab(go)
    if lead:
        L2 = a.newlab("ld")
        a(f"s_cmp_eq_u32 s{slead}, 0\ns_cbranch_scc1 {L2}")
        if OPT["lead"] > 1: a("s_setprio 3")
    for i in range(80): a(f"v_mov_b32 v{MACC+i}, 0")
    if lead:
        a(f"v_mov_b32 v13, 1\ns_waitcnt vmcnt({OPT['leadwait']})\nds_write_b32 v12, v13")
        a.lab(L2)
    a(f"s_cmp_eq_u32 s{sphi}, 2\ns_cbranch_scc1 {B[2]}\ns_cmp_eq_u32 s{sphi}, 3\ns_cbranch_scc1 {B[3]}")
    for k in range(4):
        a.lab(B[k])
        mlp_body(a, k, 27, True, ldf)
    a(f"s_sub_u32 s{S_CNT}, s{S_CNT}, 1\ns_cmp_lg_u32 s{S_CNT}, 0\ns_cbranch_scc1 {B[0]}")
    for k in range(4): mlp_body(a, k, 27-9*k, False, ldf)

def mlp1_tile(a, sdt, sft, skip):
    a(f"s_and_b32 s{sdt}, s{SXCD}, 1\ns_lshl_b32 s{sdt}, s{sdt}, 2\ns_and_b32 s47, s{SJ}, 3\ns_add_u32 s{sdt}, s{sdt}, s47")
    a(f"s_lshr_b32 s{sft}, s{SXCD}, 1\ns_mul_i32 s{sft}, s{sft}, 7\ns_lshr_b32 s47, s{SJ}, 2\ns_add_u32 s{sft}, s{sft}, s47")
    a(f"s_cmp_ge_u32 s47, 7\ns_cbranch_scc1 {skip}\ns_cmp_ge_u32 s{sft}, 27\ns_cbranch_scc1 {skip}")
def mlp1_main(a, sdt, sft, skw, ringbase, ringstride, ldf, flag=None):
    a(f"s_mul_i32 s66, s{skw}, {ringstride}\ns_add_u32 s66, s66, {ringbase}")
    a(f"s_mul_i32 s67, s{skw}, 3\ns_cmp_eq_u32 s{skw}, 3\ns_cselect_b32 s67, 8, s67")
    a(f"v_lshrrev_b32 v2, 4, v{VL}\nv_lshlrev_b32 v11, 3, v2")
    for k in range(3):
        a(f"s_add_u32 s65, s67, {k}\ns_cmp_ge_u32 s65, 5\ns_cselect_b32 s65, 64, 0\ns_lshl_b32 s68, s{sft}, 7\ns_add_u32 s65, s65, s68")
        for t in range(2): a(f"buffer_load_dwordx2 {v(192+4*k+2*t,2)}, v11, {s(SB1,4)}, s65 offen offset:{t*32}")
    mlp_setup(a, SW1, 3456, 66)
    a(f"s_mul_i32 s{S_TO}, s{skw}, {512*3456}\ns_lshl_b32 s65, s{sft}, 7\ns_add_u32 s{S_TO}, s{S_TO}, s65")
    a(f"s_mul_i32 s{S_DO}, s{sdt}, 327680\ns_mul_i32 s65, s{skw}, {16*5120}\ns_add_u32 s{S_DO}, s{S_DO}, s65\ns_add_u32 s{S_DO}, s{S_DO}, {OFF_H}")
    lead_setup(a, skw, 75)
    a(f"s_mov_b32 s{S_CNT}, 3\ns_mov_b32 s65, 0")
    mlp_loop(a, 65, ldf, 75, flag)
GC1 = -2*1.4426950408889634*0.7978845608028654
GC2 = GC1*0.044715
def mlp1_epi(a, sdt, sft, skw, ringbase, ringstride, cnt_addr, stf):
    a(f"v_add_u32 v10, s66, v{MDIR}\ns_nop 7")
    for t in range(20): a(f"ds_write_b128 v10, {v(MACC+4*t,4)} offset:{t*1024}")
    lds_sync(a, cnt_addr, 4)
    a(f"s_mul_i32 s68, s{sdt}, {54*5120}\ns_mul_i32 s65, s{sft}, 10240\ns_add_u32 s68, s68, s65\ns_lshl_b32 s65, s67, 10\ns_add_u32 s68, s68, s65\ns_add_u32 s68, s68, {OFF_G}")
    skip = a.newlab("m1e")
    for k in range(3):
        if k == 2: a(f"s_cmp_ge_u32 s{skw}, 2\ns_cbranch_scc1 {skip}_r")
        a(f"s_add_u32 s65, s67, {k}\ns_cmp_ge_u32 s65, 5\ns_cselect_b32 s69, 5, 0\ns_add_u32 s65, s65, s69\ns_lshl_b32 s65, s65, 10\ns_add_u32 s65, s65, {ringbase}")
        a(f"v_add_u32 v10, s65, v{MDIR}\nv_add_u32 v11, 5120, v10")
        for t in range(2):
            for src in range(4): a(f"ds_read_b128 {v(16+32*k+16*t+4*src,4)}, v{10+t} offset:{src*ringstride}")
    a.lab(skip + "_r")
    a(f"s_mov_b32 s70, {hexf(GC1)}\ns_mov_b32 s71, {hexf(GC1)}\ns_mov_b32 s72, {hexf(GC2)}\ns_mov_b32 s73, {hexf(GC2)}\nv_mov_b32 v14, s70\nv_mov_b32 v15, s70")
    a("s_waitcnt lgkmcnt(0)")
    for k in range(3):
        if k == 2: a(f"s_cmp_ge_u32 s{skw}, 2\ns_cbranch_scc1 {skip}")
        b = 16 + 32*k
        for t in range(2):
            for q in range(2):
                bb = 192+4*k+2*t+q
                a(f"v_lshlrev_b32 v{112+4*t+2*q}, 16, v{bb}\nv_and_b32 v{113+4*t+2*q}, 0xffff0000, v{bb}")
        for src in range(4):
            for t in range(2):
                for q in range(2): a(f"v_pk_add_f32 {v(112+4*t+2*q,2)}, {v(112+4*t+2*q,2)}, {v(b+16*t+4*src+2*q,2)}")
        for q in range(4): a(f"v_pk_mul_f32 {v(120+2*q,2)}, {v(112+2*q,2)}, {v(112+2*q,2)}")
        for q in range(4): a(f"v_pk_fma_f32 {v(120+2*q,2)}, {v(120+2*q,2)}, s[72:73], v[14:15]")
        for q in range(4): a(f"v_pk_mul_f32 {v(120+2*q,2)}, {v(120+2*q,2)}, {v(112+2*q,2)}")
        for q in range(8): a(f"v_exp_f32 v{120+q}, v{120+q}")
        for q in range(8): a(f"v_add_f32 v{120+q}, 1.0, v{120+q}")
        for q in range(8): a(f"v_rcp_f32 v{120+q}, v{120+q}")
        a("s_nop 0")
        for q in range(4): a(f"v_pk_mul_f32 {v(120+2*q,2)}, {v(120+2*q,2)}, {v(112+2*q,2)}")
        for q in range(4): a(f"v_cvt_pk_bf16_f32 v{128+4*k+q}, v{120+2*q}, v{121+2*q}")
        a(f"buffer_store_dwordx4 {v(128+4*k,4)}, v{MDIR}, {s(SWS,4)}, s68 offen offset:{k*1024} {stf}")
    a.lab(skip)

AS, AMD, AME, AO, AK, AV, AQ = 16, 160, 176, 192, 208, 226, 242
def attn_ids(a, shd, sb):
    a(f"s_lshl_b32 s{shd}, s{SXCD}, 2\ns_and_b32 s47, s{SJ}, 3\ns_add_u32 s{shd}, s{shd}, s47\ns_lshr_b32 s{sb}, s{SJ}, 2")
def attn_masks(a):
    a(f"v_and_b32 v2, 31, v{VL}\nv_lshrrev_b32 v3, 5, v{VL}\nv_lshlrev_b32 v3, 2, v3\nv_sub_u32 v2, v2, v3\nv_mov_b32 v3, {NEGINF}")
    for r0 in range(0, 16, 4):
        for r in range(r0, r0+4): a(f"v_cmp_le_i32 {s(66+2*(r-r0),2)}, {8*(r>>2)+(r&3)}, v2")
        for r in range(r0, r0+4): a(f"v_cndmask_b32 v{AMD+r}, v3, 0, {s(66+2*(r-r0),2)}\nv_cndmask_b32 v{AME+r}, 0, v3, {s(66+2*(r-r0),2)}")
def attn_loads(a, shd, sb, base, ldf):
    ws = s(SWS, 4); w = SWAVE
    KB, VB = base, base + 20480
    a(f"s_lshl_b32 s50, s{sb}, 3\ns_sub_u32 s51, s50, 8\ns_cmp_eq_u32 s{sb}, 0\ns_cselect_b32 s52, 0, s51\ns_cmp_ge_u32 s{w}, 2\ns_cselect_b32 s51, s51, s52\ns_lshl_b32 s52, s{w}, 2\ns_add_u32 s51, s51, s52\ns_mul_i32 s51, s51, 40960")
    a(f"v_and_b32 v2, 31, v{VL}\nv_lshrrev_b32 v3, 5, v{VL}\nv_lshlrev_b32 v4, 3, v2\nv_lshl_add_u32 v5, v3, 9, v4\nv_mov_b32 v6, {OOB}\nv_cmp_eq_u32 vcc, 0, v3\ns_nop 1\nv_cndmask_b32 v6, v6, v4, vcc")
    a(f"s_add_u32 s52, s50, s{w}\ns_mul_i32 s52, s52, 40960\ns_mul_i32 s53, s{shd}, 1280\ns_add_u32 s52, s52, s53\ns_add_u32 s54, s52, {OFF_Q}\ns_add_u32 s55, s54, {4*40960}")
    for t in range(2):
        a(f"buffer_load_dwordx2 {v(AQ+6*t,2)}, v5, {ws}, s{54+t} offen {ldf}\nbuffer_load_dwordx2 {v(AQ+6*t+2,2)}, v5, {ws}, s{54+t} offen offset:256 {ldf}\nbuffer_load_dwordx2 {v(AQ+6*t+4,2)}, v6, {ws}, s{54+t} offen offset:1024 {ldf}")
    a(f"s_add_u32 s56, s52, {OFF_O}")
    a(f"s_add_u32 s53, s53, s51\ns_add_u32 s53, s53, {OFF_K}\ns_mul_i32 s54, s{w}, 5120\ns_add_u32 m0, s54, {KB}\ns_mov_b32 s55, 39680")
    for i in range(5):
        a(f"v_add_u32 v7, {64*i}, v{VL}\nv_mul_u32_u24 v7, 205, v7\nv_lshrrev_b32 v7, 14, v7\nv_mul_lo_u32 v7, v7, s55\nv_lshl_add_u32 v7, v{VL}, 4, v7")
        if i == 4: a(f"s_add_u32 m0, s54, {KB+4096}\nv_add_u32 v7, 4096, v7")
        a(f"buffer_load_dwordx4 v7, {ws}, s53 offen offset:{(i&3)*1024} {ldf} lds")
    a(f"v_mul_u32_u24 v7, 49, v{VL}\nv_lshrrev_b32 v7, 10, v7\nv_mul_u32_u24 v7, {10240-336}, v7\nv_lshl_add_u32 v7, v{VL}, 4, v7")
    a(f"s_mul_i32 s53, s{shd}, 320\ns_add_u32 s53, s53, s51\ns_add_u32 s53, s53, {OFF_V}\ns_mul_i32 s54, s{w}, 5376\ns_add_u32 s54, s54, {VB}")
    for k in range(6):
        a(f"s_add_u32 m0, s54, {k*1008}")
        if k == 5: a("s_mov_b64 exec, 0x1fffff")
        else: a("s_nop 0")
        a(f"buffer_load_dwordx4 v7, {ws}, s53 offen {ldf} lds\ns_add_u32 s53, s53, 30720")
    a("s_mov_b64 exec, -1")
    a(f"s_mul_i32 s53, s{w}, 1280\ns_add_u32 s53, s53, {KB}\nv_add_u32 v8, s53, v5\nv_add_u32 v9, s53, v4")
    a(f"v_min_u32 v10, 20, v2\nv_cmp_lt_u32 vcc, 27, v2\nv_mul_u32_u24 v13, 336, v3\ns_nop 0\nv_cndmask_b32 v10, v10, 4, vcc".replace("v_cndmask_b32 v10, v10, 4, vcc", "v_cndmask_b32_e64 v10, v10, 4, vcc"))
    a(f"s_mul_i32 s53, s{w}, 1344\ns_add_u32 s53, s53, {VB}\nv_lshl_add_u32 v10, v10, 4, v13\nv_add_u32 v10, s53, v10")
    a(f"v_lshl_add_u32 v11, v3, 8, v4\nv_mov_b32 v12, v6")
    a(f"v_and_b32 v13, 15, v{VL}\nv_mul_u32_u24 v13, 336, v13\nv_add_u32 v13, s54, v13")
    a("v_mov_b32 v4, 0x3f803f80\nv_mov_b32 v5, v4\nv_mov_b32 v6, v4\nv_mov_b32 v7, v4")
    a(f"s_sub_u32 s57, 8, s{w}\ns_cmp_eq_u32 s{sb}, 0\ns_cselect_b32 s57, s57, 0\ns_cselect_b32 s58, 4, 0")
def attn_compute(a, cnt_addr, stf):
    ws = s(SWS, 4)
    a("s_waitcnt vmcnt(0)\nds_write_b128 v13, v[4:7] offset:320")
    lds_sync(a, cnt_addr, 4)
    a("s_mov_b32 s59, 0")
    if OPT.get("astamp"): stamp(a, 3)
    L = a.newlab("atask")
    if OPT.get("aalign"): a(".p2align 3")
    a.lab(L)
    def kread(p):
        b = AK + 6*(p % 3)
        a(f"ds_read_b64 {v(b,2)}, v8 offset:{p*1280}\nds_read_b64 {v(b+2,2)}, v8 offset:{p*1280+256}\nds_read_b64 {v(b+4,2)}, v9 offset:{p*1280+1024}")
    def vread(p):
        b = AV + 8*(p % 2)
        for m in range(2): a(f"ds_read_b128 {v(b+4*m,4)}, v10 offset:{p*1344+m*672}")
    def mx(p):
        sk = a.newlab("inv")
        if p < 8:
            a(f"s_cmp_le_u32 s57, {p}\ns_cbranch_scc1 {sk}")
            for r in range(16): a(f"v_mov_b32 v{AS+16*p+r}, {NEGINF}")
            a.lab(sk)
        for q in range(8):
            d = 2 + (q & 1)
            if p == 0 and q < 2: a(f"v_max_f32 v{d}, v{AS+2*q}, v{AS+2*q+1}")
            else: a(f"v_max3_f32 v{d}, v{d}, v{AS+16*p+2*q}, v{AS+16*p+2*q+1}")
    kread(0); kread(1)
    for p in range(9):
        if p + 2 < 9: kread(p+2)
        a(f"s_waitcnt lgkmcnt({min(2, 8-p)*3})")
        b = AK + 6*(p % 3); S = v(AS+16*p, 16)
        C = v(AME,16) if p == 0 else v(AMD,16) if p == 8 else "0"
        a(f"v_mfma_f32_32x32x16_bf16 {S}, {v(b,4)}, {v(AQ,4)}, {C}")
        a(f"v_mfma_f32_32x32x8bf16_1k {S}, {v(b+4,2)}, {v(AQ+4,2)}, {S}")
        if p >= 2: mx(p-2)
    vread(0)
    mx(7)
    a("s_nop 1")
    mx(8)
    a("v_max_f32 v2, v2, v3\nv_mov_b32 v3, v2\ns_nop 1\nv_permlane32_swap_b32 v2, v3\nv_max_f32 v2, v2, v3")
    if OPT.get("astamp"):
        LL = a.newlab("st"); a(f"s_cmp_eq_u32 s59, {OPT['astamp']-1}\ns_cbranch_scc0 {LL}"); stamp(a, 4); a.lab(LL)
    def pv(p):
        b = AV + 8*(p % 2)
        for m in range(2):
            C = "0" if (p == 0 and m == 0) else v(AO,16)
            a(f"v_mfma_f32_32x32x16_bf16 {v(AO,16)}, {v(b+4*m,4)}, {v(AS+16*p+4*m,4)}, {C}")
    for p in range(9):
        b = AS + 16*p
        if OPT.get("nopk"):
            for q in range(16): a(f"v_sub_f32 v{b+q}, v{b+q}, v2")
        else:
            for q in range(8): a(f"v_pk_add_f32 {v(b+2*q,2)}, {v(b+2*q,2)}, v[2:3] op_sel_hi:[1,0] neg_lo:[0,1] neg_hi:[0,1]")
        if p > 0:
            a("s_waitcnt lgkmcnt(0)"); pv(p-1)
        if p + 1 < 9 and p > 0: vread(p+1)
        if p == 0: vread(1)
        for q in range(16): a(f"v_exp_f32 v{b+q}, v{b+q}")
        a("s_nop 0")
        for q in range(8): a(f"v_cvt_pk_bf16_f32 v{b+q}, v{b+2*q}, v{b+2*q+1}")
    a("s_waitcnt lgkmcnt(0)\ns_nop 0"); pv(8)
    for r in range(6): a(f"v_mov_b32 v{AQ+r}, v{AQ+6+r}")
    a(f"v_add_u32 v8, {4*1280}, v8\nv_add_u32 v9, {4*1280}, v9\nv_add_u32 v10, {4*1344}, v10\ns_sub_u32 s57, s57, s58\ns_nop 2")
    a(f"v_mov_b32 v2, v{AO+8}\nv_mov_b32 v3, v{AO+8}\ns_nop 1\nv_permlane32_swap_b32 v2, v3\nv_rcp_f32 v2, v3\ns_nop 0")
    for q in range(6): a(f"v_pk_mul_f32 {v(AO+2*q,2)}, {v(AO+2*q,2)}, v[2:3] op_sel_hi:[1,0]")
    for q in range(6): a(f"v_cvt_pk_bf16_f32 v{AS+q}, v{AO+2*q}, v{AO+2*q+1}")
    a(f"buffer_store_dwordx2 {v(AS,2)}, v11, {ws}, s56 offen {stf}\nbuffer_store_dwordx2 {v(AS+2,2)}, v11, {ws}, s56 offen offset:512 {stf}\nbuffer_store_dwordx2 {v(AS+4,2)}, v12, {ws}, s56 offen offset:1024 {stf}")
    if OPT.get("astamp"):
        LL = a.newlab("st"); a(f"s_cmp_eq_u32 s59, 0\ns_cbranch_scc0 {LL}"); stamp(a, 5 if OPT['astamp'] == 1 else 3); a.lab(LL)
    a(f"s_add_u32 s56, s56, {4*40960}\ns_add_u32 s59, s59, 1\ns_cmp_lt_u32 s59, 2\ns_cbranch_scc1 {L}")

def fin_tile(a, sdt, sst):
    a(f"s_and_b32 s{sdt}, s{SXCD}, 1\ns_lshl_b32 s{sdt}, s{sdt}, 2\ns_and_b32 s47, s{SJ}, 3\ns_add_u32 s{sdt}, s{sdt}, s47")
    a(f"s_lshr_b32 s{sst}, s{SXCD}, 1\ns_lshl_b32 s{sst}, s{sst}, 3\ns_lshr_b32 s47, s{SJ}, 2\ns_add_u32 s{sst}, s{sst}, s47")
def fin_resid_loads(a, sdt, sst, sw):
    a(f"s_lshl_b32 s65, s{sst}, 6\ns_lshl_b32 s68, s{sw}, 4\ns_add_u32 s65, s65, s68\ns_mul_i32 s74, s65, 1280\ns_mul_i32 s68, s{sdt}, 160\ns_add_u32 s74, s74, s68\ns_lshl_b32 s65, s65, 1")
    for k in range(3):
        a(f"v_add_u32 v2, {64*k}, v{VL}\nv_mul_u32_u24 v3, 205, v2\nv_lshrrev_b32 v3, 11, v3\nv_mul_u32_u24 v10, 1120, v3\nv_lshl_add_u32 v{207+k}, v2, 4, v10\nv_lshlrev_b32 v3, 1, v3")
        if k == 2: a(f"v_cmp_gt_u32 vcc, 32, v{VL}\nv_mov_b32 v10, {OOB}\ns_nop 0\nv_cndmask_b32 v209, v10, v209, vcc\nv_cndmask_b32 v3, v10, v3, vcc")
        a(f"buffer_load_dwordx4 {v(192+4*k,4)}, v{207+k}, {s(SX,4)}, s74 offen\nbuffer_load_ushort v{204+k}, v3, {s(SB2,4)}, s65 offen")
def mlp2_main(a, sdt, sst, sw, ringbase, ringstride, ldf, flag=None):
    a(f"s_mul_i32 s66, s{sw}, {ringstride}\ns_add_u32 s66, s66, {ringbase}")
    mlp_setup(a, SW2, 4096, 66, rot=sw)
    a(f"s_mul_i32 s67, s{sw}, 14\ns_cmp_eq_u32 s{sw}, 3\ns_cselect_b32 s67, 41, s67")
    a(f"s_lshl_b32 s{S_TO}, s67, 17\ns_lshl_b32 s65, s{sst}, 7\ns_add_u32 s{S_TO}, s{S_TO}, s65")
    a(f"s_mul_i32 s{S_DO}, s{sdt}, {54*5120}\ns_mul_i32 s65, s67, 5120\ns_add_u32 s{S_DO}, s{S_DO}, s65\ns_add_u32 s{S_DO}, s{S_DO}, {OFF_G}")
    lead_setup(a, sw, 75)
    a(f"s_mov_b32 s{S_CNT}, 3\ns_cmp_ge_u32 s{sw}, 2\ns_cselect_b32 s65, 3, 2")
    mlp_loop(a, 65, ldf, 75, flag)
WB, WA = 96, 196
def wo_bloads(a, sdt, skw, ldf):
    a(f"v_lshlrev_b32 v{MDIR}, 4, v{VL}\ns_mul_i32 s50, s{sdt}, 102400\ns_mul_i32 s51, s{skw}, {5*5120}\ns_add_u32 s50, s50, s51\ns_add_u32 s50, s50, {OFF_WOF}")
    for i in range(25):
        a(f"buffer_load_dwordx4 {v(WB+4*i,4)}, v{MDIR}, {s(SWS,4)}, s50 offen offset:{(i&3)*1024} {ldf}")
        if (i & 3) == 3: a("s_add_u32 s50, s50, 4096")
def wo_main(a, sst, skw, ldf):
    a(f"v_lshrrev_b32 v2, 4, v{VL}\nv_and_b32 v3, 15, v{VL}\nv_lshlrev_b32 v3, 3, v3\nv_lshl_add_u32 v8, v2, 9, v3")
    a(f"s_mul_i32 s50, s{sst}, 81920\ns_mul_i32 s51, s{skw}, {5*2048}\ns_add_u32 s50, s50, s51\ns_add_u32 s50, s50, {OFF_O}")
    for i in range(4):
        a(f"s_xor_b32 s51, s{skw}, {i}\ns_lshr_b32 s56, s51, 1\ns_mul_i32 s56, s56, 40960\ns_and_b32 s51, s51, 1\ns_lshl_b32 s51, s51, 7\ns_add_u32 s51, s51, s56\ns_add_u32 s{52+i}, s50, s51")
    def aload(st):
        for i in range(4):
            for e in range(2): a(f"buffer_load_dwordx2 {v(WA+16*(st%3)+4*i+2*e,2)}, v8, {s(SWS,4)}, s{52+i} offen offset:{(st&1)*2048+e*256} {ldf}")
            if st & 1: a(f"s_add_u32 s{52+i}, s{52+i}, 4096")
    for st in range(3): aload(st)
    for st in range(5):
        a(f"s_waitcnt vmcnt({8*min(2, 4-st)})")
        for db in range(5):
            for i in range(4):
                acc = v(MACC+(i*5+db)*4, 4)
                a(f"v_mfma_f32_16x16x32_bf16 {acc}, {v(WA+16*(st%3)+4*i,4)}, {v(WB+20*st+4*db,4)}, {'0' if st == 0 else acc}")
        if st + 3 < 5: aload(st+3)
def fin_write(a, sbase, first):
    a(f"v_add_u32 v10, s{sbase}, v{MDIR}\ns_nop 7")
    for t in range(first, 20): a(f"ds_write_b128 v10, {v(MACC+4*t,4)} offset:{(t-first)*1024}")
    a("s_waitcnt lgkmcnt(0)")
def fin_epi(a, sw, xbase, xstride, ybase, ystride):
    for i in range(1, 4):
        a(f"s_xor_b32 s65, s{sw}, {i}\ns_mul_i32 s65, s65, {xstride}\ns_add_u32 s65, s65, {xbase+(i-1)*5120}\nv_add_u32 v10, s65, v{MDIR}")
        for db in range(5): a(f"ds_read_b128 {v(16+20*i+4*db,4)}, v10 offset:{db*1024}")
    for i in range(4):
        a(f"s_xor_b32 s65, s{sw}, {i}\ns_mul_i32 s65, s65, {ystride}\ns_add_u32 s65, s65, {ybase+i*5120}\nv_add_u32 v10, s65, v{MDIR}")
        if i == 0: a("s_mov_b32 s66, s65")
        for db in range(5): a(f"ds_read_b128 {v(96+20*i+4*db,4)}, v10 offset:{db*1024}")
        if i == 1: a("s_waitcnt lgkmcnt(10)")
    for i in range(1, 8):
        if i == 4: a("s_waitcnt lgkmcnt(0)")
        for q in range(10): a(f"v_pk_add_f32 {v(16+2*q,2)}, {v(16+2*q,2)}, {v(16+20*i+2*q,2)}")
    a(f"v_lshrrev_b32 v2, 4, v{VL}\nv_mul_u32_u24 v2, 1280, v2\nv_and_b32 v3, 15, v{VL}\nv_lshl_add_u32 v2, v3, 2, v2\nv_add_u32 v2, s66, v2\nv_lshlrev_b32 v3, 5, v{VL}\nv_add_u32 v3, s66, v3")
    for db in range(5):
        for r in range(4): a(f"ds_write_b32 v2, v{16+4*db+r} offset:{r*320+db*64}")
    a("s_waitcnt lgkmcnt(0)")
    for k in range(3): a(f"ds_read_b128 {v(40+8*k,4)}, v3 offset:{k*2048}\nds_read_b128 {v(44+8*k,4)}, v3 offset:{k*2048+16}")
    for k in range(3):
        a(f"v_lshlrev_b32 v{204+k}, 16, v{204+k}")
        for q in range(4): a(f"v_lshlrev_b32 v{64+8*k+2*q}, 16, v{192+4*k+q}\nv_and_b32 v{65+8*k+2*q}, 0xffff0000, v{192+4*k+q}")
        for q in range(8): a(f"v_add_f32 v{64+8*k+q}, v{64+8*k+q}, v{204+k}")
    for k in range(3):
        a(f"s_waitcnt lgkmcnt({4-2*k})")
        for q in range(4): a(f"v_pk_add_f32 {v(40+8*k+2*q,2)}, {v(40+8*k+2*q,2)}, {v(64+8*k+2*q,2)}")
        for q in range(4): a(f"v_cvt_pk_bf16_f32 v{96+4*k+q}, v{40+8*k+2*q}, v{41+8*k+2*q}")
        a(f"buffer_store_dwordx4 {v(96+4*k,4)}, v{207+k}, {s(SOUT,4)}, s74 offen")
```

```python
import sys
import blocks
from blocks import *
NAME = "parallel_sum__sliding_block__mixer_token_mlp__prompt_kernel"
LDS = 163840
L_LN = 0
L_ST = 147456
L_CSP = L_ST + 2560
OFF_CSP = 0xB000
L_RS = LDS - 352
L_KN = LDS - 272
L_FULL = LDS - 256
L_FREE = L_FULL + 64
C_PUB, C_C1, C_CS, C_QD = L_FULL + 128, L_FULL + 132, L_FULL + 136, L_FULL + 140
L_CNT = LDS - 64
C_QA, C_AGO, C_AK, C_OA, C_MP, C_GA, C_W1, C_W2, C_GGO, C_OGO, C_AV, C_WR = [L_CNT + 4*i for i in range(12)]
M1BASE, M1STR = 65536, 20480
G_Q, G_O, G_G, G_W = OFF_FLAG, OFF_FLAG + 8*256, OFF_FLAG + 16*256, OFF_FLAG + 21*256
NCTR = 22
XB, XSTR = 49152, 24576
QS = 49152
OFF_O1, OFF_O2 = OFF_O, OFF_O + 0x200000
ST, LD = "sc1", "sc1"
SM, SN, SROLE, SDT1, SFT, SHAS1, SDT3, SST, SHD, SBQ, SKW = 76, 77, 78, 79, 80, 81, 82, 83, 48, 49, 75

def garrive(a, srd, soff, target, doneoff, L, va=3):
    a(f"v_mov_b32 v{va}, 1\nbuffer_atomic_add v{va}, off, {s(srd,4)}, s{soff} sc0 sc1\ns_waitcnt vmcnt(0)\nv_readfirstlane_b32 s60, v{va}\ns_cmp_lg_u32 s60, {target-1}\ns_cbranch_scc1 {L}")
    a(f"v_mov_b32 v{va}, 1\nbuffer_store_dword v{va}, off, {s(srd,4)}, s{doneoff[0]} offset:{doneoff[1]} sc1")
def arrive(a, lcnt, n, goff_sgpr, target, fin=None):
    L = a.newlab("arr")
    a(f"s_waitcnt vmcnt(0)\nv_mov_b32 v2, {lcnt}\nv_mov_b32 v3, 1\ns_mov_b64 exec, 1\nds_add_rtn_u32 v14, v2, v3\ns_waitcnt lgkmcnt(0)\nv_readfirstlane_b32 s60, v14\ns_cmp_lg_u32 s60, {n-1}\ns_cbranch_scc1 {L}")
    if fin is None: garrive(a, SWS, goff_sgpr, target, (goff_sgpr, 128), L)
    else:
        garrive(a, SWS, goff_sgpr, target, (goff_sgpr, 128), L + "f")
        a.lab(L + "f")
        lds_set(a, fin)
    a.lab(L)
    a("s_mov_b64 exec, -1")
def lds_wait(a, addr, n, vreg=2, ls=None):
    L = a.newlab("lw")
    if addr is not None: a(f"v_mov_b32 v2, {addr}")
    a("s_mov_b32 s47, 0x80000")
    a.lab(L)
    a(f"ds_read_b32 v3, v{vreg}\ns_sub_u32 s47, s47, 1\ns_cbranch_scc1 {L}x\ns_waitcnt lgkmcnt(0)\nv_readfirstlane_b32 s60, v3\ns_cmp_ge_u32 s60, {n}\ns_cbranch_scc1 {L}x\ns_sleep {OPT.get('ls', 3) if ls is None else ls}\ns_branch {L}")
    a.lab(L + "x")
def lds_set(a, addr):
    a(f"v_mov_b32 v2, {addr}\nv_mov_b32 v3, 1\nds_write_b32 v2, v3")
def gpoll(a, vaddr, srd, soff, target, nl, vd=3, slp=None, tgt_reg=False):
    L = a.newlab("gp")
    if tgt_reg: target = hex(target)
    a(f"s_mov_b64 exec, {(1<<nl)-1}\ns_mov_b32 s47, 0x8000")
    a.lab(L)
    a(f"buffer_load_dword v{vd}, v{vaddr}, {s(srd,4)}, {soff} offen sc1\ns_sub_u32 s47, s47, 1\ns_cbranch_scc1 {L}x\ns_waitcnt vmcnt(0)\nv_cmp_ne_u32 vcc, {target}, v{vd}\ns_cbranch_vccz {L}x\ns_sleep {slp or OPT.get('slp', 2)}\ns_branch {L}")
    a.lab(L + "x")
    a("s_mov_b64 exec, -1")
def c1_poll(a, slp=None):
    a(f"v_lshlrev_b32 v2, 2, v{VL}\nv_add_u32 v2, 128, v2")
    gpoll(a, 2, SDBG, 0, 1, 2, slp=slp)

def l10(a, i, m=10):
    if OPT.get("ls9") == m: lstamp(a, i)
def est(a, i):
    if OPT.get("mst") == 3: stamp(a, i, True)
def ast(a, i, cond=None, m=5):
    if OPT.get("mst") != m: return
    if cond is None: stamp(a, i, True); return
    LL = a.newlab("as"); a(f"s_cmp_eq_u32 s59, {cond}\ns_cbranch_scc0 {LL}"); stamp(a, i, True); a.lab(LL)
def fst(a, i):
    if OPT.get("mst") == 4: stamp(a, i, True)
def ids(a):
    x, j = SXCD, SJ
    a(f"s_and_b32 s50, s{x}, 1\ns_mul_i32 s51, s50, 15\ns_add_u32 s51, s51, s{j}\ns_lshr_b32 s{SN}, s51, 1\ns_and_b32 s51, s51, 1\ns_and_b32 s{SM}, s{x}, 6\ns_add_u32 s{SM}, s{SM}, s51")
def ids_late(a):
    x, j = SXCD, SJ
    a(f"s_mul_i32 s57, s{x}, 17\ns_add_u32 s57, s57, s{j}\ns_sub_u32 s57, s57, 15\ns_mul_i32 s{SFT}, s57, 205\ns_lshr_b32 s{SFT}, s{SFT}, 10\ns_mul_i32 s58, s{SFT}, 5\ns_sub_u32 s{SDT1}, s57, s58")
    a(f"s_and_b32 s56, s{x}, 1\ns_lshl_b32 s56, s56, 2\ns_lshr_b32 s58, s{x}, 1")
    a(f"s_and_b32 s57, s{j}, 3\ns_add_u32 s{SDT3}, s56, s57\ns_lshl_b32 s58, s58, 3\ns_lshr_b32 s57, s{j}, 2\ns_xor_b32 s57, s57, {OPT.get('sx', 0)}\ns_add_u32 s{SST}, s58, s57")

def ln_issue(a):
    a(f"s_lshr_b32 s50, s{SXCD}, 1\ns_lshl_b32 s50, s50, 6\ns_and_b32 s51, s{SXCD}, 1\ns_lshl_b32 s51, s51, 5\ns_add_u32 s50, s50, s51\ns_add_u32 s50, s50, s{SJ}")
    a(f"s_lshr_b32 s51, s50, 2\ns_and_b32 s52, s50, 3\ns_lshl_b32 s53, s51, 5\ns_lshl_b32 s54, s52, 2\ns_add_u32 s53, s53, s54")
    a(f"s_lshr_b32 s54, s{SWAVE}, 1\ns_lshl_b32 s54, s54, 4\ns_add_u32 s53, s53, s54\ns_and_b32 s54, s{SWAVE}, 1\ns_lshl_b32 s54, s54, 1\ns_add_u32 s53, s53, s54")
    rows_load(a, SX, SWAVE, 53, 54)
    a(f"s_mul_i32 s55, s51, 5120\ns_lshl_b32 s52, s52, 8\ns_add_u32 s55, s55, s52\ns_add_u32 s55, s55, {OFF_H}")
def init_counters(a):
    L = a.newlab("ic")
    a(f"s_cmp_lg_u32 s{SWAVE}, 0\ns_cbranch_scc1 {L}")
    a(f"v_lshlrev_b32 v6, 2, v{VL}\nv_add_u32 v6, {L_FULL}, v6\nv_mov_b32 v7, 0\nds_write_b32 v6, v7")
    a.lab(L)
def c1_arrive(a):
    L = a.newlab("c1a")
    a(f"s_and_b32 s57, s2, 1\ns_lshl_b32 s56, s57, 6\ns_lshl_b32 s57, s57, 2\ns_mov_b64 exec, 1")
    garrive(a, SDBG, 56, 128, (57, 128), L, va=15)
    a.lab(L)
    a("s_mov_b64 exec, -1")

def loader(a):
    st = 48
    lw, sxo, swo, sm0, t, ko, t2 = st, st+1, st+2, st+3, st+4, st+5, 62
    a(f"s_sub_u32 s{lw}, s{SWAVE}, 4")
    a(f"v_lshrrev_b32 v2, 3, v{VL}\nv_mul_u32_u24 v2, 1280, v2\nv_and_b32 v3, 7, v{VL}\nv_lshrrev_b32 v4, 4, v{VL}\nv_xor_b32 v3, v3, v4\nv_lshl_add_u32 v210, v3, 4, v2\nv_xor_b32 v211, 64, v210")
    a(f"v_mul_u32_u24 v2, 3840, v4\nv_bfe_u32 v3, v{VL}, 2, 2\nv_xor_b32 v3, v3, v4\nv_lshl_add_u32 v2, v3, 6, v2\nv_and_b32 v3, 3, v{VL}\nv_lshl_add_u32 v212, v3, 4, v2")
    a(f"s_lshl_b32 s{sxo}, s{SM}, 8\ns_lshl_b32 s{t}, s{lw}, 6\ns_add_u32 s{sxo}, s{sxo}, s{t}\ns_mul_i32 s{sxo}, s{sxo}, 1280")
    a(f"s_mul_i32 s{swo}, s{lw}, {16*3840}\ns_lshl_b32 s{t}, s{SN}, 8\ns_add_u32 s{swo}, s{swo}, s{t}")
    a(f"s_lshl_b32 s{sm0}, s{lw}, 13\ns_lshl_b32 s67, s{lw}, 12\ns_sub_u32 s67, 32768, s67")
    R = OPT.get("rot", 5)
    if R == 10: a(f"s_mul_i32 s{ko}, s{SM}, 3\ns_add_u32 s{ko}, s{ko}, s{SN}\ns_mul_i32 s{t}, s{ko}, 205\ns_lshr_b32 s{t}, s{t}, 11\ns_mul_i32 s{t}, s{t}, 10\ns_sub_u32 s{ko}, s{ko}, s{t}")
    elif R == 5: a(f"s_add_u32 s{ko}, s{SM}, s{SN}\ns_mul_i32 s{t}, s{ko}, 52\ns_lshr_b32 s{t}, s{t}, 8\ns_mul_i32 s{t}, s{t}, 5\ns_sub_u32 s{ko}, s{ko}, s{t}\ns_lshl_b32 s{ko}, s{ko}, 1")
    else: a(f"s_mov_b32 s{ko}, 0")
    a(f"s_lshl_b32 s{t}, s{ko}, 7\ns_add_u32 s{sxo}, s{sxo}, s{t}\ns_mul_i32 s{t}, s{ko}, 245760\ns_add_u32 s{swo}, s{swo}, s{t}")
    a("s_movk_i32 s65, 128\ns_mov_b32 s66, 245760\ns_mov_b32 s68, 0")
    def stage(extra=""):
        a(f"s_mov_b32 m0, s{sm0}\ns_mov_b32 s{t}, s{sxo}")
        for i in range(8):
            if i == 4: a(f"s_add_u32 m0, s{sm0}, 4096\ns_add_u32 s{t}, s{t}, 4096")
            a(f"buffer_load_dwordx4 v{210+(i&1)}, {s(SX,4)}, s{t} offen offset:{(i&3)*1024} lds")
            if i < 7: a(f"s_add_u32 s{t}, s{t}, 9216")
        a(f"s_add_u32 m0, s{sm0}, s67\ns_add_u32 s{t}, s{swo}, 14336")
        a(f"buffer_load_dwordx4 v212, {s(SWQ,4)}, s{swo} offen lds\nbuffer_load_dwordx4 v212, {s(SWQ,4)}, s{t} offen offset:1024 lds")
        a(f"s_add_u32 s{t}, s{t}, 14336\ns_add_u32 s{t2}, s{t}, 14336")
        a(f"s_add_u32 s68, s68, 1\ns_cmp_eq_u32 s68, 3\ns_cselect_b32 s68, 0, s68\ns_cselect_b32 s63, {-2*QS}, s69\ns_add_u32 s{sm0}, s{sm0}, s63")
        a(f"s_add_u32 s{ko}, s{ko}, 1\ns_cmp_eq_u32 s{ko}, 10\ns_cselect_b32 s63, {128-1280}, s65\ns_cselect_b32 s64, {245760-2457600}, s66\ns_add_u32 s{sxo}, s{sxo}, s63\ns_add_u32 s{swo}, s{swo}, s64")
        a(f"buffer_load_dwordx4 v212, {s(SWQ,4)}, s{t} offen offset:2048 lds")
        if extra: a(extra)
        a(f"buffer_load_dwordx4 v212, {s(SWQ,4)}, s{t2} offen offset:3072 lds")
    a(f"s_mov_b32 s69, {QS}\ns_mul_i32 s59, s{SN}, 2560\ns_lshl_b32 s{t}, s{ko}, 8\ns_add_u32 s59, s59, s{t}\ns_lshl_b32 s{t}, s{lw}, 7\ns_add_u32 s59, s59, s{t}\ns_add_u32 s59, s59, {OFF_CSP}")
    a("s_setprio 2"); stage(); a("s_setprio 0"); stage()
    stamp(a, 1)
    ids_late(a)
    a(f"s_mov_b32 s{SKW}, s{lw}\nv_mov_b32 v8, {L_FULL}\nv_mov_b32 v9, 1")
    W4 = OPT.get("ord", 1) == 4
    if W4:
        a(f"s_mul_i32 s70, s{SXCD}, 15\ns_add_u32 s70, s70, s{SJ}\ns_lshl_b32 s70, s70, 2\ns_add_u32 s70, s70, s{lw}")
        for k, d in ((0, 70), (480, 74)):
            a(f"s_add_u32 s54, s70, {k}\ns_lshr_b32 s55, s54, 6\ns_bfe_u32 s56, s54, 0x20004\ns_and_b32 s54, s54, 15\ns_mul_i32 s57, s56, 14\ns_cmp_eq_u32 s56, 3\ns_cselect_b32 s57, 41, s57\ns_add_u32 s55, s55, s57\ns_lshl_b32 s55, s55, 4\ns_add_u32 s54, s54, s55\ns_lshl_b32 s{58 if k == 0 else d}, s54, 13")
        a(f"s_mov_b32 s70, s58\ns_and_b32 s71, s{SJ}, 1\ns_add_u32 s71, s71, {OPT.get('b0', 2)}\ns_add_u32 s72, s71, 2\ns_add_u32 s73, s71, 4\nv_lshlrev_b32 v12, 7, v{VL}")
        a(f"s_lshr_b32 s54, s{SW2}, 7\ns_sub_u32 s54, 3, s54\ns_and_b32 s54, s54, 7\ns_lshl_b32 s54, 0x1010101, s54\ns_not_b32 s61, s54")
    a(f"s_lshl_b32 s54, s{lw}, 12\ns_add_u32 s54, s54, 32768\nv_lshlrev_b32 v2, 4, v{VL}\nv_add_u32 v13, s54, v2")
    a(f"v_lshrrev_b32 v4, 4, v{VL}\nv_bfe_u32 v3, v{VL}, 2, 2\nv_xor_b32 v3, v3, v4\nv_lshlrev_b32 v3, 7, v3\nv_and_b32 v5, 3, v{VL}\nv_lshl_add_u32 v3, v5, 5, v3\nv_lshl_add_u32 v3, v4, 9, v3\ns_lshl_b32 s54, s{lw}, 11\ns_add_u32 s54, s54, {L_CSP}\nv_add_u32 v14, s54, v3")
    a(f"v_and_b32 v5, 31, v{VL}\nv_lshlrev_b32 v5, 2, v5\nv_lshrrev_b32 v10, 5, v{VL}\nv_lshl_add_u32 v10, v10, 12, v5\ns_lshl_b32 s54, s{lw}, 7\ns_add_u32 s54, s54, {L_CSP}\nv_add_u32 v10, s54, v10")
    def job(slot):
        sk = a.newlab("cj")
        a(f"s_cmp_ge_u32 s{SM}, 5\ns_cbranch_scc1 {sk}")
        for i in range(4): a(f"ds_read_b128 {v(48+4*i,4)}, v13 offset:{slot*QS+i*1024}")
        for i in range(4):
            a(f"s_waitcnt lgkmcnt({3-i})")
            for c in range(4):
                if i == 0 and slot == 0: a(f"v_lshlrev_b32 v{16+2*c}, 16, v{48+c}\nv_and_b32 v{17+2*c}, 0xffff0000, v{48+c}")
                else: a(f"v_lshlrev_b32 v24, 16, v{48+4*i+c}\nv_and_b32 v25, 0xffff0000, v{48+4*i+c}\nv_add_f32 v{16+2*c}, v{16+2*c}, v24\nv_add_f32 v{17+2*c}, v{17+2*c}, v25")
        if slot == 1: a("ds_write_b128 v14, v[16:19]\nds_write_b128 v14, v[20:23] offset:16\ns_waitcnt lgkmcnt(0)")
        a.lab(sk)
    def bar(k):
        if not W4: a("s_waitcnt vmcnt(12)\ns_barrier"); return
        x_ = a.newlab("bw")
        a(f"s_cmp_eq_u32 s72, {k}\ns_cbranch_scc1 {x_}\ns_cmp_eq_u32 s73, {k}\ns_cbranch_scc1 {x_}\ns_waitcnt vmcnt(12)")
        a.lab(x_)
        a("s_waitcnt vmcnt(13)\ns_barrier")
    def after(k):
        if not W4: return
        for r, o in ((71, 70), (72, 74)):
            x_ = a.newlab("bu")
            a(f"s_cmp_lg_u32 s{r}, {k}\ns_cbranch_scc1 {x_}\ns_mov_b32 exec_lo, s61\ns_mov_b32 exec_hi, s61\nbuffer_load_dword v255, v12, {s(SW2,4)}, s{o} offen\ns_mov_b64 exec, -1")
            a.lab(x_)
    a("s_waitcnt vmcnt(12)\ns_barrier"); stage(); job(0)
    a("s_waitcnt vmcnt(12)"); job(1); a("s_barrier")
    sk = a.newlab("cb")
    a(f"s_cmp_ge_u32 s{SM}, 5\ns_cbranch_scc1 {sk}")
    for k in range(8): a(f"ds_read_b32 v{16+k}, v10 offset:{k*512}")
    a("s_waitcnt lgkmcnt(0)")
    for k in range(1, 8): a(f"v_add_f32 v16, v16, v{16+k}")
    a(f"v_mov_b32 v17, v16\ns_nop 1\nv_permlane32_swap_b32 v16, v17\nv_add_f32 v16, v16, v17\ns_mov_b32 exec_hi, 0\nbuffer_store_dword v16, v5, {s(SWS,4)}, s59 offen sc1\ns_mov_b64 exec, -1")
    a.lab(sk)
    stage(); after(1)
    a("s_waitcnt vmcnt(12)\ns_barrier")
    n1 = a.newlab("n1"); n3 = a.newlab("n3")
    a(f"s_cmp_lg_u32 s{lw}, 3\ns_cbranch_scc1 {n1}\ns_cmp_ge_u32 s{SM}, 5\ns_cbranch_scc1 {n1}\ns_mov_b64 exec, 1\nv_mov_b32 v15, 1\nbuffer_atomic_add v15, off, {s(SDBG,4)}, 0 offset:96 sc0 sc1\ns_mov_b64 exec, -1")
    a.lab(n1)
    stage(); after(2)
    a(f"s_cmp_lg_u32 s{lw}, 3\ns_cbranch_scc1 {n3}\ns_cmp_ge_u32 s{SM}, 5\ns_cbranch_scc1 {n3}\ns_waitcnt vmcnt(12)\nv_readfirstlane_b32 s60, v15\ns_cmp_lg_u32 s60, 74\ns_cbranch_scc1 {n3}")
    a(f"s_mov_b64 exec, 1\nbuffer_store_dword v9, off, {s(SDBG,4)}, 0 offset:136 sc1\ns_mov_b64 exec, -1")
    a.lab(n3)
    for k in range(3, 6):
        bar(k); stage(); after(k)
    bar(6)
    n0 = a.newlab("n0"); n2 = a.newlab("n0")
    a(f"s_cmp_lg_u32 s{lw}, 0\ns_cbranch_scc1 {n0}\nv_lshlrev_b32 v2, 2, v{VL}\nv_add_u32 v2, 128, v2\ns_mov_b64 exec, 7\nbuffer_load_dword v3, v2, {s(SDBG,4)}, 0 offen sc1\ns_mov_b64 exec, -1")
    a.lab(n0)
    stage()
    a(f"s_cmp_lg_u32 s{lw}, 0\ns_cbranch_scc1 {n2}\ns_waitcnt vmcnt(12)\ns_mov_b64 exec, 7\nv_cmp_ne_u32 vcc, 1, v3\ns_mov_b64 exec, -1\ns_cbranch_vccz {n2}")
    gpoll(a, 2, SDBG, 0, 1, 3)
    a.lab(n2)
    bar(7)
    nst = a.newlab("nst"); cs = a.newlab("ncs")
    a(f"v_lshlrev_b32 v4, 4, v{VL}\ns_cmp_eq_u32 s{lw}, 3\ns_cbranch_scc1 {nst}\ns_cmp_eq_u32 s{lw}, 2\ns_cbranch_scc1 {cs}")
    a(f"s_lshl_b32 s54, s{SM}, 10\ns_lshl_b32 s55, s{lw}, 13\ns_add_u32 s54, s54, s55\ns_lshl_b32 s55, s{lw}, 10\ns_add_u32 m0, s55, {L_ST}\ns_nop 0\nbuffer_load_dwordx4 v4, {s(SWS,4)}, s54 offen sc1 lds\ns_branch {nst}")
    a.lab(cs)
    a(f"s_mul_i32 s54, s{SN}, 2560\ns_add_u32 s54, s54, {OFF_CSP}\nv_cmp_gt_u32 vcc, 32, v{VL}\nv_mov_b32 v5, {OOB}\ns_nop 0\nv_cndmask_b32 v5, v5, v4, vcc")
    for k in range(3): a(f"buffer_load_dwordx4 {v(16+4*k,4)}, v{4 if k < 2 else 5}, {s(SWS,4)}, s54 offen offset:{k*1024} sc1")
    a.lab(nst)
    stage()
    wof_issue(a)
    W2 = OPT.get("w2m", 0); np_ = 5
    if OPT.get("w1e"):
        a(f"s_lshl_b32 s63, s61, 2\ns_add_u32 s63, s63, s{SKW}")
        prefetch(a, 63, 480, OPT.get('npb', 896), OPT.get('npb', 896) + 480); np_ += 1
    if W2 in (1, 3, 5):
        a(f"s_lshl_b32 s63, s61, 2\ns_add_u32 s63, s63, s{SKW}")
        if W2 == 5: prefetch(a, 63, 480, NB1 + 256, NB1 + 256 + 960); np_ += 2
        else: prefetch(a, 63, 480, NB1, NB1 + 480); np_ += 1
    sk = a.newlab("sk")
    a(f"s_waitcnt vmcnt({12+np_})\ns_cmp_lg_u32 s{lw}, 2\ns_cbranch_scc1 {sk}")
    a(f"v_and_b32 v2, 31, v{VL}\nv_lshlrev_b32 v2, 4, v2\nv_add_u32 v2, {L_ST+2048}, v2")
    for k in range(1, 3):
        for q in range(2): a(f"v_pk_add_f32 {v(16+2*q,2)}, {v(16+2*q,2)}, {v(16+4*k+2*q,2)}")
    for q in range(4): a(f"v_mov_b32 v{20+q}, v{16+q}")
    a("s_nop 0")
    for q in range(4): a(f"v_permlane32_swap_b32 v{16+q}, v{20+q}")
    for q in range(2): a(f"v_pk_add_f32 {v(16+2*q,2)}, {v(16+2*q,2)}, {v(20+2*q,2)}")
    a("ds_write_b128 v2, v[16:19]\ns_waitcnt lgkmcnt(0)")
    a.lab(sk)
    a(f"s_barrier\ns_waitcnt vmcnt({np_})\ns_barrier")

CA, CF, CS_, CONE = 64, 16, 192, 208
L_CSX = L_ST + 2048
def cons_setup(a):
    a(f"s_lshr_b32 s48, s{SWAVE}, 1\ns_and_b32 s49, s{SWAVE}, 1")
    a(f"v_and_b32 v2, 31, v{VL}\nv_lshrrev_b32 v3, 5, v{VL}\nv_bfe_u32 v4, v{VL}, 1, 3")
    a(f"s_lshl_b32 s50, s48, 14\nv_lshlrev_b32 v5, 7, v2\nv_add_u32 v5, s50, v5")
    for ks in range(4): a(f"v_or_b32 v6, {2*ks}, v3\nv_xor_b32 v6, v6, v4\nv_lshl_add_u32 v{8+ks}, v6, 4, v5")
    a(f"v_bfe_u32 v4, v{VL}, 2, 2\nv_lshl_add_u32 v5, v3, 3, v4\nv_lshlrev_b32 v5, 8, v5\nv_bfe_u32 v6, v{VL}, 4, 1\nv_lshl_add_u32 v5, v6, 5, v5\nv_and_b32 v6, 3, v{VL}\nv_lshl_add_u32 v5, v6, 3, v5\nv_add_u32 v5, 32768, v5\ns_lshl_b32 s50, s49, 1")
    for cf in range(2): a(f"s_xor_b32 s51, s48, {cf}\ns_add_u32 s51, s50, s51\nv_xor_b32 v6, s51, v4\nv_lshl_add_u32 v{12+cf}, v6, 6, v5")
    for i in range(128): a(f"v_mov_b32 v{CA+i}, 0")
def cons_loop(a, vori):
    L = a.newlab("qloop"); last = a.newlab("qlast"); s9 = a.newlab("qs9"); s9b = a.newlab("qs9b")
    def rd(ks, buf, which, half=None):
        b = CF + 24*buf; i = int(which[1])
        if which[0] == "x": a(f"ds_read_b128 {v(b+4*i,4)}, v{8+ks} offset:{i*4096}")
        else:
            for r in (range(2) if half is None else (half,)): a(f"ds_read_b64_tr_b16 {v(b+16+4*i+2*r,2)}, v{12+i} offset:{ks*4096+r*1024}")
    def mf(buf, i, cf):
        b = CF + 24*buf; acc = v(CA + 16*(2*i+cf), 16); X = v(b+4*i, 4); W = v(b+16+4*cf, 4)
        a(f"v_mfma_f32_32x32x16_bf16 {acc}, {X+', '+W if vori else W+', '+X}, {acc}")
    def csum(buf):
        return
        W = v(CF+24*buf+16, 4); O = v(CONE, 4)
        a(f"v_mfma_f32_32x32x16_bf16 {v(CS_,16)}, {O+', '+W if vori else W+', '+O}, {v(CS_,16)}")
    order = ("x0", "w0", "w1", "x1", "x2", "x3")
    for w in order: rd(0, 0, w)
    a(f"s_mov_b32 s50, 0\ns_mov_b32 s51, 0\ns_mov_b32 s52, {QS}")
    a(".p2align 3")
    a.lab(L)
    for ks in range(4):
        buf = ks & 1; nb = buf ^ 1
        if ks < 3:
            n = ks + 1
            a("s_waitcnt lgkmcnt(5)"); mf(buf, 0, 0); rd(n, nb, "x0")
            a("s_waitcnt lgkmcnt(4)"); mf(buf, 0, 1); rd(n, nb, "w0", 0)
            a("s_waitcnt lgkmcnt(4)"); mf(buf, 1, 0); rd(n, nb, "w0", 1); mf(buf, 1, 1); rd(n, nb, "w1", 0)
            a("s_waitcnt lgkmcnt(5)"); mf(buf, 2, 0); rd(n, nb, "w1", 1); mf(buf, 2, 1); rd(n, nb, "x1")
            a("s_waitcnt lgkmcnt(6)"); mf(buf, 3, 0); rd(n, nb, "x2"); mf(buf, 3, 1); rd(n, nb, "x3"); csum(buf)
        else:
            a("s_waitcnt lgkmcnt(5)"); mf(buf, 0, 0)
            a(f"s_cmp_eq_u32 s50, 9\ns_cbranch_scc1 {last}\ns_add_u32 s51, s51, 1\ns_cmp_eq_u32 s51, 3")
            a("s_waitcnt lgkmcnt(3)"); mf(buf, 0, 1)
            a(f"s_cselect_b32 s51, 0, s51\ns_cselect_b32 s53, {-2*QS}, s52")
            for r in range(8, 11): a(f"v_add_u32 v{r}, s53, v{r}")
            a("s_waitcnt lgkmcnt(2)"); mf(buf, 1, 0)
            for r in range(11, 14): a(f"v_add_u32 v{r}, s53, v{r}")
            a("s_waitcnt lgkmcnt(0)"); mf(buf, 1, 1)
            a("s_barrier")
            rd(0, nb, "x0"); rd(0, nb, "w0", 0); mf(buf, 2, 0); rd(0, nb, "w0", 1); rd(0, nb, "w1", 0); mf(buf, 2, 1); rd(0, nb, "w1", 1); rd(0, nb, "x1")
            mf(buf, 3, 0); rd(0, nb, "x2"); rd(0, nb, "x3"); a("s_add_u32 s50, s50, 1"); mf(buf, 3, 1); csum(buf)
            if OPT.get("ls9") == 12:
                for c in range(1, 5):
                    LL = a.newlab("cs"); a(f"s_cmp_eq_u32 s50, {2*c}\ns_cbranch_scc0 {LL}"); lstamp(a, c); a.lab(LL)
    a(f"s_branch {L}")
    a.lab(last)
    a("s_waitcnt lgkmcnt(0)")
    csum(1)
    for i, cf in ((0, 1), (1, 0), (1, 1), (2, 0), (2, 1), (3, 0), (3, 1)): mf(1, i, cf)
def cons_epi(a, vori):
    ws = s(SWS, 4)
    a(f"s_lshl_b32 s50, s{SM}, 3\ns_lshl_b32 s51, s48, 2\ns_add_u32 s50, s50, s51\ns_mul_i32 s50, s50, 40960")
    a(f"s_lshl_b32 s53, s{SN}, 7\ns_lshl_b32 s54, s49, 6\ns_add_u32 s53, s53, s54")
    a(f"s_lshl_b32 s51, s48, 9\ns_add_u32 s51, s51, {L_ST}\ns_lshl_b32 s54, s49, 8\ns_lshl_b32 s55, s48, 7\ns_add_u32 s54, s54, s55\ns_add_u32 s54, s54, {L_CSX}")
    a(f"v_and_b32 v14, 31, v{VL}\nv_lshrrev_b32 v15, 5, v{VL}\nv_lshlrev_b32 v4, 2, v14\nv_lshlrev_b32 v5, 4, v15")
    if not vori:
        a("v_add_u32 v4, s51, v4\nv_add_u32 v5, s54, v5\nv_xor_b32 v8, 128, v5")
        for k in range(4): a(f"ds_read_b128 {v(CS_+4*k,4)}, v5 offset:{k*32}\nds_read_b128 {v(32+4*k,4)}, v8 offset:{k*32}")
        for i in range(4): a(f"ds_read_b32 v{16+2*i}, v4 offset:{i*128}\nds_read_b32 v{24+2*i}, v4 offset:{1024+i*128}")
        a(f"s_cmp_lt_u32 s{SN}, 5\ns_cselect_b32 s55, {hexf(QSCALE)}, 1.0\ns_cselect_b32 s56, 0, {OFF_K - OFF_Q - 160*256}\ns_add_u32 s56, s56, {OFF_Q}\ns_add_u32 s56, s56, s50\ns_lshl_b32 s57, s53, 6\ns_add_u32 s56, s56, s57")
        a("v_lshlrev_b32 v4, 3, v14\nv_lshl_add_u32 v4, v15, 8, v4\ns_lshl_b32 s57, s48, 11\nv_add_u32 v4, s57, v4\nv_xor_b32 v5, 2048, v4\ns_waitcnt lgkmcnt(0)")
        for r in range(16, 32, 2): a(f"v_mul_f32 v{r}, s55, v{r}")
        for i in range(4):
            for cf in range(2):
                b = CA + 16*(2*i+cf); cs = CS_ if cf == 0 else 32
                for p in range(8): a(f"v_pk_mul_f32 {v(b+2*p,2)}, {v(b+2*p,2)}, {v(16+2*i,2)} op_sel_hi:[1,0]")
                for p in range(8): a(f"v_pk_fma_f32 {v(b+2*p,2)}, {v(cs+2*p,2)}, {v(24+2*i,2)}, {v(b+2*p,2)} op_sel_hi:[1,0,1] neg_lo:[0,1,0] neg_hi:[0,1,0]")
                for p in range(8): a(f"v_cvt_pk_bf16_f32 v{b+p}, v{b+2*p}, v{b+2*p+1}")
                for q in range(4): a(f"buffer_store_dwordx2 {v(b+2*q,2)}, v{4+cf}, {ws}, s56 offen offset:{(2*q)*256} {ST}")
            if i < 3: a("s_add_u32 s56, s56, 40960")
    else:
        a(f"v_add_u32 v4, s54, v4\nv_add_u32 v9, s51, v5\nv_xor_b32 v8, 128, v4")
        a(f"ds_read_b32 v{CS_}, v4\nds_read_b32 v{CS_+2}, v8")
        a(f"s_lshl_b32 s56, s53, 4\ns_add_u32 s56, s56, s50\ns_add_u32 s56, s56, {OFF_V - 1280*16}\ns_add_u32 s57, s56, 20480")
        a("v_mul_u32_u24 v4, 10240, v15\nv_lshl_add_u32 v4, v14, 4, v4\ns_lshl_b32 s55, s48, 9\nv_add_u32 v4, s55, v4\nv_xor_b32 v5, 512, v4")
        def st(i):
            for k in range(4): a(f"ds_read_b128 {v(16+4*k,4) if not i & 1 else v(212+4*k,4)}, v9 offset:{i*128+k*32}\nds_read_b128 {v(32+4*k,4) if not i & 1 else v(228+4*k,4)}, v9 offset:{1024+i*128+k*32}")
        st(0)
        for i in range(4):
            if i < 3: st(i+1)
            a(f"s_waitcnt lgkmcnt({8 if i < 3 else 0})")
            Rr, RM = (16, 32) if not i & 1 else (212, 228)
            for cf in range(2):
                b = CA + 16*(2*i+cf)
                for p in range(8): a(f"v_pk_mul_f32 {v(b+2*p,2)}, {v(b+2*p,2)}, {v(Rr+2*p,2)}")
                for p in range(8): a(f"v_pk_fma_f32 {v(b+2*p,2)}, {v(RM+2*p,2)}, {v(CS_+2*cf,2)}, {v(b+2*p,2)} op_sel_hi:[1,0,1] neg_lo:[0,1,0] neg_hi:[0,1,0]")
                for p in range(8): a(f"v_cvt_pk_bf16_f32 v{b+p}, v{b+2*p}, v{b+2*p+1}")
                for m in range(2): a(f"buffer_store_dwordx4 {v(b+4*m,4)}, v{4+cf}, {ws}, s{56+m} offen {ST}")
            if i < 3: a("s_add_u32 s56, s56, 40960\ns_add_u32 s57, s57, 40960")

NA, NB_ = 144, 160
def n_dir(a, slot, c):
    r = NB_ + 32*slot + 4*c
    a(f"buffer_load_dwordx4 {v(r,4)}, v{MSK}, {s(SWS,4)}, s{S_DO} offen offset:{(c&1)*2048} {LD}")
    if c & 1: a(f"s_add_u32 s{S_DO}, s{S_DO}, {'s70' if c == 3 else 's71' if c == 7 else 4096}")
def n_last(a, slot):
    a("s_waitcnt vmcnt(0)")
    for fb in range(4):
        for rd in range(2): a(f"ds_read_b64_tr_b16 {v(NA+4*fb+2*rd,2)}, v{MTR+fb} offset:{slot*4096+rd*2048}")
    a(f"v_add_u32 v10, s66, v{MDIR}\ns_setprio 3\ns_waitcnt lgkmcnt(0)")
    out = [(g, c, (g*4+c-4)*1024) for g in range(2) for c in range(4, 8)] + [(g, c, 8192+((g-2)*8+c)*1024) for g in range(2, 4) for c in range(8)]
    own = [(g, c, None) for g in range(2) for c in range(4)]
    seq = out + own
    LAG = 5
    for n_ in range(len(seq) + LAG):
        if n_ < len(seq):
            g, c, _ = seq[n_]; acc = v(16 + (g*8+c)*4, 4)
            a(f"v_mfma_f32_16x16x32_bf16 {acc}, {v(NA+4*g,4)}, {v(NB_+32*slot+4*c,4)}, {acc}")
        if LAG <= n_ < len(out) + LAG:
            g, c, off = seq[n_-LAG]
            if n_ == LAG: a("s_nop 3")
            a(f"ds_write_b128 v10, {v(16+(g*8+c)*4,4)} offset:{off}")
def n_body(a, slot, wait, loads):
    a(f"s_waitcnt vmcnt({wait})")
    for fb in range(4):
        for rd in range(2): a(f"ds_read_b64_tr_b16 {v(NA+4*fb+2*rd,2)}, v{MTR+fb} offset:{slot*4096+rd*2048}")
    a("s_waitcnt lgkmcnt(0)")
    if loads: mlp_dma(a, slot)
    for c in range(8):
        for fb in range(4):
            acc = v(16 + (fb*8+c)*4, 4)
            a(f"v_mfma_f32_16x16x32_bf16 {acc}, {v(NA+4*fb,4)}, {v(NB_+32*slot+4*c,4)}, {acc}")
        if loads: n_dir(a, slot, c)
def n_epi(a):
    kw = SKW; ws = s(SWS, 4)
    l10(a, 1)
    a(f"v_mov_b32 v8, v{MSK}")
    for n_, (x_, off) in enumerate(((1, 0), (2, 8192), (3, 8192+4096))):
        a(f"s_xor_b32 s68, s{kw}, {x_}\ns_mul_i32 s68, s68, {XSTR}\ns_add_u32 s68, s68, {XB+off}\nv_add_u32 v{11+n_}, s68, v{MDIR}")
    a(f"s_lshl_b32 s65, s{SFT}, 1\ns_lshr_b32 s69, s{kw}, 1\ns_add_u32 s65, s65, s69\ns_mul_i32 s65, s65, 10240\ns_add_u32 s65, s65, {OFF_G}")
    a(f"s_lshl_b32 s69, s{SDT1}, 3\ns_and_b32 s68, s{kw}, 1\ns_lshl_b32 s68, s68, 2\ns_add_u32 s69, s69, s68")
    for k in range(4):
        a(f"s_add_u32 s68, s69, {k}\ns_mul_i32 s70, s68, 52\ns_lshr_b32 s70, s70, 8\ns_mul_i32 s70, s70, {54*10240-10240}\ns_lshl_b32 s68, s68, 11\ns_add_u32 s70, s70, s68\ns_add_u32 s{50+k}, s70, s65")
    a(f"s_mov_b32 s72, {hexf(GC2)}\ns_mov_b32 s73, {hexf(GC2)}\nv_mov_b32 v14, {hexf(GC1)}\nv_mov_b32 v15, v14")
    lds_sync(a, C_MP, 4, ls=0)
    l10(a, 2)
    def rd(k):
        for n_ in range(3):
            for g in range(2): a(f"ds_read_b128 {v(160+24*k+8*n_+4*g,4)}, v{11+n_} offset:{g*(4096 if n_ == 0 else 8192)+k*1024}")
    rd(0); rd(1)
    for k in range(4):
        if k < 2: rd(k+2)
        a(f"s_waitcnt lgkmcnt({[12, 12, 6, 0][k]})")
        U = [16+4*k, 16+4*k+2, 48+4*k, 48+4*k+2]; T = 144
        for n_ in range(3):
            for q in range(4): a(f"v_pk_add_f32 {v(U[q],2)}, {v(U[q],2)}, {v(160+24*k+8*n_+2*q,2)}")
        for q in range(4): a(f"v_pk_mul_f32 {v(T+2*q,2)}, {v(U[q],2)}, {v(U[q],2)}")
        for q in range(4): a(f"v_pk_fma_f32 {v(T+2*q,2)}, {v(T+2*q,2)}, s[72:73], v[14:15]")
        for q in range(4): a(f"v_pk_mul_f32 {v(T+2*q,2)}, {v(T+2*q,2)}, {v(U[q],2)}")
        for q in range(8): a(f"v_exp_f32 v{T+q}, v{T+q}")
        a("s_nop 0")
        for q in range(4): a(f"v_pk_add_f32 {v(T+2*q,2)}, {v(T+2*q,2)}, 1.0 op_sel_hi:[1,0]")
        for q in range(8): a(f"v_rcp_f32 v{T+q}, v{T+q}")
        a("s_nop 0")
        for q in range(4): a(f"v_pk_mul_f32 {v(T+2*q,2)}, {v(T+2*q,2)}, {v(U[q],2)}")
        for q in range(4): a(f"v_cvt_pk_bf16_f32 v{152+4*(k&1)+q}, v{T+2*q}, v{T+2*q+1}")
        a(f"buffer_store_dwordx4 {v(152+4*(k&1),4)}, v8, {ws}, s{50+k} offen {ST}")
        if k == 1: l10(a, 3)

NB1, NB2 = 16*56, 14*64
def prefetch(a, sid, nw, n0, n1, thr=None, mask=None):
    L = a.newlab("pf"); w2 = a.newlab("pfw"); nx = a.newlab("pfn"); done = a.newlab("pfd")
    a(f"v_lshlrev_b32 v4, 7, v{VL}\ns_add_u32 s50, s{sid}, {n0}")
    if mask: a(f"s_mov_b32 exec_lo, s{mask}\ns_mov_b32 exec_hi, s{mask}")
    a.lab(L)
    a(f"s_cmp_ge_u32 s50, {n1}\ns_cbranch_scc1 {done}\ns_cmp_ge_u32 s50, {NB1}\ns_cbranch_scc1 {w2}")
    a(f"s_mul_i32 s51, s50, 1171\ns_lshr_b32 s51, s51, 16\ns_mul_i32 s52, s51, 56\ns_sub_u32 s52, s50, s52")
    a(f"s_mul_i32 s53, s52, 37\ns_lshr_b32 s53, s53, 9\ns_mul_i32 s54, s53, 14\ns_sub_u32 s52, s52, s54")
    a(f"s_lshl_b32 s53, s53, 4\ns_add_u32 s51, s51, s53\ns_mul_i32 s51, s51, 110592\ns_lshl_b32 s52, s52, 13\ns_add_u32 s51, s51, s52")
    a(f"buffer_load_dword v255, v4, {s(SW1,4)}, s51 offen\ns_branch {nx}")
    a.lab(w2)
    a(f"s_sub_u32 s51, s50, {NB1}\ns_lshr_b32 s52, s51, 6\ns_bfe_u32 s53, s51, 0x20004\ns_and_b32 s51, s51, 15")
    a(f"s_mul_i32 s54, s53, 14\ns_cmp_eq_u32 s53, 3\ns_cselect_b32 s54, 41, s54\ns_add_u32 s52, s52, s54\ns_lshl_b32 s52, s52, 4\ns_add_u32 s51, s51, s52\ns_lshl_b32 s51, s51, 13")
    a(f"buffer_load_dword v255, v4, {s(SW2,4)}, s51 offen")
    a.lab(nx)
    if thr is not None: a(f"s_waitcnt vmcnt({thr})")
    a(f"s_add_u32 s50, s50, {nw}\ns_branch {L}")
    a.lab(done)
    if mask: a("s_mov_b64 exec, -1")

L_WS = L_ST + 2560
def wof_issue(a):
    a(f"s_mul_i32 s61, s{SXCD}, 15\ns_add_u32 s61, s61, s{SJ}")
    a(f"s_lshr_b32 s51, s61, 2\ns_and_b32 s52, s61, 3\ns_mul_i32 s53, s51, 52\ns_lshr_b32 s53, s53, 8\ns_mul_i32 s54, s53, 5\ns_sub_u32 s54, s51, s54")
    a(f"s_lshl_b32 s56, s53, 4\ns_lshl_b32 s57, s54, 2\ns_add_u32 s56, s56, s57\ns_add_u32 s56, s56, s52")
    a(f"s_lshr_b32 s57, s56, 1\ns_mul_i32 s57, s57, 20\ns_and_b32 s56, s56, 1\ns_lshl_b32 s56, s56, 2\ns_add_u32 s56, s56, s57")
    a(f"s_lshl_b32 s57, s53, 3\ns_lshl_b32 s58, s52, 1\ns_add_u32 s57, s57, s58\ns_mul_i32 s57, s57, 20\ns_add_u32 s57, s57, 16")
    a(f"s_cmp_eq_u32 s54, 4\ns_cselect_b32 s56, s57, s56\ns_cselect_b32 s57, 20, 8\ns_cmp_ge_u32 s{SKW}, 2\ns_cselect_b32 s57, s57, 0\ns_add_u32 s56, s56, s57")
    a(f"s_and_b32 s57, s{SKW}, 1\ns_lshl_b32 s57, s57, 1\ns_add_u32 s53, s56, s57\ns_mul_i32 s54, s53, 1280")
    a(f"v_lshrrev_b32 v2, 5, v{VL}\nv_and_b32 v3, 31, v{VL}\nv_mul_u32_u24 v6, 1280, v2\nv_lshl_add_u32 v7, v3, 3, v6\nv_lshl_add_u32 v6, v3, 4, v6")
    a(f"buffer_load_dwordx4 v[32:35], v6, {s(SWO,4)}, s54 offen\nbuffer_load_dwordx4 v[36:39], v6, {s(SWO,4)}, s54 offen offset:512\nbuffer_load_dwordx2 v[40:41], v7, {s(SWO,4)}, s54 offen offset:1024")
    a(f"s_mul_i32 s55, s51, 5120\ns_lshl_b32 s52, s52, 8\ns_add_u32 s55, s55, s52\ns_add_u32 s62, s55, {OFF_WOF}")
    a(f"s_lshr_b32 s51, s{SW2}, 7\ns_sub_u32 s51, 3, s51\ns_and_b32 s51, s51, 7\ns_lshl_b32 s51, s51, 7\nv_lshrrev_b32 v2, 3, v{VL}\nv_lshlrev_b32 v2, 12, v2\nv_and_b32 v3, 7, v{VL}\nv_lshl_add_u32 v6, v3, 4, v2")
    for k in range(2):
        a(f"s_lshl_b32 s52, s61, 2\ns_add_u32 s52, s52, s{SKW}\ns_add_u32 s52, s52, {480*k}\ns_lshl_b32 s{63+k}, s52, 11\ns_add_u32 s{63+k}, s{63+k}, {OFF_W2C}")
        a(f"s_mul_i32 s53, s52, 4855\ns_lshr_b32 s53, s53, 20\ns_mul_i32 s54, s53, 216\ns_sub_u32 s54, s52, s54\ns_lshl_b32 s54, s54, 15\ns_lshl_b32 s53, s53, 10\ns_add_u32 s54, s54, s53\ns_add_u32 s54, s54, s51")
        a(f"s_cmp_ge_u32 s52, 864\ns_cselect_b32 s54, {OOB}, s54\ns_cselect_b32 s{63+k}, {OOB}, s{63+k}\nbuffer_load_dwordx4 {v(44+4*k,4)}, v6, {s(SW2,4)}, s54 offen")
def wof_finish(a):
    skip_off(a, 10)
    a(f"s_waitcnt vmcnt(0)\nbuffer_store_dwordx4 v[44:47], v10, {s(SWS,4)}, s63 offen {ST}\nbuffer_store_dwordx4 v[48:51], v10, {s(SWS,4)}, s64 offen {ST}\ns_cmp_ge_u32 s61, 80\ns_cbranch_scc1 L_nowof")
    trs_prep(a, SKW, L_WS, 102400, 54, 214)
    a(f"v_lshrrev_b32 v2, 5, v{VL}\nv_and_b32 v3, 31, v{VL}")
    a(f"s_mul_i32 s54, s{SKW}, 2688\ns_add_u32 s54, s54, {L_WS}\nv_mul_u32_u24 v4, 1344, v2\nv_add_u32 v4, s54, v4\nv_lshl_add_u32 v5, v3, 3, v4\nv_lshl_add_u32 v4, v3, 4, v4")
    a("ds_write_b128 v4, v[32:35]\nds_write_b128 v4, v[36:39] offset:512\nds_write_b64 v5, v[40:41] offset:1024")
    lds_sync(a, C_MP, 4, ls=1)
    trs_go(a, SKW, 62, 214)
    a.lab("L_nowof")
    a(f"s_mov_b32 s61, {G_W}")
    arrive(a, C_W1, 4, 61, 120)

def attn_setup(a):
    pass
def attn2(a):
    ws = s(SWS, 4); w = SWAVE; shd, sb = SHD, SBQ
    KB, VB = 0, 20480
    attn_ids(a, shd, sb)
    a(f"s_lshl_b32 s50, s{sb}, 3\ns_sub_u32 s51, s50, 8\ns_cmp_eq_u32 s{sb}, 0\ns_cselect_b32 s52, 0, s51\ns_cmp_ge_u32 s{w}, 2\ns_cselect_b32 s51, s51, s52\ns_lshl_b32 s52, s{w}, 2\ns_add_u32 s51, s51, s52\ns_mul_i32 s51, s51, 40960")
    attn_masks(a)
    a(f"v_and_b32 v2, 31, v{VL}\nv_lshrrev_b32 v3, 5, v{VL}\nv_lshlrev_b32 v4, 3, v2\nv_lshl_add_u32 v5, v3, 9, v4\nv_mov_b32 v6, {OOB}\nv_cmp_eq_u32 vcc, 0, v3\ns_nop 1\nv_cndmask_b32 v6, v6, v4, vcc")
    a(f"s_add_u32 s52, s50, s{w}\ns_mul_i32 s53, s52, 40960\ns_mul_i32 s54, s{shd}, 1280\ns_add_u32 s53, s53, s54\ns_add_u32 s62, s53, {OFF_Q}\ns_add_u32 s63, s62, {4*40960}")
    a(f"s_lshl_b32 s56, s52, 15\ns_lshl_b32 s53, s{shd}, 10\ns_add_u32 s56, s56, s53\ns_add_u32 s56, s56, {OFF_O1}")
    a(f"s_lshl_b32 s61, s52, 13\ns_lshl_b32 s53, s{shd}, 8\ns_add_u32 s61, s61, s53\ns_add_u32 s61, s61, {OFF_O2}")
    a(f"s_add_u32 s64, s54, s51\ns_add_u32 s64, s64, {OFF_K}\ns_mov_b32 s55, 39680")
    for i in range(5):
        a(f"v_add_u32 v{16+i}, {64*i}, v{VL}\nv_mul_u32_u24 v{16+i}, 205, v{16+i}\nv_lshrrev_b32 v{16+i}, 14, v{16+i}\nv_mul_u32_u24 v{16+i}, s55, v{16+i}\nv_lshl_add_u32 v{16+i}, v{VL}, 4, v{16+i}")
    a("v_add_u32 v20, 4096, v20")
    a(f"v_mul_u32_u24 v7, 49, v{VL}\nv_lshrrev_b32 v7, 10, v7\nv_mul_u32_u24 v7, {10240-336}, v7\nv_lshl_add_u32 v7, v{VL}, 4, v7")
    a(f"s_mul_i32 s65, s{shd}, 320\ns_add_u32 s65, s65, s51\ns_add_u32 s65, s65, {OFF_V}\ns_mul_i32 s54, s{w}, 5376\ns_add_u32 s54, s54, {VB}\ns_mul_i32 s66, s{w}, 5120")
    a(f"s_mul_i32 s53, s{w}, 1280\ns_add_u32 s53, s53, {KB}\nv_add_u32 v8, s53, v5\nv_add_u32 v9, s53, v4")
    a(f"v_min_u32 v10, 20, v2\nv_cmp_lt_u32 vcc, 27, v2\nv_mul_u32_u24 v13, 336, v3\ns_nop 0\nv_cndmask_b32_e64 v10, v10, 4, vcc")
    a(f"s_mul_i32 s53, s{w}, 1344\ns_add_u32 s53, s53, {VB}\nv_lshl_add_u32 v10, v10, 4, v13\nv_add_u32 v10, s53, v10")
    a(f"v_lshlrev_b32 v11, 4, v2\nv_lshl_add_u32 v11, v3, 9, v11\nv_mov_b32 v12, v6")
    a(f"v_and_b32 v13, 15, v{VL}\nv_mul_u32_u24 v13, 336, v13\nv_add_u32 v13, s54, v13")
    a("v_mov_b32 v24, 0x3f803f80\nv_mov_b32 v25, v24\nv_mov_b32 v26, v24\nv_mov_b32 v27, v24")
    a(f"s_sub_u32 s57, 8, s{w}\ns_cmp_eq_u32 s{sb}, 0\ns_cselect_b32 s57, s57, 0\ns_cselect_b32 s58, 4, 0")
    stamp(a, 4)
    oth = a.newlab("aw"); go = a.newlab("ag")
    a(f"s_cmp_lg_u32 s{w}, 0\ns_cbranch_scc1 {oth}")
    lds_wait(a, C_QA, 4)
    if OPT.get("al", 3):
        nh = a.newlab("al")
        a(f"s_cmp_eq_u32 s{SHAS1}, 0\ns_cbranch_scc1 {nh}")
        lds_wait(a, {1: C_MP, 2: C_GA, 3: C_CS}[OPT.get("al", 3)], 4)
        a.lab(nh)
    a(f"s_sub_u32 s53, s{sb}, 1\nv_add_u32 v2, s53, v{VL}\nv_max_i32 v2, 0, v2\nv_lshlrev_b32 v2, 8, v2\ns_mov_b32 s53, {G_Q+128}")
    gpoll(a, 2, SWS, "s53", 1, 2)
    lds_set(a, C_AGO)
    a(f"s_branch {go}")
    a.lab(oth)
    lds_wait(a, C_AGO, 1, ls=1)
    a.lab(go)
    stamp(a, 5, OPT.get("mst") == 5)
    a(f"s_mov_b32 m0, s66")
    a(f"buffer_load_dwordx2 {v(AQ,2)}, v5, {ws}, s62 offen {LD}\nbuffer_load_dwordx2 {v(AQ+2,2)}, v5, {ws}, s62 offen offset:256 {LD}\nbuffer_load_dwordx2 {v(AQ+4,2)}, v6, {ws}, s62 offen offset:1024 {LD}")
    for i in range(5):
        if i == 4: a(f"s_add_u32 m0, s66, 4096\ns_nop 0")
        a(f"buffer_load_dwordx4 v{16+i}, {ws}, s64 offen offset:{(i&3)*1024} {LD} lds")
    for k in range(6):
        a(f"s_add_u32 m0, s54, {k*1008}")
        a("s_mov_b64 exec, 0x1fffff" if k == 5 else "s_nop 0")
        a(f"buffer_load_dwordx4 v7, {ws}, s65 offen {LD} lds\ns_add_u32 s65, s65, 30720")
    a("s_mov_b64 exec, -1")
    a(f"buffer_load_dwordx2 {v(AQ+6,2)}, v5, {ws}, s63 offen {LD}\nbuffer_load_dwordx2 {v(AQ+8,2)}, v5, {ws}, s63 offen offset:256 {LD}\nbuffer_load_dwordx2 {v(AQ+10,2)}, v6, {ws}, s63 offen offset:1024 {LD}")
    a(f"s_setprio {OPT.get('prioa', 0)}")
    FAST = OPT.get("fast", 1)
    if FAST:
        a(f"v_and_b32 v2, 31, v{VL}\nv_lshrrev_b32 v3, 5, v{VL}\nv_mul_u32_u24 v3, 1280, v3\nv_lshl_add_u32 v2, v2, 3, v3\nv_add_u32 v2, s66, v2\ns_waitcnt vmcnt(9)")
        for t in range(2):
            for u in range(5): a(f"ds_read_b64 {v(28+10*t+2*u,2)}, v2 offset:{t*2560+u*256}")
        for t in range(2):
            a(f"s_waitcnt lgkmcnt({5-5*t})\nv_mov_b32 v{14+t}, 0")
            for u in range(10): a(f"v_dot2_f32_bf16 v{14+t}, v{28+10*t+u}, v{28+10*t+u}, v{14+t}")
        a("s_nop 2\nv_max_f32 v14, v14, v15")
        for sh in (8, 4, 2, 1): a(f"s_nop 1\nv_max_f32_dpp v14, v14, v14 row_ror:{sh} row_mask:0xf bank_mask:0xf")
        for sw in ("v_permlane16_swap_b32", "v_permlane32_swap_b32"): a(f"v_mov_b32 v15, v14\ns_nop 1\n{sw} v14, v15\nv_max_f32 v14, v14, v15")
        a(f"s_lshl_b32 s53, s{w}, 2\ns_add_u32 s53, s53, {L_KN}\nv_mov_b32 v15, s53\nds_write_b32 v15, v14")
    else:
        a("s_waitcnt vmcnt(9)")
    lds_sync(a, C_AK, 4, ls=0)
    if FAST:
        a(f"v_mov_b32 v2, {L_KN}\nds_read_b128 v[28:31], v2\ns_waitcnt lgkmcnt(0)\nv_max3_f32 v28, v28, v29, v30\nv_max_f32 v254, v28, v31")
    ast(a, 1)
    if OPT.get("ah"):
        nh = a.newlab("ah")
        a(f"s_cmp_eq_u32 s{SHAS1}, 0\ns_cbranch_scc1 {nh}")
        lds_wait(a, C_GA, OPT["ah"])
        a.lab(nh)
    a("s_mov_b32 s59, 0")
    fin = a.newlab("afin")
    if OPT.get("noac"):
        lds_sync(a, C_AV, 4, vt=14, ls=0); a(f"s_branch {fin}")
    L = a.newlab("atask"); vw = a.newlab("avw"); vwb = a.newlab("avb")
    inv = [a.newlab("inv") for _ in range(8)]; invb = [a.newlab("invb") for _ in range(8)]
    a(".p2align 3")
    a.lab(L)
    def kread(p):
        b = AK + 6*(p % 3)
        a(f"ds_read_b64 {v(b,2)}, v8 offset:{p*1280}\nds_read_b64 {v(b+2,2)}, v8 offset:{p*1280+256}\nds_read_b64 {v(b+4,2)}, v9 offset:{p*1280+1024}")
    def vread(p):
        b = AV + 8*(p % 2)
        for m in range(2): a(f"ds_read_b128 {v(b+4*m,4)}, v10 offset:{p*1344+m*672}")
    def mx(p):
        if p < 8:
            a(f"s_cmp_gt_u32 s57, {p}\ns_cbranch_scc1 {inv[p]}")
            a.lab(invb[p])
        for q in range(8):
            d = 2 + (q & 1)
            if p == 0 and q < 2: a(f"v_max_f32 v{d}, v{AS+2*q}, v{AS+2*q+1}")
            else: a(f"v_max3_f32 v{d}, v{d}, v{AS+16*p+2*q}, v{AS+16*p+2*q+1}")
    def m1(p):
        b = AK + 6*(p % 3); S = v(AS+16*p, 16)
        C = v(AME,16) if p == 0 else v(AMD,16) if p == 8 else "0"
        a(f"v_mfma_f32_32x32x16_bf16 {S}, {v(b,4)}, {v(AQ,4)}, {C}")
    def m2(p):
        b = AK + 6*(p % 3); S = v(AS+16*p, 16)
        a(f"v_mfma_f32_32x32x8bf16_1k {S}, {v(b+4,2)}, {v(AQ+4,2)}, {S}")
    def pv(p, S=None, ms=(0, 1)):
        b = AV + 8*(p % 2); S = AS+16*p if S is None else S
        for m in ms:
            C = "0" if (p == 0 and m == 0) else v(AO,16)
            a(f"v_mfma_f32_32x32x16_bf16 {v(AO,16)}, {v(b+4*m,4)}, {v(S+4*m,4)}, {C}")
    kread(0); kread(1); kread(2)
    join = a.newlab("ajoin")
    if FAST:
        slow = a.newlab("aslow"); fvw = a.newlab("afv"); fvb = a.newlab("afb")
        finv = [a.newlab("finv") for _ in range(8)]; finvb = [a.newlab("finvb") for _ in range(8)]
        a("v_mov_b32 v2, 0")
        for r in range(6): a(f"v_dot2_f32_bf16 v2, v{AQ+r}, v{AQ+r}, v2")
        a(f"s_nop 2\nv_mov_b32 v3, v2\ns_nop 1\nv_permlane32_swap_b32 v2, v3\nv_add_f32 v2, v2, v3\nv_mul_f32 v2, v2, v254\nv_cmp_nge_f32 vcc, {hexf(3600.0)}, v2\ns_cbranch_vccnz {slow}")
        def SB(p): return AS + 16*(p % 3)
        def fm1(p):
            b = AK + 6*(p % 3); C = v(AME,16) if p == 0 else v(AMD,16) if p == 8 else "0"
            a(f"v_mfma_f32_32x32x16_bf16 {v(SB(p),16)}, {v(b,4)}, {v(AQ,4)}, {C}")
        def fm2(p):
            b = AK + 6*(p % 3)
            a(f"v_mfma_f32_32x32x8bf16_1k {v(SB(p),16)}, {v(b+4,2)}, {v(AQ+4,2)}, {v(SB(p),16)}")
        a("s_waitcnt lgkmcnt(6)"); fm1(0); fm2(0)
        a(f"s_cmp_eq_u32 s59, 0\ns_cbranch_scc1 {fvw}")
        a.lab(fvb)
        vread(0); kread(3)
        a("s_waitcnt lgkmcnt(8)"); fm1(1); fm2(1)
        a("s_nop 7")
        ast(a, 2, 1, 7)
        for p in range(9):
            S = SB(p)
            if p < 8:
                a(f"s_cmp_gt_u32 s57, {p}\ns_cbranch_scc1 {finv[p]}")
                a.lab(finvb[p])
            ex = [f"v_exp_f32 v{S+q}, v{S+q}" for q in range(16)]
            for q in range(0, 4): a(ex[q])
            if p > 0: pv(p-1, SB(p-1), (0,))
            for q in range(4, 8): a(ex[q])
            if p > 0: pv(p-1, SB(p-1), (1,))
            if p + 1 < 9: vread(p+1)
            for q in range(8, 12): a(ex[q])
            if p + 2 < 9:
                a(f"s_waitcnt lgkmcnt({(5 if p + 3 < 9 else 2) + 2})"); fm1(p+2)
            for q in range(12, 16): a(ex[q])
            if p + 2 < 9: fm2(p+2)
            else: a("s_nop 0")
            if p + 4 < 9: kread(p+4)
            for q in range(8): a(f"v_cvt_pk_bf16_f32 v{S+q}, v{S+2*q}, v{S+2*q+1}")
            n = (2 if p + 1 < 9 else 0) + (3 if p + 3 < 9 else 0) + (3 if p + 4 < 9 else 0)
            a(f"s_waitcnt lgkmcnt({n})")
        ast(a, 3, 1, 7)
        a("s_nop 0"); pv(8, SB(8))
        a(f"s_branch {join}")
        for p in range(8):
            a.lab(finv[p])
            for r in range(16): a(f"v_mov_b32 v{SB(p)+r}, {NEGINF}")
            a(f"s_branch {finvb[p]}")
        a.lab(fvw)
        a("s_waitcnt vmcnt(0)\nv_mov_b32 v4, 0x3f803f80\nv_mov_b32 v5, v4\nv_mov_b32 v6, v4\nv_mov_b32 v7, v4\nds_write_b128 v13, v[4:7] offset:320")
        lds_sync(a, C_AV, 4, vt=14, ls=0)
        a(f"s_branch {fvb}")
        a.lab(slow)
    a("s_waitcnt lgkmcnt(6)"); m1(0)
    for p in range(9):
        if p + 1 < 9:
            a(f"s_waitcnt lgkmcnt({3 if p + 2 < 9 else 0})"); m1(p+1)
        m2(p)
        if p + 3 < 9: kread(p+3)
        if p >= 2: mx(p-2)
    a(f"s_cmp_eq_u32 s59, 0\ns_cbranch_scc1 {vw}")
    a.lab(vwb)
    vread(0)
    mx(7)
    a("s_nop 0")
    mx(8)
    a("v_max_f32 v2, v2, v3\nv_mov_b32 v3, v2\ns_nop 1\nv_permlane32_swap_b32 v2, v3\nv_max_f32 v2, v2, v3")
    for p in range(9):
        b = AS + 16*p
        for q in range(8): a(f"v_pk_add_f32 {v(b+2*q,2)}, {v(b+2*q,2)}, v[2:3] op_sel_hi:[1,0] neg_lo:[0,1] neg_hi:[0,1]")
        if p > 0:
            a("s_waitcnt lgkmcnt(0)"); pv(p-1)
        if p + 1 < 9 and p > 0: vread(p+1)
        if p == 0: vread(1)
        for q in range(16): a(f"v_exp_f32 v{b+q}, v{b+q}")
        a("s_nop 0")
        for q in range(8): a(f"v_cvt_pk_bf16_f32 v{b+q}, v{b+2*q}, v{b+2*q+1}")
    a("s_waitcnt lgkmcnt(0)\ns_nop 0"); pv(8)
    a.lab(join)
    for r in range(6): a(f"v_mov_b32 v{AQ+r}, v{AQ+6+r}")
    a(f"v_add_u32 v8, {4*1280}, v8\nv_add_u32 v9, {4*1280}, v9\nv_add_u32 v10, {4*1344}, v10\ns_sub_u32 s57, s57, s58\ns_nop 2")
    a(f"v_mov_b32 v2, v{AO+8}\nv_mov_b32 v3, v{AO+8}\ns_nop 1\nv_permlane32_swap_b32 v2, v3\nv_rcp_f32 v2, v3\ns_nop 0")
    for q in range(6): a(f"v_pk_mul_f32 {v(AO+2*q,2)}, {v(AO+2*q,2)}, v[2:3] op_sel_hi:[1,0]")
    for q in range(6): a(f"v_cvt_pk_bf16_f32 v{4+q if q < 4 else 10+q}, v{AO+2*q}, v{AO+2*q+1}")
    a(f"s_setprio 2\nbuffer_store_dwordx4 v[4:7], v11, {ws}, s56 offen {ST}\nbuffer_store_dwordx2 v[14:15], v12, {ws}, s61 offen {ST}\ns_setprio {OPT.get('prioa', 0)}")
    ast(a, 3, 0); ast(a, 4, 1); ast(a, 1, 0, 7); ast(a, 4, 1, 7)
    a(f"s_add_u32 s56, s56, {4*32768}\ns_add_u32 s61, s61, {4*8192}\ns_add_u32 s59, s59, 1\ns_cmp_lt_u32 s59, 2\ns_cbranch_scc1 {L}")
    a(f"s_branch {fin}")
    for p in range(8):
        a.lab(inv[p])
        for r in range(16): a(f"v_mov_b32 v{AS+16*p+r}, {NEGINF}")
        a(f"s_branch {invb[p]}")
    a.lab(vw)
    a("s_waitcnt vmcnt(0)\nv_mov_b32 v4, 0x3f803f80\nv_mov_b32 v5, v4\nv_mov_b32 v6, v4\nv_mov_b32 v7, v4\nds_write_b128 v13, v[4:7] offset:320")
    lds_sync(a, C_AV, 4, vt=14, ls=0)
    a(f"s_branch {vwb}")
    a.lab(fin)

def wo2(a):
    skw = SKW; ws = s(SWS, 4)
    a(f"v_lshrrev_b32 v2, 4, v{VL}\nv_and_b32 v3, 15, v{VL}\nv_lshlrev_b32 v8, 4, v3\nv_lshl_add_u32 v8, v2, 9, v8\nv_lshlrev_b32 v10, 3, v3\nv_lshl_add_u32 v10, v2, 9, v10")
    a(f"s_lshl_b32 s50, s{SST}, 16\ns_lshl_b32 s51, s{skw}, 13\ns_add_u32 s50, s50, s51\ns_add_u32 s50, s50, {OFF_O1}")
    a(f"s_lshl_b32 s61, s{SST}, 14\ns_lshl_b32 s51, s{skw}, 11\ns_add_u32 s61, s61, s51\ns_add_u32 s61, s61, {OFF_O2}")
    for i in range(4):
        a(f"s_xor_b32 s51, s{skw}, {i}\ns_lshr_b32 s56, s51, 1\ns_and_b32 s51, s51, 1\ns_lshl_b32 s57, s56, 15\ns_lshl_b32 s58, s51, 8\ns_add_u32 s57, s57, s58\ns_add_u32 s{52+i}, s50, s57")
        a(f"s_lshl_b32 s57, s56, 13\ns_lshl_b32 s58, s51, 7\ns_add_u32 s57, s57, s58\ns_add_u32 s{62+i}, s61, s57")
    oth = a.newlab("ow"); go = a.newlab("og")
    a(f"s_cmp_lg_u32 s{skw}, 0\ns_cbranch_scc1 {oth}")
    a(f"s_lshr_b32 s51, s{SST}, 2\ns_lshl_b32 s51, s51, 8\ns_add_u32 s51, s51, {G_O+128}\nv_mov_b32 v2, 0")
    gpoll(a, 2, SWS, "s51", 1, 1)
    lds_set(a, C_OGO)
    a(f"s_branch {go}")
    a.lab(oth)
    lds_wait(a, C_OGO, 1, ls=1)
    a.lab(go)
    stamp(a, 2, OPT.get("mst") == 5)
    def aload(st):
        for i in range(4):
            r = WA+16*(st%3)+4*i
            if st < 4:
                a(f"buffer_load_dwordx4 {v(r,4)}, v8, {ws}, s{52+i} offen offset:{(st&1)*2048} {LD}")
                if st == 1: a(f"s_add_u32 s{52+i}, s{52+i}, 4096")
            else:
                for e in range(2): a(f"buffer_load_dwordx2 {v(r+2*e,2)}, v10, {ws}, s{62+i} offen offset:{e*256} {LD}")
    for st in range(3): aload(st)
    for st in range(5):
        a(f"s_waitcnt vmcnt({[8, 8, 12, 8, 0][st]})")
        for db in range(5):
            for i in range(4):
                acc = v(MACC+(i*5+db)*4, 4)
                a(f"v_mfma_f32_16x16x32_bf16 {acc}, {v(WB+20*st+4*db,4)}, {v(WA+16*(st%3)+4*i,4)}, {'0' if st == 0 else acc}")
        if st + 3 < 5: aload(st+3)

def colsum4(a, snt, ldsbase, st):
    a(f"v_lshrrev_b32 v2, 4, v{VL}\nv_and_b32 v3, 15, v{VL}\nv_mul_u32_u24 v4, 3840, v2\nv_lshl_add_u32 v4, v3, 4, v4")
    a(f"s_mul_i32 s{st}, s{SKW}, {160*3840}\ns_lshl_b32 s{st+1}, s{snt}, 8\ns_add_u32 s{st}, s{st}, s{st+1}")
    a(f"s_cmp_eq_u32 s{snt}, 15\ns_cbranch_scc0 L_cs_go\ns_barrier\ns_branch L_cs_end")
    a.lab("L_cs_go")
    for i in range(40):
        a(f"buffer_load_dwordx4 v[{32+4*i}:{35+4*i}], v4, {s(SWQ,4)}, s{st} offen\ns_add_u32 s{st}, s{st}, {4*3840}")
        if i == 9: a("s_barrier")
    for c in range(8): a(f"v_mov_b32 v{16+c}, 0")
    for i in range(40):
        a(f"s_waitcnt vmcnt({39-i})")
        for c in range(4):
            a(f"v_lshlrev_b32 v24, 16, v{32+4*i+c}\nv_and_b32 v25, 0xffff0000, v{32+4*i+c}\nv_pk_add_f32 v[{16+2*c}:{17+2*c}], v[{16+2*c}:{17+2*c}], v[24:25]")
    for sw in ("v_permlane32_swap_b32", "v_permlane16_swap_b32"):
        for c in range(8): a(f"v_mov_b32 v{24+c}, v{16+c}")
        a("s_nop 0")
        for c in range(8): a(f"{sw} v{16+c}, v{24+c}")
        for c in range(8): a(f"v_add_f32 v{16+c}, v{16+c}, v{24+c}")
    a(f"s_lshl_b32 s{st}, s{SKW}, 9\ns_add_u32 s{st}, s{st}, {ldsbase}\nv_lshlrev_b32 v4, 5, v3\nv_add_u32 v4, s{st}, v4")
    a("ds_write_b128 v4, v[16:19]\nds_write_b128 v4, v[20:23] offset:16")
    lds_sync(a, C_W2, 4)
    a(f"s_cmp_ge_u32 s{SKW}, 2\ns_cbranch_scc1 L_cs_end")
    a(f"s_lshl_b32 s{st}, s{SKW}, 8\nv_lshlrev_b32 v4, 2, v{VL}\nv_add_u32 v4, s{st}, v4\nv_add_u32 v5, {ldsbase}, v4")
    for w in range(4): a(f"ds_read_b32 v{16+w}, v5 offset:{w*512}")
    a("s_waitcnt lgkmcnt(0)")
    for w in range(1, 4): a(f"v_add_f32 v16, v16, v{16+w}")
    a(f"s_lshl_b32 s{st}, s{snt}, 9\ns_add_u32 s{st}, s{st}, {OFF_CS}")
    a(f"buffer_store_dword v16, v4, {s(SWS,4)}, s{st} offen {ST}")
    a.lab("L_cs_end")

def prologue2(a):
    a(f".globl {NAME}\n.p2align 8\n.type {NAME},@function")
    a.lab(NAME)
    a(f"s_load_dwordx4 s[64:67], s[0:1], 0\ns_load_dwordx4 s[68:71], s[0:1], 72\ns_cmp_ge_u32 s2, 256\ns_cbranch_scc1 L_end")
    if blocks.STAMP:
        for i in range(16): a(f"s_mov_b32 s{84+i}, 0")
    stamp(a, 0)
    if OPT.get("cpf", 1):
        a(f"s_getpc_b64 s[50:51]\ns_sub_u32 s50, s50, .-{NAME}\ns_subb_u32 s51, s51, 0")
        a(f"s_lshr_b32 s52, s2, 3\ns_and_b32 s52, s52, 3\ns_add_u32 s52, s52, 1\ns_lshl_b32 s52, s52, 13\nv_and_b32 v2, 63, v0\nv_lshlrev_b32 v2, 7, v2")
        a(f"v_cmp_le_u32 vcc, 256, v0\nv_mov_b32 v3, s52\nv_and_b32 v4, 0xc0, v0\nv_cndmask_b32 v3, 0, v3, vcc\nv_add_u32 v2, v2, v3\nv_cmp_eq_u32 vcc, 0, v4\ns_mov_b32 s54, L_end-{NAME}\nv_cmp_gt_u32 s[52:53], s54, v2\ns_nop 0\ns_and_b64 vcc, vcc, s[52:53]")
        a(f"s_and_saveexec_b64 s[52:53], vcc\ns_cbranch_execz L_nocpf\nglobal_load_dword v255, v2, s[50:51]")
        a.lab("L_nocpf")
        a("s_mov_b64 exec, -1")
    a(f"s_load_dwordx8 s[56:63], s[0:1], 32\ns_load_dwordx2 {s(SWO,2)}, s[0:1], 16\ns_load_dwordx2 {s(SOUT,2)}, s[0:1], 64")
    a(f"v_lshrrev_b32 v2, 6, v0\nv_and_b32 v{VL}, 63, v0")
    a(f"s_and_b32 s{SXCD}, s2, 7\ns_lshr_b32 s{SJ}, s2, 3")
    a(f"v_readfirstlane_b32 s{SWAVE}, v2")
    for r in SRDS: a(f"s_mov_b32 s{r+2}, {SRDS[r][1]}\ns_mov_b32 s{r+3}, 0x20000")
    ids(a)
    a("s_waitcnt lgkmcnt(0)")
    for r, src in ((SX, 64), (SWQ, 66), (SDBG, 68), (SWS, 70), (SW1, 56), (SB1, 58), (SW2, 60), (SB2, 62)): a(f"s_mov_b64 {s(r,2)}, {s(src,2)}")

def trs_prep8(a, sw, sbase, st, vb):
    a(f"v_lshrrev_b32 v2, 4, v{VL}\nv_and_b32 v3, 15, v{VL}")
    a(f"v_lshrrev_b32 v4, 2, v3\nv_mul_u32_u24 v4, 1344, v4\nv_lshl_add_u32 v4, v2, 5, v4\nv_and_b32 v5, 3, v3\nv_lshl_add_u32 v4, v5, 3, v4")
    a(f"s_lshl_b32 s{st}, s{sw}, 7\ns_add_u32 s{st}, s{st}, s{sbase}\nv_add_u32 v{vb}, s{st}, v4")
    a(f"s_cmp_eq_u32 s52, 768\ns_cselect_b32 s{st}, 128, 0\nv_lshrrev_b32 v7, 3, v3\nv_mul_u32_u24 v7, s{st}, v7\nv_lshl_add_u32 v7, v3, 4, v7")
    for k in range(3):
        a(f"s_lshl_b32 s{st}, s{sw}, 2\ns_add_u32 s{st}, s{st}, {16*k}\nv_add_u32 v5, s{st}, v2")
        a(f"v_lshrrev_b32 v6, 3, v5\nv_lshlrev_b32 v6, 20, v6\nv_and_b32 v5, 7, v5\nv_lshl_add_u32 v6, v5, 11, v6\nv_add_u32 v{vb+1+k}, v7, v6")
def trs_prep(a, sw, ldsbase, dt, st, vb):
    a(f"v_lshrrev_b32 v2, 4, v{VL}\nv_and_b32 v3, 15, v{VL}")
    a(f"v_lshrrev_b32 v4, 2, v3\nv_mul_u32_u24 v4, 1344, v4\nv_lshl_add_u32 v4, v2, 5, v4\nv_and_b32 v5, 3, v3\nv_lshl_add_u32 v4, v5, 3, v4")
    a(f"s_lshl_b32 s{st}, s{sw}, 7\ns_add_u32 s{st}, s{st}, {ldsbase}\nv_add_u32 v{vb}, s{st}, v4\ns_mov_b32 s{st+1}, {dt-5120}")
    for k in range(3):
        a(f"s_lshl_b32 s{st}, s{sw}, 2\ns_add_u32 s{st}, s{st}, {16*k}\nv_add_u32 v5, s{st}, v2")
        a(f"v_mul_u32_u24 v6, 52, v5\nv_lshrrev_b32 v6, 8, v6\nv_mul_u32_u24 v6, s{st+1}, v6\nv_lshl_add_u32 v6, v5, 10, v6\nv_lshl_add_u32 v{vb+1+k}, v3, 4, v6")
    a(f"s_cmp_ge_u32 s{sw}, 2\ns_cselect_b64 vcc, -1, 0\nv_mov_b32 v5, {OOB}\nv_cndmask_b32 v{vb+3}, v{vb+3}, v5, vcc")
def trs_go(a, sw, sdst, vb, d=16):
    for k in range(3):
        a(f"ds_read_b64_tr_b16 v[{d+4*k}:{d+1+4*k}], v{vb} offset:{k*512}\nds_read_b64_tr_b16 v[{d+2+4*k}:{d+3+4*k}], v{vb} offset:{k*512+5376}")
    sk = a.newlab("tg")
    for k in range(3):
        if k == 2: a(f"s_cmp_ge_u32 s{sw}, 2\ns_cbranch_scc1 {sk}")
        a(f"s_waitcnt lgkmcnt({4-2*k})\nbuffer_store_dwordx4 v[{d+4*k}:{d+3+4*k}], v{vb+1+k}, {s(SWS,4)}, s{sdst} offen {ST}")
    a.lab(sk)

def m1_bias_init(a):
    z = a.newlab("bz"); d = a.newlab("bd")
    a(f"s_cmp_lg_u32 s{SKW}, 0\ns_cbranch_scc1 {z}\ns_waitcnt vmcnt(36)")
    for fb in range(4):
        for q in range(2):
            a(f"v_lshlrev_b32 v{MACC+fb*20+2*q}, 16, v{192+2*fb+q}\nv_and_b32 v{MACC+fb*20+2*q+1}, 0xffff0000, v{192+2*fb+q}")
        for db in range(1, 5):
            for r in range(4): a(f"v_mov_b32 v{MACC+(fb*5+db)*4+r}, v{MACC+fb*20+r}")
    a(f"s_branch {d}")
    a.lab(z)
    for i in range(80): a(f"v_mov_b32 v{MACC+i}, 0")
    a.lab(d)
def m1_epi(a):
    kw = SKW; ws = s(SWS, 4)
    odd = a.newlab("eo"); j1 = a.newlab("ej"); j2 = a.newlab("ej")
    a(f"v_add_u32 v10, s66, v{MDIR}\ns_and_b32 s65, s{kw}, 1\ns_cmp_eq_u32 s65, 1\ns_nop 3")
    for t in range(10, 20): a(f"ds_write_b128 v10, {v(MACC+4*t,4)} offset:{t*1024}")
    a(f"s_cbranch_scc1 {odd}")
    for t in (3, 4, 8, 9): a(f"ds_write_b128 v10, {v(MACC+4*t,4)} offset:{t*1024}")
    a(f"s_branch {j1}")
    a.lab(odd)
    for t in (0, 1, 2, 5, 6, 7): a(f"ds_write_b128 v10, {v(MACC+4*t,4)} offset:{t*1024}")
    for g in range(2):
        for r in range(8): a(f"v_mov_b32 v{MACC+20*g+r}, v{MACC+20*g+12+r}")
    a.lab(j1)
    l10(a, 1)
    a(f"s_mul_i32 s65, s65, 3072")
    for n_, x_ in enumerate((1, 2, 3)):
        a(f"s_xor_b32 s68, s{kw}, {x_}\ns_mul_i32 s68, s68, {M1STR}\ns_add_u32 s68, s68, s65\ns_add_u32 s68, s68, {M1BASE + (0 if x_ == 1 else 10240)}\nv_add_u32 v{11+n_}, s68, v{MDIR}")
    a(f"s_mul_i32 s68, s{SDT1}, {54*5120}\ns_mul_i32 s69, s{SFT}, 10240\ns_add_u32 s68, s68, s69\ns_lshr_b32 s69, s{kw}, 1\ns_mul_i32 s69, s69, 5120\ns_add_u32 s68, s68, s69\ns_add_u32 s68, s68, s65\ns_add_u32 s68, s68, {OFF_G}")
    a(f"s_mov_b32 s72, {hexf(GC2)}\ns_mov_b32 s73, {hexf(GC2)}\nv_mov_b32 v14, {hexf(GC1)}\nv_mov_b32 v15, v14")
    lds_sync(a, C_MP, 4, ls=0)
    l10(a, 2)
    def rd(k):
        for n_ in range(3):
            for g in range(2): a(f"ds_read_b128 {v(112+24*k+8*n_+4*g,4)}, v{11+n_} offset:{g*5120+k*1024}")
    rd(0); rd(1)
    for k in range(3):
        if k == 0:
            a(f"s_cmp_lg_u32 s65, 0\ns_cbranch_scc1 {j2}_r"); rd(2); a(f"s_waitcnt lgkmcnt(12)\ns_branch {j2}_w")
            a.lab(j2 + "_r"); a("s_waitcnt lgkmcnt(6)"); a.lab(j2 + "_w")
        elif k == 1:
            a(f"s_waitcnt lgkmcnt(6)\ns_cmp_eq_u32 s65, 0\ns_cbranch_scc1 {j2}_x\ns_waitcnt lgkmcnt(0)"); a.lab(j2 + "_x")
        else: a(f"s_cmp_lg_u32 s65, 0\ns_cbranch_scc1 {j2}\ns_waitcnt lgkmcnt(0)")
        U = [MACC+4*k, MACC+4*k+2, MACC+20+4*k, MACC+20+4*k+2]
        T = 96
        if OPT.get("gpk", 1):
            for n_ in range(3):
                for q in range(4): a(f"v_pk_add_f32 {v(U[q],2)}, {v(U[q],2)}, {v(112+24*k+8*n_+2*q,2)}")
            for q in range(4): a(f"v_pk_mul_f32 {v(T+2*q,2)}, {v(U[q],2)}, {v(U[q],2)}")
            for q in range(4): a(f"v_pk_fma_f32 {v(T+2*q,2)}, {v(T+2*q,2)}, s[72:73], v[14:15]")
            for q in range(4): a(f"v_pk_mul_f32 {v(T+2*q,2)}, {v(T+2*q,2)}, {v(U[q],2)}")
            for q in range(8): a(f"v_exp_f32 v{T+q}, v{T+q}")
            a("s_nop 0")
            for q in range(4): a(f"v_pk_add_f32 {v(T+2*q,2)}, {v(T+2*q,2)}, 1.0 op_sel_hi:[1,0]")
            for q in range(8): a(f"v_rcp_f32 v{T+q}, v{T+q}")
            a("s_nop 0")
            for q in range(4): a(f"v_pk_mul_f32 {v(T+2*q,2)}, {v(T+2*q,2)}, {v(U[q],2)}")
        else:
            R = [U[q>>1] + (q & 1) for q in range(8)]
            for n_ in range(3):
                for q in range(8): a(f"v_add_f32 v{R[q]}, v{R[q]}, v{112+24*k+8*n_+q}")
            for q in range(8): a(f"v_mul_f32 v{T+q}, v{R[q]}, v{R[q]}")
            for q in range(8): a(f"v_fmaak_f32 v{T+q}, s72, v{T+q}, {hexf(GC1)}" if False else f"v_fma_f32 v{T+q}, v{T+q}, s72, v14")
            for q in range(8): a(f"v_mul_f32 v{T+q}, v{T+q}, v{R[q]}")
            for q in range(8): a(f"v_exp_f32 v{T+q}, v{T+q}")
            for q in range(8): a(f"v_add_f32 v{T+q}, 1.0, v{T+q}")
            for q in range(8): a(f"v_rcp_f32 v{T+q}, v{T+q}")
            for q in range(8): a(f"v_mul_f32 v{T+q}, v{T+q}, v{R[q]}")
        for q in range(4): a(f"v_cvt_pk_bf16_f32 v{104+4*(k&1)+q}, v{T+2*q}, v{T+2*q+1}")
        a(f"buffer_store_dwordx4 {v(104+4*(k&1),4)}, v{MDIR}, {ws}, s68 offen offset:{k*1024} {ST}")
        if k < 2: l10(a, 3+k)
    a.lab(j2)

def gen():
    NPB = OPT.get('npb', 896)
    a = Asm()
    a(f"; @launch grid=(256,1,1) block=(512,1,1) lds={LDS}")
    a('.amdgcn_target "amdgcn-amd-amdhsa--gfx950"\n.text')
    prologue2(a)
    a(f"s_cmp_ge_u32 s{SJ}, 15\ns_cbranch_scc1 L_b\ns_cmp_ge_u32 s{SWAVE}, 4\ns_cbranch_scc0 L_cons")
    loader(a)
    stamp(a, 2)
    wof_finish(a)
    stamp(a, 3)
    ORD = OPT.get("ord", 1)
    def flood():
        a(f"s_mul_i32 s67, s{SXCD}, 15\ns_add_u32 s67, s67, s{SJ}\ns_lshl_b32 s67, s67, 2\ns_add_u32 s67, s67, s{SKW}")
        a(f"s_lshr_b32 s51, s{SW2}, 7\ns_sub_u32 s51, 3, s51\ns_and_b32 s51, s51, 7\ns_lshl_b32 s51, 0x1010101, s51\ns_not_b32 s60, s51")
        prefetch(a, 67, 480, NB1, NB1 + NB2, mask=60)
        stamp(a, 4)
    if ORD in (0, 4): lds_wait(a, C_QD if OPT.get("p1e", 1) else C_AV, 1 if OPT.get("p1e", 1) else 4)
    elif ORD == 3: lds_wait(a, C_AK, 4)
    else: lds_wait(a, C_AV, 4)
    if ORD in (1, 3): flood()
    a(f"s_mov_b32 s61, {C_QA}\ns_branch L_m2")
    if ORD in (0, 2):
        a.lab("L_a_pf")
        lds_wait(a, C_AV, 4)
        a(f"s_mov_b32 s74, s50\ns_mov_b64 s[64:65], s[52:53]\ns_mov_b32 s68, s54\nv_mov_b32 v15, v4")
        flood()
        a(f"s_mov_b32 s50, s74\ns_mov_b64 s[52:53], s[64:65]\ns_mov_b32 s54, s68\nv_mov_b32 v4, v15\ns_branch L_a_pfd")
    a.lab("L_b")
    a(f"s_and_b32 s{SKW}, s{SWAVE}, 3\ns_lshr_b32 s64, s{SWAVE}, 2\ns_cmp_eq_u32 s{SJ}, 31\ns_cbranch_scc1 L_b_noln")
    a(f"s_lshr_b32 s63, s{SXCD}, 1\ns_lshl_b32 s63, s63, 5\ns_and_b32 s51, s{SXCD}, 1\ns_lshl_b32 s51, s51, 4\ns_add_u32 s63, s63, s51\ns_add_u32 s63, s63, s{SJ}\ns_sub_u32 s63, s63, 15\ns_lshl_b32 s50, s63, 1\ns_add_u32 s50, s50, s64")
    a(f"s_lshr_b32 s51, s50, 2\ns_and_b32 s52, s50, 3\ns_lshl_b32 s53, s51, 5\ns_lshl_b32 s54, s52, 2\ns_add_u32 s53, s53, s54")
    a(f"s_lshr_b32 s54, s{SKW}, 1\ns_lshl_b32 s54, s54, 4\ns_add_u32 s53, s53, s54\ns_and_b32 s54, s{SKW}, 1\ns_lshl_b32 s54, s54, 1\ns_add_u32 s53, s53, s54")
    rows_load(a, SX, SKW, 53, 54)
    a(f"s_lshl_b32 s62, s51, 14\ns_lshl_b32 s52, s52, 8\ns_add_u32 s62, s62, s52\ns_add_u32 s62, s62, {OFF_H+512}\ns_mul_i32 s64, s64, 10752")
    ids_late(a)
    trs_prep8(a, SKW, 64, 54, 214)
    init_counters(a)
    a(f"v_lshrrev_b32 v2, 5, v{VL}\nv_and_b32 v3, 31, v{VL}\ns_waitcnt vmcnt(0)")
    rows_ln(a, 53, 54, ST)
    a(f"s_mul_i32 s54, s{SKW}, 2688\ns_add_u32 s54, s54, s64\nv_mul_u32_u24 v4, 1344, v2\nv_add_u32 v4, s54, v4\nv_lshl_add_u32 v5, v3, 3, v4\nv_lshl_add_u32 v4, v3, 4, v4")
    a("ds_write_b128 v4, v[16:19]\nds_write_b128 v4, v[20:23] offset:512\nds_write_b64 v5, v[24:25] offset:1024")
    zz = a.newlab("zz")
    a(f"s_cmp_lg_u32 s{SWAVE}, 3\ns_cbranch_scc1 {zz}\ns_cmp_ge_u32 s63, {NCTR}\ns_cbranch_scc1 {zz}")
    a(f"s_lshl_b32 s56, s63, 8\ns_add_u32 s56, s56, {OFF_FLAG}\nv_lshlrev_b32 v6, 7, v{VL}\nv_mov_b32 v7, 0\ns_mov_b64 exec, 3\nbuffer_store_dword v7, v6, {s(SWS,4)}, s56 offen sc1\ns_mov_b64 exec, -1")
    a.lab(zz)
    a("s_waitcnt lgkmcnt(0)\ns_barrier")
    trs_go(a, SKW, 62, 214)
    a(f"s_waitcnt vmcnt(0) lgkmcnt(0)\ns_barrier\ns_cmp_lg_u32 s{SWAVE}, 0\ns_cbranch_scc1 L_b_pf")
    L = a.newlab("c1a")
    a(f"s_and_b32 s57, s63, 1\ns_lshl_b32 s56, s57, 6\ns_lshl_b32 s57, s57, 2\ns_mov_b64 exec, 1\ns_setprio 3")
    garrive(a, SDBG, 56, 64, (57, 128), L, va=15)
    a.lab(L)
    a("s_mov_b64 exec, -1\ns_setprio 0")
    lds_set(a, C_PUB)
    a("s_branch L_b_pf")
    a.lab("L_b_noln")
    ids_late(a)
    init_counters(a)
    a("s_waitcnt lgkmcnt(0)\ns_barrier")
    lds_set(a, C_PUB)
    a.lab("L_b_pf")
    stamp(a, 1)
    a(f"s_cmp_lt_u32 s{SFT}, 27\ns_cselect_b32 s{SHAS1}, 1, 0")
    a(f"s_cmp_ge_u32 s{SWAVE}, 4\ns_cbranch_scc1 L_b_hi")
    lds_wait(a, C_PUB, 1, ls=1)
    if OPT.get("pf", 1):
        if OPT.get("xm", 0):
            a(f"s_mul_i32 s62, s{SXCD}, {17*205}\ns_lshr_b32 s62, s62, 10\ns_lshl_b32 s62, s62, 7\ns_mul_i32 s61, s{SWAVE}, {512*3456}\ns_add_u32 s62, s62, s61\ns_sub_u32 s61, s{SJ}, 15\ns_mul_i32 s63, s61, {12*3456}\ns_add_u32 s62, s62, s63")
            a(f"v_mul_u32_u24 v2, 52, v{VL}\nv_lshrrev_b32 v2, 8, v2\nv_mul_u32_u24 v2, {3456-640}, v2\nv_lshl_add_u32 v2, v{VL}, 7, v2\ns_mov_b32 exec_hi, 0xfffffff")
            for k in range(3):
                if k == 2: a("s_cmp_ge_u32 s61, 9\ns_cbranch_scc1 L_b_pfd")
                a(f"buffer_load_dword v255, v2, {s(SW1,4)}, s62 offen\ns_add_u32 s62, s62, {17*12*3456}")
            a.lab("L_b_pfd")
            a("s_mov_b64 exec, -1")
        else:
            a(f"s_sub_u32 s62, s{SJ}, 15\ns_lshl_b32 s62, s62, 3\ns_add_u32 s62, s62, s{SXCD}\ns_mul_i32 s61, s{SWAVE}, 136\ns_add_u32 s61, s61, s62")
            prefetch(a, 61, 544, OPT.get('np0', 0), NPB)
    a("s_waitcnt vmcnt(0)\ns_setprio 3\ns_branch L_attn")
    a.lab("L_b_hi")
    a(f"s_cmp_eq_u32 s{SHAS1}, 0\ns_cbranch_scc1 L_b_c1")
    a(f"v_lshrrev_b32 v2, 4, v{VL}\nv_lshlrev_b32 v12, 3, v2\ns_lshl_b32 s65, s{SFT}, 7\ns_cmp_lg_u32 s{SKW}, 0\ns_cbranch_scc1 L_nobias")
    for fb in range(4): a(f"buffer_load_dwordx2 {v(160+2*fb,2)}, v12, {s(SB1,4)}, s65 offen offset:{fb*32}")
    a.lab("L_nobias")
    a(f"s_mul_i32 s66, s{SKW}, {XSTR}\ns_add_u32 s66, s66, {XB}\ns_and_b32 s67, s{SKW}, 2")
    mlp_setup(a, SW1, 3456, 66, rot=67)
    a(f"s_mul_i32 s{S_TO}, s{SKW}, {512*3456}\ns_lshl_b32 s65, s{SFT}, 7\ns_add_u32 s{S_TO}, s{S_TO}, s65")
    skip_off(a, MSK)
    a(f"s_lshl_b32 s{S_DO}, s{SDT1}, 20\ns_lshl_b32 s65, s{SKW}, 18\ns_add_u32 s{S_DO}, s{S_DO}, s65\ns_and_b32 s65, s{SKW}, 1\ns_lshl_b32 s68, s65, 13\ns_add_u32 s{S_DO}, s{S_DO}, s68\ns_add_u32 s{S_DO}, s{S_DO}, {OFF_H}")
    a("s_cmp_eq_u32 s65, 1\ns_movk_i32 s68, 0x1000\ns_cselect_b32 s70, -12288, s68\ns_cselect_b32 s71, 20480, s68")
    z = a.newlab("bz"); d = a.newlab("bd")
    a(f"s_cmp_lg_u32 s{SKW}, 0\ns_cbranch_scc1 {z}\ns_waitcnt vmcnt(0)")
    for fb in range(4):
        for q in range(2): a(f"v_lshlrev_b32 v{16+fb*32+2*q}, 16, v{160+2*fb+q}\nv_and_b32 v{16+fb*32+2*q+1}, 0xffff0000, v{160+2*fb+q}")
        for c in range(1, 8):
            for r in range(4): a(f"v_mov_b32 v{16+(fb*8+c)*4+r}, v{16+fb*32+r}")
    a(f"s_branch {d}")
    a.lab(z)
    for i in range(128): a(f"v_mov_b32 v{16+i}, 0")
    a.lab(d)
    if OPT.get("pw", 1):
        lds_wait(a, C_PUB, 1, ls=1)
        for k in (2, 0, 1): mlp_dma(a, k)
    a.lab("L_b_c1")
    oth = a.newlab("cw"); go = a.newlab("cg")
    a(f"s_cmp_lg_u32 s{SKW}, 0\ns_cbranch_scc1 {oth}")
    c1_poll(a)
    a(f"v_mov_b32 v2, {C_QA}\nv_mov_b32 v3, 4\nds_write_b32 v2, v3\ns_branch {go}")
    a.lab(oth)
    lds_wait(a, C_QA, 4, ls=1)
    a.lab(go)
    stamp(a, 2)
    a(f"s_cmp_eq_u32 s{SHAS1}, 0\ns_cselect_b32 s61, {C_QA}, s61\ns_cbranch_scc1 L_m2")
    PW = OPT.get("pw", 1)
    for n_, k in enumerate((2, 0, 1)):
        a(f"s_setprio {3-n_}")
        if not PW: mlp_dma(a, k)
        for c in range(8): n_dir(a, k, c)
    a(f"s_mov_b32 s{S_CNT}, 5\ns_setprio {OPT.get('prio1', 1)}")
    if PW:
        n_body(a, 2, 16, True)
        a(f"s_mov_b32 s{S_CNT}, 4\ns_waitcnt vmcnt(20)\ns_branch L_n0")
    else: a("s_branch L_n2")
    a(".p2align 3")
    for k in range(3):
        a.lab(f"L_n{k}")
        n_body(a, k, 24, True)
    a(f"s_sub_u32 s{S_CNT}, s{S_CNT}, 1\ns_cmp_lg_u32 s{S_CNT}, 0\ns_cbranch_scc1 L_n0")
    if OPT.get("al", 3) == 3: a(f"v_mov_b32 v2, {C_CS}\nv_mov_b32 v3, 1\ns_mov_b64 exec, 1\nds_add_u32 v2, v3\ns_mov_b64 exec, -1")
    for k in range(2): n_body(a, k, 24-12*k, False)
    n_last(a, 2)
    stamp(a, 3)
    a("s_setprio 3")
    l10(a, 0)
    n_epi(a)
    l10(a, 4)
    stamp(a, 4)
    a(f"s_lshl_b32 s61, s{SDT1}, 8\ns_add_u32 s61, s61, {G_G}")
    arrive(a, C_GA, 4, 61, 27)
    l10(a, 5)
    a(f"s_mov_b32 s61, {C_GA}")
    a.lab("L_m2")
    w = SKW
    a(f"s_setprio {OPT.get('prio2', 1)}\ns_mul_i32 s66, s{w}, {M1STR}\ns_add_u32 s66, s66, {M1BASE}\nv_mov_b32 v12, s61")
    mlp_setup(a, SW2, 4096, 66)
    a(f"s_mul_i32 s67, s{w}, 14\ns_cmp_eq_u32 s{w}, 3\ns_cselect_b32 s67, 41, s67")
    a(f"s_lshl_b32 s{S_TO}, s67, 17\ns_lshl_b32 s65, s{SST}, 7\ns_add_u32 s{S_TO}, s{S_TO}, s65")
    skip_off(a, MSK)
    a(f"s_mul_i32 s{S_DO}, s{SDT3}, {54*10240}\ns_mul_i32 s65, s67, 10240\ns_add_u32 s{S_DO}, s{S_DO}, s65\ns_add_u32 s{S_DO}, s{S_DO}, {OFF_G}")
    for i in range(80): a(f"v_mov_b32 v{MACC+i}, 0")
    oth = a.newlab("ww"); go = a.newlab("wg")
    a(f"s_cmp_lg_u32 s{w}, 0\ns_cbranch_scc1 {oth}\ns_mov_b32 s51, {G_W+128}\nv_mov_b32 v2, 0")
    gpoll(a, 2, SWS, "s51", 1, 1)
    lds_set(a, C_W2)
    a(f"s_branch {go}")
    a.lab(oth)
    lds_wait(a, C_W2, 1, ls=1)
    a.lab(go)
    if OPT.get("w2c", 1):
        a(f"s_lshr_b32 s51, s{SW2}, 7\ns_add_u32 s51, s51, s{SST}\ns_and_b32 s51, s51, 7\ns_cmp_lg_u32 s51, 3\ns_cbranch_scc1 L_now2c")
        for k in range(3): a(f"s_mov_b32 s{S_SRD+k}, s{SWS+k}")
        a(f"s_movk_i32 s{S_D8}, 1024\ns_movk_i32 s{S_STEP}, 5120\ns_lshr_b32 s51, s{SST}, 3\ns_mul_i32 s51, s51, 54\ns_add_u32 s51, s51, s67\ns_lshl_b32 s{S_TO}, s51, 13\ns_add_u32 s{S_TO}, s{S_TO}, {OFF_W2C}")
        a(f"v_and_b32 v2, 127, v{MDMA}\nv_and_b32 v3, 0xffffff80, v{MSK}\nv_or_b32 v{MDMA}, v2, v3")
        a.lab("L_now2c")
    lds_wait(a, None, 4, vreg=12)
    a(f"s_cmp_ge_u32 s{w}, 2\ns_cbranch_scc1 L_p3")
    NT = "nt" if OPT.get("sk4", 0) == 2 else ""
    mlp_dma(a, 2, NT)
    a.lab("L_p3")
    for k in (3, 0, 1): mlp_dma(a, k, NT)
    a(f"s_cmp_ge_u32 s{w}, 2\ns_cbranch_scc0 L_p3b")
    mlp_dma(a, 2, NT)
    a.lab("L_p3b")
    a(f"v_and_b32 v2, 15, v{VL}\nv_mul_u32_u24 v12, 10, v2\nv_lshrrev_b32 v3, 5, v{VL}\nv_add_u32 v12, v12, v3\nv_bfe_u32 v2, v{VL}, 2, 1\nv_xor_b32 v12, v12, v2\nv_lshlrev_b32 v12, 4, v12\nv_bfe_u32 v2, v{VL}, 4, 1\nv_mul_u32_u24 v2, 2560, v2\nv_add3_u32 v12, v12, v2, s66")
    a(f"v_lshrrev_b32 v2, 4, v{VL}\nv_and_b32 v3, 15, v{VL}\nv_lshlrev_b32 v13, 4, v3\nv_lshl_add_u32 v13, v2, 9, v13\nv_lshlrev_b32 v14, 3, v3\nv_lshl_add_u32 v14, v2, 9, v14")
    a(f"s_lshl_b32 s70, s{SST}, 16\ns_lshl_b32 s51, s{w}, 13\ns_add_u32 s70, s70, s51\ns_add_u32 s70, s70, {OFF_O1}\ns_add_u32 s71, s70, 32768\ns_add_u32 s72, s70, 4096\ns_add_u32 s73, s71, 4096")
    a(f"s_lshl_b32 s49, s{SST}, 14\ns_lshl_b32 s51, s{w}, 11\ns_add_u32 s49, s49, s51\ns_add_u32 s49, s49, {OFF_O2}\ns_add_u32 s50, s49, 8192")
    a(f"s_mul_i32 s48, s{SDT3}, 102400\ns_mul_i32 s51, s{w}, 25600\ns_add_u32 s48, s48, s51\ns_add_u32 s48, s48, {OFF_WOF}")
    def wof_ld(r):
        for db in range(5):
            a(f"buffer_load_dwordx4 {v(r+4*db,4)}, v{MDIR}, {s(SWS,4)}, s48 offen offset:{(db&3)*1024} {LD}")
            if db >= 3: a(f"s_add_u32 s48, s48, {4096 if db == 3 else 1024}")
    for st in range(3): wof_ld(192+20*st)
    l10(a, 6)
    if OPT.get("ord", 1) in (0, 2): a(f"s_cmp_lt_u32 s{SJ}, 15\ns_cbranch_scc1 L_a_pf")
    a.lab("L_a_pfd")
    oth = a.newlab("gw"); go = a.newlab("gg")
    a(f"s_cmp_lg_u32 s{w}, 0\ns_cbranch_scc1 {oth}")
    a(f"s_mul_i32 s51, s{SDT3}, 5\nv_lshlrev_b32 v2, 2, v{VL}\nv_add_u32 v2, s51, v2\nv_lshrrev_b32 v2, 3, v2\nv_lshlrev_b32 v2, 8, v2\ns_mov_b32 s51, {G_G+128}\ns_setprio 3")
    gpoll(a, 2, SWS, "s51", 1, 2)
    lds_set(a, C_GGO)
    a(f"s_setprio {OPT.get('prio2', 1)}\ns_branch {go}")
    a.lab(oth)
    lds_wait(a, C_GGO, 1, ls=1)
    a.lab(go)
    stamp(a, 5); l10(a, 7)
    SM_ = OPT.get("smaj", 1)
    a(f"s_mov_b32 s{S_CNT}, 3\ns_mov_b32 s69, 3\ns_cmp_ge_u32 s{w}, 2\ns_cbranch_scc1 L_d3")
    for lab, order, ent in ((None, (2, 3, 0, 1), "L_mb2"), ("L_d3", (3, 0, 1, 2), "L_mb3")):
        if lab: a.lab(lab)
        for n_, k in enumerate(order):
            if SM_: a(f"s_setprio {3-n_}")
            for db in range(5): mlp_dir(a, k, db, LD)
        a(f"s_setprio {OPT.get('prio2', 1)}\ns_branch {ent}" if SM_ else f"s_waitcnt vmcnt(0)\ns_branch {ent}")
    if SM_:
        for k in range(4):
            a.lab(f"L_fw{k}")
            a(f"s_sub_u32 s69, s69, 1\ns_cmp_eq_u32 s69, 0\ns_cbranch_scc1 L_fw{k}c\ns_cmp_eq_u32 s69, 1\ns_cbranch_scc1 L_fw{k}b\ns_waitcnt vmcnt(15)\ns_branch L_fb{k}")
            a.lab(f"L_fw{k}b"); a(f"s_waitcnt vmcnt(19)\ns_branch L_fb{k}")
            a.lab(f"L_fw{k}c"); a(f"s_waitcnt vmcnt(23)\ns_branch L_fb{k}")
    a(".p2align 3")
    for k in range(4):
        a.lab(f"L_mb{k}")
        if SM_:
            a(f"s_cmp_lg_u32 s69, 0\ns_cbranch_scc1 L_fw{k}")
            a.lab(f"L_fb{k}")
        mlp_body(a, k, 27, True, LD, swap=True)
    a(f"s_sub_u32 s{S_CNT}, s{S_CNT}, 1\ns_cmp_lg_u32 s{S_CNT}, 0\ns_cbranch_scc1 L_mb0")
    def o_ld(st):
        r = MB + 20*(st & 3)
        for sb in range(4):
            if st < 4: a(f"buffer_load_dwordx4 {v(r+4*sb,4)}, v13, {s(SWS,4)}, s{70+(sb>>1)+2*(st>>1)} offen offset:{(sb&1)*256+(st&1)*2048} {LD}")
            else:
                for e in range(2): a(f"buffer_load_dwordx2 {v(r+4*sb+2*e,2)}, v14, {s(SWS,4)}, s{49+(sb>>1)} offen offset:{(sb&1)*128+e*256} {LD}")
    a(f"v_mov_b32 v2, {C_OGO}\nds_read_b32 v15, v2")
    mlp_body(a, 0, 27, False, LD, swap=True)
    a("v_readfirstlane_b32 s60, v15\ns_cmp_eq_u32 s60, 0\ns_cbranch_scc1 L_olate")
    stamp(a, 2)
    o_ld(0)
    for k in range(1, 4):
        mlp_body(a, k, 27-5*k, False, LD, swap=True)
        o_ld(k)
    a.lab("L_wo")
    for st in range(5):
        a(f"s_waitcnt vmcnt({[12, 21, 22, 13, 0][st]})")
        for db in range(5):
            for sb in range(4):
                acc = v(MACC+(sb*5+db)*4, 4)
                a(f"v_mfma_f32_16x16x32_bf16 {acc}, {v(192+20*(st%3)+4*db,4)}, {v(MB+20*(st&3)+4*sb,4)}, {acc}")
        if st == 0: wof_ld(192); o_ld(4)
        if st == 1: wof_ld(212)
    stamp(a, 6); l10(a, 0, 11)
    a("s_nop 4")
    for db in range(5):
        for sb in range(4): a(f"ds_write_b128 v12, {v(MACC+(sb*5+db)*4,4)} offset:{sb*5120+db*32}")
    l10(a, 1, 11)
    a("s_waitcnt lgkmcnt(0)")
    l10(a, 2, 11)
    a("s_barrier")
    l10(a, 3, 11)
    stamp_dump(a, 0)
    a("s_endpgm")
    a.lab("L_olate")
    for k in range(1, 4): mlp_body(a, k, 27-9*k, False, LD, swap=True)
    lds_wait(a, C_OGO, 1, ls=0)
    stamp(a, 2)
    for k in range(4): o_ld(k)
    a("s_branch L_wo")
    a.lab("L_cons")
    init_counters(a)
    cons_setup(a)
    a(f"s_setprio {OPT.get('prioc', 2)}\ns_waitcnt lgkmcnt(0)\ns_barrier")
    stamp(a, 2); l10(a, 0, 12)
    a(f"s_cmp_ge_u32 s{SN}, 10\ns_cbranch_scc1 L_consv")
    for vori in (0, 1):
        if vori: a.lab("L_consv")
        cons_loop(a, vori)
        stamp(a, 3); l10(a, 5, 12)
        a("s_setprio 3")
        cons_epi(a, vori)
        l10(a, 6, 12)
        if not vori: a("s_branch L_qdone")
    a.lab("L_qdone")
    ids_late(a)
    a(f"s_mov_b32 s{SHAS1}, 0\ns_lshl_b32 s61, s{SM}, 8\ns_add_u32 s61, s61, {G_Q}")
    arrive(a, C_QA, 4, 61, 15, C_QD)
    l10(a, 7, 12)
    a.lab("L_attn")
    attn2(a)
    a("s_setprio 2")
    a(f"s_lshl_b32 s61, s{SBQ}, 8\ns_add_u32 s61, s61, {G_O}")
    arrive(a, C_OA, 4, 61, 32)
    w = SWAVE
    a(f"s_mov_b32 s{SKW}, s{w}\ns_setprio {OPT.get('priow', 2)}")
    a(f"s_lshl_b32 s65, s{SST}, 6\ns_lshl_b32 s68, s{w}, 4\ns_add_u32 s65, s65, s68\ns_mul_i32 s74, s65, 1280\ns_mul_i32 s68, s{SDT3}, 160\ns_add_u32 s74, s74, s68\ns_lshl_b32 s65, s65, 1")
    for k in range(3):
        a(f"v_add_u32 v2, {64*k}, v{VL}\nv_mul_u32_u24 v3, 205, v2\nv_lshrrev_b32 v3, 11, v3\nv_mul_u32_u24 v4, 1120, v3\nv_lshl_add_u32 v{207+k}, v2, 4, v4\nv_lshlrev_b32 v3, 1, v3")
        if k == 2: a(f"v_cmp_gt_u32 vcc, 32, v{VL}\nv_mov_b32 v4, {OOB}\ns_nop 0\nv_cndmask_b32 v209, v4, v209, vcc\nv_cndmask_b32 v3, v4, v3, vcc")
        a(f"buffer_load_dwordx4 {v(192+4*k,4)}, v{207+k}, {s(SX,4)}, s74 offen\nbuffer_load_ushort v{204+k}, v3, {s(SB2,4)}, s65 offen")
    go = a.newlab("og")
    a(f"s_cmp_lg_u32 s{w}, 0\ns_cbranch_scc1 {go}")
    a(f"s_lshr_b32 s51, s{SST}, 2\ns_lshl_b32 s51, s51, 8\ns_add_u32 s51, s51, {G_O+128}\nv_mov_b32 v2, 0")
    gpoll(a, 2, SWS, "s51", 1, 1, slp=OPT.get("so", 3))
    lds_set(a, C_OGO)
    a.lab(go)
    stamp(a, 6)
    a(f"s_mul_i32 s65, s{w}, 5120\ns_add_u32 s65, s65, {M1BASE}")
    for k in range(3):
        a(f"v_add_u32 v2, {64*k}, v{VL}\nv_min_u32 v2, 159, v2\nv_mul_u32_u24 v3, 205, v2\nv_bfe_u32 v4, v3, 13, 1\nv_xor_b32 v2, v2, v4\nv_lshlrev_b32 v2, 4, v2\nv_add_u32 v{210+2*k}, s65, v2\nv_add_u32 v{211+2*k}, 2560, v{210+2*k}")
    a("s_waitcnt vmcnt(0)")
    for k in range(3):
        a(f"v_lshlrev_b32 v{204+k}, 16, v{204+k}")
        for q in range(4): a(f"v_lshlrev_b32 v{40+8*k+2*q}, 16, v{192+4*k+q}\nv_and_b32 v{41+8*k+2*q}, 0xffff0000, v{192+4*k+q}")
        for q in range(8): a(f"v_add_f32 v{40+8*k+q}, v{40+8*k+q}, v{204+k}")
    stamp(a, 1)
    a("s_setprio 3\ns_barrier")
    stamp(a, 2, False) if OPT.get("fin") else None; l10(a, 0, 11)
    for k in range(3):
        for src in range(4): a(f"ds_read_b128 {v(96+32*k+8*src,4)}, v{210+2*k} offset:{src*M1STR}\nds_read_b128 {v(100+32*k+8*src,4)}, v{211+2*k} offset:{src*M1STR}")
        if k >= 1:
            a("s_waitcnt lgkmcnt(8)")
            for src in range(4):
                for q in range(4): a(f"v_pk_add_f32 {v(40+8*(k-1)+2*q,2)}, {v(40+8*(k-1)+2*q,2)}, {v(96+32*(k-1)+8*src+2*q,2)}")
            for q in range(4): a(f"v_cvt_pk_bf16_f32 v{16+4*(k-1)+q}, v{40+8*(k-1)+2*q}, v{41+8*(k-1)+2*q}")
            a(f"buffer_store_dwordx4 {v(16+4*(k-1),4)}, v{207+k-1}, {s(SOUT,4)}, s74 offen {OPT.get('outf', 1) and 'sc1' or ''}")
        if k == 1: pass
    a("s_waitcnt lgkmcnt(0)")
    for src in range(4):
        for q in range(4): a(f"v_pk_add_f32 {v(56+2*q,2)}, {v(56+2*q,2)}, {v(160+8*src+2*q,2)}")
    for q in range(4): a(f"v_cvt_pk_bf16_f32 v{24+q}, v{56+2*q}, v{57+2*q}")
    l10(a, 1, 11)
    a(f"buffer_store_dwordx4 v[24:27], v209, {s(SOUT,4)}, s74 offen {OPT.get('outf', 1) and 'sc1' or ''}")
    l10(a, 2, 11)
    if blocks.STAMP: a("s_waitcnt vmcnt(0)")
    l10(a, 3, 11)
    stamp_dump(a, 0)
    a("s_endpgm")
    a.lab("L_end"); a("s_endpgm")
    a('.section .rodata,"a"')
    return a.text() + kd(NAME)
if __name__ == "__main__":
    blocks.STAMP = "stamp" in sys.argv
    for x in sys.argv[2:]:
        if "=" in x: k, val = x.split("="); blocks.OPT[k] = int(val)
    t = gen()
    print("hazards:", hazard_check(t))
    open(sys.argv[1], "w").write(open("hdr.txt").read() + t)
    import subprocess
    r = subprocess.run(["clang", "-x", "assembler", "-target", "amdgcn-amd-amdhsa", "-mcpu=gfx950", "-c", sys.argv[1], "-o", "x.o"], capture_output=True, text=True)
    if r.returncode: print(r.stderr[:1500]); sys.exit(1)
```

```python
import sys
import blocks
from blocks import *
NAME = "parallel_sum__sliding_block__mixer_token_mlp__prompt_kernel"
LDS = 163840
L_LN = 0
L_ST = 147456
L_CSP = L_ST + 2560
OFF_CSP = 0xC000
L_RS = LDS - 352
L_KN = LDS - 272
L_FULL = LDS - 256
L_FREE = L_FULL + 64
C_PUB, C_C1, C_CS, C_QD = L_FULL + 128, L_FULL + 132, L_FULL + 136, L_FULL + 140
L_CNT = LDS - 64
C_QA, C_AGO, C_AK, C_OA, C_MP, C_GA, C_W1, C_W2, C_GGO, C_OGO, C_AV, C_WR = [L_CNT + 4*i for i in range(12)]
M1BASE, M1STR = 65536, 20480
G_Q, G_O, G_W, G_G = OFF_FLAG, OFF_FLAG + 8*256, OFF_FLAG + 16*256, OFF_FLAG + 17*256
NCTR = 37
XB, XSTR = 49152, 24576
QS = 49152
OFF_O1, OFF_O2 = OFF_O, OFF_O + 0x200000
ST, LD = "sc1", "sc1"
SM, SN, SROLE, SDT1, SFT, SHAS1, SDT3, SST, SHD, SBQ, SKW = 76, 77, 78, 79, 80, 81, 82, 83, 48, 49, 75

def garrive(a, srd, soff, target, doneoff, L, va=3):
    a(f"v_mov_b32 v{va}, 1\nbuffer_atomic_add v{va}, off, {s(srd,4)}, s{soff} sc0 sc1\ns_waitcnt vmcnt(0)\nv_readfirstlane_b32 s60, v{va}\ns_cmp_lg_u32 s60, {target-1}\ns_cbranch_scc1 {L}")
    a(f"v_mov_b32 v{va}, 1\nbuffer_store_dword v{va}, off, {s(srd,4)}, s{doneoff[0]} offset:{doneoff[1]} sc1")
def arrive(a, lcnt, n, goff_sgpr, target, fin=None):
    L = a.newlab("arr")
    a(f"s_waitcnt vmcnt(0)\nv_mov_b32 v2, {lcnt}\nv_mov_b32 v3, 1\ns_mov_b64 exec, 1\nds_add_rtn_u32 v14, v2, v3\ns_waitcnt lgkmcnt(0)\nv_readfirstlane_b32 s60, v14\ns_cmp_lg_u32 s60, {n-1}\ns_cbranch_scc1 {L}")
    if fin is None: garrive(a, SWS, goff_sgpr, target, (goff_sgpr, 128), L)
    else:
        garrive(a, SWS, goff_sgpr, target, (goff_sgpr, 128), L + "f")
        a.lab(L + "f")
        lds_set(a, fin)
    a.lab(L)
    a("s_mov_b64 exec, -1")
def lds_wait(a, addr, n, vreg=2, ls=None):
    L = a.newlab("lw")
    if addr is not None: a(f"v_mov_b32 v2, {addr}")
    a("s_mov_b32 s47, 0x80000")
    a.lab(L)
    a(f"ds_read_b32 v3, v{vreg}\ns_sub_u32 s47, s47, 1\ns_cbranch_scc1 {L}x\ns_waitcnt lgkmcnt(0)\nv_readfirstlane_b32 s60, v3\ns_cmp_ge_u32 s60, {n}\ns_cbranch_scc1 {L}x\ns_sleep {OPT.get('ls', 3) if ls is None else ls}\ns_branch {L}")
    a.lab(L + "x")
def lds_set(a, addr):
    a(f"v_mov_b32 v2, {addr}\nv_mov_b32 v3, 1\nds_write_b32 v2, v3")
def gpoll(a, vaddr, srd, soff, target, nl, vd=3, slp=None, tgt_reg=False):
    L = a.newlab("gp")
    if tgt_reg: target = hex(target)
    a(f"s_mov_b64 exec, {(1<<nl)-1}\ns_mov_b32 s47, 0x8000")
    a.lab(L)
    a(f"buffer_load_dword v{vd}, v{vaddr}, {s(srd,4)}, {soff} offen sc1\ns_sub_u32 s47, s47, 1\ns_cbranch_scc1 {L}x\ns_waitcnt vmcnt(0)\nv_cmp_ne_u32 vcc, {target}, v{vd}\ns_cbranch_vccz {L}x\ns_sleep {slp or OPT.get('slp', 2)}\ns_branch {L}")
    a.lab(L + "x")
    a("s_mov_b64 exec, -1")
def c1_poll(a, slp=None):
    a(f"v_lshlrev_b32 v2, 2, v{VL}\nv_add_u32 v2, 128, v2")
    gpoll(a, 2, SDBG, 0, 1, 2, slp=slp)

def l10(a, i, m=10):
    if OPT.get("ls9") == m: lstamp(a, i)
def est(a, i):
    if OPT.get("mst") == 3: stamp(a, i, True)
def ast(a, i, cond=None, m=5):
    if OPT.get("mst") != m: return
    if cond is None: stamp(a, i, True); return
    LL = a.newlab("as"); a(f"s_cmp_eq_u32 s59, {cond}\ns_cbranch_scc0 {LL}"); stamp(a, i, True); a.lab(LL)
def fst(a, i):
    if OPT.get("mst") == 4: stamp(a, i, True)
def ids(a):
    x, j = SXCD, SJ
    a(f"s_and_b32 s50, s{x}, 1\ns_mul_i32 s51, s50, 15\ns_add_u32 s51, s51, s{j}\ns_lshr_b32 s{SN}, s51, 1\ns_and_b32 s51, s51, 1\ns_and_b32 s{SM}, s{x}, 6\ns_add_u32 s{SM}, s{SM}, s51")
def ids_late(a):
    x, j = SXCD, SJ
    a(f"s_mul_i32 s57, s{x}, 17\ns_add_u32 s57, s57, s{j}\ns_sub_u32 s57, s57, 15\ns_mul_i32 s{SFT}, s57, 205\ns_lshr_b32 s{SFT}, s{SFT}, 10\ns_mul_i32 s58, s{SFT}, 5\ns_sub_u32 s{SDT1}, s57, s58")
    a(f"s_and_b32 s56, s{x}, 1\ns_lshl_b32 s56, s56, 2\ns_lshr_b32 s58, s{x}, 1")
    a(f"s_and_b32 s57, s{j}, 3\ns_add_u32 s{SDT3}, s56, s57\ns_lshl_b32 s58, s58, 3\ns_lshr_b32 s57, s{j}, 2\ns_xor_b32 s57, s57, {OPT.get('sx', 0)}\ns_add_u32 s{SST}, s58, s57")

def ln_issue(a):
    a(f"s_lshr_b32 s50, s{SXCD}, 1\ns_lshl_b32 s50, s50, 6\ns_and_b32 s51, s{SXCD}, 1\ns_lshl_b32 s51, s51, 5\ns_add_u32 s50, s50, s51\ns_add_u32 s50, s50, s{SJ}")
    a(f"s_lshr_b32 s51, s50, 2\ns_and_b32 s52, s50, 3\ns_lshl_b32 s53, s51, 5\ns_lshl_b32 s54, s52, 2\ns_add_u32 s53, s53, s54")
    a(f"s_lshr_b32 s54, s{SWAVE}, 1\ns_lshl_b32 s54, s54, 4\ns_add_u32 s53, s53, s54\ns_and_b32 s54, s{SWAVE}, 1\ns_lshl_b32 s54, s54, 1\ns_add_u32 s53, s53, s54")
    rows_load(a, SX, SWAVE, 53, 54)
    a(f"s_mul_i32 s55, s51, 5120\ns_lshl_b32 s52, s52, 8\ns_add_u32 s55, s55, s52\ns_add_u32 s55, s55, {OFF_H}")
def init_counters(a):
    L = a.newlab("ic")
    a(f"s_cmp_lg_u32 s{SWAVE}, 0\ns_cbranch_scc1 {L}")
    a(f"v_lshlrev_b32 v6, 2, v{VL}\nv_add_u32 v6, {L_FULL}, v6\nv_mov_b32 v7, 0\nds_write_b32 v6, v7")
    a.lab(L)
def c1_arrive(a):
    L = a.newlab("c1a")
    a(f"s_and_b32 s57, s2, 1\ns_lshl_b32 s56, s57, 6\ns_lshl_b32 s57, s57, 2\ns_mov_b64 exec, 1")
    garrive(a, SDBG, 56, 128, (57, 128), L, va=15)
    a.lab(L)
    a("s_mov_b64 exec, -1")

def loader(a):
    st = 48
    lw, sxo, swo, sm0, t, ko, t2 = st, st+1, st+2, st+3, st+4, st+5, 62
    a(f"s_sub_u32 s{lw}, s{SWAVE}, 4")
    a(f"v_lshrrev_b32 v2, 3, v{VL}\nv_mul_u32_u24 v2, 1280, v2\nv_and_b32 v3, 7, v{VL}\nv_lshrrev_b32 v4, 4, v{VL}\nv_xor_b32 v3, v3, v4\nv_lshl_add_u32 v210, v3, 4, v2\nv_xor_b32 v211, 64, v210")
    a(f"v_mul_u32_u24 v2, 3840, v4\nv_bfe_u32 v3, v{VL}, 2, 2\nv_xor_b32 v3, v3, v4\nv_lshl_add_u32 v2, v3, 6, v2\nv_and_b32 v3, 3, v{VL}\nv_lshl_add_u32 v212, v3, 4, v2")
    a(f"s_lshl_b32 s{sxo}, s{SM}, 8\ns_lshl_b32 s{t}, s{lw}, 6\ns_add_u32 s{sxo}, s{sxo}, s{t}\ns_mul_i32 s{sxo}, s{sxo}, 1280")
    a(f"s_mul_i32 s{swo}, s{lw}, {16*3840}\ns_lshl_b32 s{t}, s{SN}, 8\ns_add_u32 s{swo}, s{swo}, s{t}")
    a(f"s_lshl_b32 s{sm0}, s{lw}, 13\ns_lshl_b32 s67, s{lw}, 12\ns_sub_u32 s67, 32768, s67")
    R = OPT.get("rot", 5)
    if R == 10: a(f"s_mul_i32 s{ko}, s{SM}, 3\ns_add_u32 s{ko}, s{ko}, s{SN}\ns_mul_i32 s{t}, s{ko}, 205\ns_lshr_b32 s{t}, s{t}, 11\ns_mul_i32 s{t}, s{t}, 10\ns_sub_u32 s{ko}, s{ko}, s{t}")
    elif R == 5: a(f"s_add_u32 s{ko}, s{SM}, s{SN}\ns_mul_i32 s{t}, s{ko}, 52\ns_lshr_b32 s{t}, s{t}, 8\ns_mul_i32 s{t}, s{t}, 5\ns_sub_u32 s{ko}, s{ko}, s{t}\ns_lshl_b32 s{ko}, s{ko}, 1")
    else: a(f"s_mov_b32 s{ko}, 0")
    a(f"s_lshl_b32 s{t}, s{ko}, 7\ns_add_u32 s{sxo}, s{sxo}, s{t}\ns_mul_i32 s{t}, s{ko}, 245760\ns_add_u32 s{swo}, s{swo}, s{t}")
    a("s_movk_i32 s65, 128\ns_mov_b32 s66, 245760\ns_mov_b32 s68, 0")
    def stage(extra=""):
        a(f"s_mov_b32 m0, s{sm0}\ns_mov_b32 s{t}, s{sxo}")
        for i in range(8):
            if i == 4: a(f"s_add_u32 m0, s{sm0}, 4096\ns_add_u32 s{t}, s{t}, 4096")
            a(f"buffer_load_dwordx4 v{210+(i&1)}, {s(SX,4)}, s{t} offen offset:{(i&3)*1024} lds")
            if i < 7: a(f"s_add_u32 s{t}, s{t}, 9216")
        a(f"s_add_u32 m0, s{sm0}, s67\ns_add_u32 s{t}, s{swo}, 14336")
        a(f"buffer_load_dwordx4 v212, {s(SWQ,4)}, s{swo} offen lds\nbuffer_load_dwordx4 v212, {s(SWQ,4)}, s{t} offen offset:1024 lds")
        a(f"s_add_u32 s{t}, s{t}, 14336\ns_add_u32 s{t2}, s{t}, 14336")
        a(f"s_add_u32 s68, s68, 1\ns_cmp_eq_u32 s68, 3\ns_cselect_b32 s68, 0, s68\ns_cselect_b32 s63, {-2*QS}, s69\ns_add_u32 s{sm0}, s{sm0}, s63")
        a(f"s_add_u32 s{ko}, s{ko}, 1\ns_cmp_eq_u32 s{ko}, 10\ns_cselect_b32 s63, {128-1280}, s65\ns_cselect_b32 s64, {245760-2457600}, s66\ns_add_u32 s{sxo}, s{sxo}, s63\ns_add_u32 s{swo}, s{swo}, s64")
        a(f"buffer_load_dwordx4 v212, {s(SWQ,4)}, s{t} offen offset:2048 lds")
        if extra: a(extra)
        a(f"buffer_load_dwordx4 v212, {s(SWQ,4)}, s{t2} offen offset:3072 lds")
    a(f"s_mov_b32 s69, {QS}\ns_mul_i32 s59, s{SN}, 2560\ns_lshl_b32 s{t}, s{ko}, 8\ns_add_u32 s59, s59, s{t}\ns_lshl_b32 s{t}, s{lw}, 7\ns_add_u32 s59, s59, s{t}\ns_add_u32 s59, s59, {OFF_CSP}")
    kwait(a)
    a("s_setprio 2"); stage(); a("s_setprio 0"); stage()
    stamp(a, 1)
    ids_late(a)
    a(f"s_mov_b32 s{SKW}, s{lw}\nv_mov_b32 v8, {L_FULL}\nv_mov_b32 v9, 1")
    W4 = OPT.get("ord", 1) == 4 or OPT.get("ab", 0)
    if OPT.get("ab", 0):
        PL = OPT["ab"]
        a(f"s_mul_i32 s70, s{SXCD}, 15\ns_add_u32 s70, s70, s{SJ}\ns_mul_i32 s70, s70, {PL*128}\ns_mul_i32 s71, s{lw}, {16*110592}\ns_add_u32 s70, s70, s71\ns_add_u32 s70, s70, {16*110592 - 120*PL*128}")
        a(f"s_and_b32 s71, s{SJ}, {OPT.get('bk', 1)}\ns_add_u32 s71, s71, {OPT.get('b0', 4)}\ns_add_u32 s72, s71, 2\ns_mov_b32 s73, 99\nv_lshlrev_b32 v12, 7, v{VL}")
    elif W4:
        a(f"s_mul_i32 s70, s{SXCD}, 15\ns_add_u32 s70, s70, s{SJ}\ns_lshl_b32 s70, s70, 2\ns_add_u32 s70, s70, s{lw}")
        for k, d in ((0, 70), (480, 74)):
            a(f"s_add_u32 s54, s70, {k}\ns_lshr_b32 s55, s54, 6\ns_bfe_u32 s56, s54, 0x20004\ns_and_b32 s54, s54, 15\ns_mul_i32 s57, s56, 14\ns_cmp_eq_u32 s56, 3\ns_cselect_b32 s57, 41, s57\ns_add_u32 s55, s55, s57\ns_lshl_b32 s55, s55, 4\ns_add_u32 s54, s54, s55\ns_lshl_b32 s{58 if k == 0 else d}, s54, 13")
        a(f"s_mov_b32 s70, s58\ns_and_b32 s71, s{SJ}, 1\ns_add_u32 s71, s71, {OPT.get('b0', 2)}\ns_add_u32 s72, s71, 2\ns_add_u32 s73, s71, 4\nv_lshlrev_b32 v12, 7, v{VL}")
        a(f"s_lshr_b32 s54, s{SW2}, 7\ns_sub_u32 s54, 3, s54\ns_and_b32 s54, s54, 7\ns_lshl_b32 s54, 0x1010101, s54\ns_not_b32 s61, s54")
    a(f"s_lshl_b32 s54, s{lw}, 12\ns_add_u32 s54, s54, 32768\nv_lshlrev_b32 v2, 4, v{VL}\nv_add_u32 v13, s54, v2")
    a(f"v_lshrrev_b32 v4, 4, v{VL}\nv_bfe_u32 v3, v{VL}, 2, 2\nv_xor_b32 v3, v3, v4\nv_lshlrev_b32 v3, 7, v3\nv_and_b32 v5, 3, v{VL}\nv_lshl_add_u32 v3, v5, 5, v3\nv_lshl_add_u32 v3, v4, 9, v3\ns_lshl_b32 s54, s{lw}, 11\ns_add_u32 s54, s54, {L_CSP}\nv_add_u32 v14, s54, v3")
    a(f"v_and_b32 v5, 31, v{VL}\nv_lshlrev_b32 v5, 2, v5\nv_lshrrev_b32 v10, 5, v{VL}\nv_lshl_add_u32 v10, v10, 12, v5\ns_lshl_b32 s54, s{lw}, 7\ns_add_u32 s54, s54, {L_CSP}\nv_add_u32 v10, s54, v10")
    def job(slot):
        sk = a.newlab("cj")
        a(f"s_cmp_ge_u32 s{SM}, 5\ns_cbranch_scc1 {sk}")
        for i in range(4): a(f"ds_read_b128 {v(48+4*i,4)}, v13 offset:{slot*QS+i*1024}")
        for i in range(4):
            a(f"s_waitcnt lgkmcnt({3-i})")
            for c in range(4):
                if i == 0 and slot == 0: a(f"v_lshlrev_b32 v{16+2*c}, 16, v{48+c}\nv_and_b32 v{17+2*c}, 0xffff0000, v{48+c}")
                else: a(f"v_lshlrev_b32 v24, 16, v{48+4*i+c}\nv_and_b32 v25, 0xffff0000, v{48+4*i+c}\nv_add_f32 v{16+2*c}, v{16+2*c}, v24\nv_add_f32 v{17+2*c}, v{17+2*c}, v25")
        if slot == 1: a("ds_write_b128 v14, v[16:19]\nds_write_b128 v14, v[20:23] offset:16\ns_waitcnt lgkmcnt(0)")
        a.lab(sk)
    def bar(k):
        if not W4: a("s_waitcnt vmcnt(12)\ns_barrier"); return
        x_ = a.newlab("bw")
        a(f"s_cmp_eq_u32 s72, {k}\ns_cbranch_scc1 {x_}\ns_cmp_eq_u32 s73, {k}\ns_cbranch_scc1 {x_}\ns_waitcnt vmcnt(12)")
        a.lab(x_)
        a("s_waitcnt vmcnt(13)\ns_barrier")
    def after(k):
        if not W4: return
        if OPT.get("ab", 0):
            x_ = a.newlab("bu")
            a(f"s_cmp_lg_u32 s71, {k}\ns_cbranch_scc1 {x_}\ns_mov_b32 exec_hi, {(1 << (OPT['ab']-32)) - 1}\nbuffer_load_dword v255, v12, {s(SW1,4)}, s70 offen\ns_mov_b64 exec, -1")
            a.lab(x_)
            return
        for r, o in ((71, 70), (72, 74)):
            x_ = a.newlab("bu")
            a(f"s_cmp_lg_u32 s{r}, {k}\ns_cbranch_scc1 {x_}\ns_mov_b32 exec_lo, s61\ns_mov_b32 exec_hi, s61\nbuffer_load_dword v255, v12, {s(SW2,4)}, s{o} offen\ns_mov_b64 exec, -1")
            a.lab(x_)
    a("s_waitcnt vmcnt(12)\ns_barrier"); stage(); job(0)
    a("s_waitcnt vmcnt(12)"); job(1); a("s_barrier")
    sk = a.newlab("cb")
    a(f"s_cmp_ge_u32 s{SM}, 5\ns_cbranch_scc1 {sk}")
    for k in range(8): a(f"ds_read_b32 v{16+k}, v10 offset:{k*512}")
    a("s_waitcnt lgkmcnt(0)")
    for k in range(1, 8): a(f"v_add_f32 v16, v16, v{16+k}")
    a(f"v_mov_b32 v17, v16\ns_nop 1\nv_permlane32_swap_b32 v16, v17\nv_add_f32 v16, v16, v17\ns_mov_b32 exec_hi, 0\nbuffer_store_dword v16, v5, {s(SWS,4)}, s59 offen sc1\ns_mov_b64 exec, -1")
    a.lab(sk)
    stage(); after(1)
    a("s_waitcnt vmcnt(12)\ns_barrier")
    n1 = a.newlab("n1"); n3 = a.newlab("n3")
    a(f"s_cmp_lg_u32 s{lw}, 3\ns_cbranch_scc1 {n1}\ns_cmp_ge_u32 s{SM}, 5\ns_cbranch_scc1 {n1}\ns_mov_b64 exec, 1\nv_mov_b32 v15, 1\nbuffer_atomic_add v15, off, {s(SDBG,4)}, 0 offset:96 sc0 sc1\ns_mov_b64 exec, -1")
    a.lab(n1)
    stage(); after(2)
    a(f"s_cmp_lg_u32 s{lw}, 3\ns_cbranch_scc1 {n3}\ns_cmp_ge_u32 s{SM}, 5\ns_cbranch_scc1 {n3}\ns_waitcnt vmcnt(12)\nv_readfirstlane_b32 s60, v15\ns_cmp_lg_u32 s60, 74\ns_cbranch_scc1 {n3}")
    a(f"s_mov_b64 exec, 1\nbuffer_store_dword v9, off, {s(SDBG,4)}, 0 offset:136 sc1\ns_mov_b64 exec, -1")
    a.lab(n3)
    for k in range(3, 6):
        bar(k); stage(); after(k)
    bar(6)
    n0 = a.newlab("n0"); n2 = a.newlab("n0")
    a(f"s_cmp_lg_u32 s{lw}, 0\ns_cbranch_scc1 {n0}\nv_lshlrev_b32 v2, 2, v{VL}\nv_add_u32 v2, 128, v2\ns_mov_b64 exec, 7\nbuffer_load_dword v3, v2, {s(SDBG,4)}, 0 offen sc1\ns_mov_b64 exec, -1")
    a.lab(n0)
    stage()
    a(f"s_cmp_lg_u32 s{lw}, 0\ns_cbranch_scc1 {n2}\ns_waitcnt vmcnt(12)\ns_mov_b64 exec, 7\nv_cmp_ne_u32 vcc, 1, v3\ns_mov_b64 exec, -1\ns_cbranch_vccz {n2}")
    gpoll(a, 2, SDBG, 0, 1, 3)
    a.lab(n2)
    bar(7)
    nst = a.newlab("nst"); cs = a.newlab("ncs")
    a(f"v_lshlrev_b32 v4, 4, v{VL}\ns_cmp_eq_u32 s{lw}, 3\ns_cbranch_scc1 {nst}\ns_cmp_eq_u32 s{lw}, 2\ns_cbranch_scc1 {cs}")
    a(f"s_lshl_b32 s54, s{SM}, 10\ns_lshl_b32 s55, s{lw}, 13\ns_add_u32 s54, s54, s55\ns_lshl_b32 s55, s{lw}, 10\ns_add_u32 m0, s55, {L_ST}\ns_nop 0\nbuffer_load_dwordx4 v4, {s(SWS,4)}, s54 offen sc1 lds\ns_branch {nst}")
    a.lab(cs)
    a(f"s_mul_i32 s54, s{SN}, 2560\ns_add_u32 s54, s54, {OFF_CSP}\nv_cmp_gt_u32 vcc, 32, v{VL}\nv_mov_b32 v5, {OOB}\ns_nop 0\nv_cndmask_b32 v5, v5, v4, vcc")
    for k in range(3): a(f"buffer_load_dwordx4 {v(16+4*k,4)}, v{4 if k < 2 else 5}, {s(SWS,4)}, s54 offen offset:{k*1024} sc1")
    a.lab(nst)
    stage()
    wof_issue(a)
    W2 = OPT.get("w2m", 0); np_ = 5
    if OPT.get("w1e"):
        a(f"s_lshl_b32 s63, s61, 2\ns_add_u32 s63, s63, s{SKW}")
        prefetch(a, 63, 480, OPT.get('npb', 896), OPT.get('npb', 896) + 480); np_ += 1
    if W2 in (1, 3, 5):
        a(f"s_lshl_b32 s63, s61, 2\ns_add_u32 s63, s63, s{SKW}")
        if W2 == 5: prefetch(a, 63, 480, NB1 + 256, NB1 + 256 + 960); np_ += 2
        else: prefetch(a, 63, 480, NB1, NB1 + 480); np_ += 1
    sk = a.newlab("sk")
    a(f"s_waitcnt vmcnt({12+np_})\ns_cmp_lg_u32 s{lw}, 2\ns_cbranch_scc1 {sk}")
    a(f"v_and_b32 v2, 31, v{VL}\nv_lshlrev_b32 v2, 4, v2\nv_add_u32 v2, {L_ST+2048}, v2")
    for k in range(1, 3):
        for q in range(2): a(f"v_pk_add_f32 {v(16+2*q,2)}, {v(16+2*q,2)}, {v(16+4*k+2*q,2)}")
    for q in range(4): a(f"v_mov_b32 v{20+q}, v{16+q}")
    a("s_nop 0")
    for q in range(4): a(f"v_permlane32_swap_b32 v{16+q}, v{20+q}")
    for q in range(2): a(f"v_pk_add_f32 {v(16+2*q,2)}, {v(16+2*q,2)}, {v(20+2*q,2)}")
    a("ds_write_b128 v2, v[16:19]\ns_waitcnt lgkmcnt(0)")
    a.lab(sk)
    a(f"s_barrier\ns_waitcnt vmcnt({np_})\ns_barrier")

CA, CF, CS_, CONE = 64, 16, 192, 208
L_CSX = L_ST + 2048
def cons_setup(a):
    a(f"s_lshr_b32 s48, s{SWAVE}, 1\ns_and_b32 s49, s{SWAVE}, 1")
    a(f"v_and_b32 v2, 31, v{VL}\nv_lshrrev_b32 v3, 5, v{VL}\nv_bfe_u32 v4, v{VL}, 1, 3")
    a(f"s_lshl_b32 s50, s48, 14\nv_lshlrev_b32 v5, 7, v2\nv_add_u32 v5, s50, v5")
    for ks in range(4): a(f"v_or_b32 v6, {2*ks}, v3\nv_xor_b32 v6, v6, v4\nv_lshl_add_u32 v{8+ks}, v6, 4, v5")
    a(f"v_bfe_u32 v4, v{VL}, 2, 2\nv_lshl_add_u32 v5, v3, 3, v4\nv_lshlrev_b32 v5, 8, v5\nv_bfe_u32 v6, v{VL}, 4, 1\nv_lshl_add_u32 v5, v6, 5, v5\nv_and_b32 v6, 3, v{VL}\nv_lshl_add_u32 v5, v6, 3, v5\nv_add_u32 v5, 32768, v5\ns_lshl_b32 s50, s49, 1")
    for cf in range(2): a(f"s_xor_b32 s51, s48, {cf}\ns_add_u32 s51, s50, s51\nv_xor_b32 v6, s51, v4\nv_lshl_add_u32 v{12+cf}, v6, 6, v5")
    for i in range(128): a(f"v_mov_b32 v{CA+i}, 0")
def cons_loop(a, vori):
    L = a.newlab("qloop"); last = a.newlab("qlast"); s9 = a.newlab("qs9"); s9b = a.newlab("qs9b")
    def rd(ks, buf, which, half=None):
        b = CF + 24*buf; i = int(which[1])
        if which[0] == "x": a(f"ds_read_b128 {v(b+4*i,4)}, v{8+ks} offset:{i*4096}")
        else:
            for r in (range(2) if half is None else (half,)): a(f"ds_read_b64_tr_b16 {v(b+16+4*i+2*r,2)}, v{12+i} offset:{ks*4096+r*1024}")
    def mf(buf, i, cf):
        b = CF + 24*buf; acc = v(CA + 16*(2*i+cf), 16); X = v(b+4*i, 4); W = v(b+16+4*cf, 4)
        a(f"v_mfma_f32_32x32x16_bf16 {acc}, {X+', '+W if vori else W+', '+X}, {acc}")
    def csum(buf):
        return
        W = v(CF+24*buf+16, 4); O = v(CONE, 4)
        a(f"v_mfma_f32_32x32x16_bf16 {v(CS_,16)}, {O+', '+W if vori else W+', '+O}, {v(CS_,16)}")
    order = ("x0", "w0", "w1", "x1", "x2", "x3")
    for w in order: rd(0, 0, w)
    a(f"s_mov_b32 s50, 0\ns_mov_b32 s51, 0\ns_mov_b32 s52, {QS}")
    a(".p2align 3")
    a.lab(L)
    for ks in range(4):
        buf = ks & 1; nb = buf ^ 1
        if ks < 3:
            n = ks + 1
            a("s_waitcnt lgkmcnt(5)"); mf(buf, 0, 0); rd(n, nb, "x0")
            a("s_waitcnt lgkmcnt(4)"); mf(buf, 0, 1); rd(n, nb, "w0", 0)
            a("s_waitcnt lgkmcnt(4)"); mf(buf, 1, 0); rd(n, nb, "w0", 1); mf(buf, 1, 1); rd(n, nb, "w1", 0)
            a("s_waitcnt lgkmcnt(5)"); mf(buf, 2, 0); rd(n, nb, "w1", 1); mf(buf, 2, 1); rd(n, nb, "x1")
            a("s_waitcnt lgkmcnt(6)"); mf(buf, 3, 0); rd(n, nb, "x2"); mf(buf, 3, 1); rd(n, nb, "x3"); csum(buf)
        else:
            a("s_waitcnt lgkmcnt(5)"); mf(buf, 0, 0)
            a(f"s_cmp_eq_u32 s50, 9\ns_cbranch_scc1 {last}\ns_add_u32 s51, s51, 1\ns_cmp_eq_u32 s51, 3")
            a("s_waitcnt lgkmcnt(3)"); mf(buf, 0, 1)
            a(f"s_cselect_b32 s51, 0, s51\ns_cselect_b32 s53, {-2*QS}, s52")
            for r in range(8, 11): a(f"v_add_u32 v{r}, s53, v{r}")
            a("s_waitcnt lgkmcnt(2)"); mf(buf, 1, 0)
            for r in range(11, 14): a(f"v_add_u32 v{r}, s53, v{r}")
            a("s_waitcnt lgkmcnt(0)"); mf(buf, 1, 1)
            a("s_barrier")
            rd(0, nb, "x0"); rd(0, nb, "w0", 0); mf(buf, 2, 0); rd(0, nb, "w0", 1); rd(0, nb, "w1", 0); mf(buf, 2, 1); rd(0, nb, "w1", 1); rd(0, nb, "x1")
            mf(buf, 3, 0); rd(0, nb, "x2"); rd(0, nb, "x3"); a("s_add_u32 s50, s50, 1"); mf(buf, 3, 1); csum(buf)
            if OPT.get("ls9") == 12:
                for c in range(1, 5):
                    LL = a.newlab("cs"); a(f"s_cmp_eq_u32 s50, {2*c}\ns_cbranch_scc0 {LL}"); lstamp(a, c); a.lab(LL)
    a(f"s_branch {L}")
    a.lab(last)
    a("s_waitcnt lgkmcnt(0)")
    csum(1)
    for i, cf in ((0, 1), (1, 0), (1, 1), (2, 0), (2, 1), (3, 0), (3, 1)): mf(1, i, cf)
def cons_epi(a, vori):
    ws = s(SWS, 4)
    a(f"s_lshl_b32 s50, s{SM}, 3\ns_lshl_b32 s51, s48, 2\ns_add_u32 s50, s50, s51\ns_mul_i32 s50, s50, 40960")
    a(f"s_lshl_b32 s53, s{SN}, 7\ns_lshl_b32 s54, s49, 6\ns_add_u32 s53, s53, s54")
    a(f"s_lshl_b32 s51, s48, 9\ns_add_u32 s51, s51, {L_ST}\ns_lshl_b32 s54, s49, 8\ns_lshl_b32 s55, s48, 7\ns_add_u32 s54, s54, s55\ns_add_u32 s54, s54, {L_CSX}")
    a(f"v_and_b32 v14, 31, v{VL}\nv_lshrrev_b32 v15, 5, v{VL}\nv_lshlrev_b32 v4, 2, v14\nv_lshlrev_b32 v5, 4, v15")
    if not vori:
        a("v_add_u32 v4, s51, v4\nv_add_u32 v5, s54, v5\nv_xor_b32 v8, 128, v5")
        for k in range(4): a(f"ds_read_b128 {v(CS_+4*k,4)}, v5 offset:{k*32}\nds_read_b128 {v(32+4*k,4)}, v8 offset:{k*32}")
        for i in range(4): a(f"ds_read_b32 v{16+2*i}, v4 offset:{i*128}\nds_read_b32 v{24+2*i}, v4 offset:{1024+i*128}")
        a(f"s_cmp_lt_u32 s{SN}, 5\ns_cselect_b32 s55, {hexf(QSCALE)}, 1.0\ns_cselect_b32 s56, 0, {OFF_K - OFF_Q - 160*256}\ns_add_u32 s56, s56, {OFF_Q}\ns_add_u32 s56, s56, s50\ns_lshl_b32 s57, s53, 6\ns_add_u32 s56, s56, s57")
        a("v_lshlrev_b32 v4, 3, v14\nv_lshl_add_u32 v4, v15, 8, v4\ns_lshl_b32 s57, s48, 11\nv_add_u32 v4, s57, v4\nv_xor_b32 v5, 2048, v4\ns_waitcnt lgkmcnt(0)")
        for r in range(16, 32, 2): a(f"v_mul_f32 v{r}, s55, v{r}")
        for i in range(4):
            for cf in range(2):
                b = CA + 16*(2*i+cf); cs = CS_ if cf == 0 else 32
                for p in range(8): a(f"v_pk_mul_f32 {v(b+2*p,2)}, {v(b+2*p,2)}, {v(16+2*i,2)} op_sel_hi:[1,0]")
                for p in range(8): a(f"v_pk_fma_f32 {v(b+2*p,2)}, {v(cs+2*p,2)}, {v(24+2*i,2)}, {v(b+2*p,2)} op_sel_hi:[1,0,1] neg_lo:[0,1,0] neg_hi:[0,1,0]")
                for p in range(8): a(f"v_cvt_pk_bf16_f32 v{b+p}, v{b+2*p}, v{b+2*p+1}")
                for q in range(4): a(f"buffer_store_dwordx2 {v(b+2*q,2)}, v{4+cf}, {ws}, s56 offen offset:{(2*q)*256} {ST}")
            if i < 3: a("s_add_u32 s56, s56, 40960")
    else:
        a(f"v_add_u32 v4, s54, v4\nv_add_u32 v9, s51, v5\nv_xor_b32 v8, 128, v4")
        a(f"ds_read_b32 v{CS_}, v4\nds_read_b32 v{CS_+2}, v8")
        a(f"s_lshl_b32 s56, s53, 4\ns_add_u32 s56, s56, s50\ns_add_u32 s56, s56, {OFF_V - 1280*16}\ns_add_u32 s57, s56, 20480")
        a("v_mul_u32_u24 v4, 10240, v15\nv_lshl_add_u32 v4, v14, 4, v4\ns_lshl_b32 s55, s48, 9\nv_add_u32 v4, s55, v4\nv_xor_b32 v5, 512, v4")
        def st(i):
            for k in range(4): a(f"ds_read_b128 {v(16+4*k,4) if not i & 1 else v(212+4*k,4)}, v9 offset:{i*128+k*32}\nds_read_b128 {v(32+4*k,4) if not i & 1 else v(228+4*k,4)}, v9 offset:{1024+i*128+k*32}")
        st(0)
        for i in range(4):
            if i < 3: st(i+1)
            a(f"s_waitcnt lgkmcnt({8 if i < 3 else 0})")
            Rr, RM = (16, 32) if not i & 1 else (212, 228)
            for cf in range(2):
                b = CA + 16*(2*i+cf)
                for p in range(8): a(f"v_pk_mul_f32 {v(b+2*p,2)}, {v(b+2*p,2)}, {v(Rr+2*p,2)}")
                for p in range(8): a(f"v_pk_fma_f32 {v(b+2*p,2)}, {v(RM+2*p,2)}, {v(CS_+2*cf,2)}, {v(b+2*p,2)} op_sel_hi:[1,0,1] neg_lo:[0,1,0] neg_hi:[0,1,0]")
                for p in range(8): a(f"v_cvt_pk_bf16_f32 v{b+p}, v{b+2*p}, v{b+2*p+1}")
                for m in range(2): a(f"buffer_store_dwordx4 {v(b+4*m,4)}, v{4+cf}, {ws}, s{56+m} offen {ST}")
            if i < 3: a("s_add_u32 s56, s56, 40960\ns_add_u32 s57, s57, 40960")

NA, NB_ = 144, 160
def n_dir(a, slot, c):
    r = NB_ + 32*slot + 4*c
    a(f"buffer_load_dwordx4 {v(r,4)}, v{MSK}, {s(SWS,4)}, s{S_DO} offen offset:{(c&1)*2048} {LD}")
    if c & 1: a(f"s_add_u32 s{S_DO}, s{S_DO}, {'s70' if c == 3 else 's71' if c == 7 else 4096}")
def n_last(a, slot):
    a("s_waitcnt vmcnt(0)")
    for fb in range(4):
        for rd in range(2): a(f"ds_read_b64_tr_b16 {v(NA+4*fb+2*rd,2)}, v{MTR+fb} offset:{slot*4096+rd*2048}")
    a(f"v_add_u32 v10, s66, v{MDIR}\ns_setprio 3\ns_waitcnt lgkmcnt(0)")
    out = [(g, c, (g*4+c-4)*1024) for g in range(2) for c in range(4, 8)] + [(g, c, 8192+((g-2)*8+c)*1024) for g in range(2, 4) for c in range(8)]
    own = [(g, c, None) for g in range(2) for c in range(4)]
    seq = out + own
    LAG = 5
    for n_ in range(len(seq) + LAG):
        if n_ < len(seq):
            g, c, _ = seq[n_]; acc = v(16 + (g*8+c)*4, 4)
            a(f"v_mfma_f32_16x16x32_bf16 {acc}, {v(NA+4*g,4)}, {v(NB_+32*slot+4*c,4)}, {acc}")
        if LAG <= n_ < len(out) + LAG:
            g, c, off = seq[n_-LAG]
            if n_ == LAG: a("s_nop 3")
            a(f"ds_write_b128 v10, {v(16+(g*8+c)*4,4)} offset:{off}")
def n_body(a, slot, wait, loads):
    a(f"s_waitcnt vmcnt({wait})")
    for fb in range(4):
        for rd in range(2): a(f"ds_read_b64_tr_b16 {v(NA+4*fb+2*rd,2)}, v{MTR+fb} offset:{slot*4096+rd*2048}")
    a("s_waitcnt lgkmcnt(0)")
    if loads: mlp_dma(a, slot)
    for c in range(8):
        for fb in range(4):
            acc = v(16 + (fb*8+c)*4, 4)
            a(f"v_mfma_f32_16x16x32_bf16 {acc}, {v(NA+4*fb,4)}, {v(NB_+32*slot+4*c,4)}, {acc}")
        if loads: n_dir(a, slot, c)
def n_epi(a):
    kw = SKW; ws = s(SWS, 4)
    l10(a, 1)
    a(f"v_mov_b32 v8, v{MSK}")
    for n_, (x_, off) in enumerate(((1, 0), (2, 8192), (3, 8192+4096))):
        a(f"s_xor_b32 s68, s{kw}, {x_}\ns_mul_i32 s68, s68, {XSTR}\ns_add_u32 s68, s68, {XB+off}\nv_add_u32 v{11+n_}, s68, v{MDIR}")
    a(f"s_lshl_b32 s65, s{SFT}, 1\ns_lshr_b32 s69, s{kw}, 1\ns_add_u32 s65, s65, s69\ns_mul_i32 s65, s65, 10240\ns_add_u32 s65, s65, {OFF_G}")
    a(f"s_lshl_b32 s69, s{SDT1}, 3\ns_and_b32 s68, s{kw}, 1\ns_lshl_b32 s68, s68, 2\ns_add_u32 s69, s69, s68")
    for k in range(4):
        a(f"s_add_u32 s68, s69, {k}\ns_mul_i32 s70, s68, 52\ns_lshr_b32 s70, s70, 8\ns_mul_i32 s70, s70, {54*10240-10240}\ns_lshl_b32 s68, s68, 11\ns_add_u32 s70, s70, s68\ns_add_u32 s{50+k}, s70, s65")
    a(f"s_mov_b32 s72, {hexf(GC2)}\ns_mov_b32 s73, {hexf(GC2)}\nv_mov_b32 v14, {hexf(GC1)}\nv_mov_b32 v15, v14")
    lds_sync(a, C_MP, 4, ls=0)
    l10(a, 2)
    def rd(k):
        for n_ in range(3):
            for g in range(2): a(f"ds_read_b128 {v(160+24*k+8*n_+4*g,4)}, v{11+n_} offset:{g*(4096 if n_ == 0 else 8192)+k*1024}")
    rd(0); rd(1)
    for k in range(4):
        if k < 2: rd(k+2)
        a(f"s_waitcnt lgkmcnt({[12, 12, 6, 0][k]})")
        U = [16+4*k, 16+4*k+2, 48+4*k, 48+4*k+2]; T = 144
        for n_ in range(3):
            for q in range(4): a(f"v_pk_add_f32 {v(U[q],2)}, {v(U[q],2)}, {v(160+24*k+8*n_+2*q,2)}")
        for q in range(4): a(f"v_pk_mul_f32 {v(T+2*q,2)}, {v(U[q],2)}, {v(U[q],2)}")
        for q in range(4): a(f"v_pk_fma_f32 {v(T+2*q,2)}, {v(T+2*q,2)}, s[72:73], v[14:15]")
        for q in range(4): a(f"v_pk_mul_f32 {v(T+2*q,2)}, {v(T+2*q,2)}, {v(U[q],2)}")
        for q in range(8): a(f"v_exp_f32 v{T+q}, v{T+q}")
        a("s_nop 0")
        for q in range(4): a(f"v_pk_add_f32 {v(T+2*q,2)}, {v(T+2*q,2)}, 1.0 op_sel_hi:[1,0]")
        for q in range(8): a(f"v_rcp_f32 v{T+q}, v{T+q}")
        a("s_nop 0")
        for q in range(4): a(f"v_pk_mul_f32 {v(T+2*q,2)}, {v(T+2*q,2)}, {v(U[q],2)}")
        for q in range(4): a(f"v_cvt_pk_bf16_f32 v{152+4*(k&1)+q}, v{T+2*q}, v{T+2*q+1}")
        a(f"buffer_store_dwordx4 {v(152+4*(k&1),4)}, v8, {ws}, s{50+k} offen {ST}")
        if k == 1: l10(a, 3)

NB1, NB2 = 16*56, 14*64
def prefetch(a, sid, nw, n0, n1, thr=None, mask=None):
    L = a.newlab("pf"); w2 = a.newlab("pfw"); nx = a.newlab("pfn"); done = a.newlab("pfd")
    a(f"v_lshlrev_b32 v4, 7, v{VL}\ns_add_u32 s50, s{sid}, {n0}")
    if mask: a(f"s_mov_b32 exec_lo, s{mask}\ns_mov_b32 exec_hi, s{mask}")
    a.lab(L)
    a(f"s_cmp_ge_u32 s50, {n1}\ns_cbranch_scc1 {done}\ns_cmp_ge_u32 s50, {NB1}\ns_cbranch_scc1 {w2}")
    a(f"s_mul_i32 s51, s50, 1171\ns_lshr_b32 s51, s51, 16\ns_mul_i32 s52, s51, 56\ns_sub_u32 s52, s50, s52")
    a(f"s_mul_i32 s53, s52, 37\ns_lshr_b32 s53, s53, 9\ns_mul_i32 s54, s53, 14\ns_sub_u32 s52, s52, s54")
    a(f"s_lshl_b32 s53, s53, 4\ns_add_u32 s51, s51, s53\ns_mul_i32 s51, s51, 110592\ns_lshl_b32 s52, s52, 13\ns_add_u32 s51, s51, s52")
    a(f"buffer_load_dword v255, v4, {s(SW1,4)}, s51 offen\ns_branch {nx}")
    a.lab(w2)
    a(f"s_sub_u32 s51, s50, {NB1}\ns_lshr_b32 s52, s51, 6\ns_bfe_u32 s53, s51, 0x20004\ns_and_b32 s51, s51, 15")
    a(f"s_mul_i32 s54, s53, 14\ns_cmp_eq_u32 s53, 3\ns_cselect_b32 s54, 41, s54\ns_add_u32 s52, s52, s54\ns_lshl_b32 s52, s52, 4\ns_add_u32 s51, s51, s52\ns_lshl_b32 s51, s51, 13")
    a(f"buffer_load_dword v255, v4, {s(SW2,4)}, s51 offen")
    a.lab(nx)
    if thr is not None: a(f"s_waitcnt vmcnt({thr})")
    a(f"s_add_u32 s50, s50, {nw}\ns_branch {L}")
    a.lab(done)
    if mask: a("s_mov_b64 exec, -1")

L_WS = L_ST + 2560
def wof_issue(a):
    a(f"s_mul_i32 s61, s{SXCD}, 15\ns_add_u32 s61, s61, s{SJ}")
    a(f"s_lshr_b32 s51, s61, 2\ns_and_b32 s52, s61, 3\ns_mul_i32 s53, s51, 52\ns_lshr_b32 s53, s53, 8\ns_mul_i32 s54, s53, 5\ns_sub_u32 s54, s51, s54")
    a(f"s_lshl_b32 s56, s53, 4\ns_lshl_b32 s57, s54, 2\ns_add_u32 s56, s56, s57\ns_add_u32 s56, s56, s52")
    a(f"s_lshr_b32 s57, s56, 1\ns_mul_i32 s57, s57, 20\ns_and_b32 s56, s56, 1\ns_lshl_b32 s56, s56, 2\ns_add_u32 s56, s56, s57")
    a(f"s_lshl_b32 s57, s53, 3\ns_lshl_b32 s58, s52, 1\ns_add_u32 s57, s57, s58\ns_mul_i32 s57, s57, 20\ns_add_u32 s57, s57, 16")
    a(f"s_cmp_eq_u32 s54, 4\ns_cselect_b32 s56, s57, s56\ns_cselect_b32 s57, 20, 8\ns_cmp_ge_u32 s{SKW}, 2\ns_cselect_b32 s57, s57, 0\ns_add_u32 s56, s56, s57")
    a(f"s_and_b32 s57, s{SKW}, 1\ns_lshl_b32 s57, s57, 1\ns_add_u32 s53, s56, s57\ns_mul_i32 s54, s53, 1280")
    a(f"v_lshrrev_b32 v2, 5, v{VL}\nv_and_b32 v3, 31, v{VL}\nv_mul_u32_u24 v6, 1280, v2\nv_lshl_add_u32 v7, v3, 3, v6\nv_lshl_add_u32 v6, v3, 4, v6")
    a(f"buffer_load_dwordx4 v[32:35], v6, {s(SWO,4)}, s54 offen\nbuffer_load_dwordx4 v[36:39], v6, {s(SWO,4)}, s54 offen offset:512\nbuffer_load_dwordx2 v[40:41], v7, {s(SWO,4)}, s54 offen offset:1024")
    a(f"s_mul_i32 s55, s51, 5120\ns_lshl_b32 s52, s52, 8\ns_add_u32 s55, s55, s52\ns_add_u32 s62, s55, {OFF_WOF}")
    a(f"s_lshr_b32 s51, s{SW2}, 7\ns_sub_u32 s51, 3, s51\ns_and_b32 s51, s51, 7\ns_lshl_b32 s51, s51, 7\nv_lshrrev_b32 v2, 3, v{VL}\nv_lshlrev_b32 v2, 12, v2\nv_and_b32 v3, 7, v{VL}\nv_lshl_add_u32 v6, v3, 4, v2")
    for k in range(2):
        a(f"s_lshl_b32 s52, s61, 2\ns_add_u32 s52, s52, s{SKW}\ns_add_u32 s52, s52, {480*k}\ns_lshl_b32 s{63+k}, s52, 11\ns_add_u32 s{63+k}, s{63+k}, {OFF_W2C}")
        a(f"s_mul_i32 s53, s52, 4855\ns_lshr_b32 s53, s53, 20\ns_mul_i32 s54, s53, 216\ns_sub_u32 s54, s52, s54\ns_lshl_b32 s54, s54, 15\ns_lshl_b32 s53, s53, 10\ns_add_u32 s54, s54, s53\ns_add_u32 s54, s54, s51")
        a(f"s_cmp_ge_u32 s52, 864\ns_cselect_b32 s54, {OOB}, s54\ns_cselect_b32 s{63+k}, {OOB}, s{63+k}\nbuffer_load_dwordx4 {v(44+4*k,4)}, v6, {s(SW2,4)}, s54 offen")
def wof_finish(a):
    skip_off(a, 10)
    a(f"s_waitcnt vmcnt(0)\nbuffer_store_dwordx4 v[44:47], v10, {s(SWS,4)}, s63 offen {ST}\nbuffer_store_dwordx4 v[48:51], v10, {s(SWS,4)}, s64 offen {ST}\ns_cmp_ge_u32 s61, 80\ns_cbranch_scc1 L_nowof")
    trs_prep(a, SKW, L_WS, 102400, 54, 214)
    a(f"v_lshrrev_b32 v2, 5, v{VL}\nv_and_b32 v3, 31, v{VL}")
    a(f"s_mul_i32 s54, s{SKW}, 2688\ns_add_u32 s54, s54, {L_WS}\nv_mul_u32_u24 v4, 1344, v2\nv_add_u32 v4, s54, v4\nv_lshl_add_u32 v5, v3, 3, v4\nv_lshl_add_u32 v4, v3, 4, v4")
    a("ds_write_b128 v4, v[32:35]\nds_write_b128 v4, v[36:39] offset:512\nds_write_b64 v5, v[40:41] offset:1024")
    lds_sync(a, C_MP, 4, ls=1)
    trs_go(a, SKW, 62, 214)
    a.lab("L_nowof")
    a(f"s_mov_b32 s61, {G_W}")
    arrive(a, C_W1, 4, 61, 120)

def attn_setup(a):
    pass
def attn2(a):
    ws = s(SWS, 4); w = SWAVE; shd, sb = SHD, SBQ
    KB, VB = 0, 20480
    attn_ids(a, shd, sb)
    a(f"s_lshl_b32 s50, s{sb}, 3\ns_sub_u32 s51, s50, 8\ns_cmp_eq_u32 s{sb}, 0\ns_cselect_b32 s52, 0, s51\ns_cmp_ge_u32 s{w}, 2\ns_cselect_b32 s51, s51, s52\ns_lshl_b32 s52, s{w}, 2\ns_add_u32 s51, s51, s52\ns_mul_i32 s51, s51, 40960")
    attn_masks(a)
    a(f"v_and_b32 v2, 31, v{VL}\nv_lshrrev_b32 v3, 5, v{VL}\nv_lshlrev_b32 v4, 3, v2\nv_lshl_add_u32 v5, v3, 9, v4\nv_mov_b32 v6, {OOB}\nv_cmp_eq_u32 vcc, 0, v3\ns_nop 1\nv_cndmask_b32 v6, v6, v4, vcc")
    a(f"s_add_u32 s52, s50, s{w}\ns_mul_i32 s53, s52, 40960\ns_mul_i32 s54, s{shd}, 1280\ns_add_u32 s53, s53, s54\ns_add_u32 s62, s53, {OFF_Q}\ns_add_u32 s63, s62, {4*40960}")
    a(f"s_lshl_b32 s56, s52, 15\ns_lshl_b32 s53, s{shd}, 10\ns_add_u32 s56, s56, s53\ns_add_u32 s56, s56, {OFF_O1}")
    a(f"s_lshl_b32 s61, s52, 13\ns_lshl_b32 s53, s{shd}, 8\ns_add_u32 s61, s61, s53\ns_add_u32 s61, s61, {OFF_O2}")
    a(f"s_add_u32 s64, s54, s51\ns_add_u32 s64, s64, {OFF_K}\ns_mov_b32 s55, 39680")
    for i in range(5):
        a(f"v_add_u32 v{16+i}, {64*i}, v{VL}\nv_mul_u32_u24 v{16+i}, 205, v{16+i}\nv_lshrrev_b32 v{16+i}, 14, v{16+i}\nv_mul_u32_u24 v{16+i}, s55, v{16+i}\nv_lshl_add_u32 v{16+i}, v{VL}, 4, v{16+i}")
    a("v_add_u32 v20, 4096, v20")
    a(f"v_mul_u32_u24 v7, 49, v{VL}\nv_lshrrev_b32 v7, 10, v7\nv_mul_u32_u24 v7, {10240-336}, v7\nv_lshl_add_u32 v7, v{VL}, 4, v7")
    a(f"s_mul_i32 s65, s{shd}, 320\ns_add_u32 s65, s65, s51\ns_add_u32 s65, s65, {OFF_V}\ns_mul_i32 s54, s{w}, 5376\ns_add_u32 s54, s54, {VB}\ns_mul_i32 s66, s{w}, 5120")
    a(f"s_mul_i32 s53, s{w}, 1280\ns_add_u32 s53, s53, {KB}\nv_add_u32 v8, s53, v5\nv_add_u32 v9, s53, v4")
    a(f"v_min_u32 v10, 20, v2\nv_cmp_lt_u32 vcc, 27, v2\nv_mul_u32_u24 v13, 336, v3\ns_nop 0\nv_cndmask_b32_e64 v10, v10, 4, vcc")
    a(f"s_mul_i32 s53, s{w}, 1344\ns_add_u32 s53, s53, {VB}\nv_lshl_add_u32 v10, v10, 4, v13\nv_add_u32 v10, s53, v10")
    a(f"v_lshlrev_b32 v11, 4, v2\nv_lshl_add_u32 v11, v3, 9, v11\nv_mov_b32 v12, v6")
    a(f"v_and_b32 v13, 15, v{VL}\nv_mul_u32_u24 v13, 336, v13\nv_add_u32 v13, s54, v13")
    a("v_mov_b32 v24, 0x3f803f80\nv_mov_b32 v25, v24\nv_mov_b32 v26, v24\nv_mov_b32 v27, v24")
    a(f"s_sub_u32 s57, 8, s{w}\ns_cmp_eq_u32 s{sb}, 0\ns_cselect_b32 s57, s57, 0\ns_cselect_b32 s58, 4, 0")
    stamp(a, 4)
    oth = a.newlab("aw"); go = a.newlab("ag")
    a(f"s_cmp_lg_u32 s{w}, 0\ns_cbranch_scc1 {oth}")
    lds_wait(a, C_QA, 4)
    if OPT.get("al", 3):
        nh = a.newlab("al")
        a(f"s_cmp_eq_u32 s{SHAS1}, 0\ns_cbranch_scc1 {nh}")
        lds_wait(a, {1: C_MP, 2: C_GA, 3: C_CS}[OPT.get("al", 3)], 4)
        a.lab(nh)
    a(f"s_sub_u32 s53, s{sb}, 1\nv_add_u32 v2, s53, v{VL}\nv_max_i32 v2, 0, v2\nv_lshlrev_b32 v2, 8, v2\ns_mov_b32 s53, {G_Q+128}")
    gpoll(a, 2, SWS, "s53", 1, 2)
    lds_set(a, C_AGO)
    a(f"s_branch {go}")
    a.lab(oth)
    lds_wait(a, C_AGO, 1, ls=1)
    a.lab(go)
    stamp(a, 5, OPT.get("mst") == 5)
    a(f"s_mov_b32 m0, s66")
    a(f"buffer_load_dwordx2 {v(AQ,2)}, v5, {ws}, s62 offen {LD}\nbuffer_load_dwordx2 {v(AQ+2,2)}, v5, {ws}, s62 offen offset:256 {LD}\nbuffer_load_dwordx2 {v(AQ+4,2)}, v6, {ws}, s62 offen offset:1024 {LD}")
    for i in range(5):
        if i == 4: a(f"s_add_u32 m0, s66, 4096\ns_nop 0")
        a(f"buffer_load_dwordx4 v{16+i}, {ws}, s64 offen offset:{(i&3)*1024} {LD} lds")
    for k in range(6):
        a(f"s_add_u32 m0, s54, {k*1008}")
        a("s_mov_b64 exec, 0x1fffff" if k == 5 else "s_nop 0")
        a(f"buffer_load_dwordx4 v7, {ws}, s65 offen {LD} lds\ns_add_u32 s65, s65, 30720")
    a("s_mov_b64 exec, -1")
    a(f"buffer_load_dwordx2 {v(AQ+6,2)}, v5, {ws}, s63 offen {LD}\nbuffer_load_dwordx2 {v(AQ+8,2)}, v5, {ws}, s63 offen offset:256 {LD}\nbuffer_load_dwordx2 {v(AQ+10,2)}, v6, {ws}, s63 offen offset:1024 {LD}")
    a(f"s_setprio {OPT.get('prioa', 0)}")
    FAST = OPT.get("fast", 1)
    if FAST:
        a(f"v_and_b32 v2, 31, v{VL}\nv_lshrrev_b32 v3, 5, v{VL}\nv_mul_u32_u24 v3, 1280, v3\nv_lshl_add_u32 v2, v2, 3, v3\nv_add_u32 v2, s66, v2\ns_waitcnt vmcnt(9)")
        for t in range(2):
            for u in range(5): a(f"ds_read_b64 {v(28+10*t+2*u,2)}, v2 offset:{t*2560+u*256}")
        for t in range(2):
            a(f"s_waitcnt lgkmcnt({5-5*t})\nv_mov_b32 v{14+t}, 0")
            for u in range(10): a(f"v_dot2_f32_bf16 v{14+t}, v{28+10*t+u}, v{28+10*t+u}, v{14+t}")
        a("s_nop 2\nv_max_f32 v14, v14, v15")
        for sh in (8, 4, 2, 1): a(f"s_nop 1\nv_max_f32_dpp v14, v14, v14 row_ror:{sh} row_mask:0xf bank_mask:0xf")
        for sw in ("v_permlane16_swap_b32", "v_permlane32_swap_b32"): a(f"v_mov_b32 v15, v14\ns_nop 1\n{sw} v14, v15\nv_max_f32 v14, v14, v15")
        a(f"s_lshl_b32 s53, s{w}, 2\ns_add_u32 s53, s53, {L_KN}\nv_mov_b32 v15, s53\nds_write_b32 v15, v14")
    else:
        a("s_waitcnt vmcnt(9)")
    lds_sync(a, C_AK, 4, ls=0)
    if FAST:
        a(f"v_mov_b32 v2, {L_KN}\nds_read_b128 v[28:31], v2\ns_waitcnt lgkmcnt(0)\nv_max3_f32 v28, v28, v29, v30\nv_max_f32 v254, v28, v31")
    ast(a, 1)
    if OPT.get("ah"):
        nh = a.newlab("ah")
        a(f"s_cmp_eq_u32 s{SHAS1}, 0\ns_cbranch_scc1 {nh}")
        lds_wait(a, C_GA, OPT["ah"])
        a.lab(nh)
    a("s_mov_b32 s59, 0")
    fin = a.newlab("afin")
    if OPT.get("noac"):
        lds_sync(a, C_AV, 4, vt=14, ls=0); a(f"s_branch {fin}")
    L = a.newlab("atask"); vw = a.newlab("avw"); vwb = a.newlab("avb")
    inv = [a.newlab("inv") for _ in range(8)]; invb = [a.newlab("invb") for _ in range(8)]
    a(".p2align 3")
    a.lab(L)
    def kread(p):
        b = AK + 6*(p % 3)
        a(f"ds_read_b64 {v(b,2)}, v8 offset:{p*1280}\nds_read_b64 {v(b+2,2)}, v8 offset:{p*1280+256}\nds_read_b64 {v(b+4,2)}, v9 offset:{p*1280+1024}")
    def vread(p):
        b = AV + 8*(p % 2)
        for m in range(2): a(f"ds_read_b128 {v(b+4*m,4)}, v10 offset:{p*1344+m*672}")
    def mx(p):
        if p < 8:
            a(f"s_cmp_gt_u32 s57, {p}\ns_cbranch_scc1 {inv[p]}")
            a.lab(invb[p])
        for q in range(8):
            d = 2 + (q & 1)
            if p == 0 and q < 2: a(f"v_max_f32 v{d}, v{AS+2*q}, v{AS+2*q+1}")
            else: a(f"v_max3_f32 v{d}, v{d}, v{AS+16*p+2*q}, v{AS+16*p+2*q+1}")
    def m1(p):
        b = AK + 6*(p % 3); S = v(AS+16*p, 16)
        C = v(AME,16) if p == 0 else v(AMD,16) if p == 8 else "0"
        a(f"v_mfma_f32_32x32x16_bf16 {S}, {v(b,4)}, {v(AQ,4)}, {C}")
    def m2(p):
        b = AK + 6*(p % 3); S = v(AS+16*p, 16)
        a(f"v_mfma_f32_32x32x8bf16_1k {S}, {v(b+4,2)}, {v(AQ+4,2)}, {S}")
    def pv(p, S=None, ms=(0, 1)):
        b = AV + 8*(p % 2); S = AS+16*p if S is None else S
        for m in ms:
            C = "0" if (p == 0 and m == 0) else v(AO,16)
            a(f"v_mfma_f32_32x32x16_bf16 {v(AO,16)}, {v(b+4*m,4)}, {v(S+4*m,4)}, {C}")
    kread(0); kread(1); kread(2)
    join = a.newlab("ajoin")
    if FAST:
        slow = a.newlab("aslow"); fvw = a.newlab("afv"); fvb = a.newlab("afb")
        finv = [a.newlab("finv") for _ in range(8)]; finvb = [a.newlab("finvb") for _ in range(8)]
        a("v_mov_b32 v2, 0")
        for r in range(6): a(f"v_dot2_f32_bf16 v2, v{AQ+r}, v{AQ+r}, v2")
        a(f"s_nop 2\nv_mov_b32 v3, v2\ns_nop 1\nv_permlane32_swap_b32 v2, v3\nv_add_f32 v2, v2, v3\nv_mul_f32 v2, v2, v254\nv_cmp_nge_f32 vcc, {hexf(3600.0)}, v2\ns_cbranch_vccnz {slow}")
        def SB(p): return AS + 16*(p % 3)
        def fm1(p):
            b = AK + 6*(p % 3); C = v(AME,16) if p == 0 else v(AMD,16) if p == 8 else "0"
            a(f"v_mfma_f32_32x32x16_bf16 {v(SB(p),16)}, {v(b,4)}, {v(AQ,4)}, {C}")
        def fm2(p):
            b = AK + 6*(p % 3)
            a(f"v_mfma_f32_32x32x8bf16_1k {v(SB(p),16)}, {v(b+4,2)}, {v(AQ+4,2)}, {v(SB(p),16)}")
        a("s_waitcnt lgkmcnt(6)"); fm1(0); fm2(0)
        a(f"s_cmp_eq_u32 s59, 0\ns_cbranch_scc1 {fvw}")
        a.lab(fvb)
        vread(0); kread(3)
        a("s_waitcnt lgkmcnt(8)"); fm1(1); fm2(1)
        a("s_nop 7")
        ast(a, 2, 1, 7)
        for p in range(9):
            S = SB(p)
            if p < 8:
                a(f"s_cmp_gt_u32 s57, {p}\ns_cbranch_scc1 {finv[p]}")
                a.lab(finvb[p])
            ex = [f"v_exp_f32 v{S+q}, v{S+q}" for q in range(16)]
            for q in range(0, 4): a(ex[q])
            if p > 0: pv(p-1, SB(p-1), (0,))
            for q in range(4, 8): a(ex[q])
            if p > 0: pv(p-1, SB(p-1), (1,))
            if p + 1 < 9: vread(p+1)
            for q in range(8, 12): a(ex[q])
            if p + 2 < 9:
                a(f"s_waitcnt lgkmcnt({(5 if p + 3 < 9 else 2) + 2})"); fm1(p+2)
            for q in range(12, 16): a(ex[q])
            if p + 2 < 9: fm2(p+2)
            else: a("s_nop 0")
            if p + 4 < 9: kread(p+4)
            for q in range(8): a(f"v_cvt_pk_bf16_f32 v{S+q}, v{S+2*q}, v{S+2*q+1}")
            n = (2 if p + 1 < 9 else 0) + (3 if p + 3 < 9 else 0) + (3 if p + 4 < 9 else 0)
            a(f"s_waitcnt lgkmcnt({n})")
        ast(a, 3, 1, 7)
        a("s_nop 0"); pv(8, SB(8))
        a(f"s_branch {join}")
        for p in range(8):
            a.lab(finv[p])
            for r in range(16): a(f"v_mov_b32 v{SB(p)+r}, {NEGINF}")
            a(f"s_branch {finvb[p]}")
        a.lab(fvw)
        a("s_waitcnt vmcnt(0)\nv_mov_b32 v4, 0x3f803f80\nv_mov_b32 v5, v4\nv_mov_b32 v6, v4\nv_mov_b32 v7, v4\nds_write_b128 v13, v[4:7] offset:320")
        lds_sync(a, C_AV, 4, vt=14, ls=0)
        a(f"s_branch {fvb}")
        a.lab(slow)
    a("s_waitcnt lgkmcnt(6)"); m1(0)
    for p in range(9):
        if p + 1 < 9:
            a(f"s_waitcnt lgkmcnt({3 if p + 2 < 9 else 0})"); m1(p+1)
        m2(p)
        if p + 3 < 9: kread(p+3)
        if p >= 2: mx(p-2)
    a(f"s_cmp_eq_u32 s59, 0\ns_cbranch_scc1 {vw}")
    a.lab(vwb)
    vread(0)
    mx(7)
    a("s_nop 0")
    mx(8)
    a("v_max_f32 v2, v2, v3\nv_mov_b32 v3, v2\ns_nop 1\nv_permlane32_swap_b32 v2, v3\nv_max_f32 v2, v2, v3")
    for p in range(9):
        b = AS + 16*p
        for q in range(8): a(f"v_pk_add_f32 {v(b+2*q,2)}, {v(b+2*q,2)}, v[2:3] op_sel_hi:[1,0] neg_lo:[0,1] neg_hi:[0,1]")
        if p > 0:
            a("s_waitcnt lgkmcnt(0)"); pv(p-1)
        if p + 1 < 9 and p > 0: vread(p+1)
        if p == 0: vread(1)
        for q in range(16): a(f"v_exp_f32 v{b+q}, v{b+q}")
        a("s_nop 0")
        for q in range(8): a(f"v_cvt_pk_bf16_f32 v{b+q}, v{b+2*q}, v{b+2*q+1}")
    a("s_waitcnt lgkmcnt(0)\ns_nop 0"); pv(8)
    a.lab(join)
    for r in range(6): a(f"v_mov_b32 v{AQ+r}, v{AQ+6+r}")
    a(f"v_add_u32 v8, {4*1280}, v8\nv_add_u32 v9, {4*1280}, v9\nv_add_u32 v10, {4*1344}, v10\ns_sub_u32 s57, s57, s58\ns_nop 2")
    a(f"v_mov_b32 v2, v{AO+8}\nv_mov_b32 v3, v{AO+8}\ns_nop 1\nv_permlane32_swap_b32 v2, v3\nv_rcp_f32 v2, v3\ns_nop 0")
    for q in range(6): a(f"v_pk_mul_f32 {v(AO+2*q,2)}, {v(AO+2*q,2)}, v[2:3] op_sel_hi:[1,0]")
    for q in range(6): a(f"v_cvt_pk_bf16_f32 v{4+q if q < 4 else 10+q}, v{AO+2*q}, v{AO+2*q+1}")
    a(f"s_setprio 2\nbuffer_store_dwordx4 v[4:7], v11, {ws}, s56 offen {ST}\nbuffer_store_dwordx2 v[14:15], v12, {ws}, s61 offen {ST}\ns_setprio {OPT.get('prioa', 0)}")
    ast(a, 3, 0); ast(a, 4, 1); ast(a, 1, 0, 7); ast(a, 4, 1, 7)
    a(f"s_add_u32 s56, s56, {4*32768}\ns_add_u32 s61, s61, {4*8192}\ns_add_u32 s59, s59, 1\ns_cmp_lt_u32 s59, 2\ns_cbranch_scc1 {L}")
    a(f"s_branch {fin}")
    for p in range(8):
        a.lab(inv[p])
        for r in range(16): a(f"v_mov_b32 v{AS+16*p+r}, {NEGINF}")
        a(f"s_branch {invb[p]}")
    a.lab(vw)
    a("s_waitcnt vmcnt(0)\nv_mov_b32 v4, 0x3f803f80\nv_mov_b32 v5, v4\nv_mov_b32 v6, v4\nv_mov_b32 v7, v4\nds_write_b128 v13, v[4:7] offset:320")
    lds_sync(a, C_AV, 4, vt=14, ls=0)
    a(f"s_branch {vwb}")
    a.lab(fin)

def wo2(a):
    skw = SKW; ws = s(SWS, 4)
    a(f"v_lshrrev_b32 v2, 4, v{VL}\nv_and_b32 v3, 15, v{VL}\nv_lshlrev_b32 v8, 4, v3\nv_lshl_add_u32 v8, v2, 9, v8\nv_lshlrev_b32 v10, 3, v3\nv_lshl_add_u32 v10, v2, 9, v10")
    a(f"s_lshl_b32 s50, s{SST}, 16\ns_lshl_b32 s51, s{skw}, 13\ns_add_u32 s50, s50, s51\ns_add_u32 s50, s50, {OFF_O1}")
    a(f"s_lshl_b32 s61, s{SST}, 14\ns_lshl_b32 s51, s{skw}, 11\ns_add_u32 s61, s61, s51\ns_add_u32 s61, s61, {OFF_O2}")
    for i in range(4):
        a(f"s_xor_b32 s51, s{skw}, {i}\ns_lshr_b32 s56, s51, 1\ns_and_b32 s51, s51, 1\ns_lshl_b32 s57, s56, 15\ns_lshl_b32 s58, s51, 8\ns_add_u32 s57, s57, s58\ns_add_u32 s{52+i}, s50, s57")
        a(f"s_lshl_b32 s57, s56, 13\ns_lshl_b32 s58, s51, 7\ns_add_u32 s57, s57, s58\ns_add_u32 s{62+i}, s61, s57")
    oth = a.newlab("ow"); go = a.newlab("og")
    a(f"s_cmp_lg_u32 s{skw}, 0\ns_cbranch_scc1 {oth}")
    a(f"s_lshr_b32 s51, s{SST}, 2\ns_lshl_b32 s51, s51, 8\ns_add_u32 s51, s51, {G_O+128}\nv_mov_b32 v2, 0")
    gpoll(a, 2, SWS, "s51", 1, 1)
    lds_set(a, C_OGO)
    a(f"s_branch {go}")
    a.lab(oth)
    lds_wait(a, C_OGO, 1, ls=1)
    a.lab(go)
    stamp(a, 2, OPT.get("mst") == 5)
    def aload(st):
        for i in range(4):
            r = WA+16*(st%3)+4*i
            if st < 4:
                a(f"buffer_load_dwordx4 {v(r,4)}, v8, {ws}, s{52+i} offen offset:{(st&1)*2048} {LD}")
                if st == 1: a(f"s_add_u32 s{52+i}, s{52+i}, 4096")
            else:
                for e in range(2): a(f"buffer_load_dwordx2 {v(r+2*e,2)}, v10, {ws}, s{62+i} offen offset:{e*256} {LD}")
    for st in range(3): aload(st)
    for st in range(5):
        a(f"s_waitcnt vmcnt({[8, 8, 12, 8, 0][st]})")
        for db in range(5):
            for i in range(4):
                acc = v(MACC+(i*5+db)*4, 4)
                a(f"v_mfma_f32_16x16x32_bf16 {acc}, {v(WB+20*st+4*db,4)}, {v(WA+16*(st%3)+4*i,4)}, {'0' if st == 0 else acc}")
        if st + 3 < 5: aload(st+3)

def colsum4(a, snt, ldsbase, st):
    a(f"v_lshrrev_b32 v2, 4, v{VL}\nv_and_b32 v3, 15, v{VL}\nv_mul_u32_u24 v4, 3840, v2\nv_lshl_add_u32 v4, v3, 4, v4")
    a(f"s_mul_i32 s{st}, s{SKW}, {160*3840}\ns_lshl_b32 s{st+1}, s{snt}, 8\ns_add_u32 s{st}, s{st}, s{st+1}")
    a(f"s_cmp_eq_u32 s{snt}, 15\ns_cbranch_scc0 L_cs_go\ns_barrier\ns_branch L_cs_end")
    a.lab("L_cs_go")
    for i in range(40):
        a(f"buffer_load_dwordx4 v[{32+4*i}:{35+4*i}], v4, {s(SWQ,4)}, s{st} offen\ns_add_u32 s{st}, s{st}, {4*3840}")
        if i == 9: a("s_barrier")
    for c in range(8): a(f"v_mov_b32 v{16+c}, 0")
    for i in range(40):
        a(f"s_waitcnt vmcnt({39-i})")
        for c in range(4):
            a(f"v_lshlrev_b32 v24, 16, v{32+4*i+c}\nv_and_b32 v25, 0xffff0000, v{32+4*i+c}\nv_pk_add_f32 v[{16+2*c}:{17+2*c}], v[{16+2*c}:{17+2*c}], v[24:25]")
    for sw in ("v_permlane32_swap_b32", "v_permlane16_swap_b32"):
        for c in range(8): a(f"v_mov_b32 v{24+c}, v{16+c}")
        a("s_nop 0")
        for c in range(8): a(f"{sw} v{16+c}, v{24+c}")
        for c in range(8): a(f"v_add_f32 v{16+c}, v{16+c}, v{24+c}")
    a(f"s_lshl_b32 s{st}, s{SKW}, 9\ns_add_u32 s{st}, s{st}, {ldsbase}\nv_lshlrev_b32 v4, 5, v3\nv_add_u32 v4, s{st}, v4")
    a("ds_write_b128 v4, v[16:19]\nds_write_b128 v4, v[20:23] offset:16")
    lds_sync(a, C_W2, 4)
    a(f"s_cmp_ge_u32 s{SKW}, 2\ns_cbranch_scc1 L_cs_end")
    a(f"s_lshl_b32 s{st}, s{SKW}, 8\nv_lshlrev_b32 v4, 2, v{VL}\nv_add_u32 v4, s{st}, v4\nv_add_u32 v5, {ldsbase}, v4")
    for w in range(4): a(f"ds_read_b32 v{16+w}, v5 offset:{w*512}")
    a("s_waitcnt lgkmcnt(0)")
    for w in range(1, 4): a(f"v_add_f32 v16, v16, v{16+w}")
    a(f"s_lshl_b32 s{st}, s{snt}, 9\ns_add_u32 s{st}, s{st}, {OFF_CS}")
    a(f"buffer_store_dword v16, v4, {s(SWS,4)}, s{st} offen {ST}")
    a.lab("L_cs_end")

def kwait(a):
    if not (OPT.get("late", 1) and not blocks.STAMP): return
    a("s_waitcnt lgkmcnt(0)")
    for r, src in ((SX, 84), (SWQ, 86), (SWO, 88), (SW1, 92), (SB1, 94), (SW2, 96), (SB2, 98), (SOUT, 80), (SDBG, 82)): a(f"s_mov_b64 {s(r,2)}, {s(src,2)}")
def prologue2(a):
    a(f".globl {NAME}\n.p2align 8\n.type {NAME},@function")
    a.lab(NAME)
    LATE = OPT.get("late", 1) and not blocks.STAMP
    if LATE: a(f"s_load_dwordx16 s[84:99], s[0:1], 0\ns_load_dwordx4 s[80:83], s[0:1], 64\ns_load_dwordx2 {s(SWS,2)}, s[0:1], 80\ns_cmp_ge_u32 s2, 256\ns_cbranch_scc1 L_end")
    else: a(f"s_load_dwordx4 s[64:67], s[0:1], 0\ns_load_dwordx4 s[68:71], s[0:1], 72\ns_cmp_ge_u32 s2, 256\ns_cbranch_scc1 L_end")
    if blocks.STAMP:
        for i in range(16): a(f"s_mov_b32 s{84+i}, 0")
    stamp(a, 0)
    if OPT.get("cpf", 1):
        a(f"s_getpc_b64 s[50:51]\ns_sub_u32 s50, s50, .-{NAME}\ns_subb_u32 s51, s51, 0")
        a(f"s_lshr_b32 s52, s2, 3\ns_and_b32 s52, s52, 3\ns_add_u32 s52, s52, 1\ns_lshl_b32 s52, s52, 13\nv_and_b32 v2, 63, v0\nv_lshlrev_b32 v2, 7, v2")
        a(f"v_cmp_le_u32 vcc, 256, v0\nv_mov_b32 v3, s52\nv_and_b32 v4, 0xc0, v0\nv_cndmask_b32 v3, 0, v3, vcc\nv_add_u32 v2, v2, v3\nv_cmp_eq_u32 vcc, 0, v4\ns_mov_b32 s54, L_end-{NAME}\nv_cmp_gt_u32 s[52:53], s54, v2\ns_nop 0\ns_and_b64 vcc, vcc, s[52:53]")
        a(f"s_and_saveexec_b64 s[52:53], vcc\ns_cbranch_execz L_nocpf\nglobal_load_dword v255, v2, s[50:51]")
        a.lab("L_nocpf")
        a("s_mov_b64 exec, -1")
    if not LATE: a(f"s_load_dwordx8 s[56:63], s[0:1], 32\ns_load_dwordx2 {s(SWO,2)}, s[0:1], 16\ns_load_dwordx2 {s(SOUT,2)}, s[0:1], 64")
    a(f"v_lshrrev_b32 v2, 6, v0\nv_and_b32 v{VL}, 63, v0")
    a(f"s_and_b32 s{SXCD}, s2, 7\ns_lshr_b32 s{SJ}, s2, 3")
    a(f"v_readfirstlane_b32 s{SWAVE}, v2")
    for r in SRDS: a(f"s_mov_b32 s{r+2}, {SRDS[r][1]}\ns_mov_b32 s{r+3}, 0x20000")
    ids(a)
    if LATE: return
    a("s_waitcnt lgkmcnt(0)")
    for r, src in ((SX, 64), (SWQ, 66), (SDBG, 68), (SWS, 70), (SW1, 56), (SB1, 58), (SW2, 60), (SB2, 62)): a(f"s_mov_b64 {s(r,2)}, {s(src,2)}")

def trs_prep8(a, sw, sbase, st, vb):
    a(f"v_lshrrev_b32 v2, 4, v{VL}\nv_and_b32 v3, 15, v{VL}")
    a(f"v_lshrrev_b32 v4, 2, v3\nv_mul_u32_u24 v4, 1344, v4\nv_lshl_add_u32 v4, v2, 5, v4\nv_and_b32 v5, 3, v3\nv_lshl_add_u32 v4, v5, 3, v4")
    a(f"s_lshl_b32 s{st}, s{sw}, 7\ns_add_u32 s{st}, s{st}, s{sbase}\nv_add_u32 v{vb}, s{st}, v4")
    a(f"s_cmp_eq_u32 s52, 768\ns_cselect_b32 s{st}, 128, 0\nv_lshrrev_b32 v7, 3, v3\nv_mul_u32_u24 v7, s{st}, v7\nv_lshl_add_u32 v7, v3, 4, v7")
    for k in range(3):
        a(f"s_lshl_b32 s{st}, s{sw}, 2\ns_add_u32 s{st}, s{st}, {16*k}\nv_add_u32 v5, s{st}, v2")
        a(f"v_lshrrev_b32 v6, 3, v5\nv_lshlrev_b32 v6, 20, v6\nv_and_b32 v5, 7, v5\nv_lshl_add_u32 v6, v5, 11, v6\nv_add_u32 v{vb+1+k}, v7, v6")
def trs_prep(a, sw, ldsbase, dt, st, vb):
    a(f"v_lshrrev_b32 v2, 4, v{VL}\nv_and_b32 v3, 15, v{VL}")
    a(f"v_lshrrev_b32 v4, 2, v3\nv_mul_u32_u24 v4, 1344, v4\nv_lshl_add_u32 v4, v2, 5, v4\nv_and_b32 v5, 3, v3\nv_lshl_add_u32 v4, v5, 3, v4")
    a(f"s_lshl_b32 s{st}, s{sw}, 7\ns_add_u32 s{st}, s{st}, {ldsbase}\nv_add_u32 v{vb}, s{st}, v4\ns_mov_b32 s{st+1}, {dt-5120}")
    for k in range(3):
        a(f"s_lshl_b32 s{st}, s{sw}, 2\ns_add_u32 s{st}, s{st}, {16*k}\nv_add_u32 v5, s{st}, v2")
        a(f"v_mul_u32_u24 v6, 52, v5\nv_lshrrev_b32 v6, 8, v6\nv_mul_u32_u24 v6, s{st+1}, v6\nv_lshl_add_u32 v6, v5, 10, v6\nv_lshl_add_u32 v{vb+1+k}, v3, 4, v6")
    a(f"s_cmp_ge_u32 s{sw}, 2\ns_cselect_b64 vcc, -1, 0\nv_mov_b32 v5, {OOB}\nv_cndmask_b32 v{vb+3}, v{vb+3}, v5, vcc")
def trs_go(a, sw, sdst, vb, d=16):
    for k in range(3):
        a(f"ds_read_b64_tr_b16 v[{d+4*k}:{d+1+4*k}], v{vb} offset:{k*512}\nds_read_b64_tr_b16 v[{d+2+4*k}:{d+3+4*k}], v{vb} offset:{k*512+5376}")
    sk = a.newlab("tg")
    for k in range(3):
        if k == 2: a(f"s_cmp_ge_u32 s{sw}, 2\ns_cbranch_scc1 {sk}")
        a(f"s_waitcnt lgkmcnt({4-2*k})\nbuffer_store_dwordx4 v[{d+4*k}:{d+3+4*k}], v{vb+1+k}, {s(SWS,4)}, s{sdst} offen {ST}")
    a.lab(sk)

def m1_bias_init(a):
    z = a.newlab("bz"); d = a.newlab("bd")
    a(f"s_cmp_lg_u32 s{SKW}, 0\ns_cbranch_scc1 {z}\ns_waitcnt vmcnt(36)")
    for fb in range(4):
        for q in range(2):
            a(f"v_lshlrev_b32 v{MACC+fb*20+2*q}, 16, v{192+2*fb+q}\nv_and_b32 v{MACC+fb*20+2*q+1}, 0xffff0000, v{192+2*fb+q}")
        for db in range(1, 5):
            for r in range(4): a(f"v_mov_b32 v{MACC+(fb*5+db)*4+r}, v{MACC+fb*20+r}")
    a(f"s_branch {d}")
    a.lab(z)
    for i in range(80): a(f"v_mov_b32 v{MACC+i}, 0")
    a.lab(d)
def m1_epi(a):
    kw = SKW; ws = s(SWS, 4)
    odd = a.newlab("eo"); j1 = a.newlab("ej"); j2 = a.newlab("ej")
    a(f"v_add_u32 v10, s66, v{MDIR}\ns_and_b32 s65, s{kw}, 1\ns_cmp_eq_u32 s65, 1\ns_nop 3")
    for t in range(10, 20): a(f"ds_write_b128 v10, {v(MACC+4*t,4)} offset:{t*1024}")
    a(f"s_cbranch_scc1 {odd}")
    for t in (3, 4, 8, 9): a(f"ds_write_b128 v10, {v(MACC+4*t,4)} offset:{t*1024}")
    a(f"s_branch {j1}")
    a.lab(odd)
    for t in (0, 1, 2, 5, 6, 7): a(f"ds_write_b128 v10, {v(MACC+4*t,4)} offset:{t*1024}")
    for g in range(2):
        for r in range(8): a(f"v_mov_b32 v{MACC+20*g+r}, v{MACC+20*g+12+r}")
    a.lab(j1)
    l10(a, 1)
    a(f"s_mul_i32 s65, s65, 3072")
    for n_, x_ in enumerate((1, 2, 3)):
        a(f"s_xor_b32 s68, s{kw}, {x_}\ns_mul_i32 s68, s68, {M1STR}\ns_add_u32 s68, s68, s65\ns_add_u32 s68, s68, {M1BASE + (0 if x_ == 1 else 10240)}\nv_add_u32 v{11+n_}, s68, v{MDIR}")
    a(f"s_mul_i32 s68, s{SDT1}, {54*5120}\ns_mul_i32 s69, s{SFT}, 10240\ns_add_u32 s68, s68, s69\ns_lshr_b32 s69, s{kw}, 1\ns_mul_i32 s69, s69, 5120\ns_add_u32 s68, s68, s69\ns_add_u32 s68, s68, s65\ns_add_u32 s68, s68, {OFF_G}")
    a(f"s_mov_b32 s72, {hexf(GC2)}\ns_mov_b32 s73, {hexf(GC2)}\nv_mov_b32 v14, {hexf(GC1)}\nv_mov_b32 v15, v14")
    lds_sync(a, C_MP, 4, ls=0)
    l10(a, 2)
    def rd(k):
        for n_ in range(3):
            for g in range(2): a(f"ds_read_b128 {v(112+24*k+8*n_+4*g,4)}, v{11+n_} offset:{g*5120+k*1024}")
    rd(0); rd(1)
    for k in range(3):
        if k == 0:
            a(f"s_cmp_lg_u32 s65, 0\ns_cbranch_scc1 {j2}_r"); rd(2); a(f"s_waitcnt lgkmcnt(12)\ns_branch {j2}_w")
            a.lab(j2 + "_r"); a("s_waitcnt lgkmcnt(6)"); a.lab(j2 + "_w")
        elif k == 1:
            a(f"s_waitcnt lgkmcnt(6)\ns_cmp_eq_u32 s65, 0\ns_cbranch_scc1 {j2}_x\ns_waitcnt lgkmcnt(0)"); a.lab(j2 + "_x")
        else: a(f"s_cmp_lg_u32 s65, 0\ns_cbranch_scc1 {j2}\ns_waitcnt lgkmcnt(0)")
        U = [MACC+4*k, MACC+4*k+2, MACC+20+4*k, MACC+20+4*k+2]
        T = 96
        if OPT.get("gpk", 1):
            for n_ in range(3):
                for q in range(4): a(f"v_pk_add_f32 {v(U[q],2)}, {v(U[q],2)}, {v(112+24*k+8*n_+2*q,2)}")
            for q in range(4): a(f"v_pk_mul_f32 {v(T+2*q,2)}, {v(U[q],2)}, {v(U[q],2)}")
            for q in range(4): a(f"v_pk_fma_f32 {v(T+2*q,2)}, {v(T+2*q,2)}, s[72:73], v[14:15]")
            for q in range(4): a(f"v_pk_mul_f32 {v(T+2*q,2)}, {v(T+2*q,2)}, {v(U[q],2)}")
            for q in range(8): a(f"v_exp_f32 v{T+q}, v{T+q}")
            a("s_nop 0")
            for q in range(4): a(f"v_pk_add_f32 {v(T+2*q,2)}, {v(T+2*q,2)}, 1.0 op_sel_hi:[1,0]")
            for q in range(8): a(f"v_rcp_f32 v{T+q}, v{T+q}")
            a("s_nop 0")
            for q in range(4): a(f"v_pk_mul_f32 {v(T+2*q,2)}, {v(T+2*q,2)}, {v(U[q],2)}")
        else:
            R = [U[q>>1] + (q & 1) for q in range(8)]
            for n_ in range(3):
                for q in range(8): a(f"v_add_f32 v{R[q]}, v{R[q]}, v{112+24*k+8*n_+q}")
            for q in range(8): a(f"v_mul_f32 v{T+q}, v{R[q]}, v{R[q]}")
            for q in range(8): a(f"v_fmaak_f32 v{T+q}, s72, v{T+q}, {hexf(GC1)}" if False else f"v_fma_f32 v{T+q}, v{T+q}, s72, v14")
            for q in range(8): a(f"v_mul_f32 v{T+q}, v{T+q}, v{R[q]}")
            for q in range(8): a(f"v_exp_f32 v{T+q}, v{T+q}")
            for q in range(8): a(f"v_add_f32 v{T+q}, 1.0, v{T+q}")
            for q in range(8): a(f"v_rcp_f32 v{T+q}, v{T+q}")
            for q in range(8): a(f"v_mul_f32 v{T+q}, v{T+q}, v{R[q]}")
        for q in range(4): a(f"v_cvt_pk_bf16_f32 v{104+4*(k&1)+q}, v{T+2*q}, v{T+2*q+1}")
        a(f"buffer_store_dwordx4 {v(104+4*(k&1),4)}, v{MDIR}, {ws}, s68 offen offset:{k*1024} {ST}")
        if k < 2: l10(a, 3+k)
    a.lab(j2)

def gen():
    NPB = OPT.get('npb', 896)
    a = Asm()
    a(f"; @launch grid=(256,1,1) block=(512,1,1) lds={LDS}")
    a('.amdgcn_target "amdgcn-amd-amdhsa--gfx950"\n.text')
    prologue2(a)
    a(f"s_cmp_ge_u32 s{SJ}, 15\ns_cbranch_scc1 L_b\ns_cmp_ge_u32 s{SWAVE}, 4\ns_cbranch_scc0 L_cons")
    loader(a)
    stamp(a, 2)
    wof_finish(a)
    stamp(a, 3)
    ORD = OPT.get("ord", 1)
    def flood():
        a(f"s_mul_i32 s67, s{SXCD}, 15\ns_add_u32 s67, s67, s{SJ}\ns_lshl_b32 s67, s67, 2\ns_add_u32 s67, s67, s{SKW}")
        a(f"s_lshr_b32 s51, s{SW2}, 7\ns_sub_u32 s51, 3, s51\ns_and_b32 s51, s51, 7\ns_lshl_b32 s51, 0x1010101, s51\ns_not_b32 s60, s51")
        prefetch(a, 67, 480, NB1, NB1 + NB2, mask=60)
        stamp(a, 4)
    if ORD == 8:
        lds_wait(a, C_AV if OPT.get("x8", 1) else C_QD, 4 if OPT.get("x8", 1) else 1)
        fl = {0: "", 1: "nt", 2: "sc1 nt"}[OPT.get("nt8", 1)]
        a(f"v_lshrrev_b32 v4, 3, v{VL}\nv_lshlrev_b32 v4, 12, v4\nv_and_b32 v5, 7, v{VL}\nv_lshl_add_u32 v4, v5, 7, v4\ns_lshr_b32 s55, s{SXCD}, 1\ns_lshl_b32 s55, s55, 10")
        a(f"s_lshr_b32 s51, s{SW2}, 7\ns_sub_u32 s51, 3, s51\ns_and_b32 s51, s51, 7\ns_lshl_b32 s51, 0x1010101, s51\ns_not_b32 s60, s51\ns_mov_b32 exec_lo, s60\ns_mov_b32 exec_hi, s60")
        a(f"s_lshl_b32 s50, s{SJ}, 2\ns_add_u32 s50, s50, s{SKW}")
        a.lab("L_x8")
        a(f"s_lshr_b32 s52, s50, 4\ns_bfe_u32 s53, s50, 0x20002\ns_mul_i32 s54, s53, 14\ns_cmp_eq_u32 s53, 3\ns_cselect_b32 s54, 41, s54\ns_add_u32 s52, s52, s54\ns_lshl_b32 s52, s52, 2\ns_and_b32 s51, s50, 3\ns_add_u32 s52, s52, s51\ns_lshl_b32 s52, s52, 15\ns_add_u32 s52, s52, s55")
        a(f"buffer_load_dword v255, v4, {s(SW2,4)}, s52 offen {fl}\ns_add_u32 s50, s50, 60\ns_cmp_lt_u32 s50, 224\ns_cbranch_scc1 L_x8\ns_mov_b64 exec, -1")
        stamp(a, 4)
    elif ORD in (5, 6, 7):
        if ORD != 5: lds_wait(a, C_QD, 1)
        nw_ = OPT.get("tw", 1)
        a(f"s_cmp_ge_u32 s{SKW}, {nw_}\ns_cbranch_scc1 L_tw\ns_mul_i32 s67, s{SXCD}, 15\ns_add_u32 s67, s67, s{SJ}\ns_mul_i32 s67, s67, {nw_}\ns_add_u32 s67, s67, s{SKW}")
        a(f"s_lshr_b32 s51, s{SW2}, 7\ns_sub_u32 s51, 3, s51\ns_and_b32 s51, s51, 7\ns_lshl_b32 s51, 0x1010101, s51\ns_not_b32 s60, s51")
        prefetch(a, 67, 120*nw_, NB1, NB1 + NB2, thr=OPT.get("thr", 0), mask=60)
        stamp(a, 4)
        a.lab("L_tw")
        lds_wait(a, C_AV, 4)
    elif ORD in (0, 4): lds_wait(a, C_QD if OPT.get("p1e", 1) else C_AV, 1 if OPT.get("p1e", 1) else 4)
    elif ORD == 3: lds_wait(a, C_AK, 4)
    else: lds_wait(a, C_AV, 4)
    if ORD in (1, 3): flood()
    a(f"s_mov_b32 s61, {C_QA}\ns_branch L_m2")
    if ORD in (0, 2):
        a.lab("L_a_pf")
        lds_wait(a, C_AV, 4)
        a(f"s_mov_b32 s74, s50\ns_mov_b64 s[64:65], s[52:53]\ns_mov_b32 s68, s54\nv_mov_b32 v15, v4")
        flood()
        a(f"s_mov_b32 s50, s74\ns_mov_b64 s[52:53], s[64:65]\ns_mov_b32 s54, s68\nv_mov_b32 v4, v15\ns_branch L_a_pfd")
    a.lab("L_b")
    a(f"s_and_b32 s{SKW}, s{SWAVE}, 3\ns_lshr_b32 s64, s{SWAVE}, 2\ns_cmp_eq_u32 s{SJ}, 31\ns_cbranch_scc1 L_b_noln")
    a(f"s_lshr_b32 s63, s{SXCD}, 1\ns_lshl_b32 s63, s63, 5\ns_and_b32 s51, s{SXCD}, 1\ns_lshl_b32 s51, s51, 4\ns_add_u32 s63, s63, s51\ns_add_u32 s63, s63, s{SJ}\ns_sub_u32 s63, s63, 15\ns_lshl_b32 s50, s63, 1\ns_add_u32 s50, s50, s64")
    a(f"s_lshr_b32 s51, s50, 2\ns_and_b32 s52, s50, 3\ns_lshl_b32 s53, s51, 5\ns_lshl_b32 s54, s52, 2\ns_add_u32 s53, s53, s54")
    a(f"s_lshr_b32 s54, s{SKW}, 1\ns_lshl_b32 s54, s54, 4\ns_add_u32 s53, s53, s54\ns_and_b32 s54, s{SKW}, 1\ns_lshl_b32 s54, s54, 1\ns_add_u32 s53, s53, s54")
    a(f"v_lshrrev_b32 v2, 5, v{VL}\nv_and_b32 v3, 31, v{VL}\nv_mul_u32_u24 v4, 1280, v2\nv_lshl_add_u32 v5, v3, 3, v4\nv_lshl_add_u32 v4, v3, 4, v4\ns_mul_i32 s54, s53, 1280")
    kwait(a)
    a(f"buffer_load_dwordx4 v[16:19], v4, {s(SX,4)}, s54 offen\nbuffer_load_dwordx4 v[20:23], v4, {s(SX,4)}, s54 offen offset:512\nbuffer_load_dwordx2 v[24:25], v5, {s(SX,4)}, s54 offen offset:1024")
    a(f"s_lshl_b32 s62, s51, 14\ns_lshl_b32 s52, s52, 8\ns_add_u32 s62, s62, s52\ns_add_u32 s62, s62, {OFF_H+512}\ns_mul_i32 s64, s64, 10752")
    ids_late(a)
    trs_prep8(a, SKW, 64, 54, 214)
    init_counters(a)
    a(f"v_lshrrev_b32 v2, 5, v{VL}\nv_and_b32 v3, 31, v{VL}\ns_waitcnt vmcnt(0)")
    rows_ln(a, 53, 54, ST)
    a(f"s_mul_i32 s54, s{SKW}, 2688\ns_add_u32 s54, s54, s64\nv_mul_u32_u24 v4, 1344, v2\nv_add_u32 v4, s54, v4\nv_lshl_add_u32 v5, v3, 3, v4\nv_lshl_add_u32 v4, v3, 4, v4")
    a("ds_write_b128 v4, v[16:19]\nds_write_b128 v4, v[20:23] offset:512\nds_write_b64 v5, v[24:25] offset:1024")
    zz = a.newlab("zz")
    a(f"s_cmp_lg_u32 s{SWAVE}, 3\ns_cbranch_scc1 {zz}\ns_cmp_ge_u32 s63, {NCTR}\ns_cbranch_scc1 {zz}")
    a(f"s_lshl_b32 s56, s63, 8\ns_add_u32 s56, s56, {OFF_FLAG}\nv_lshlrev_b32 v6, 7, v{VL}\nv_mov_b32 v7, 0\ns_mov_b64 exec, 3\nbuffer_store_dword v7, v6, {s(SWS,4)}, s56 offen sc1\ns_mov_b64 exec, -1")
    a.lab(zz)
    a("s_waitcnt lgkmcnt(0)\ns_barrier")
    trs_go(a, SKW, 62, 214)
    a(f"s_waitcnt vmcnt(0) lgkmcnt(0)\ns_barrier\ns_cmp_lg_u32 s{SWAVE}, 0\ns_cbranch_scc1 L_b_pf")
    L = a.newlab("c1a")
    a(f"s_and_b32 s57, s63, 1\ns_lshl_b32 s56, s57, 6\ns_lshl_b32 s57, s57, 2\ns_mov_b64 exec, 1\ns_setprio 3")
    garrive(a, SDBG, 56, 64, (57, 128), L, va=15)
    a.lab(L)
    a("s_mov_b64 exec, -1\ns_setprio 0")
    lds_set(a, C_PUB)
    a("s_branch L_b_pf")
    a.lab("L_b_noln")
    kwait(a)
    ids_late(a)
    init_counters(a)
    a("s_waitcnt lgkmcnt(0)\ns_barrier")
    lds_set(a, C_PUB)
    a.lab("L_b_pf")
    stamp(a, 1)
    a(f"s_cmp_lt_u32 s{SFT}, 27\ns_cselect_b32 s{SHAS1}, 1, 0")
    a(f"s_cmp_ge_u32 s{SWAVE}, 4\ns_cbranch_scc1 L_b_hi")
    lds_wait(a, C_PUB, 1, ls=1)
    if OPT.get("pf", 1):
        if OPT.get("xm", 0):
            a(f"s_mul_i32 s62, s{SXCD}, {17*205}\ns_lshr_b32 s62, s62, 10\ns_lshl_b32 s62, s62, 7\ns_mul_i32 s61, s{SWAVE}, {512*3456}\ns_add_u32 s62, s62, s61\ns_sub_u32 s61, s{SJ}, 15\ns_mul_i32 s63, s61, {12*3456}\ns_add_u32 s62, s62, s63")
            a(f"v_mul_u32_u24 v2, 52, v{VL}\nv_lshrrev_b32 v2, 8, v2\nv_mul_u32_u24 v2, {3456-640}, v2\nv_lshl_add_u32 v2, v{VL}, 7, v2\ns_mov_b32 exec_hi, 0xfffffff")
            for k in range(3):
                if k == 2: a("s_cmp_ge_u32 s61, 9\ns_cbranch_scc1 L_b_pfd")
                a(f"buffer_load_dword v255, v2, {s(SW1,4)}, s62 offen\ns_add_u32 s62, s62, {17*12*3456}")
            a.lab("L_b_pfd")
            a("s_mov_b64 exec, -1")
        else:
            E = OPT.get("e31", 0)
            if E:
                a(f"s_cmp_eq_u32 s{SJ}, 31\ns_cbranch_scc0 L_b_pf2\ns_lshl_b32 s61, s{SXCD}, 2\ns_add_u32 s61, s61, s{SWAVE}")
                prefetch(a, 61, 32, 0, 32*E)
                a("s_branch L_b_pf3")
                a.lab("L_b_pf2")
                a(f"s_sub_u32 s62, s{SJ}, 15\ns_lshl_b32 s62, s62, 3\ns_add_u32 s62, s62, s{SXCD}\ns_lshl_b32 s61, s{SWAVE}, 7\ns_add_u32 s61, s61, s62")
                prefetch(a, 61, 512, 32*E, NPB)
                a.lab("L_b_pf3")
            else:
                a(f"s_sub_u32 s62, s{SJ}, 15\ns_lshl_b32 s62, s62, 3\ns_add_u32 s62, s62, s{SXCD}\ns_mul_i32 s61, s{SWAVE}, 136\ns_add_u32 s61, s61, s62")
                prefetch(a, 61, 544, OPT.get('np0', 0), NPB)
    if OPT.get("nobat"):
        attn_ids(a, SHD, SBQ)
        lds_wait(a, C_CS, 4 if OPT["nobat"] == 1 else 0)
        a("s_waitcnt vmcnt(0)\ns_branch L_adone")
    a("s_waitcnt vmcnt(0)\ns_setprio 3\ns_branch L_attn")
    a.lab("L_b_hi")
    a(f"s_cmp_eq_u32 s{SHAS1}, 0\ns_cbranch_scc1 L_b_c1")
    a(f"v_lshrrev_b32 v2, 4, v{VL}\nv_lshlrev_b32 v12, 3, v2\ns_lshl_b32 s65, s{SFT}, 7\ns_cmp_lg_u32 s{SKW}, 0\ns_cbranch_scc1 L_nobias")
    for fb in range(4): a(f"buffer_load_dwordx2 {v(160+2*fb,2)}, v12, {s(SB1,4)}, s65 offen offset:{fb*32}")
    a.lab("L_nobias")
    a(f"s_mul_i32 s66, s{SKW}, {XSTR}\ns_add_u32 s66, s66, {XB}\ns_and_b32 s67, s{SKW}, 2")
    mlp_setup(a, SW1, 3456, 66, rot=67)
    a(f"s_mul_i32 s{S_TO}, s{SKW}, {512*3456}\ns_lshl_b32 s65, s{SFT}, 7\ns_add_u32 s{S_TO}, s{S_TO}, s65")
    skip_off(a, MSK)
    a(f"s_lshl_b32 s{S_DO}, s{SDT1}, 20\ns_lshl_b32 s65, s{SKW}, 18\ns_add_u32 s{S_DO}, s{S_DO}, s65\ns_and_b32 s65, s{SKW}, 1\ns_lshl_b32 s68, s65, 13\ns_add_u32 s{S_DO}, s{S_DO}, s68\ns_add_u32 s{S_DO}, s{S_DO}, {OFF_H}")
    a("s_cmp_eq_u32 s65, 1\ns_movk_i32 s68, 0x1000\ns_cselect_b32 s70, -12288, s68\ns_cselect_b32 s71, 20480, s68")
    z = a.newlab("bz"); d = a.newlab("bd")
    a(f"s_cmp_lg_u32 s{SKW}, 0\ns_cbranch_scc1 {z}\ns_waitcnt vmcnt(0)")
    for fb in range(4):
        for q in range(2): a(f"v_lshlrev_b32 v{16+fb*32+2*q}, 16, v{160+2*fb+q}\nv_and_b32 v{16+fb*32+2*q+1}, 0xffff0000, v{160+2*fb+q}")
        for c in range(1, 8):
            for r in range(4): a(f"v_mov_b32 v{16+(fb*8+c)*4+r}, v{16+fb*32+r}")
    a(f"s_branch {d}")
    a.lab(z)
    for i in range(128): a(f"v_mov_b32 v{16+i}, 0")
    a.lab(d)
    if OPT.get("pw", 1):
        lds_wait(a, C_PUB, 1, ls=1)
        for k in (2, 0, 1): mlp_dma(a, k)
    a.lab("L_b_c1")
    oth = a.newlab("cw"); go = a.newlab("cg")
    a(f"s_cmp_lg_u32 s{SKW}, 0\ns_cbranch_scc1 {oth}")
    c1_poll(a)
    a(f"v_mov_b32 v2, {C_QA}\nv_mov_b32 v3, 4\nds_write_b32 v2, v3\ns_branch {go}")
    a.lab(oth)
    lds_wait(a, C_QA, 4, ls=1)
    a.lab(go)
    stamp(a, 2)
    a(f"s_cmp_eq_u32 s{SHAS1}, 0\ns_cselect_b32 s61, {C_QA}, s61\ns_cbranch_scc1 L_m2")
    PW = OPT.get("pw", 1)
    for n_, k in enumerate((2, 0, 1)):
        a(f"s_setprio {3-n_}")
        if not PW: mlp_dma(a, k)
        for c in range(8): n_dir(a, k, c)
    a(f"s_mov_b32 s{S_CNT}, 5\ns_setprio {OPT.get('prio1', 1)}")
    if PW:
        n_body(a, 2, 16, True)
        a(f"s_mov_b32 s{S_CNT}, 4\ns_waitcnt vmcnt(20)\ns_branch L_n0")
    else: a("s_branch L_n2")
    a(".p2align 3")
    for k in range(3):
        a.lab(f"L_n{k}")
        n_body(a, k, 24, True)
    a(f"s_sub_u32 s{S_CNT}, s{S_CNT}, 1\ns_cmp_lg_u32 s{S_CNT}, 0\ns_cbranch_scc1 L_n0")
    if OPT.get("al", 3) == 3: a(f"v_mov_b32 v2, {C_CS}\nv_mov_b32 v3, 1\ns_mov_b64 exec, 1\nds_add_u32 v2, v3\ns_mov_b64 exec, -1")
    for k in range(2): n_body(a, k, 24-12*k, False)
    n_last(a, 2)
    stamp(a, 3)
    a("s_setprio 3")
    l10(a, 0)
    n_epi(a)
    l10(a, 4)
    stamp(a, 4)
    if OPT.get("pwg", 1):
        a(f"s_mul_i32 s61, s{SFT}, 37\ns_lshr_b32 s61, s61, 8\ns_lshl_b32 s65, s{SDT1}, 2\ns_add_u32 s61, s61, s65\ns_lshl_b32 s61, s61, 8\ns_add_u32 s61, s61, {G_G}")
        L = a.newlab("arr")
        a(f"s_waitcnt vmcnt(0)\nv_mov_b32 v2, {C_GA}\nv_mov_b32 v3, 1\ns_mov_b64 exec, 1\nds_add_rtn_u32 v14, v2, v3\ns_waitcnt lgkmcnt(0)\nv_readfirstlane_b32 s60, v14\ns_cmp_lg_u32 s60, 3\ns_cbranch_scc1 {L}")
        a(f"s_cmp_eq_u32 s{SFT}, 20\ns_cselect_b32 s65, 3, 1\ns_mov_b32 exec_lo, s65\nv_lshlrev_b32 v2, 8, v{VL}\nv_mov_b32 v3, 1\nbuffer_atomic_add v3, v2, {s(SWS,4)}, s61 offen sc0 sc1\ns_waitcnt vmcnt(0)")
        a(f"v_cmpx_eq_u32 vcc, 6, v3\ns_cbranch_execz {L}\nv_mov_b32 v3, 1\nbuffer_store_dword v3, v2, {s(SWS,4)}, s61 offen offset:128 sc1")
        a.lab(L)
        a("s_mov_b64 exec, -1")
    else:
        a(f"s_lshl_b32 s61, s{SDT1}, 10\ns_add_u32 s61, s61, {G_G}")
        arrive(a, C_GA, 4, 61, 27)
    l10(a, 5)
    a(f"s_mov_b32 s61, {C_GA}")
    a.lab("L_m2")
    w = SKW
    a(f"s_setprio {OPT.get('prio2', 1)}\ns_mul_i32 s66, s{w}, {M1STR}\ns_add_u32 s66, s66, {M1BASE}\nv_mov_b32 v12, s61")
    mlp_setup(a, SW2, 4096, 66)
    a(f"s_mul_i32 s67, s{w}, 14\ns_cmp_eq_u32 s{w}, 3\ns_cselect_b32 s67, 41, s67")
    a(f"s_lshl_b32 s{S_TO}, s67, 17\ns_lshl_b32 s65, s{SST}, 7\ns_add_u32 s{S_TO}, s{S_TO}, s65")
    skip_off(a, MSK)
    a(f"s_mul_i32 s{S_DO}, s{SDT3}, {54*10240}\ns_mul_i32 s65, s67, 10240\ns_add_u32 s{S_DO}, s{S_DO}, s65\ns_add_u32 s{S_DO}, s{S_DO}, {OFF_G}")
    for i in range(80): a(f"v_mov_b32 v{MACC+i}, 0")
    oth = a.newlab("ww"); go = a.newlab("wg")
    a(f"s_cmp_lg_u32 s{w}, 0\ns_cbranch_scc1 {oth}\ns_mov_b32 s51, {G_W+128}\nv_mov_b32 v2, 0")
    gpoll(a, 2, SWS, "s51", 1, 1)
    lds_set(a, C_W2)
    a(f"s_branch {go}")
    a.lab(oth)
    lds_wait(a, C_W2, 1, ls=1)
    a.lab(go)
    if OPT.get("w2c", 1):
        a(f"s_lshr_b32 s51, s{SW2}, 7\ns_add_u32 s51, s51, s{SST}\ns_and_b32 s51, s51, 7\ns_cmp_lg_u32 s51, 3\ns_cbranch_scc1 L_now2c")
        for k in range(3): a(f"s_mov_b32 s{S_SRD+k}, s{SWS+k}")
        a(f"s_movk_i32 s{S_D8}, 1024\ns_movk_i32 s{S_STEP}, 5120\ns_lshr_b32 s51, s{SST}, 3\ns_mul_i32 s51, s51, 54\ns_add_u32 s51, s51, s67\ns_lshl_b32 s{S_TO}, s51, 13\ns_add_u32 s{S_TO}, s{S_TO}, {OFF_W2C}")
        a(f"v_and_b32 v2, 127, v{MDMA}\nv_and_b32 v3, 0xffffff80, v{MSK}\nv_or_b32 v{MDMA}, v2, v3")
        a.lab("L_now2c")
    lds_wait(a, None, 4, vreg=12)
    a(f"s_cmp_ge_u32 s{w}, 2\ns_cbranch_scc1 L_p3")
    NT = "nt" if OPT.get("sk4", 0) == 2 else ""
    mlp_dma(a, 2, NT)
    a.lab("L_p3")
    for k in (3, 0, 1): mlp_dma(a, k, NT)
    a(f"s_cmp_ge_u32 s{w}, 2\ns_cbranch_scc0 L_p3b")
    mlp_dma(a, 2, NT)
    a.lab("L_p3b")
    a(f"v_and_b32 v2, 15, v{VL}\nv_mul_u32_u24 v12, 10, v2\nv_lshrrev_b32 v3, 5, v{VL}\nv_add_u32 v12, v12, v3\nv_bfe_u32 v2, v{VL}, 2, 1\nv_xor_b32 v12, v12, v2\nv_lshlrev_b32 v12, 4, v12\nv_bfe_u32 v2, v{VL}, 4, 1\nv_mul_u32_u24 v2, 2560, v2\nv_add3_u32 v12, v12, v2, s66")
    a(f"v_lshrrev_b32 v2, 4, v{VL}\nv_and_b32 v3, 15, v{VL}\nv_lshlrev_b32 v13, 4, v3\nv_lshl_add_u32 v13, v2, 9, v13\nv_lshlrev_b32 v14, 3, v3\nv_lshl_add_u32 v14, v2, 9, v14")
    a(f"s_lshl_b32 s70, s{SST}, 16\ns_lshl_b32 s51, s{w}, 13\ns_add_u32 s70, s70, s51\ns_add_u32 s70, s70, {OFF_O1}\ns_add_u32 s71, s70, 32768\ns_add_u32 s72, s70, 4096\ns_add_u32 s73, s71, 4096")
    a(f"s_lshl_b32 s49, s{SST}, 14\ns_lshl_b32 s51, s{w}, 11\ns_add_u32 s49, s49, s51\ns_add_u32 s49, s49, {OFF_O2}\ns_add_u32 s50, s49, 8192")
    a(f"s_mul_i32 s48, s{SDT3}, 102400\ns_mul_i32 s51, s{w}, 25600\ns_add_u32 s48, s48, s51\ns_add_u32 s48, s48, {OFF_WOF}")
    def wof_ld(r):
        for db in range(5):
            a(f"buffer_load_dwordx4 {v(r+4*db,4)}, v{MDIR}, {s(SWS,4)}, s48 offen offset:{(db&3)*1024} {LD}")
            if db >= 3: a(f"s_add_u32 s48, s48, {4096 if db == 3 else 1024}")
    for st in range(3): wof_ld(192+20*st)
    l10(a, 6)
    if OPT.get("ord", 1) in (0, 2): a(f"s_cmp_lt_u32 s{SJ}, 15\ns_cbranch_scc1 L_a_pf")
    a.lab("L_a_pfd")
    if OPT.get("pwg", 1):
        a(f"s_mul_i32 s51, s{SDT3}, 5\nv_lshlrev_b32 v2, 2, v{VL}\nv_add_u32 v2, s51, v2\nv_lshrrev_b32 v2, 3, v2\nv_lshlrev_b32 v2, 10, v2\ns_lshl_b32 s51, s{w}, 8\ns_add_u32 s51, s51, {G_G+128}\ns_setprio 3")
        gpoll(a, 2, SWS, "s51", 1, 2)
    else:
        oth = a.newlab("gw"); go = a.newlab("gg")
        a(f"s_cmp_lg_u32 s{w}, 0\ns_cbranch_scc1 {oth}")
        a(f"s_mul_i32 s51, s{SDT3}, 5\nv_lshlrev_b32 v2, 2, v{VL}\nv_add_u32 v2, s51, v2\nv_lshrrev_b32 v2, 3, v2\nv_lshlrev_b32 v2, 10, v2\ns_mov_b32 s51, {G_G+128}\ns_setprio 3")
        gpoll(a, 2, SWS, "s51", 1, 2)
        lds_set(a, C_GGO)
        a(f"s_setprio {OPT.get('prio2', 1)}\ns_branch {go}")
        a.lab(oth)
        lds_wait(a, C_GGO, 1, ls=1)
        a.lab(go)
    stamp(a, 5); l10(a, 7)
    SM_ = OPT.get("smaj", 1)
    a(f"s_mov_b32 s{S_CNT}, 3\ns_mov_b32 s69, 3\ns_cmp_ge_u32 s{w}, 2\ns_cbranch_scc1 L_d3")
    for lab, order, ent in ((None, (2, 3, 0, 1), "L_mb2"), ("L_d3", (3, 0, 1, 2), "L_mb3")):
        if lab: a.lab(lab)
        for n_, k in enumerate(order):
            if SM_: a(f"s_setprio {3-n_}")
            for db in range(5): mlp_dir(a, k, db, LD)
        a(f"s_setprio {OPT.get('prio2', 1)}\ns_branch {ent}" if SM_ else f"s_waitcnt vmcnt(0)\ns_branch {ent}")
    if SM_:
        for k in range(4):
            a.lab(f"L_fw{k}")
            a(f"s_sub_u32 s69, s69, 1\ns_cmp_eq_u32 s69, 0\ns_cbranch_scc1 L_fw{k}c\ns_cmp_eq_u32 s69, 1\ns_cbranch_scc1 L_fw{k}b\ns_waitcnt vmcnt(15)\ns_branch L_fb{k}")
            a.lab(f"L_fw{k}b"); a(f"s_waitcnt vmcnt(19)\ns_branch L_fb{k}")
            a.lab(f"L_fw{k}c"); a(f"s_waitcnt vmcnt(23)\ns_branch L_fb{k}")
    a(".p2align 3")
    for k in range(4):
        a.lab(f"L_mb{k}")
        if SM_:
            a(f"s_cmp_lg_u32 s69, 0\ns_cbranch_scc1 L_fw{k}")
            a.lab(f"L_fb{k}")
        mlp_body(a, k, 27, True, LD, swap=True)
    a(f"s_sub_u32 s{S_CNT}, s{S_CNT}, 1\ns_cmp_lg_u32 s{S_CNT}, 0\ns_cbranch_scc1 L_mb0")
    def o_ld(st):
        r = MB + 20*(st & 3)
        for sb in range(4):
            if st < 4: a(f"buffer_load_dwordx4 {v(r+4*sb,4)}, v13, {s(SWS,4)}, s{70+(sb>>1)+2*(st>>1)} offen offset:{(sb&1)*256+(st&1)*2048} {LD}")
            else:
                for e in range(2): a(f"buffer_load_dwordx2 {v(r+4*sb+2*e,2)}, v14, {s(SWS,4)}, s{49+(sb>>1)} offen offset:{(sb&1)*128+e*256} {LD}")
    a(f"v_mov_b32 v2, {C_OGO}\nds_read_b32 v15, v2")
    mlp_body(a, 0, 27, False, LD, swap=True)
    a("v_readfirstlane_b32 s60, v15\ns_cmp_eq_u32 s60, 0\ns_cbranch_scc1 L_olate")
    stamp(a, 2)
    o_ld(0)
    for k in range(1, 4):
        mlp_body(a, k, 27-5*k, False, LD, swap=True)
        o_ld(k)
    a.lab("L_wo")
    seq = [(db, sb) for db in range(5) for sb in range(4)]
    for st in range(5):
        a(f"s_waitcnt vmcnt({[12, 21, 22, 13, 0][st]})")
        if st == 4: a("s_setprio 3")
        LAG = 5
        for n_ in range(20 + (LAG if st == 4 else 0)):
            if n_ < 20:
                db, sb = seq[n_]; acc = v(MACC+(sb*5+db)*4, 4)
                a(f"v_mfma_f32_16x16x32_bf16 {acc}, {v(192+20*(st%3)+4*db,4)}, {v(MB+20*(st&3)+4*sb,4)}, {acc}")
            if st == 4 and n_ >= LAG:
                db, sb = seq[n_-LAG]
                if n_ == LAG or n_ >= 20: a("s_nop 3" if n_ == LAG else "s_nop 0")
                a(f"ds_write_b128 v12, {v(MACC+(sb*5+db)*4,4)} offset:{sb*5120+db*32}")
        if st == 0: wof_ld(192); o_ld(4)
        if st == 1: wof_ld(212)
    stamp(a, 6); l10(a, 0, 11)
    l10(a, 1, 11)
    a("s_waitcnt lgkmcnt(0)")
    l10(a, 2, 11)
    a("s_barrier")
    l10(a, 3, 11)
    stamp_dump(a, 0)
    a("s_endpgm")
    a.lab("L_olate")
    for k in range(1, 4): mlp_body(a, k, 27-9*k, False, LD, swap=True)
    lds_wait(a, C_OGO, 1, ls=0)
    stamp(a, 2)
    for k in range(4): o_ld(k)
    a("s_branch L_wo")
    a.lab("L_cons")
    kwait(a)
    init_counters(a)
    cons_setup(a)
    a(f"s_setprio {OPT.get('prioc', 2)}\ns_waitcnt lgkmcnt(0)\ns_barrier")
    stamp(a, 2); l10(a, 0, 12)
    a(f"s_cmp_ge_u32 s{SN}, 10\ns_cbranch_scc1 L_consv")
    for vori in (0, 1):
        if vori: a.lab("L_consv")
        cons_loop(a, vori)
        stamp(a, 3); l10(a, 5, 12)
        a("s_setprio 3")
        cons_epi(a, vori)
        l10(a, 6, 12)
        if not vori: a("s_branch L_qdone")
    a.lab("L_qdone")
    ids_late(a)
    a(f"s_mov_b32 s{SHAS1}, 0\ns_lshl_b32 s61, s{SM}, 8\ns_add_u32 s61, s61, {G_Q}")
    arrive(a, C_QA, 4, 61, 15, C_QD)
    l10(a, 7, 12)
    a.lab("L_attn")
    attn2(a)
    a.lab("L_adone")
    a("s_setprio 2")
    a(f"s_lshl_b32 s61, s{SBQ}, 8\ns_add_u32 s61, s61, {G_O}")
    arrive(a, C_OA, 4, 61, 32)
    w = SWAVE
    a(f"s_mov_b32 s{SKW}, s{w}\ns_setprio {OPT.get('priow', 2)}")
    a(f"s_lshl_b32 s65, s{SST}, 6\ns_lshl_b32 s68, s{w}, 4\ns_add_u32 s65, s65, s68\ns_mul_i32 s74, s65, 1280\ns_mul_i32 s68, s{SDT3}, 160\ns_add_u32 s74, s74, s68\ns_lshl_b32 s65, s65, 1")
    a(f"v_lshlrev_b32 v2, 1, v{VL}\ns_mov_b64 exec, 0xffff\nbuffer_load_ushort v16, v2, {s(SB2,4)}, s65 offen\ns_mov_b64 exec, -1")
    for k in range(3):
        a(f"v_add_u32 v2, {64*k}, v{VL}\nv_mul_u32_u24 v3, 205, v2\nv_lshrrev_b32 v3, 11, v3\nv_mul_u32_u24 v4, 1120, v3\nv_lshl_add_u32 v{207+k}, v2, 4, v4\nv_min_u32 v3, 15, v3\nv_lshlrev_b32 v{17+k}, 2, v3")
        if k == 2: a(f"v_cmp_gt_u32 vcc, 32, v{VL}\nv_mov_b32 v4, {OOB}\ns_nop 0\nv_cndmask_b32 v209, v4, v209, vcc")
        a(f"buffer_load_dwordx4 {v(192+4*k,4)}, v{207+k}, {s(SX,4)}, s74 offen")
    go = a.newlab("og")
    a(f"s_cmp_lg_u32 s{w}, 0\ns_cbranch_scc1 {go}")
    a(f"s_lshr_b32 s51, s{SST}, 2\ns_lshl_b32 s51, s51, 8\ns_add_u32 s51, s51, {G_O+128}\nv_mov_b32 v2, 0")
    gpoll(a, 2, SWS, "s51", 1, 1, slp=OPT.get("so", 3))
    lds_set(a, C_OGO)
    a.lab(go)
    stamp(a, 6)
    a(f"s_mul_i32 s65, s{w}, 5120\ns_add_u32 s65, s65, {M1BASE}")
    for k in range(3):
        a(f"v_add_u32 v2, {64*k}, v{VL}\nv_min_u32 v2, 159, v2\nv_mul_u32_u24 v3, 205, v2\nv_bfe_u32 v4, v3, 13, 1\nv_xor_b32 v2, v2, v4\nv_lshlrev_b32 v2, 4, v2\nv_add_u32 v{210+2*k}, s65, v2\nv_add_u32 v{211+2*k}, 2560, v{210+2*k}")
    a("s_waitcnt vmcnt(0)")
    for k in range(3): a(f"ds_bpermute_b32 v{204+k}, v{17+k}, v16")
    a("s_waitcnt lgkmcnt(0)")
    for k in range(3):
        a(f"v_lshlrev_b32 v{204+k}, 16, v{204+k}")
        for q in range(4): a(f"v_lshlrev_b32 v{40+8*k+2*q}, 16, v{192+4*k+q}\nv_and_b32 v{41+8*k+2*q}, 0xffff0000, v{192+4*k+q}")
        for q in range(8): a(f"v_add_f32 v{40+8*k+q}, v{40+8*k+q}, v{204+k}")
    stamp(a, 1)
    a("s_setprio 3\ns_barrier")
    stamp(a, 2, False) if OPT.get("fin") else None; l10(a, 0, 11)
    for k in range(3):
        for src in range(4): a(f"ds_read_b128 {v(96+32*k+8*src,4)}, v{210+2*k} offset:{src*M1STR}\nds_read_b128 {v(100+32*k+8*src,4)}, v{211+2*k} offset:{src*M1STR}")
        if k >= 1:
            a("s_waitcnt lgkmcnt(8)")
            for src in range(4):
                for q in range(4): a(f"v_pk_add_f32 {v(40+8*(k-1)+2*q,2)}, {v(40+8*(k-1)+2*q,2)}, {v(96+32*(k-1)+8*src+2*q,2)}")
            for q in range(4): a(f"v_cvt_pk_bf16_f32 v{16+4*(k-1)+q}, v{40+8*(k-1)+2*q}, v{41+8*(k-1)+2*q}")
            a(f"buffer_store_dwordx4 {v(16+4*(k-1),4)}, v{207+k-1}, {s(SOUT,4)}, s74 offen {OPT.get('outf', 1) and 'sc1' or ''}")
        if k == 1: pass
    a("s_waitcnt lgkmcnt(0)")
    for src in range(4):
        for q in range(4): a(f"v_pk_add_f32 {v(56+2*q,2)}, {v(56+2*q,2)}, {v(160+8*src+2*q,2)}")
    for q in range(4): a(f"v_cvt_pk_bf16_f32 v{24+q}, v{56+2*q}, v{57+2*q}")
    l10(a, 1, 11)
    a(f"buffer_store_dwordx4 v[24:27], v209, {s(SOUT,4)}, s74 offen {OPT.get('outf', 1) and 'sc1' or ''}")
    l10(a, 2, 11)
    if blocks.STAMP: a("s_waitcnt vmcnt(0)")
    l10(a, 3, 11)
    stamp_dump(a, 0)
    a("s_endpgm")
    a.lab("L_end"); a("s_endpgm")
    a('.section .rodata,"a"')
    return a.text() + kd(NAME)
if __name__ == "__main__":
    blocks.STAMP = "stamp" in sys.argv
    for x in sys.argv[2:]:
        if "=" in x: k, val = x.split("="); blocks.OPT[k] = int(val)
    t = gen()
    print("hazards:", hazard_check(t))
    open(sys.argv[1], "w").write(open("hdr.txt").read() + t)
    import subprocess
    r = subprocess.run(["clang", "-x", "assembler", "-target", "amdgcn-amd-amdhsa", "-mcpu=gfx950", "-c", sys.argv[1], "-o", "x.o"], capture_output=True, text=True)
    if r.returncode: print(r.stderr[:1500]); sys.exit(1)
```

```python
import sys
import blocks
from blocks import *
NAME = "parallel_sum__sliding_block__mixer_token_mlp__prompt_kernel"
LDS = 163840
L_LN = 0
L_ST = 147456
L_CSP = L_ST + 2560
OFF_CSP = 0xC000
L_RS = LDS - 352
L_KN = LDS - 272
L_FULL = LDS - 256
L_FREE = L_FULL + 64
C_PUB, C_C1, C_CS, C_QD, C_AI = L_FULL + 128, L_FULL + 132, L_FULL + 136, L_FULL + 140, L_FULL + 144
L_CNT = LDS - 64
C_QA, C_AGO, C_AK, C_OA, C_MP, C_GA, C_W1, C_W2, C_GGO, C_OGO, C_AV, C_WR = [L_CNT + 4*i for i in range(12)]
M1BASE, M1STR = 65536, 20480
G_Q, G_O, G_W, G_G = OFF_FLAG, OFF_FLAG + 8*256, OFF_FLAG + 16*256, OFF_FLAG + 17*256
NCTR = 37
XB, XSTR = 49152, 24576
QS = 49152
OFF_O1, OFF_O2 = OFF_O, OFF_O + 0x200000
ST, LD = "sc1", "sc1"
SM, SN, SROLE, SDT1, SFT, SHAS1, SDT3, SST, SHD, SBQ, SKW = 76, 77, 78, 79, 80, 81, 82, 83, 48, 49, 75

def garrive(a, srd, soff, target, doneoff, L, va=3):
    a(f"v_mov_b32 v{va}, 1\nbuffer_atomic_add v{va}, off, {s(srd,4)}, s{soff} sc0 sc1\ns_waitcnt vmcnt(0)\nv_readfirstlane_b32 s60, v{va}\ns_cmp_lg_u32 s60, {target-1}\ns_cbranch_scc1 {L}")
    a(f"v_mov_b32 v{va}, 1\nbuffer_store_dword v{va}, off, {s(srd,4)}, s{doneoff[0]} offset:{doneoff[1]} sc1")
def arrive(a, lcnt, n, goff_sgpr, target, fin=None):
    L = a.newlab("arr")
    a(f"s_waitcnt vmcnt(0)\nv_mov_b32 v2, {lcnt}\nv_mov_b32 v3, 1\ns_mov_b64 exec, 1\nds_add_rtn_u32 v14, v2, v3\ns_waitcnt lgkmcnt(0)\nv_readfirstlane_b32 s60, v14\ns_cmp_lg_u32 s60, {n-1}\ns_cbranch_scc1 {L}")
    if fin is None: garrive(a, SWS, goff_sgpr, target, (goff_sgpr, 128), L)
    else:
        garrive(a, SWS, goff_sgpr, target, (goff_sgpr, 128), L + "f")
        a.lab(L + "f")
        lds_set(a, fin)
    a.lab(L)
    a("s_mov_b64 exec, -1")
def lds_wait(a, addr, n, vreg=2, ls=None):
    L = a.newlab("lw")
    if addr is not None: a(f"v_mov_b32 v2, {addr}")
    a("s_mov_b32 s47, 0x80000")
    a.lab(L)
    a(f"ds_read_b32 v3, v{vreg}\ns_sub_u32 s47, s47, 1\ns_cbranch_scc1 {L}x\ns_waitcnt lgkmcnt(0)\nv_readfirstlane_b32 s60, v3\ns_cmp_ge_u32 s60, {n}\ns_cbranch_scc1 {L}x\ns_sleep {OPT.get('ls', 3) if ls is None else ls}\ns_branch {L}")
    a.lab(L + "x")
def lds_set(a, addr):
    a(f"v_mov_b32 v2, {addr}\nv_mov_b32 v3, 1\nds_write_b32 v2, v3")
def gpoll(a, vaddr, srd, soff, target, nl, vd=3, slp=None, tgt_reg=False):
    L = a.newlab("gp")
    if tgt_reg: target = hex(target)
    a(f"s_mov_b64 exec, {(1<<nl)-1}\ns_mov_b32 s47, 0x8000")
    a.lab(L)
    a(f"buffer_load_dword v{vd}, v{vaddr}, {s(srd,4)}, {soff} offen sc1\ns_sub_u32 s47, s47, 1\ns_cbranch_scc1 {L}x\ns_waitcnt vmcnt(0)\nv_cmp_ne_u32 vcc, {target}, v{vd}\ns_cbranch_vccz {L}x\ns_sleep {slp or OPT.get('slp', 2)}\ns_branch {L}")
    a.lab(L + "x")
    a("s_mov_b64 exec, -1")
def c1_poll(a, slp=None):
    a(f"v_lshlrev_b32 v2, 2, v{VL}\nv_add_u32 v2, 128, v2")
    gpoll(a, 2, SDBG, 0, 1, 2, slp=slp)

def l10(a, i, m=10):
    if OPT.get("ls9") == m: lstamp(a, i)
def est(a, i):
    if OPT.get("mst") == 3: stamp(a, i, True)
def ast(a, i, cond=None, m=5):
    if OPT.get("mst") != m: return
    if cond is None: stamp(a, i, True); return
    LL = a.newlab("as"); a(f"s_cmp_eq_u32 s59, {cond}\ns_cbranch_scc0 {LL}"); stamp(a, i, True); a.lab(LL)
def fst(a, i):
    if OPT.get("mst") == 4: stamp(a, i, True)
def ids(a):
    x, j = SXCD, SJ
    a(f"s_and_b32 s50, s{x}, 1\ns_mul_i32 s51, s50, 15\ns_add_u32 s51, s51, s{j}\ns_lshr_b32 s{SN}, s51, 1\ns_and_b32 s51, s51, 1\ns_and_b32 s{SM}, s{x}, 6\ns_add_u32 s{SM}, s{SM}, s51")
def ids_late(a):
    x, j = SXCD, SJ
    a(f"s_mul_i32 s57, s{x}, 17\ns_add_u32 s57, s57, s{j}\ns_sub_u32 s57, s57, 15\ns_mul_i32 s{SFT}, s57, 205\ns_lshr_b32 s{SFT}, s{SFT}, 10\ns_mul_i32 s58, s{SFT}, 5\ns_sub_u32 s{SDT1}, s57, s58")
    a(f"s_and_b32 s56, s{x}, 1\ns_lshl_b32 s56, s56, 2\ns_lshr_b32 s58, s{x}, 1")
    a(f"s_and_b32 s57, s{j}, 3\ns_add_u32 s{SDT3}, s56, s57\ns_lshl_b32 s58, s58, 3\ns_lshr_b32 s57, s{j}, 2\ns_xor_b32 s57, s57, {OPT.get('sx', 0)}\ns_add_u32 s{SST}, s58, s57")

def ln_issue(a):
    a(f"s_lshr_b32 s50, s{SXCD}, 1\ns_lshl_b32 s50, s50, 6\ns_and_b32 s51, s{SXCD}, 1\ns_lshl_b32 s51, s51, 5\ns_add_u32 s50, s50, s51\ns_add_u32 s50, s50, s{SJ}")
    a(f"s_lshr_b32 s51, s50, 2\ns_and_b32 s52, s50, 3\ns_lshl_b32 s53, s51, 5\ns_lshl_b32 s54, s52, 2\ns_add_u32 s53, s53, s54")
    a(f"s_lshr_b32 s54, s{SWAVE}, 1\ns_lshl_b32 s54, s54, 4\ns_add_u32 s53, s53, s54\ns_and_b32 s54, s{SWAVE}, 1\ns_lshl_b32 s54, s54, 1\ns_add_u32 s53, s53, s54")
    rows_load(a, SX, SWAVE, 53, 54)
    a(f"s_mul_i32 s55, s51, 5120\ns_lshl_b32 s52, s52, 8\ns_add_u32 s55, s55, s52\ns_add_u32 s55, s55, {OFF_H}")
def init_counters(a):
    L = a.newlab("ic")
    a(f"s_cmp_lg_u32 s{SWAVE}, 0\ns_cbranch_scc1 {L}")
    a(f"v_lshlrev_b32 v6, 2, v{VL}\nv_add_u32 v6, {L_FULL}, v6\nv_mov_b32 v7, 0\nds_write_b32 v6, v7")
    a.lab(L)
def c1_arrive(a):
    L = a.newlab("c1a")
    a(f"s_and_b32 s57, s2, 1\ns_lshl_b32 s56, s57, 6\ns_lshl_b32 s57, s57, 2\ns_mov_b64 exec, 1")
    garrive(a, SDBG, 56, 128, (57, 128), L, va=15)
    a.lab(L)
    a("s_mov_b64 exec, -1")

def loader(a):
    st = 48
    lw, sxo, swo, sm0, t, ko, t2 = st, st+1, st+2, st+3, st+4, st+5, 62
    a(f"s_sub_u32 s{lw}, s{SWAVE}, 4")
    a(f"v_lshrrev_b32 v2, 3, v{VL}\nv_mul_u32_u24 v2, 1280, v2\nv_and_b32 v3, 7, v{VL}\nv_lshrrev_b32 v4, 4, v{VL}\nv_xor_b32 v3, v3, v4\nv_lshl_add_u32 v210, v3, 4, v2\nv_xor_b32 v211, 64, v210")
    a(f"v_mul_u32_u24 v2, 3840, v4\nv_bfe_u32 v3, v{VL}, 2, 2\nv_xor_b32 v3, v3, v4\nv_lshl_add_u32 v2, v3, 6, v2\nv_and_b32 v3, 3, v{VL}\nv_lshl_add_u32 v212, v3, 4, v2")
    a(f"s_lshl_b32 s{sxo}, s{SM}, 8\ns_lshl_b32 s{t}, s{lw}, 6\ns_add_u32 s{sxo}, s{sxo}, s{t}\ns_mul_i32 s{sxo}, s{sxo}, 1280")
    a(f"s_mul_i32 s{swo}, s{lw}, {16*3840}\ns_lshl_b32 s{t}, s{SN}, 8\ns_add_u32 s{swo}, s{swo}, s{t}")
    a(f"s_lshl_b32 s{sm0}, s{lw}, 13\ns_lshl_b32 s67, s{lw}, 12\ns_sub_u32 s67, 32768, s67")
    R = OPT.get("rot", 5)
    if R == 10: a(f"s_mul_i32 s{ko}, s{SM}, 3\ns_add_u32 s{ko}, s{ko}, s{SN}\ns_mul_i32 s{t}, s{ko}, 205\ns_lshr_b32 s{t}, s{t}, 11\ns_mul_i32 s{t}, s{t}, 10\ns_sub_u32 s{ko}, s{ko}, s{t}")
    elif R == 5: a(f"s_add_u32 s{ko}, s{SM}, s{SN}\ns_mul_i32 s{t}, s{ko}, 52\ns_lshr_b32 s{t}, s{t}, 8\ns_mul_i32 s{t}, s{t}, 5\ns_sub_u32 s{ko}, s{ko}, s{t}\ns_lshl_b32 s{ko}, s{ko}, 1")
    else: a(f"s_mov_b32 s{ko}, 0")
    a(f"s_lshl_b32 s{t}, s{ko}, 7\ns_add_u32 s{sxo}, s{sxo}, s{t}\ns_mul_i32 s{t}, s{ko}, 245760\ns_add_u32 s{swo}, s{swo}, s{t}")
    a("s_movk_i32 s65, 128\ns_mov_b32 s66, 245760\ns_mov_b32 s68, 0")
    def stage(extra=""):
        a(f"s_mov_b32 m0, s{sm0}\ns_mov_b32 s{t}, s{sxo}")
        for i in range(8):
            if i == 4: a(f"s_add_u32 m0, s{sm0}, 4096\ns_add_u32 s{t}, s{t}, 4096")
            a(f"buffer_load_dwordx4 v{210+(i&1)}, {s(SX,4)}, s{t} offen offset:{(i&3)*1024} lds")
            if i < 7: a(f"s_add_u32 s{t}, s{t}, 9216")
        a(f"s_add_u32 m0, s{sm0}, s67\ns_add_u32 s{t}, s{swo}, 14336")
        a(f"buffer_load_dwordx4 v212, {s(SWQ,4)}, s{swo} offen lds\nbuffer_load_dwordx4 v212, {s(SWQ,4)}, s{t} offen offset:1024 lds")
        a(f"s_add_u32 s{t}, s{t}, 14336\ns_add_u32 s{t2}, s{t}, 14336")
        a(f"s_add_u32 s68, s68, 1\ns_cmp_eq_u32 s68, 3\ns_cselect_b32 s68, 0, s68\ns_cselect_b32 s63, {-2*QS}, s69\ns_add_u32 s{sm0}, s{sm0}, s63")
        a(f"s_add_u32 s{ko}, s{ko}, 1\ns_cmp_eq_u32 s{ko}, 10\ns_cselect_b32 s63, {128-1280}, s65\ns_cselect_b32 s64, {245760-2457600}, s66\ns_add_u32 s{sxo}, s{sxo}, s63\ns_add_u32 s{swo}, s{swo}, s64")
        a(f"buffer_load_dwordx4 v212, {s(SWQ,4)}, s{t} offen offset:2048 lds")
        if extra: a(extra)
        a(f"buffer_load_dwordx4 v212, {s(SWQ,4)}, s{t2} offen offset:3072 lds")
    a(f"s_mov_b32 s69, {QS}\ns_mul_i32 s59, s{SN}, 2560\ns_lshl_b32 s{t}, s{ko}, 8\ns_add_u32 s59, s59, s{t}\ns_lshl_b32 s{t}, s{lw}, 7\ns_add_u32 s59, s59, s{t}\ns_add_u32 s59, s59, {OFF_CSP}")
    kwait(a)
    a("s_setprio 2"); stage(); a("s_setprio 0"); stage()
    stamp(a, 1)
    ids_late(a)
    a(f"s_mov_b32 s{SKW}, s{lw}\nv_mov_b32 v8, {L_FULL}\nv_mov_b32 v9, 1")
    W4 = OPT.get("ord", 1) == 4 or OPT.get("ab", 0)
    if OPT.get("ab", 0):
        PL = OPT["ab"]
        a(f"s_mul_i32 s70, s{SXCD}, 15\ns_add_u32 s70, s70, s{SJ}\ns_mul_i32 s70, s70, {PL*128}\ns_mul_i32 s71, s{lw}, {16*110592}\ns_add_u32 s70, s70, s71\ns_add_u32 s70, s70, {16*110592 - 120*PL*128}")
        a(f"s_and_b32 s71, s{SJ}, {OPT.get('bk', 1)}\ns_add_u32 s71, s71, {OPT.get('b0', 4)}\ns_add_u32 s72, s71, 2\ns_mov_b32 s73, 99\nv_lshlrev_b32 v12, 7, v{VL}")
    elif W4:
        a(f"s_mul_i32 s70, s{SXCD}, 15\ns_add_u32 s70, s70, s{SJ}\ns_lshl_b32 s70, s70, 2\ns_add_u32 s70, s70, s{lw}")
        for k, d in ((0, 70), (480, 74)):
            a(f"s_add_u32 s54, s70, {k}\ns_lshr_b32 s55, s54, 6\ns_bfe_u32 s56, s54, 0x20004\ns_and_b32 s54, s54, 15\ns_mul_i32 s57, s56, 14\ns_cmp_eq_u32 s56, 3\ns_cselect_b32 s57, 41, s57\ns_add_u32 s55, s55, s57\ns_lshl_b32 s55, s55, 4\ns_add_u32 s54, s54, s55\ns_lshl_b32 s{58 if k == 0 else d}, s54, 13")
        a(f"s_mov_b32 s70, s58\ns_and_b32 s71, s{SJ}, 1\ns_add_u32 s71, s71, {OPT.get('b0', 2)}\ns_add_u32 s72, s71, 2\ns_add_u32 s73, s71, 4\nv_lshlrev_b32 v12, 7, v{VL}")
        a(f"s_lshr_b32 s54, s{SW2}, 7\ns_sub_u32 s54, 3, s54\ns_and_b32 s54, s54, 7\ns_lshl_b32 s54, 0x1010101, s54\ns_not_b32 s61, s54")
    a(f"s_lshl_b32 s54, s{lw}, 12\ns_add_u32 s54, s54, 32768\nv_lshlrev_b32 v2, 4, v{VL}\nv_add_u32 v13, s54, v2")
    a(f"v_lshrrev_b32 v4, 4, v{VL}\nv_bfe_u32 v3, v{VL}, 2, 2\nv_xor_b32 v3, v3, v4\nv_lshlrev_b32 v3, 7, v3\nv_and_b32 v5, 3, v{VL}\nv_lshl_add_u32 v3, v5, 5, v3\nv_lshl_add_u32 v3, v4, 9, v3\ns_lshl_b32 s54, s{lw}, 11\ns_add_u32 s54, s54, {L_CSP}\nv_add_u32 v14, s54, v3")
    a(f"v_and_b32 v5, 31, v{VL}\nv_lshlrev_b32 v5, 2, v5\nv_lshrrev_b32 v10, 5, v{VL}\nv_lshl_add_u32 v10, v10, 12, v5\ns_lshl_b32 s54, s{lw}, 7\ns_add_u32 s54, s54, {L_CSP}\nv_add_u32 v10, s54, v10")
    def job(slot):
        sk = a.newlab("cj")
        a(f"s_cmp_ge_u32 s{SM}, {0 if OPT.get('nojob') else 5}\ns_cbranch_scc1 {sk}")
        for i in range(4): a(f"ds_read_b128 {v(48+4*i,4)}, v13 offset:{slot*QS+i*1024}")
        for i in range(4):
            a(f"s_waitcnt lgkmcnt({3-i})")
            for c in range(4):
                if i == 0 and slot == 0: a(f"v_lshlrev_b32 v{16+2*c}, 16, v{48+c}\nv_and_b32 v{17+2*c}, 0xffff0000, v{48+c}")
                else: a(f"v_lshlrev_b32 v24, 16, v{48+4*i+c}\nv_and_b32 v25, 0xffff0000, v{48+4*i+c}\nv_add_f32 v{16+2*c}, v{16+2*c}, v24\nv_add_f32 v{17+2*c}, v{17+2*c}, v25")
        if slot == 1: a("ds_write_b128 v14, v[16:19]\nds_write_b128 v14, v[20:23] offset:16\ns_waitcnt lgkmcnt(0)")
        a.lab(sk)
    def bar(k):
        if not W4: a("s_waitcnt vmcnt(12)\ns_barrier"); return
        x_ = a.newlab("bw")
        a(f"s_cmp_eq_u32 s72, {k}\ns_cbranch_scc1 {x_}\ns_cmp_eq_u32 s73, {k}\ns_cbranch_scc1 {x_}\ns_waitcnt vmcnt(12)")
        a.lab(x_)
        a("s_waitcnt vmcnt(13)\ns_barrier")
    def after(k):
        if not W4: return
        if OPT.get("ab", 0):
            x_ = a.newlab("bu")
            a(f"s_cmp_lg_u32 s71, {k}\ns_cbranch_scc1 {x_}\ns_mov_b32 exec_hi, {(1 << (OPT['ab']-32)) - 1}\nbuffer_load_dword v255, v12, {s(SW1,4)}, s70 offen\ns_mov_b64 exec, -1")
            a.lab(x_)
            return
        for r, o in ((71, 70), (72, 74)):
            x_ = a.newlab("bu")
            a(f"s_cmp_lg_u32 s{r}, {k}\ns_cbranch_scc1 {x_}\ns_mov_b32 exec_lo, s61\ns_mov_b32 exec_hi, s61\nbuffer_load_dword v255, v12, {s(SW2,4)}, s{o} offen\ns_mov_b64 exec, -1")
            a.lab(x_)
    a("s_waitcnt vmcnt(12)\ns_barrier"); stage(); job(0)
    a("s_waitcnt vmcnt(12)"); job(1); a("s_barrier")
    sk = a.newlab("cb")
    a(f"s_cmp_ge_u32 s{SM}, 5\ns_cbranch_scc1 {sk}")
    for k in range(8): a(f"ds_read_b32 v{16+k}, v10 offset:{k*512}")
    a("s_waitcnt lgkmcnt(0)")
    for k in range(1, 8): a(f"v_add_f32 v16, v16, v{16+k}")
    a(f"v_mov_b32 v17, v16\ns_nop 1\nv_permlane32_swap_b32 v16, v17\nv_add_f32 v16, v16, v17\ns_mov_b32 exec_hi, 0\nbuffer_store_dword v16, v5, {s(SWS,4)}, s59 offen sc1\ns_mov_b64 exec, -1")
    a.lab(sk)
    stage(); after(1)
    a("s_waitcnt vmcnt(12)\ns_barrier")
    n1 = a.newlab("n1"); n3 = a.newlab("n3")
    a(f"s_cmp_lg_u32 s{lw}, 3\ns_cbranch_scc1 {n1}\ns_cmp_ge_u32 s{SM}, 5\ns_cbranch_scc1 {n1}\ns_mov_b64 exec, 1\nv_mov_b32 v15, 1\nbuffer_atomic_add v15, off, {s(SDBG,4)}, 0 offset:96 sc0 sc1\ns_mov_b64 exec, -1")
    a.lab(n1)
    stage(); after(2)
    a(f"s_cmp_lg_u32 s{lw}, 3\ns_cbranch_scc1 {n3}\ns_cmp_ge_u32 s{SM}, 5\ns_cbranch_scc1 {n3}\ns_waitcnt vmcnt(12)\nv_readfirstlane_b32 s60, v15\ns_cmp_lg_u32 s60, 74\ns_cbranch_scc1 {n3}")
    a(f"s_mov_b64 exec, 1\nbuffer_store_dword v9, off, {s(SDBG,4)}, 0 offset:136 sc1\ns_mov_b64 exec, -1")
    a.lab(n3)
    for k in range(3, 6):
        bar(k); stage(); after(k)
    bar(6)
    n0 = a.newlab("n0"); n2 = a.newlab("n0")
    a(f"s_cmp_lg_u32 s{lw}, 0\ns_cbranch_scc1 {n0}\nv_lshlrev_b32 v2, 2, v{VL}\nv_add_u32 v2, 128, v2\ns_mov_b64 exec, 7\nbuffer_load_dword v3, v2, {s(SDBG,4)}, 0 offen sc1\ns_mov_b64 exec, -1")
    a.lab(n0)
    stage()
    a(f"s_cmp_lg_u32 s{lw}, 0\ns_cbranch_scc1 {n2}\ns_waitcnt vmcnt(12)\ns_mov_b64 exec, 7\nv_cmp_ne_u32 vcc, 1, v3\ns_mov_b64 exec, -1\ns_cbranch_vccz {n2}")
    gpoll(a, 2, SDBG, 0, 1, 3)
    a.lab(n2)
    bar(7)
    nst = a.newlab("nst"); cs = a.newlab("ncs")
    a(f"v_lshlrev_b32 v4, 4, v{VL}\ns_cmp_eq_u32 s{lw}, 3\ns_cbranch_scc1 {nst}\ns_cmp_eq_u32 s{lw}, 2\ns_cbranch_scc1 {cs}")
    a(f"s_lshl_b32 s54, s{SM}, 10\ns_lshl_b32 s55, s{lw}, 13\ns_add_u32 s54, s54, s55\ns_lshl_b32 s55, s{lw}, 10\ns_add_u32 m0, s55, {L_ST}\ns_nop 0\nbuffer_load_dwordx4 v4, {s(SWS,4)}, s54 offen sc1 lds\ns_branch {nst}")
    a.lab(cs)
    a(f"s_mul_i32 s54, s{SN}, 2560\ns_add_u32 s54, s54, {OFF_CSP}\nv_cmp_gt_u32 vcc, 32, v{VL}\nv_mov_b32 v5, {OOB}\ns_nop 0\nv_cndmask_b32 v5, v5, v4, vcc")
    for k in range(3): a(f"buffer_load_dwordx4 {v(16+4*k,4)}, v{4 if k < 2 else 5}, {s(SWS,4)}, s54 offen offset:{k*1024} sc1")
    a.lab(nst)
    stage()
    wof_issue(a)
    W2 = OPT.get("w2m", 0); np_ = 5
    if OPT.get("w1e"):
        a(f"s_lshl_b32 s63, s61, 2\ns_add_u32 s63, s63, s{SKW}")
        prefetch(a, 63, 480, OPT.get('npb', 896), OPT.get('npb', 896) + 480); np_ += 1
    if W2 in (1, 3, 5):
        a(f"s_lshl_b32 s63, s61, 2\ns_add_u32 s63, s63, s{SKW}")
        if W2 == 5: prefetch(a, 63, 480, NB1 + 256, NB1 + 256 + 960); np_ += 2
        else: prefetch(a, 63, 480, NB1, NB1 + 480); np_ += 1
    sk = a.newlab("sk")
    a(f"s_waitcnt vmcnt({12+np_})\ns_cmp_lg_u32 s{lw}, 2\ns_cbranch_scc1 {sk}")
    a(f"v_and_b32 v2, 31, v{VL}\nv_lshlrev_b32 v2, 4, v2\nv_add_u32 v2, {L_ST+2048}, v2")
    for k in range(1, 3):
        for q in range(2): a(f"v_pk_add_f32 {v(16+2*q,2)}, {v(16+2*q,2)}, {v(16+4*k+2*q,2)}")
    for q in range(4): a(f"v_mov_b32 v{20+q}, v{16+q}")
    a("s_nop 0")
    for q in range(4): a(f"v_permlane32_swap_b32 v{16+q}, v{20+q}")
    for q in range(2): a(f"v_pk_add_f32 {v(16+2*q,2)}, {v(16+2*q,2)}, {v(20+2*q,2)}")
    a("ds_write_b128 v2, v[16:19]\ns_waitcnt lgkmcnt(0)")
    a.lab(sk)
    a(f"s_barrier\ns_waitcnt vmcnt({np_})\ns_barrier")

CA, CF, CS_, CONE = 64, 16, 192, 208
L_CSX = L_ST + 2048
def cons_setup(a):
    a(f"s_lshr_b32 s48, s{SWAVE}, 1\ns_and_b32 s49, s{SWAVE}, 1")
    a(f"v_and_b32 v2, 31, v{VL}\nv_lshrrev_b32 v3, 5, v{VL}\nv_bfe_u32 v4, v{VL}, 1, 3")
    a(f"s_lshl_b32 s50, s48, 14\nv_lshlrev_b32 v5, 7, v2\nv_add_u32 v5, s50, v5")
    for ks in range(4): a(f"v_or_b32 v6, {2*ks}, v3\nv_xor_b32 v6, v6, v4\nv_lshl_add_u32 v{8+ks}, v6, 4, v5")
    a(f"v_bfe_u32 v4, v{VL}, 2, 2\nv_lshl_add_u32 v5, v3, 3, v4\nv_lshlrev_b32 v5, 8, v5\nv_bfe_u32 v6, v{VL}, 4, 1\nv_lshl_add_u32 v5, v6, 5, v5\nv_and_b32 v6, 3, v{VL}\nv_lshl_add_u32 v5, v6, 3, v5\nv_add_u32 v5, 32768, v5\ns_lshl_b32 s50, s49, 1")
    for cf in range(2): a(f"s_xor_b32 s51, s48, {cf}\ns_add_u32 s51, s50, s51\nv_xor_b32 v6, s51, v4\nv_lshl_add_u32 v{12+cf}, v6, 6, v5")
    for i in range(128): a(f"v_mov_b32 v{CA+i}, 0")
def cons_loop(a, vori):
    L = a.newlab("qloop"); last = a.newlab("qlast"); s9 = a.newlab("qs9"); s9b = a.newlab("qs9b")
    def rd(ks, buf, which, half=None):
        b = CF + 24*buf; i = int(which[1])
        if which[0] == "x": a(f"ds_read_b128 {v(b+4*i,4)}, v{8+ks} offset:{i*4096}")
        else:
            for r in (range(2) if half is None else (half,)): a(f"ds_read_b64_tr_b16 {v(b+16+4*i+2*r,2)}, v{12+i} offset:{ks*4096+r*1024}")
    def mf(buf, i, cf):
        b = CF + 24*buf; acc = v(CA + 16*(2*i+cf), 16); X = v(b+4*i, 4); W = v(b+16+4*cf, 4)
        a(f"v_mfma_f32_32x32x16_bf16 {acc}, {X+', '+W if vori else W+', '+X}, {acc}")
    def csum(buf):
        return
        W = v(CF+24*buf+16, 4); O = v(CONE, 4)
        a(f"v_mfma_f32_32x32x16_bf16 {v(CS_,16)}, {O+', '+W if vori else W+', '+O}, {v(CS_,16)}")
    order = ("x0", "w0", "w1", "x1", "x2", "x3")
    for w in order: rd(0, 0, w)
    a(f"s_mov_b32 s50, 0\ns_mov_b32 s51, 0\ns_mov_b32 s52, {QS}")
    a(".p2align 3")
    a.lab(L)
    for ks in range(4):
        buf = ks & 1; nb = buf ^ 1
        if ks < 3:
            n = ks + 1
            a("s_waitcnt lgkmcnt(5)"); mf(buf, 0, 0); rd(n, nb, "x0")
            a("s_waitcnt lgkmcnt(4)"); mf(buf, 0, 1); rd(n, nb, "w0", 0)
            a("s_waitcnt lgkmcnt(4)"); mf(buf, 1, 0); rd(n, nb, "w0", 1); mf(buf, 1, 1); rd(n, nb, "w1", 0)
            a("s_waitcnt lgkmcnt(5)"); mf(buf, 2, 0); rd(n, nb, "w1", 1); mf(buf, 2, 1); rd(n, nb, "x1")
            a("s_waitcnt lgkmcnt(6)"); mf(buf, 3, 0); rd(n, nb, "x2"); mf(buf, 3, 1); rd(n, nb, "x3"); csum(buf)
        else:
            a("s_waitcnt lgkmcnt(5)"); mf(buf, 0, 0)
            a(f"s_cmp_eq_u32 s50, 9\ns_cbranch_scc1 {last}\ns_add_u32 s51, s51, 1\ns_cmp_eq_u32 s51, 3")
            a("s_waitcnt lgkmcnt(3)"); mf(buf, 0, 1)
            a(f"s_cselect_b32 s51, 0, s51\ns_cselect_b32 s53, {-2*QS}, s52")
            for r in range(8, 11): a(f"v_add_u32 v{r}, s53, v{r}")
            a("s_waitcnt lgkmcnt(2)"); mf(buf, 1, 0)
            for r in range(11, 14): a(f"v_add_u32 v{r}, s53, v{r}")
            a("s_waitcnt lgkmcnt(0)"); mf(buf, 1, 1)
            a("s_barrier")
            rd(0, nb, "x0"); rd(0, nb, "w0", 0); mf(buf, 2, 0); rd(0, nb, "w0", 1); rd(0, nb, "w1", 0); mf(buf, 2, 1); rd(0, nb, "w1", 1); rd(0, nb, "x1")
            mf(buf, 3, 0); rd(0, nb, "x2"); rd(0, nb, "x3"); a("s_add_u32 s50, s50, 1"); mf(buf, 3, 1); csum(buf)
            if OPT.get("ls9") == 12:
                for c in range(1, 5):
                    LL = a.newlab("cs"); a(f"s_cmp_eq_u32 s50, {2*c}\ns_cbranch_scc0 {LL}"); lstamp(a, c); a.lab(LL)
    a(f"s_branch {L}")
    a.lab(last)
    a("s_waitcnt lgkmcnt(0)")
    csum(1)
    for i, cf in ((0, 1), (1, 0), (1, 1), (2, 0), (2, 1), (3, 0), (3, 1)): mf(1, i, cf)
def cons_epi(a, vori):
    ws = s(SWS, 4)
    a(f"s_lshl_b32 s50, s{SM}, 3\ns_lshl_b32 s51, s48, 2\ns_add_u32 s50, s50, s51\ns_mul_i32 s50, s50, 40960")
    a(f"s_lshl_b32 s53, s{SN}, 7\ns_lshl_b32 s54, s49, 6\ns_add_u32 s53, s53, s54")
    a(f"s_lshl_b32 s51, s48, 9\ns_add_u32 s51, s51, {L_ST}\ns_lshl_b32 s54, s49, 8\ns_lshl_b32 s55, s48, 7\ns_add_u32 s54, s54, s55\ns_add_u32 s54, s54, {L_CSX}")
    a(f"v_and_b32 v14, 31, v{VL}\nv_lshrrev_b32 v15, 5, v{VL}\nv_lshlrev_b32 v4, 2, v14\nv_lshlrev_b32 v5, 4, v15")
    if not vori:
        a("v_add_u32 v4, s51, v4\nv_add_u32 v5, s54, v5\nv_xor_b32 v8, 128, v5")
        for k in range(4): a(f"ds_read_b128 {v(CS_+4*k,4)}, v5 offset:{k*32}\nds_read_b128 {v(32+4*k,4)}, v8 offset:{k*32}")
        for i in range(4): a(f"ds_read_b32 v{16+2*i}, v4 offset:{i*128}\nds_read_b32 v{24+2*i}, v4 offset:{1024+i*128}")
        a(f"s_cmp_lt_u32 s{SN}, 5\ns_cselect_b32 s55, {hexf(QSCALE)}, 1.0\ns_cselect_b32 s56, 0, {OFF_K - OFF_Q - 160*256}\ns_add_u32 s56, s56, {OFF_Q}\ns_add_u32 s56, s56, s50\ns_lshl_b32 s57, s53, 6\ns_add_u32 s56, s56, s57")
        a("v_lshlrev_b32 v4, 3, v14\nv_lshl_add_u32 v4, v15, 8, v4\ns_lshl_b32 s57, s48, 11\nv_add_u32 v4, s57, v4\nv_xor_b32 v5, 2048, v4\nv_lshlrev_b32 v6, 4, v1\nv_add_u32 v6, s57, v6\nv_xor_b32 v7, 2048, v6\ns_waitcnt lgkmcnt(0)")
        for r in range(16, 32, 2): a(f"v_mul_f32 v{r}, s55, v{r}")
        for i in range(4):
            for cf in range(2):
                b = CA + 16*(2*i+cf); cs = CS_ if cf == 0 else 32
                for p in range(8): a(f"v_pk_mul_f32 {v(b+2*p,2)}, {v(b+2*p,2)}, {v(16+2*i,2)} op_sel_hi:[1,0]")
                for p in range(8): a(f"v_pk_fma_f32 {v(b+2*p,2)}, {v(cs+2*p,2)}, {v(24+2*i,2)}, {v(b+2*p,2)} op_sel_hi:[1,0,1] neg_lo:[0,1,0] neg_hi:[0,1,0]")
                for p in range(8): a(f"v_cvt_pk_bf16_f32 v{b+p}, v{b+2*p}, v{b+2*p+1}")
                if OPT.get("hst"):
                    for q in range(2): a(f"buffer_store_dwordx4 {v(b+4*q,4)}, v{6+cf}, {ws}, s56 offen offset:{q*1024} {ST}")
                else:
                    for q in range(4): a(f"buffer_store_dwordx2 {v(b+2*q,2)}, v{4+cf}, {ws}, s56 offen offset:{(2*q)*256} {ST}")
            if i < 3: a("s_add_u32 s56, s56, 40960")
    else:
        a(f"v_add_u32 v4, s54, v4\nv_add_u32 v9, s51, v5\nv_xor_b32 v8, 128, v4")
        a(f"ds_read_b32 v{CS_}, v4\nds_read_b32 v{CS_+2}, v8")
        a(f"s_lshl_b32 s56, s53, 4\ns_add_u32 s56, s56, s50\ns_add_u32 s56, s56, {OFF_V - 1280*16}\ns_add_u32 s57, s56, 20480")
        a("v_mul_u32_u24 v4, 10240, v15\nv_lshl_add_u32 v4, v14, 4, v4\ns_lshl_b32 s55, s48, 9\nv_add_u32 v4, s55, v4\nv_xor_b32 v5, 512, v4")
        def st(i):
            for k in range(4): a(f"ds_read_b128 {v(16+4*k,4) if not i & 1 else v(212+4*k,4)}, v9 offset:{i*128+k*32}\nds_read_b128 {v(32+4*k,4) if not i & 1 else v(228+4*k,4)}, v9 offset:{1024+i*128+k*32}")
        st(0)
        for i in range(4):
            if i < 3: st(i+1)
            a(f"s_waitcnt lgkmcnt({8 if i < 3 else 0})")
            Rr, RM = (16, 32) if not i & 1 else (212, 228)
            for cf in range(2):
                b = CA + 16*(2*i+cf)
                for p in range(8): a(f"v_pk_mul_f32 {v(b+2*p,2)}, {v(b+2*p,2)}, {v(Rr+2*p,2)}")
                for p in range(8): a(f"v_pk_fma_f32 {v(b+2*p,2)}, {v(RM+2*p,2)}, {v(CS_+2*cf,2)}, {v(b+2*p,2)} op_sel_hi:[1,0,1] neg_lo:[0,1,0] neg_hi:[0,1,0]")
                for p in range(8): a(f"v_cvt_pk_bf16_f32 v{b+p}, v{b+2*p}, v{b+2*p+1}")
                for m in range(2): a(f"buffer_store_dwordx4 {v(b+4*m,4)}, v{4+cf}, {ws}, s{56+m} offen {ST}")
            if i < 3: a("s_add_u32 s56, s56, 40960\ns_add_u32 s57, s57, 40960")

NA, NB_ = 144, 160
def n_dir(a, slot, c):
    r = NB_ + 32*slot + 4*c
    a(f"buffer_load_dwordx4 {v(r,4)}, v{MSK}, {s(SWS,4)}, s{S_DO} offen offset:{(c&1)*2048} {LD}")
    if c & 1: a(f"s_add_u32 s{S_DO}, s{S_DO}, {'s70' if c == 3 else 's71' if c == 7 else 4096}")
def n_last(a, slot):
    a("s_waitcnt vmcnt(0)")
    for fb in range(4):
        for rd in range(2): a(f"ds_read_b64_tr_b16 {v(NA+4*fb+2*rd,2)}, v{MTR+fb} offset:{slot*4096+rd*2048}")
    a(f"v_add_u32 v10, s66, v{MDIR}\ns_setprio 3\ns_waitcnt lgkmcnt(0)")
    out = [(g, c, (g*4+c-4)*1024) for g in range(2) for c in range(4, 8)] + [(g, c, 8192+((g-2)*8+c)*1024) for g in range(2, 4) for c in range(8)]
    own = [(g, c, None) for g in range(2) for c in range(4)]
    seq = out + own
    LAG = 5
    for n_ in range(len(seq) + LAG):
        if n_ < len(seq):
            g, c, _ = seq[n_]; acc = v(16 + (g*8+c)*4, 4)
            a(f"v_mfma_f32_16x16x32_bf16 {acc}, {v(NA+4*g,4)}, {v(NB_+32*slot+4*c,4)}, {acc}")
        if LAG <= n_ < len(out) + LAG:
            g, c, off = seq[n_-LAG]
            if n_ == LAG: a("s_nop 3")
            a(f"ds_write_b128 v10, {v(16+(g*8+c)*4,4)} offset:{off}")
def n_body(a, slot, wait, loads):
    a(f"s_waitcnt vmcnt({wait})")
    for fb in range(4):
        for rd in range(2): a(f"ds_read_b64_tr_b16 {v(NA+4*fb+2*rd,2)}, v{MTR+fb} offset:{slot*4096+rd*2048}")
    a("s_waitcnt lgkmcnt(0)")
    if loads: mlp_dma(a, slot)
    for c in range(8):
        for fb in range(4):
            acc = v(16 + (fb*8+c)*4, 4)
            a(f"v_mfma_f32_16x16x32_bf16 {acc}, {v(NA+4*fb,4)}, {v(NB_+32*slot+4*c,4)}, {acc}")
        if loads: n_dir(a, slot, c)
def n_epi(a):
    kw = SKW; ws = s(SWS, 4)
    l10(a, 1)
    a(f"v_mov_b32 v8, v{MSK}")
    for n_, (x_, off) in enumerate(((1, 0), (2, 8192), (3, 8192+4096))):
        a(f"s_xor_b32 s68, s{kw}, {x_}\ns_mul_i32 s68, s68, {XSTR}\ns_add_u32 s68, s68, {XB+off}\nv_add_u32 v{11+n_}, s68, v{MDIR}")
    a(f"s_lshl_b32 s65, s{SFT}, 1\ns_lshr_b32 s69, s{kw}, 1\ns_add_u32 s65, s65, s69\ns_mul_i32 s65, s65, 10240\ns_add_u32 s65, s65, {OFF_G}")
    a(f"s_lshl_b32 s69, s{SDT1}, 3\ns_and_b32 s68, s{kw}, 1\ns_lshl_b32 s68, s68, 2\ns_add_u32 s69, s69, s68")
    for k in range(4):
        a(f"s_add_u32 s68, s69, {k}\ns_mul_i32 s70, s68, 52\ns_lshr_b32 s70, s70, 8\ns_mul_i32 s70, s70, {54*10240-10240}\ns_lshl_b32 s68, s68, 11\ns_add_u32 s70, s70, s68\ns_add_u32 s{50+k}, s70, s65")
    a(f"s_mov_b32 s72, {hexf(GC2)}\ns_mov_b32 s73, {hexf(GC2)}\nv_mov_b32 v14, {hexf(GC1)}\nv_mov_b32 v15, v14")
    lds_sync(a, C_MP, 4, ls=0)
    l10(a, 2)
    def rd(k):
        for n_ in range(3):
            for g in range(2): a(f"ds_read_b128 {v(160+24*k+8*n_+4*g,4)}, v{11+n_} offset:{g*(4096 if n_ == 0 else 8192)+k*1024}")
    rd(0); rd(1)
    for k in range(4):
        if k < 2: rd(k+2)
        a(f"s_waitcnt lgkmcnt({[12, 12, 6, 0][k]})")
        U = [16+4*k, 16+4*k+2, 48+4*k, 48+4*k+2]; T = 144
        for n_ in range(3):
            for q in range(4): a(f"v_pk_add_f32 {v(U[q],2)}, {v(U[q],2)}, {v(160+24*k+8*n_+2*q,2)}")
        for q in range(4): a(f"v_pk_mul_f32 {v(T+2*q,2)}, {v(U[q],2)}, {v(U[q],2)}")
        for q in range(4): a(f"v_pk_fma_f32 {v(T+2*q,2)}, {v(T+2*q,2)}, s[72:73], v[14:15]")
        for q in range(4): a(f"v_pk_mul_f32 {v(T+2*q,2)}, {v(T+2*q,2)}, {v(U[q],2)}")
        for q in range(8): a(f"v_exp_f32 v{T+q}, v{T+q}")
        a("s_nop 0")
        for q in range(4): a(f"v_pk_add_f32 {v(T+2*q,2)}, {v(T+2*q,2)}, 1.0 op_sel_hi:[1,0]")
        for q in range(8): a(f"v_rcp_f32 v{T+q}, v{T+q}")
        a("s_nop 0")
        for q in range(4): a(f"v_pk_mul_f32 {v(T+2*q,2)}, {v(T+2*q,2)}, {v(U[q],2)}")
        for q in range(4): a(f"v_cvt_pk_bf16_f32 v{152+4*(k&1)+q}, v{T+2*q}, v{T+2*q+1}")
        a(f"buffer_store_dwordx4 {v(152+4*(k&1),4)}, v8, {ws}, s{50+k} offen {ST}")
        if k == 1: l10(a, 3)

NB1, NB2 = 16*56, 14*64
def prefetch(a, sid, nw, n0, n1, thr=None, mask=None):
    L = a.newlab("pf"); w2 = a.newlab("pfw"); nx = a.newlab("pfn"); done = a.newlab("pfd")
    a(f"v_lshlrev_b32 v4, 7, v{VL}\ns_add_u32 s50, s{sid}, {n0}")
    if mask: a(f"s_mov_b32 exec_lo, s{mask}\ns_mov_b32 exec_hi, s{mask}")
    a.lab(L)
    a(f"s_cmp_ge_u32 s50, {n1}\ns_cbranch_scc1 {done}\ns_cmp_ge_u32 s50, {NB1}\ns_cbranch_scc1 {w2}")
    a(f"s_mul_i32 s51, s50, 1171\ns_lshr_b32 s51, s51, 16\ns_mul_i32 s52, s51, 56\ns_sub_u32 s52, s50, s52")
    a(f"s_mul_i32 s53, s52, 37\ns_lshr_b32 s53, s53, 9\ns_mul_i32 s54, s53, 14\ns_sub_u32 s52, s52, s54")
    a(f"s_lshl_b32 s53, s53, 4\ns_add_u32 s51, s51, s53\ns_mul_i32 s51, s51, 110592\ns_lshl_b32 s52, s52, 13\ns_add_u32 s51, s51, s52")
    a(f"buffer_load_dword v255, v4, {s(SW1,4)}, s51 offen\ns_branch {nx}")
    a.lab(w2)
    a(f"s_sub_u32 s51, s50, {NB1}\ns_lshr_b32 s52, s51, 6\ns_bfe_u32 s53, s51, 0x20004\ns_and_b32 s51, s51, 15")
    a(f"s_mul_i32 s54, s53, 14\ns_cmp_eq_u32 s53, 3\ns_cselect_b32 s54, 41, s54\ns_add_u32 s52, s52, s54\ns_lshl_b32 s52, s52, 4\ns_add_u32 s51, s51, s52\ns_lshl_b32 s51, s51, 13")
    a(f"buffer_load_dword v255, v4, {s(SW2,4)}, s51 offen")
    a.lab(nx)
    if thr is not None: a(f"s_waitcnt vmcnt({thr})")
    a(f"s_add_u32 s50, s50, {nw}\ns_branch {L}")
    a.lab(done)
    if mask: a("s_mov_b64 exec, -1")

L_WS = L_ST + 2560
def wof_issue(a):
    a(f"s_mul_i32 s61, s{SXCD}, 15\ns_add_u32 s61, s61, s{SJ}")
    a(f"s_lshr_b32 s51, s61, 2\ns_and_b32 s52, s61, 3\ns_mul_i32 s53, s51, 52\ns_lshr_b32 s53, s53, 8\ns_mul_i32 s54, s53, 5\ns_sub_u32 s54, s51, s54")
    a(f"s_lshl_b32 s56, s53, 4\ns_lshl_b32 s57, s54, 2\ns_add_u32 s56, s56, s57\ns_add_u32 s56, s56, s52")
    a(f"s_lshr_b32 s57, s56, 1\ns_mul_i32 s57, s57, 20\ns_and_b32 s56, s56, 1\ns_lshl_b32 s56, s56, 2\ns_add_u32 s56, s56, s57")
    a(f"s_lshl_b32 s57, s53, 3\ns_lshl_b32 s58, s52, 1\ns_add_u32 s57, s57, s58\ns_mul_i32 s57, s57, 20\ns_add_u32 s57, s57, 16")
    a(f"s_cmp_eq_u32 s54, 4\ns_cselect_b32 s56, s57, s56\ns_cselect_b32 s57, 20, 8\ns_cmp_ge_u32 s{SKW}, 2\ns_cselect_b32 s57, s57, 0\ns_add_u32 s56, s56, s57")
    a(f"s_and_b32 s57, s{SKW}, 1\ns_lshl_b32 s57, s57, 1\ns_add_u32 s53, s56, s57\ns_mul_i32 s54, s53, 1280")
    a(f"v_lshrrev_b32 v2, 5, v{VL}\nv_and_b32 v3, 31, v{VL}\nv_mul_u32_u24 v6, 1280, v2\nv_lshl_add_u32 v7, v3, 3, v6\nv_lshl_add_u32 v6, v3, 4, v6")
    a(f"buffer_load_dwordx4 v[32:35], v6, {s(SWO,4)}, s54 offen\nbuffer_load_dwordx4 v[36:39], v6, {s(SWO,4)}, s54 offen offset:512\nbuffer_load_dwordx2 v[40:41], v7, {s(SWO,4)}, s54 offen offset:1024")
    a(f"s_mul_i32 s55, s51, 5120\ns_lshl_b32 s52, s52, 8\ns_add_u32 s55, s55, s52\ns_add_u32 s62, s55, {OFF_WOF}")
    a(f"s_lshr_b32 s51, s{SW2}, 7\ns_sub_u32 s51, 3, s51\ns_and_b32 s51, s51, 7\ns_lshl_b32 s51, s51, 7\nv_lshrrev_b32 v2, 3, v{VL}\nv_lshlrev_b32 v2, 12, v2\nv_and_b32 v3, 7, v{VL}\nv_lshl_add_u32 v6, v3, 4, v2")
    for k in range(2):
        a(f"s_lshl_b32 s52, s61, 2\ns_add_u32 s52, s52, s{SKW}\ns_add_u32 s52, s52, {480*k}\ns_lshl_b32 s{63+k}, s52, 11\ns_add_u32 s{63+k}, s{63+k}, {OFF_W2C}")
        a(f"s_mul_i32 s53, s52, 4855\ns_lshr_b32 s53, s53, 20\ns_mul_i32 s54, s53, 216\ns_sub_u32 s54, s52, s54\ns_lshl_b32 s54, s54, 15\ns_lshl_b32 s53, s53, 10\ns_add_u32 s54, s54, s53\ns_add_u32 s54, s54, s51")
        a(f"s_cmp_ge_u32 s52, 864\ns_cselect_b32 s54, {OOB}, s54\ns_cselect_b32 s{63+k}, {OOB}, s{63+k}\nbuffer_load_dwordx4 {v(44+4*k,4)}, v6, {s(SW2,4)}, s54 offen")
def wof_finish(a):
    skip_off(a, 10)
    a(f"s_waitcnt vmcnt(0)\nbuffer_store_dwordx4 v[44:47], v10, {s(SWS,4)}, s63 offen {ST}\nbuffer_store_dwordx4 v[48:51], v10, {s(SWS,4)}, s64 offen {ST}\ns_cmp_ge_u32 s61, 80\ns_cbranch_scc1 L_nowof")
    trs_prep(a, SKW, L_WS, 102400, 54, 214)
    a(f"v_lshrrev_b32 v2, 5, v{VL}\nv_and_b32 v3, 31, v{VL}")
    a(f"s_mul_i32 s54, s{SKW}, 2688\ns_add_u32 s54, s54, {L_WS}\nv_mul_u32_u24 v4, 1344, v2\nv_add_u32 v4, s54, v4\nv_lshl_add_u32 v5, v3, 3, v4\nv_lshl_add_u32 v4, v3, 4, v4")
    a("ds_write_b128 v4, v[32:35]\nds_write_b128 v4, v[36:39] offset:512\nds_write_b64 v5, v[40:41] offset:1024")
    lds_sync(a, C_MP, 4, ls=1)
    trs_go(a, SKW, 62, 214)
    a.lab("L_nowof")
    a(f"s_mov_b32 s61, {G_W}")
    arrive(a, C_W1, 4, 61, 120)

def attn_setup(a):
    pass
def attn2(a):
    ws = s(SWS, 4); w = SWAVE; shd, sb = SHD, SBQ
    KB, VB = 0, 20480
    attn_ids(a, shd, sb)
    a(f"s_lshl_b32 s50, s{sb}, 3\ns_sub_u32 s51, s50, 8\ns_cmp_eq_u32 s{sb}, 0\ns_cselect_b32 s52, 0, s51\ns_cmp_ge_u32 s{w}, 2\ns_cselect_b32 s51, s51, s52\ns_lshl_b32 s52, s{w}, 2\ns_add_u32 s51, s51, s52\ns_mul_i32 s51, s51, 40960")
    attn_masks(a)
    a(f"v_and_b32 v2, 31, v{VL}\nv_lshrrev_b32 v3, 5, v{VL}\nv_lshlrev_b32 v4, 3, v2\nv_lshl_add_u32 v5, v3, 9, v4\nv_mov_b32 v6, {OOB}\nv_cmp_eq_u32 vcc, 0, v3\ns_nop 1\nv_cndmask_b32 v6, v6, v4, vcc")
    a(f"s_add_u32 s52, s50, s{w}\ns_mul_i32 s53, s52, 40960\ns_mul_i32 s54, s{shd}, 1280\ns_add_u32 s53, s53, s54\ns_add_u32 s62, s53, {OFF_Q}\ns_add_u32 s63, s62, {4*40960}")
    a(f"s_lshl_b32 s56, s52, 15\ns_lshl_b32 s53, s{shd}, 10\ns_add_u32 s56, s56, s53\ns_add_u32 s56, s56, {OFF_O1}")
    a(f"s_lshl_b32 s61, s52, 13\ns_lshl_b32 s53, s{shd}, 8\ns_add_u32 s61, s61, s53\ns_add_u32 s61, s61, {OFF_O2}")
    a(f"s_add_u32 s64, s54, s51\ns_add_u32 s64, s64, {OFF_K}\ns_mov_b32 s55, 39680")
    for i in range(5):
        a(f"v_add_u32 v{16+i}, {64*i}, v{VL}\nv_mul_u32_u24 v{16+i}, 205, v{16+i}\nv_lshrrev_b32 v{16+i}, 14, v{16+i}\nv_mul_u32_u24 v{16+i}, s55, v{16+i}\nv_lshl_add_u32 v{16+i}, v{VL}, 4, v{16+i}")
    a("v_add_u32 v20, 4096, v20")
    a(f"v_mul_u32_u24 v7, 49, v{VL}\nv_lshrrev_b32 v7, 10, v7\nv_mul_u32_u24 v7, {10240-336}, v7\nv_lshl_add_u32 v7, v{VL}, 4, v7")
    a(f"s_mul_i32 s65, s{shd}, 320\ns_add_u32 s65, s65, s51\ns_add_u32 s65, s65, {OFF_V}\ns_mul_i32 s54, s{w}, 5376\ns_add_u32 s54, s54, {VB}\ns_mul_i32 s66, s{w}, 5120")
    a(f"s_mul_i32 s53, s{w}, 1280\ns_add_u32 s53, s53, {KB}\nv_add_u32 v8, s53, v5\nv_add_u32 v9, s53, v4")
    a(f"v_min_u32 v10, 20, v2\nv_cmp_lt_u32 vcc, 27, v2\nv_mul_u32_u24 v13, 336, v3\ns_nop 0\nv_cndmask_b32_e64 v10, v10, 4, vcc")
    a(f"s_mul_i32 s53, s{w}, 1344\ns_add_u32 s53, s53, {VB}\nv_lshl_add_u32 v10, v10, 4, v13\nv_add_u32 v10, s53, v10")
    a(f"v_lshlrev_b32 v11, 4, v2\nv_lshl_add_u32 v11, v3, 9, v11\nv_mov_b32 v12, v6")
    a(f"v_and_b32 v13, 15, v{VL}\nv_mul_u32_u24 v13, 336, v13\nv_add_u32 v13, s54, v13")
    a("v_mov_b32 v24, 0x3f803f80\nv_mov_b32 v25, v24\nv_mov_b32 v26, v24\nv_mov_b32 v27, v24")
    a(f"s_sub_u32 s57, 8, s{w}\ns_cmp_eq_u32 s{sb}, 0\ns_cselect_b32 s57, s57, 0\ns_cselect_b32 s58, 4, 0")
    stamp(a, 4)
    oth = a.newlab("aw"); go = a.newlab("ag")
    a(f"s_cmp_lg_u32 s{w}, 0\ns_cbranch_scc1 {oth}")
    lds_wait(a, C_QA, 4)
    if OPT.get("al", 3):
        nh = a.newlab("al")
        a(f"s_cmp_eq_u32 s{SHAS1}, 0\ns_cbranch_scc1 {nh}")
        lds_wait(a, {1: C_MP, 2: C_GA, 3: C_CS}[OPT.get("al", 3)], 4)
        a.lab(nh)
    a(f"s_sub_u32 s53, s{sb}, 1\nv_add_u32 v2, s53, v{VL}\nv_max_i32 v2, 0, v2\nv_lshlrev_b32 v2, 8, v2\ns_mov_b32 s53, {G_Q+128}")
    gpoll(a, 2, SWS, "s53", 1, 2)
    lds_set(a, C_AGO)
    a(f"s_branch {go}")
    a.lab(oth)
    lds_wait(a, C_AGO, 1, ls=1)
    a.lab(go)
    stamp(a, 5, OPT.get("mst") == 5)
    a(f"s_mov_b32 m0, s66")
    a(f"buffer_load_dwordx2 {v(AQ,2)}, v5, {ws}, s62 offen {LD}\nbuffer_load_dwordx2 {v(AQ+2,2)}, v5, {ws}, s62 offen offset:256 {LD}\nbuffer_load_dwordx2 {v(AQ+4,2)}, v6, {ws}, s62 offen offset:1024 {LD}")
    for i in range(5):
        if i == 4: a(f"s_add_u32 m0, s66, 4096\ns_nop 0")
        a(f"buffer_load_dwordx4 v{16+i}, {ws}, s64 offen offset:{(i&3)*1024} {LD} lds")
    for k in range(6):
        a(f"s_add_u32 m0, s54, {k*1008}")
        a("s_mov_b64 exec, 0x1fffff" if k == 5 else "s_nop 0")
        a(f"buffer_load_dwordx4 v7, {ws}, s65 offen {LD} lds\ns_add_u32 s65, s65, 30720")
    a("s_mov_b64 exec, -1")
    a(f"buffer_load_dwordx2 {v(AQ+6,2)}, v5, {ws}, s63 offen {LD}\nbuffer_load_dwordx2 {v(AQ+8,2)}, v5, {ws}, s63 offen offset:256 {LD}\nbuffer_load_dwordx2 {v(AQ+10,2)}, v6, {ws}, s63 offen offset:1024 {LD}")
    if OPT.get("ord", 1) == 9: a(f"v_mov_b32 v2, {C_AI}\nv_mov_b32 v3, 1\ns_mov_b64 exec, 1\nds_add_u32 v2, v3\ns_mov_b64 exec, -1")
    a(f"s_setprio {OPT.get('prioa', 0)}")
    FAST = OPT.get("fast", 1)
    if FAST:
        a(f"v_and_b32 v2, 31, v{VL}\nv_lshrrev_b32 v3, 5, v{VL}\nv_mul_u32_u24 v3, 1280, v3\nv_lshl_add_u32 v2, v2, 3, v3\nv_add_u32 v2, s66, v2\ns_waitcnt vmcnt(9)")
        for t in range(2):
            for u in range(5): a(f"ds_read_b64 {v(28+10*t+2*u,2)}, v2 offset:{t*2560+u*256}")
        for t in range(2):
            a(f"s_waitcnt lgkmcnt({5-5*t})\nv_mov_b32 v{14+t}, 0")
            for u in range(10): a(f"v_dot2_f32_bf16 v{14+t}, v{28+10*t+u}, v{28+10*t+u}, v{14+t}")
        a("s_nop 2\nv_max_f32 v14, v14, v15")
        for sh in (8, 4, 2, 1): a(f"s_nop 1\nv_max_f32_dpp v14, v14, v14 row_ror:{sh} row_mask:0xf bank_mask:0xf")
        for sw in ("v_permlane16_swap_b32", "v_permlane32_swap_b32"): a(f"v_mov_b32 v15, v14\ns_nop 1\n{sw} v14, v15\nv_max_f32 v14, v14, v15")
        a(f"s_lshl_b32 s53, s{w}, 2\ns_add_u32 s53, s53, {L_KN}\nv_mov_b32 v15, s53\nds_write_b32 v15, v14")
    else:
        a("s_waitcnt vmcnt(9)")
    lds_sync(a, C_AK, 4, ls=0)
    if FAST:
        a(f"v_mov_b32 v2, {L_KN}\nds_read_b128 v[28:31], v2\ns_waitcnt lgkmcnt(0)\nv_max3_f32 v28, v28, v29, v30\nv_max_f32 v254, v28, v31")
    ast(a, 1)
    if OPT.get("ah"):
        nh = a.newlab("ah")
        a(f"s_cmp_eq_u32 s{SHAS1}, 0\ns_cbranch_scc1 {nh}")
        lds_wait(a, C_GA, OPT["ah"])
        a.lab(nh)
    a("s_mov_b32 s59, 0")
    fin = a.newlab("afin")
    if OPT.get("noac"):
        lds_sync(a, C_AV, 4, vt=14, ls=0); a(f"s_branch {fin}")
    L = a.newlab("atask"); vw = a.newlab("avw"); vwb = a.newlab("avb")
    inv = [a.newlab("inv") for _ in range(8)]; invb = [a.newlab("invb") for _ in range(8)]
    a(".p2align 3")
    a.lab(L)
    def kread(p):
        b = AK + 6*(p % 3)
        a(f"ds_read_b64 {v(b,2)}, v8 offset:{p*1280}\nds_read_b64 {v(b+2,2)}, v8 offset:{p*1280+256}\nds_read_b64 {v(b+4,2)}, v9 offset:{p*1280+1024}")
    def vread(p):
        b = AV + 8*(p % 2)
        for m in range(2): a(f"ds_read_b128 {v(b+4*m,4)}, v10 offset:{p*1344+m*672}")
    def mx(p):
        if p < 8:
            a(f"s_cmp_gt_u32 s57, {p}\ns_cbranch_scc1 {inv[p]}")
            a.lab(invb[p])
        for q in range(8):
            d = 2 + (q & 1)
            if p == 0 and q < 2: a(f"v_max_f32 v{d}, v{AS+2*q}, v{AS+2*q+1}")
            else: a(f"v_max3_f32 v{d}, v{d}, v{AS+16*p+2*q}, v{AS+16*p+2*q+1}")
    def m1(p):
        b = AK + 6*(p % 3); S = v(AS+16*p, 16)
        C = v(AME,16) if p == 0 else v(AMD,16) if p == 8 else "0"
        a(f"v_mfma_f32_32x32x16_bf16 {S}, {v(b,4)}, {v(AQ,4)}, {C}")
    def m2(p):
        b = AK + 6*(p % 3); S = v(AS+16*p, 16)
        a(f"v_mfma_f32_32x32x8bf16_1k {S}, {v(b+4,2)}, {v(AQ+4,2)}, {S}")
    def pv(p, S=None, ms=(0, 1)):
        b = AV + 8*(p % 2); S = AS+16*p if S is None else S
        for m in ms:
            C = "0" if (p == 0 and m == 0) else v(AO,16)
            a(f"v_mfma_f32_32x32x16_bf16 {v(AO,16)}, {v(b+4*m,4)}, {v(S+4*m,4)}, {C}")
    kread(0); kread(1); kread(2)
    join = a.newlab("ajoin")
    if FAST:
        slow = a.newlab("aslow"); fvw = a.newlab("afv"); fvb = a.newlab("afb")
        finv = [a.newlab("finv") for _ in range(8)]; finvb = [a.newlab("finvb") for _ in range(8)]
        a("v_mov_b32 v2, 0")
        for r in range(6): a(f"v_dot2_f32_bf16 v2, v{AQ+r}, v{AQ+r}, v2")
        a(f"s_nop 2\nv_mov_b32 v3, v2\ns_nop 1\nv_permlane32_swap_b32 v2, v3\nv_add_f32 v2, v2, v3\nv_mul_f32 v2, v2, v254\nv_cmp_nge_f32 vcc, {hexf(3600.0)}, v2\ns_cbranch_vccnz {slow}")
        def SB(p): return AS + 16*(p % 3)
        def fm1(p):
            b = AK + 6*(p % 3); C = v(AME,16) if p == 0 else v(AMD,16) if p == 8 else "0"
            a(f"v_mfma_f32_32x32x16_bf16 {v(SB(p),16)}, {v(b,4)}, {v(AQ,4)}, {C}")
        def fm2(p):
            b = AK + 6*(p % 3)
            a(f"v_mfma_f32_32x32x8bf16_1k {v(SB(p),16)}, {v(b+4,2)}, {v(AQ+4,2)}, {v(SB(p),16)}")
        a("s_waitcnt lgkmcnt(6)"); fm1(0); fm2(0)
        a(f"s_cmp_eq_u32 s59, 0\ns_cbranch_scc1 {fvw}")
        a.lab(fvb)
        vread(0); kread(3)
        a("s_waitcnt lgkmcnt(8)"); fm1(1); fm2(1)
        a("s_nop 7")
        ast(a, 2, 1, 7)
        for p in range(9):
            S = SB(p)
            if p < 8:
                a(f"s_cmp_gt_u32 s57, {p}\ns_cbranch_scc1 {finv[p]}")
                a.lab(finvb[p])
            ex = [f"v_exp_f32 v{S+q}, v{S+q}" for q in range(16)]
            for q in range(0, 4): a(ex[q])
            if p > 0: pv(p-1, SB(p-1), (0,))
            for q in range(4, 8): a(ex[q])
            if p > 0: pv(p-1, SB(p-1), (1,))
            if p + 1 < 9: vread(p+1)
            for q in range(8, 12): a(ex[q])
            if p + 2 < 9:
                a(f"s_waitcnt lgkmcnt({(5 if p + 3 < 9 else 2) + 2})"); fm1(p+2)
            for q in range(12, 16): a(ex[q])
            if p + 2 < 9: fm2(p+2)
            else: a("s_nop 0")
            if p + 4 < 9: kread(p+4)
            for q in range(8): a(f"v_cvt_pk_bf16_f32 v{S+q}, v{S+2*q}, v{S+2*q+1}")
            n = (2 if p + 1 < 9 else 0) + (3 if p + 3 < 9 else 0) + (3 if p + 4 < 9 else 0)
            a(f"s_waitcnt lgkmcnt({n})")
        ast(a, 3, 1, 7)
        a("s_nop 0"); pv(8, SB(8))
        a(f"s_branch {join}")
        for p in range(8):
            a.lab(finv[p])
            for r in range(16): a(f"v_mov_b32 v{SB(p)+r}, {NEGINF}")
            a(f"s_branch {finvb[p]}")
        a.lab(fvw)
        a("s_waitcnt vmcnt(0)\nv_mov_b32 v4, 0x3f803f80\nv_mov_b32 v5, v4\nv_mov_b32 v6, v4\nv_mov_b32 v7, v4\nds_write_b128 v13, v[4:7] offset:320")
        lds_sync(a, C_AV, 4, vt=14, ls=0)
        a(f"s_branch {fvb}")
        a.lab(slow)
    a("s_waitcnt lgkmcnt(6)"); m1(0)
    for p in range(9):
        if p + 1 < 9:
            a(f"s_waitcnt lgkmcnt({3 if p + 2 < 9 else 0})"); m1(p+1)
        m2(p)
        if p + 3 < 9: kread(p+3)
        if p >= 2: mx(p-2)
    a(f"s_cmp_eq_u32 s59, 0\ns_cbranch_scc1 {vw}")
    a.lab(vwb)
    vread(0)
    mx(7)
    a("s_nop 0")
    mx(8)
    a("v_max_f32 v2, v2, v3\nv_mov_b32 v3, v2\ns_nop 1\nv_permlane32_swap_b32 v2, v3\nv_max_f32 v2, v2, v3")
    for p in range(9):
        b = AS + 16*p
        for q in range(8): a(f"v_pk_add_f32 {v(b+2*q,2)}, {v(b+2*q,2)}, v[2:3] op_sel_hi:[1,0] neg_lo:[0,1] neg_hi:[0,1]")
        if p > 0:
            a("s_waitcnt lgkmcnt(0)"); pv(p-1)
        if p + 1 < 9 and p > 0: vread(p+1)
        if p == 0: vread(1)
        for q in range(16): a(f"v_exp_f32 v{b+q}, v{b+q}")
        a("s_nop 0")
        for q in range(8): a(f"v_cvt_pk_bf16_f32 v{b+q}, v{b+2*q}, v{b+2*q+1}")
    a("s_waitcnt lgkmcnt(0)\ns_nop 0"); pv(8)
    a.lab(join)
    for r in range(6): a(f"v_mov_b32 v{AQ+r}, v{AQ+6+r}")
    a(f"v_add_u32 v8, {4*1280}, v8\nv_add_u32 v9, {4*1280}, v9\nv_add_u32 v10, {4*1344}, v10\ns_sub_u32 s57, s57, s58\ns_nop 2")
    a(f"v_mov_b32 v2, v{AO+8}\nv_mov_b32 v3, v{AO+8}\ns_nop 1\nv_permlane32_swap_b32 v2, v3\nv_rcp_f32 v2, v3\ns_nop 0")
    for q in range(6): a(f"v_pk_mul_f32 {v(AO+2*q,2)}, {v(AO+2*q,2)}, v[2:3] op_sel_hi:[1,0]")
    for q in range(6): a(f"v_cvt_pk_bf16_f32 v{4+q if q < 4 else 10+q}, v{AO+2*q}, v{AO+2*q+1}")
    a(f"s_setprio 2\nbuffer_store_dwordx4 v[4:7], v11, {ws}, s56 offen {ST}\nbuffer_store_dwordx2 v[14:15], v12, {ws}, s61 offen {ST}\ns_setprio {OPT.get('prioa', 0)}")
    ast(a, 3, 0); ast(a, 4, 1); ast(a, 1, 0, 7); ast(a, 4, 1, 7)
    a(f"s_add_u32 s56, s56, {4*32768}\ns_add_u32 s61, s61, {4*8192}\ns_add_u32 s59, s59, 1\ns_cmp_lt_u32 s59, 2\ns_cbranch_scc1 {L}")
    a(f"s_branch {fin}")
    for p in range(8):
        a.lab(inv[p])
        for r in range(16): a(f"v_mov_b32 v{AS+16*p+r}, {NEGINF}")
        a(f"s_branch {invb[p]}")
    a.lab(vw)
    a("s_waitcnt vmcnt(0)\nv_mov_b32 v4, 0x3f803f80\nv_mov_b32 v5, v4\nv_mov_b32 v6, v4\nv_mov_b32 v7, v4\nds_write_b128 v13, v[4:7] offset:320")
    lds_sync(a, C_AV, 4, vt=14, ls=0)
    a(f"s_branch {vwb}")
    a.lab(fin)

def wo2(a):
    skw = SKW; ws = s(SWS, 4)
    a(f"v_lshrrev_b32 v2, 4, v{VL}\nv_and_b32 v3, 15, v{VL}\nv_lshlrev_b32 v8, 4, v3\nv_lshl_add_u32 v8, v2, 9, v8\nv_lshlrev_b32 v10, 3, v3\nv_lshl_add_u32 v10, v2, 9, v10")
    a(f"s_lshl_b32 s50, s{SST}, 16\ns_lshl_b32 s51, s{skw}, 13\ns_add_u32 s50, s50, s51\ns_add_u32 s50, s50, {OFF_O1}")
    a(f"s_lshl_b32 s61, s{SST}, 14\ns_lshl_b32 s51, s{skw}, 11\ns_add_u32 s61, s61, s51\ns_add_u32 s61, s61, {OFF_O2}")
    for i in range(4):
        a(f"s_xor_b32 s51, s{skw}, {i}\ns_lshr_b32 s56, s51, 1\ns_and_b32 s51, s51, 1\ns_lshl_b32 s57, s56, 15\ns_lshl_b32 s58, s51, 8\ns_add_u32 s57, s57, s58\ns_add_u32 s{52+i}, s50, s57")
        a(f"s_lshl_b32 s57, s56, 13\ns_lshl_b32 s58, s51, 7\ns_add_u32 s57, s57, s58\ns_add_u32 s{62+i}, s61, s57")
    oth = a.newlab("ow"); go = a.newlab("og")
    a(f"s_cmp_lg_u32 s{skw}, 0\ns_cbranch_scc1 {oth}")
    a(f"s_lshr_b32 s51, s{SST}, 2\ns_lshl_b32 s51, s51, 8\ns_add_u32 s51, s51, {G_O+128}\nv_mov_b32 v2, 0")
    gpoll(a, 2, SWS, "s51", 1, 1)
    lds_set(a, C_OGO)
    a(f"s_branch {go}")
    a.lab(oth)
    lds_wait(a, C_OGO, 1, ls=1)
    a.lab(go)
    stamp(a, 2, OPT.get("mst") == 5)
    def aload(st):
        for i in range(4):
            r = WA+16*(st%3)+4*i
            if st < 4:
                a(f"buffer_load_dwordx4 {v(r,4)}, v8, {ws}, s{52+i} offen offset:{(st&1)*2048} {LD}")
                if st == 1: a(f"s_add_u32 s{52+i}, s{52+i}, 4096")
            else:
                for e in range(2): a(f"buffer_load_dwordx2 {v(r+2*e,2)}, v10, {ws}, s{62+i} offen offset:{e*256} {LD}")
    for st in range(3): aload(st)
    for st in range(5):
        a(f"s_waitcnt vmcnt({[8, 8, 12, 8, 0][st]})")
        for db in range(5):
            for i in range(4):
                acc = v(MACC+(i*5+db)*4, 4)
                a(f"v_mfma_f32_16x16x32_bf16 {acc}, {v(WB+20*st+4*db,4)}, {v(WA+16*(st%3)+4*i,4)}, {'0' if st == 0 else acc}")
        if st + 3 < 5: aload(st+3)

def colsum4(a, snt, ldsbase, st):
    a(f"v_lshrrev_b32 v2, 4, v{VL}\nv_and_b32 v3, 15, v{VL}\nv_mul_u32_u24 v4, 3840, v2\nv_lshl_add_u32 v4, v3, 4, v4")
    a(f"s_mul_i32 s{st}, s{SKW}, {160*3840}\ns_lshl_b32 s{st+1}, s{snt}, 8\ns_add_u32 s{st}, s{st}, s{st+1}")
    a(f"s_cmp_eq_u32 s{snt}, 15\ns_cbranch_scc0 L_cs_go\ns_barrier\ns_branch L_cs_end")
    a.lab("L_cs_go")
    for i in range(40):
        a(f"buffer_load_dwordx4 v[{32+4*i}:{35+4*i}], v4, {s(SWQ,4)}, s{st} offen\ns_add_u32 s{st}, s{st}, {4*3840}")
        if i == 9: a("s_barrier")
    for c in range(8): a(f"v_mov_b32 v{16+c}, 0")
    for i in range(40):
        a(f"s_waitcnt vmcnt({39-i})")
        for c in range(4):
            a(f"v_lshlrev_b32 v24, 16, v{32+4*i+c}\nv_and_b32 v25, 0xffff0000, v{32+4*i+c}\nv_pk_add_f32 v[{16+2*c}:{17+2*c}], v[{16+2*c}:{17+2*c}], v[24:25]")
    for sw in ("v_permlane32_swap_b32", "v_permlane16_swap_b32"):
        for c in range(8): a(f"v_mov_b32 v{24+c}, v{16+c}")
        a("s_nop 0")
        for c in range(8): a(f"{sw} v{16+c}, v{24+c}")
        for c in range(8): a(f"v_add_f32 v{16+c}, v{16+c}, v{24+c}")
    a(f"s_lshl_b32 s{st}, s{SKW}, 9\ns_add_u32 s{st}, s{st}, {ldsbase}\nv_lshlrev_b32 v4, 5, v3\nv_add_u32 v4, s{st}, v4")
    a("ds_write_b128 v4, v[16:19]\nds_write_b128 v4, v[20:23] offset:16")
    lds_sync(a, C_W2, 4)
    a(f"s_cmp_ge_u32 s{SKW}, 2\ns_cbranch_scc1 L_cs_end")
    a(f"s_lshl_b32 s{st}, s{SKW}, 8\nv_lshlrev_b32 v4, 2, v{VL}\nv_add_u32 v4, s{st}, v4\nv_add_u32 v5, {ldsbase}, v4")
    for w in range(4): a(f"ds_read_b32 v{16+w}, v5 offset:{w*512}")
    a("s_waitcnt lgkmcnt(0)")
    for w in range(1, 4): a(f"v_add_f32 v16, v16, v{16+w}")
    a(f"s_lshl_b32 s{st}, s{snt}, 9\ns_add_u32 s{st}, s{st}, {OFF_CS}")
    a(f"buffer_store_dword v16, v4, {s(SWS,4)}, s{st} offen {ST}")
    a.lab("L_cs_end")

def kwait(a):
    if not (OPT.get("late", 0) and not blocks.STAMP): return
    a("s_waitcnt lgkmcnt(0)")
    for r, src in ((SX, 84), (SWQ, 86), (SWO, 88), (SW1, 92), (SB1, 94), (SW2, 96), (SB2, 98), (SOUT, 80), (SDBG, 82)): a(f"s_mov_b64 {s(r,2)}, {s(src,2)}")
def prologue2(a):
    a(f".globl {NAME}\n.p2align 8\n.type {NAME},@function")
    a.lab(NAME)
    LATE = OPT.get("late", 0) and not blocks.STAMP
    if LATE: a(f"s_load_dwordx16 s[84:99], s[0:1], 0\ns_load_dwordx4 s[80:83], s[0:1], 64\ns_load_dwordx2 {s(SWS,2)}, s[0:1], 80\ns_cmp_ge_u32 s2, 256\ns_cbranch_scc1 L_end")
    else: a(f"s_load_dwordx4 s[64:67], s[0:1], 0\ns_load_dwordx4 s[68:71], s[0:1], 72\ns_cmp_ge_u32 s2, 256\ns_cbranch_scc1 L_end")
    if blocks.STAMP:
        for i in range(16): a(f"s_mov_b32 s{84+i}, 0")
    stamp(a, 0)
    if OPT.get("cpf", 1):
        a(f"s_getpc_b64 s[50:51]\ns_sub_u32 s50, s50, .-{NAME}\ns_subb_u32 s51, s51, 0")
        a(f"s_lshr_b32 s52, s2, 3\ns_and_b32 s52, s52, 3\ns_add_u32 s52, s52, 1\ns_lshl_b32 s52, s52, 13\nv_and_b32 v2, 63, v0\nv_lshlrev_b32 v2, 7, v2")
        a(f"v_cmp_le_u32 vcc, 256, v0\nv_mov_b32 v3, s52\nv_and_b32 v4, 0xc0, v0\nv_cndmask_b32 v3, 0, v3, vcc\nv_add_u32 v2, v2, v3\nv_cmp_eq_u32 vcc, 0, v4\ns_mov_b32 s54, L_end-{NAME}\nv_cmp_gt_u32 s[52:53], s54, v2\ns_nop 0\ns_and_b64 vcc, vcc, s[52:53]")
        a(f"s_and_saveexec_b64 s[52:53], vcc\ns_cbranch_execz L_nocpf\nglobal_load_dword v255, v2, s[50:51]")
        a.lab("L_nocpf")
        a("s_mov_b64 exec, -1")
    if not LATE: a(f"s_load_dwordx8 s[56:63], s[0:1], 32\ns_load_dwordx2 {s(SWO,2)}, s[0:1], 16\ns_load_dwordx2 {s(SOUT,2)}, s[0:1], 64")
    a(f"v_lshrrev_b32 v2, 6, v0\nv_and_b32 v{VL}, 63, v0")
    a(f"s_and_b32 s{SXCD}, s2, 7\ns_lshr_b32 s{SJ}, s2, 3")
    a(f"v_readfirstlane_b32 s{SWAVE}, v2")
    for r in SRDS: a(f"s_mov_b32 s{r+2}, {SRDS[r][1]}\ns_mov_b32 s{r+3}, 0x20000")
    ids(a)
    if LATE: return
    a("s_waitcnt lgkmcnt(0)")
    for r, src in ((SX, 64), (SWQ, 66), (SDBG, 68), (SWS, 70), (SW1, 56), (SB1, 58), (SW2, 60), (SB2, 62)): a(f"s_mov_b64 {s(r,2)}, {s(src,2)}")

def trs_prep8(a, sw, sbase, st, vb):
    a(f"v_lshrrev_b32 v2, 4, v{VL}\nv_and_b32 v3, 15, v{VL}")
    a(f"v_lshrrev_b32 v4, 2, v3\nv_mul_u32_u24 v4, 1344, v4\nv_lshl_add_u32 v4, v2, 5, v4\nv_and_b32 v5, 3, v3\nv_lshl_add_u32 v4, v5, 3, v4")
    a(f"s_lshl_b32 s{st}, s{sw}, 7\ns_add_u32 s{st}, s{st}, s{sbase}\nv_add_u32 v{vb}, s{st}, v4")
    a(f"s_cmp_eq_u32 s52, 768\ns_cselect_b32 s{st}, 128, 0\nv_lshrrev_b32 v7, 3, v3\nv_mul_u32_u24 v7, s{st}, v7\nv_lshl_add_u32 v7, v3, 4, v7")
    for k in range(3):
        a(f"s_lshl_b32 s{st}, s{sw}, 2\ns_add_u32 s{st}, s{st}, {16*k}\nv_add_u32 v5, s{st}, v2")
        a(f"v_lshrrev_b32 v6, 3, v5\nv_lshlrev_b32 v6, 20, v6\nv_and_b32 v5, 7, v5\nv_lshl_add_u32 v6, v5, 11, v6\nv_add_u32 v{vb+1+k}, v7, v6")
def trs_prep(a, sw, ldsbase, dt, st, vb):
    a(f"v_lshrrev_b32 v2, 4, v{VL}\nv_and_b32 v3, 15, v{VL}")
    a(f"v_lshrrev_b32 v4, 2, v3\nv_mul_u32_u24 v4, 1344, v4\nv_lshl_add_u32 v4, v2, 5, v4\nv_and_b32 v5, 3, v3\nv_lshl_add_u32 v4, v5, 3, v4")
    a(f"s_lshl_b32 s{st}, s{sw}, 7\ns_add_u32 s{st}, s{st}, {ldsbase}\nv_add_u32 v{vb}, s{st}, v4\ns_mov_b32 s{st+1}, {dt-5120}")
    for k in range(3):
        a(f"s_lshl_b32 s{st}, s{sw}, 2\ns_add_u32 s{st}, s{st}, {16*k}\nv_add_u32 v5, s{st}, v2")
        a(f"v_mul_u32_u24 v6, 52, v5\nv_lshrrev_b32 v6, 8, v6\nv_mul_u32_u24 v6, s{st+1}, v6\nv_lshl_add_u32 v6, v5, 10, v6\nv_lshl_add_u32 v{vb+1+k}, v3, 4, v6")
    a(f"s_cmp_ge_u32 s{sw}, 2\ns_cselect_b64 vcc, -1, 0\nv_mov_b32 v5, {OOB}\nv_cndmask_b32 v{vb+3}, v{vb+3}, v5, vcc")
def trs_go(a, sw, sdst, vb, d=16):
    for k in range(3):
        a(f"ds_read_b64_tr_b16 v[{d+4*k}:{d+1+4*k}], v{vb} offset:{k*512}\nds_read_b64_tr_b16 v[{d+2+4*k}:{d+3+4*k}], v{vb} offset:{k*512+5376}")
    sk = a.newlab("tg")
    for k in range(3):
        if k == 2: a(f"s_cmp_ge_u32 s{sw}, 2\ns_cbranch_scc1 {sk}")
        a(f"s_waitcnt lgkmcnt({4-2*k})\nbuffer_store_dwordx4 v[{d+4*k}:{d+3+4*k}], v{vb+1+k}, {s(SWS,4)}, s{sdst} offen {ST}")
    a.lab(sk)

def m1_bias_init(a):
    z = a.newlab("bz"); d = a.newlab("bd")
    a(f"s_cmp_lg_u32 s{SKW}, 0\ns_cbranch_scc1 {z}\ns_waitcnt vmcnt(36)")
    for fb in range(4):
        for q in range(2):
            a(f"v_lshlrev_b32 v{MACC+fb*20+2*q}, 16, v{192+2*fb+q}\nv_and_b32 v{MACC+fb*20+2*q+1}, 0xffff0000, v{192+2*fb+q}")
        for db in range(1, 5):
            for r in range(4): a(f"v_mov_b32 v{MACC+(fb*5+db)*4+r}, v{MACC+fb*20+r}")
    a(f"s_branch {d}")
    a.lab(z)
    for i in range(80): a(f"v_mov_b32 v{MACC+i}, 0")
    a.lab(d)
def m1_epi(a):
    kw = SKW; ws = s(SWS, 4)
    odd = a.newlab("eo"); j1 = a.newlab("ej"); j2 = a.newlab("ej")
    a(f"v_add_u32 v10, s66, v{MDIR}\ns_and_b32 s65, s{kw}, 1\ns_cmp_eq_u32 s65, 1\ns_nop 3")
    for t in range(10, 20): a(f"ds_write_b128 v10, {v(MACC+4*t,4)} offset:{t*1024}")
    a(f"s_cbranch_scc1 {odd}")
    for t in (3, 4, 8, 9): a(f"ds_write_b128 v10, {v(MACC+4*t,4)} offset:{t*1024}")
    a(f"s_branch {j1}")
    a.lab(odd)
    for t in (0, 1, 2, 5, 6, 7): a(f"ds_write_b128 v10, {v(MACC+4*t,4)} offset:{t*1024}")
    for g in range(2):
        for r in range(8): a(f"v_mov_b32 v{MACC+20*g+r}, v{MACC+20*g+12+r}")
    a.lab(j1)
    l10(a, 1)
    a(f"s_mul_i32 s65, s65, 3072")
    for n_, x_ in enumerate((1, 2, 3)):
        a(f"s_xor_b32 s68, s{kw}, {x_}\ns_mul_i32 s68, s68, {M1STR}\ns_add_u32 s68, s68, s65\ns_add_u32 s68, s68, {M1BASE + (0 if x_ == 1 else 10240)}\nv_add_u32 v{11+n_}, s68, v{MDIR}")
    a(f"s_mul_i32 s68, s{SDT1}, {54*5120}\ns_mul_i32 s69, s{SFT}, 10240\ns_add_u32 s68, s68, s69\ns_lshr_b32 s69, s{kw}, 1\ns_mul_i32 s69, s69, 5120\ns_add_u32 s68, s68, s69\ns_add_u32 s68, s68, s65\ns_add_u32 s68, s68, {OFF_G}")
    a(f"s_mov_b32 s72, {hexf(GC2)}\ns_mov_b32 s73, {hexf(GC2)}\nv_mov_b32 v14, {hexf(GC1)}\nv_mov_b32 v15, v14")
    lds_sync(a, C_MP, 4, ls=0)
    l10(a, 2)
    def rd(k):
        for n_ in range(3):
            for g in range(2): a(f"ds_read_b128 {v(112+24*k+8*n_+4*g,4)}, v{11+n_} offset:{g*5120+k*1024}")
    rd(0); rd(1)
    for k in range(3):
        if k == 0:
            a(f"s_cmp_lg_u32 s65, 0\ns_cbranch_scc1 {j2}_r"); rd(2); a(f"s_waitcnt lgkmcnt(12)\ns_branch {j2}_w")
            a.lab(j2 + "_r"); a("s_waitcnt lgkmcnt(6)"); a.lab(j2 + "_w")
        elif k == 1:
            a(f"s_waitcnt lgkmcnt(6)\ns_cmp_eq_u32 s65, 0\ns_cbranch_scc1 {j2}_x\ns_waitcnt lgkmcnt(0)"); a.lab(j2 + "_x")
        else: a(f"s_cmp_lg_u32 s65, 0\ns_cbranch_scc1 {j2}\ns_waitcnt lgkmcnt(0)")
        U = [MACC+4*k, MACC+4*k+2, MACC+20+4*k, MACC+20+4*k+2]
        T = 96
        if OPT.get("gpk", 1):
            for n_ in range(3):
                for q in range(4): a(f"v_pk_add_f32 {v(U[q],2)}, {v(U[q],2)}, {v(112+24*k+8*n_+2*q,2)}")
            for q in range(4): a(f"v_pk_mul_f32 {v(T+2*q,2)}, {v(U[q],2)}, {v(U[q],2)}")
            for q in range(4): a(f"v_pk_fma_f32 {v(T+2*q,2)}, {v(T+2*q,2)}, s[72:73], v[14:15]")
            for q in range(4): a(f"v_pk_mul_f32 {v(T+2*q,2)}, {v(T+2*q,2)}, {v(U[q],2)}")
            for q in range(8): a(f"v_exp_f32 v{T+q}, v{T+q}")
            a("s_nop 0")
            for q in range(4): a(f"v_pk_add_f32 {v(T+2*q,2)}, {v(T+2*q,2)}, 1.0 op_sel_hi:[1,0]")
            for q in range(8): a(f"v_rcp_f32 v{T+q}, v{T+q}")
            a("s_nop 0")
            for q in range(4): a(f"v_pk_mul_f32 {v(T+2*q,2)}, {v(T+2*q,2)}, {v(U[q],2)}")
        else:
            R = [U[q>>1] + (q & 1) for q in range(8)]
            for n_ in range(3):
                for q in range(8): a(f"v_add_f32 v{R[q]}, v{R[q]}, v{112+24*k+8*n_+q}")
            for q in range(8): a(f"v_mul_f32 v{T+q}, v{R[q]}, v{R[q]}")
            for q in range(8): a(f"v_fmaak_f32 v{T+q}, s72, v{T+q}, {hexf(GC1)}" if False else f"v_fma_f32 v{T+q}, v{T+q}, s72, v14")
            for q in range(8): a(f"v_mul_f32 v{T+q}, v{T+q}, v{R[q]}")
            for q in range(8): a(f"v_exp_f32 v{T+q}, v{T+q}")
            for q in range(8): a(f"v_add_f32 v{T+q}, 1.0, v{T+q}")
            for q in range(8): a(f"v_rcp_f32 v{T+q}, v{T+q}")
            for q in range(8): a(f"v_mul_f32 v{T+q}, v{T+q}, v{R[q]}")
        for q in range(4): a(f"v_cvt_pk_bf16_f32 v{104+4*(k&1)+q}, v{T+2*q}, v{T+2*q+1}")
        a(f"buffer_store_dwordx4 {v(104+4*(k&1),4)}, v{MDIR}, {ws}, s68 offen offset:{k*1024} {ST}")
        if k < 2: l10(a, 3+k)
    a.lab(j2)

DOC = """
One persistent launch, 256 workgroups x 8 waves, one workgroup per CU (x = id & 7, j = id >> 3).
Group A (j < 15):  QKV = LN(x) Wqkv on 256 x 128 tiles; waves 4-7 stage x and W through an LDS ring, waves 0-3 run the MFMAs.
                   LN is applied after the product: r * (x W) - r * mean * colsum(W), exact in f32.
Group B (j >= 15): LayerNorm statistics and h = LN(LN(x)) for 16 rows each, then u = h^T W1 on 128 x 64 tiles (K split over
                   waves 4-7), bias, tanh-form GELU, result g in MFMA fragment order.
Every workgroup:   waves 0-3 sliding-window attention for one head and 256 queries; waves 4-7 a 64 x 80 output tile
                   g W2 + o Wo (K split over the waves); waves 0-3 add x and b2 and store.
Softmax: a wave first checks |q|^2 max|k|^2 <= 3600 (log2 units, so every score lies in [-60, 60] and no exp2 or sum can leave
the f32 range); then no shift is needed. Otherwise it takes the path that subtracts the true row maximum.
Hand-offs between workgroups: write-through stores, drained, then a counter; the last arrival raises a done word that the readers poll.
The first hand-off counts in d_debug; the counters in d_ws are cleared before it and used only after it. All waits are bounded.
"""
def gen():
    NPB = OPT.get('npb', 896); LNF = 'nt' if OPT.get('lnt') else ''
    a = Asm()
    a(f"; @launch grid=(256,1,1) block=(512,1,1) lds={LDS}")
    for l in DOC.strip("\n").split("\n"): a.L.append("; " + l)
    a('.amdgcn_target "amdgcn-amd-amdhsa--gfx950"\n.text')
    prologue2(a)
    a(f"s_cmp_ge_u32 s{SJ}, 15\ns_cbranch_scc1 L_b\ns_cmp_ge_u32 s{SWAVE}, 4\ns_cbranch_scc0 L_cons")
    loader(a)
    stamp(a, 2)
    wof_finish(a)
    stamp(a, 3)
    ORD = OPT.get("ord", 1)
    def flood():
        a(f"s_mul_i32 s67, s{SXCD}, 15\ns_add_u32 s67, s67, s{SJ}\ns_lshl_b32 s67, s67, 2\ns_add_u32 s67, s67, s{SKW}")
        a(f"s_lshr_b32 s51, s{SW2}, 7\ns_sub_u32 s51, 3, s51\ns_and_b32 s51, s51, 7\ns_lshl_b32 s51, 0x1010101, s51\ns_not_b32 s60, s51")
        prefetch(a, 67, 480, NB1, NB1 + NB2, mask=60)
        stamp(a, 4)
    if ORD == 8:
        lds_wait(a, C_AV if OPT.get("x8", 1) else C_QD, 4 if OPT.get("x8", 1) else 1)
        fl = {0: "", 1: "nt", 2: "sc1 nt"}[OPT.get("nt8", 1)]
        a(f"v_lshrrev_b32 v4, 3, v{VL}\nv_lshlrev_b32 v4, 12, v4\nv_and_b32 v5, 7, v{VL}\nv_lshl_add_u32 v4, v5, 7, v4\ns_lshr_b32 s55, s{SXCD}, 1\ns_lshl_b32 s55, s55, 10")
        a(f"s_lshr_b32 s51, s{SW2}, 7\ns_sub_u32 s51, 3, s51\ns_and_b32 s51, s51, 7\ns_lshl_b32 s51, 0x1010101, s51\ns_not_b32 s60, s51\ns_mov_b32 exec_lo, s60\ns_mov_b32 exec_hi, s60")
        a(f"s_lshl_b32 s50, s{SJ}, 2\ns_add_u32 s50, s50, s{SKW}")
        a.lab("L_x8")
        a(f"s_lshr_b32 s52, s50, 4\ns_bfe_u32 s53, s50, 0x20002\ns_mul_i32 s54, s53, 14\ns_cmp_eq_u32 s53, 3\ns_cselect_b32 s54, 41, s54\ns_add_u32 s52, s52, s54\ns_lshl_b32 s52, s52, 2\ns_and_b32 s51, s50, 3\ns_add_u32 s52, s52, s51\ns_lshl_b32 s52, s52, 15\ns_add_u32 s52, s52, s55")
        a(f"buffer_load_dword v255, v4, {s(SW2,4)}, s52 offen {fl}\ns_add_u32 s50, s50, 60\ns_cmp_lt_u32 s50, 224\ns_cbranch_scc1 L_x8\ns_mov_b64 exec, -1")
        stamp(a, 4)
    elif ORD in (5, 6, 7):
        if ORD != 5: lds_wait(a, C_QD, 1)
        nw_ = OPT.get("tw", 1)
        a(f"s_cmp_ge_u32 s{SKW}, {nw_}\ns_cbranch_scc1 L_tw\ns_mul_i32 s67, s{SXCD}, 15\ns_add_u32 s67, s67, s{SJ}\ns_mul_i32 s67, s67, {nw_}\ns_add_u32 s67, s67, s{SKW}")
        a(f"s_lshr_b32 s51, s{SW2}, 7\ns_sub_u32 s51, 3, s51\ns_and_b32 s51, s51, 7\ns_lshl_b32 s51, 0x1010101, s51\ns_not_b32 s60, s51")
        prefetch(a, 67, 120*nw_, NB1, NB1 + NB2, thr=OPT.get("thr", 0), mask=60)
        stamp(a, 4)
        a.lab("L_tw")
        lds_wait(a, C_AV, 4)
    elif ORD in (0, 4): lds_wait(a, C_QD if OPT.get("p1e", 1) else C_AV, 1 if OPT.get("p1e", 1) else 4)
    elif ORD == 3: lds_wait(a, C_AK, OPT.get("akn", 4), ls=1)
    elif ORD == 9: lds_wait(a, C_AI, 4, ls=1)
    else: lds_wait(a, C_AV, 4)
    if ORD in (1, 3, 9) and not OPT.get('nofl'): flood()
    a(f"s_mov_b32 s61, {C_QA}\ns_branch L_m2")
    if ORD in (0, 2):
        a.lab("L_a_pf")
        lds_wait(a, C_AV, 4)
        a(f"s_mov_b32 s74, s50\ns_mov_b64 s[64:65], s[52:53]\ns_mov_b32 s68, s54\nv_mov_b32 v15, v4")
        flood()
        a(f"s_mov_b32 s50, s74\ns_mov_b64 s[52:53], s[64:65]\ns_mov_b32 s54, s68\nv_mov_b32 v4, v15\ns_branch L_a_pfd")
    a.lab("L_b")
    a(f"s_and_b32 s{SKW}, s{SWAVE}, 3\ns_lshr_b32 s64, s{SWAVE}, 2\ns_cmp_eq_u32 s{SJ}, 31\ns_cbranch_scc1 L_b_noln")
    a(f"s_lshr_b32 s63, s{SXCD}, 1\ns_lshl_b32 s63, s63, 5\ns_and_b32 s51, s{SXCD}, 1\ns_lshl_b32 s51, s51, 4\ns_add_u32 s63, s63, s51\ns_add_u32 s63, s63, s{SJ}\ns_sub_u32 s63, s63, 15\ns_lshl_b32 s50, s63, 1\ns_add_u32 s50, s50, s64")
    a(f"s_lshr_b32 s51, s50, 2\ns_and_b32 s52, s50, 3\ns_lshl_b32 s53, s51, 5\ns_lshl_b32 s54, s52, 2\ns_add_u32 s53, s53, s54")
    a(f"s_lshr_b32 s54, s{SKW}, 1\ns_lshl_b32 s54, s54, 4\ns_add_u32 s53, s53, s54\ns_and_b32 s54, s{SKW}, 1\ns_lshl_b32 s54, s54, 1\ns_add_u32 s53, s53, s54")
    a(f"v_lshrrev_b32 v2, 5, v{VL}\nv_and_b32 v3, 31, v{VL}\nv_mul_u32_u24 v4, 1280, v2\nv_lshl_add_u32 v5, v3, 3, v4\nv_lshl_add_u32 v4, v3, 4, v4\ns_mul_i32 s54, s53, 1280")
    kwait(a)
    a(f"buffer_load_dwordx4 v[16:19], v4, {s(SX,4)}, s54 offen {LNF}\nbuffer_load_dwordx4 v[20:23], v4, {s(SX,4)}, s54 offen offset:512 {LNF}\nbuffer_load_dwordx2 v[24:25], v5, {s(SX,4)}, s54 offen offset:1024 {LNF}")
    a(f"s_lshl_b32 s62, s51, 14\ns_lshl_b32 s52, s52, 8\ns_add_u32 s62, s62, s52\ns_add_u32 s62, s62, {OFF_H+512}\ns_mul_i32 s64, s64, 10752")
    ids_late(a)
    trs_prep8(a, SKW, 64, 54, 214)
    init_counters(a)
    a(f"v_lshrrev_b32 v2, 5, v{VL}\nv_and_b32 v3, 31, v{VL}\ns_waitcnt vmcnt(0)")
    rows_ln(a, 53, 54, ST)
    a(f"s_mul_i32 s54, s{SKW}, 2688\ns_add_u32 s54, s54, s64\nv_mul_u32_u24 v4, 1344, v2\nv_add_u32 v4, s54, v4\nv_lshl_add_u32 v5, v3, 3, v4\nv_lshl_add_u32 v4, v3, 4, v4")
    a("ds_write_b128 v4, v[16:19]\nds_write_b128 v4, v[20:23] offset:512\nds_write_b64 v5, v[24:25] offset:1024")
    zz = a.newlab("zz")
    a(f"s_cmp_lg_u32 s{SWAVE}, 3\ns_cbranch_scc1 {zz}\ns_cmp_ge_u32 s63, {NCTR}\ns_cbranch_scc1 {zz}")
    a(f"s_lshl_b32 s56, s63, 8\ns_add_u32 s56, s56, {OFF_FLAG}\nv_lshlrev_b32 v6, 7, v{VL}\nv_mov_b32 v7, 0\ns_mov_b64 exec, 3\nbuffer_store_dword v7, v6, {s(SWS,4)}, s56 offen sc1\ns_mov_b64 exec, -1")
    a.lab(zz)
    a("s_waitcnt lgkmcnt(0)\ns_barrier")
    trs_go(a, SKW, 62, 214)
    a(f"s_waitcnt vmcnt(0) lgkmcnt(0)\ns_barrier\ns_cmp_lg_u32 s{SWAVE}, 0\ns_cbranch_scc1 L_b_pf")
    FIN = OPT.get("fin2", 0)
    if FIN:
        a(f"s_and_b32 s56, s63, 1\ns_lshl_b32 s56, s56, 6\ns_mov_b64 exec, 1\ns_setprio 3\nv_mov_b32 v15, 1\nbuffer_atomic_add v15, off, {s(SDBG,4)}, s56 sc1")
    else:
        L = a.newlab("c1a")
        a(f"s_and_b32 s57, s63, 1\ns_lshl_b32 s56, s57, 6\ns_lshl_b32 s57, s57, 2\ns_mov_b64 exec, 1\ns_setprio 3")
        garrive(a, SDBG, 56, 64, (57, 128), L, va=15)
        a.lab(L)
    a("s_mov_b64 exec, -1\ns_setprio 0")
    lds_set(a, C_PUB)
    a("s_branch L_b_pf")
    a.lab("L_b_noln")
    kwait(a)
    ids_late(a)
    init_counters(a)
    a("s_waitcnt lgkmcnt(0)\ns_barrier")
    if FIN:
        nf = a.newlab("nf")
        a(f"s_cmp_ge_u32 s{SXCD}, 2\ns_cbranch_scc1 {nf}\ns_cmp_lg_u32 s{SWAVE}, 0\ns_cbranch_scc1 L_b_pf\ns_lshl_b32 s56, s{SXCD}, 6\ns_lshl_b32 s57, s{SXCD}, 2\nv_mov_b32 v2, s56")
        gpoll(a, 2, SDBG, 0, 64, 1, slp=OPT.get("sf", 4))
        a(f"s_mov_b64 exec, 1\nv_mov_b32 v15, 1\nbuffer_store_dword v15, off, {s(SDBG,4)}, s57 offset:128 sc1\ns_mov_b64 exec, -1")
        a.lab(nf)
    lds_set(a, C_PUB)
    a.lab("L_b_pf")
    stamp(a, 1)
    a(f"s_cmp_lt_u32 s{SFT}, 27\ns_cselect_b32 s{SHAS1}, 1, 0")
    a(f"s_cmp_ge_u32 s{SWAVE}, 4\ns_cbranch_scc1 L_b_hi")
    lds_wait(a, C_PUB, 1, ls=1)
    if OPT.get("pf", 1):
        if OPT.get("xm", 0):
            a(f"s_mul_i32 s62, s{SXCD}, {17*205}\ns_lshr_b32 s62, s62, 10\ns_lshl_b32 s62, s62, 7\ns_mul_i32 s61, s{SWAVE}, {512*3456}\ns_add_u32 s62, s62, s61\ns_sub_u32 s61, s{SJ}, 15\ns_mul_i32 s63, s61, {12*3456}\ns_add_u32 s62, s62, s63")
            a(f"v_mul_u32_u24 v2, 52, v{VL}\nv_lshrrev_b32 v2, 8, v2\nv_mul_u32_u24 v2, {3456-640}, v2\nv_lshl_add_u32 v2, v{VL}, 7, v2\ns_mov_b32 exec_hi, 0xfffffff")
            for k in range(3):
                if k == 2: a("s_cmp_ge_u32 s61, 9\ns_cbranch_scc1 L_b_pfd")
                a(f"buffer_load_dword v255, v2, {s(SW1,4)}, s62 offen {'nt' if k < OPT.get('xnt', 0) else ''}\ns_add_u32 s62, s62, {17*12*3456}")
            a.lab("L_b_pfd")
            a("s_mov_b64 exec, -1")
        else:
            E = OPT.get("e31", 0)
            if E:
                a(f"s_cmp_eq_u32 s{SJ}, 31\ns_cbranch_scc0 L_b_pf2\ns_lshl_b32 s61, s{SXCD}, 2\ns_add_u32 s61, s61, s{SWAVE}")
                prefetch(a, 61, 32, 0, 32*E)
                a("s_branch L_b_pf3")
                a.lab("L_b_pf2")
                a(f"s_sub_u32 s62, s{SJ}, 15\ns_lshl_b32 s62, s62, 3\ns_add_u32 s62, s62, s{SXCD}\ns_lshl_b32 s61, s{SWAVE}, 7\ns_add_u32 s61, s61, s62")
                prefetch(a, 61, 512, 32*E, NPB)
                a.lab("L_b_pf3")
            else:
                if FIN:
                    a(f"s_sub_u32 s62, s{SJ}, 15\ns_lshl_b32 s62, s62, 3\ns_add_u32 s62, s62, 7\ns_sub_u32 s62, s62, s{SXCD}\ns_cmp_ge_u32 s62, 134\ns_cbranch_scc1 L_b_nopf\ns_mul_i32 s61, s{SWAVE}, 134\ns_add_u32 s61, s61, s62")
                    prefetch(a, 61, 536, OPT.get('np0', 0), NPB)
                    a.lab("L_b_nopf")
                else:
                    a(f"s_sub_u32 s62, s{SJ}, 15\ns_lshl_b32 s62, s62, 3\ns_add_u32 s62, s62, s{SXCD}\ns_mul_i32 s61, s{SWAVE}, 136\ns_add_u32 s61, s61, s62")
                    prefetch(a, 61, 544, OPT.get('np0', 0), NPB)
    if OPT.get("nobat"):
        attn_ids(a, SHD, SBQ)
        lds_wait(a, C_CS, 4 if OPT["nobat"] == 1 else 0)
        a("s_waitcnt vmcnt(0)\ns_branch L_adone")
    a("s_waitcnt vmcnt(0)\ns_setprio 3\ns_branch L_attn")
    a.lab("L_b_hi")
    a(f"s_cmp_eq_u32 s{SHAS1}, 0\ns_cbranch_scc1 L_b_c1")
    a(f"v_lshrrev_b32 v2, 4, v{VL}\nv_lshlrev_b32 v12, 3, v2\ns_lshl_b32 s65, s{SFT}, 7\ns_cmp_lg_u32 s{SKW}, 0\ns_cbranch_scc1 L_nobias")
    for fb in range(4): a(f"buffer_load_dwordx2 {v(160+2*fb,2)}, v12, {s(SB1,4)}, s65 offen offset:{fb*32}")
    a.lab("L_nobias")
    a(f"s_mul_i32 s66, s{SKW}, {XSTR}\ns_add_u32 s66, s66, {XB}\ns_and_b32 s67, s{SKW}, 2")
    mlp_setup(a, SW1, 3456, 66, rot=67)
    a(f"s_mul_i32 s{S_TO}, s{SKW}, {512*3456}\ns_lshl_b32 s65, s{SFT}, 7\ns_add_u32 s{S_TO}, s{S_TO}, s65")
    skip_off(a, MSK)
    a(f"s_lshl_b32 s{S_DO}, s{SDT1}, 20\ns_lshl_b32 s65, s{SKW}, 18\ns_add_u32 s{S_DO}, s{S_DO}, s65\ns_and_b32 s65, s{SKW}, 1\ns_lshl_b32 s68, s65, 13\ns_add_u32 s{S_DO}, s{S_DO}, s68\ns_add_u32 s{S_DO}, s{S_DO}, {OFF_H}")
    a("s_cmp_eq_u32 s65, 1\ns_movk_i32 s68, 0x1000\ns_cselect_b32 s70, -12288, s68\ns_cselect_b32 s71, 20480, s68")
    z = a.newlab("bz"); d = a.newlab("bd")
    a(f"s_cmp_lg_u32 s{SKW}, 0\ns_cbranch_scc1 {z}\ns_waitcnt vmcnt(0)")
    for fb in range(4):
        for q in range(2): a(f"v_lshlrev_b32 v{16+fb*32+2*q}, 16, v{160+2*fb+q}\nv_and_b32 v{16+fb*32+2*q+1}, 0xffff0000, v{160+2*fb+q}")
        for c in range(1, 8):
            for r in range(4): a(f"v_mov_b32 v{16+(fb*8+c)*4+r}, v{16+fb*32+r}")
    a(f"s_branch {d}")
    a.lab(z)
    for i in range(128): a(f"v_mov_b32 v{16+i}, 0")
    a.lab(d)
    if OPT.get("pw", 1):
        lds_wait(a, C_PUB, 1, ls=1)
        for k in (2, 0, 1): mlp_dma(a, k, 'nt' if OPT.get('pnt') else '')
    a.lab("L_b_c1")
    oth = a.newlab("cw"); go = a.newlab("cg")
    a(f"s_cmp_lg_u32 s{SKW}, 0\ns_cbranch_scc1 {oth}")
    c1_poll(a)
    a(f"v_mov_b32 v2, {C_QA}\nv_mov_b32 v3, 4\nds_write_b32 v2, v3\ns_branch {go}")
    a.lab(oth)
    lds_wait(a, C_QA, 4, ls=1)
    a.lab(go)
    stamp(a, 2)
    a(f"s_cmp_eq_u32 s{SHAS1}, 0\ns_cselect_b32 s61, {C_QA}, s61\ns_cbranch_scc1 L_m2")
    PW = OPT.get("pw", 1)
    for n_, k in enumerate((2, 0, 1)):
        a(f"s_setprio {3-n_}")
        if not PW: mlp_dma(a, k)
        for c in range(8): n_dir(a, k, c)
    a(f"s_mov_b32 s{S_CNT}, 5\ns_setprio {OPT.get('prio1', 3)}")
    if PW:
        n_body(a, 2, 16, True)
        a(f"s_mov_b32 s{S_CNT}, 4\ns_waitcnt vmcnt(20)\ns_branch L_n0")
    else: a("s_branch L_n2")
    a(".p2align 3")
    for k in range(3):
        a.lab(f"L_n{k}")
        n_body(a, k, 24, True)
    a(f"s_sub_u32 s{S_CNT}, s{S_CNT}, 1\ns_cmp_lg_u32 s{S_CNT}, 0\ns_cbranch_scc1 L_n0")
    if OPT.get("al", 3) == 3: a(f"v_mov_b32 v2, {C_CS}\nv_mov_b32 v3, 1\ns_mov_b64 exec, 1\nds_add_u32 v2, v3\ns_mov_b64 exec, -1")
    for k in range(2): n_body(a, k, 24-12*k, False)
    n_last(a, 2)
    stamp(a, 3)
    a("s_setprio 3")
    l10(a, 0)
    n_epi(a)
    l10(a, 4)
    stamp(a, 4)
    if OPT.get("pwg", 0):
        a(f"s_mul_i32 s61, s{SFT}, 37\ns_lshr_b32 s61, s61, 8\ns_lshl_b32 s65, s{SDT1}, 2\ns_add_u32 s61, s61, s65\ns_lshl_b32 s61, s61, 8\ns_add_u32 s61, s61, {G_G}")
        L = a.newlab("arr")
        a(f"s_waitcnt vmcnt(0)\nv_mov_b32 v2, {C_GA}\nv_mov_b32 v3, 1\ns_mov_b64 exec, 1\nds_add_rtn_u32 v14, v2, v3\ns_waitcnt lgkmcnt(0)\nv_readfirstlane_b32 s60, v14\ns_cmp_lg_u32 s60, 3\ns_cbranch_scc1 {L}")
        a(f"s_cmp_eq_u32 s{SFT}, 20\ns_cselect_b32 s65, 3, 1\ns_mov_b32 exec_lo, s65\nv_lshlrev_b32 v2, 8, v{VL}\nv_mov_b32 v3, 1\nbuffer_atomic_add v3, v2, {s(SWS,4)}, s61 offen sc0 sc1\ns_waitcnt vmcnt(0)")
        a(f"v_cmpx_eq_u32 vcc, 6, v3\ns_cbranch_execz {L}\nv_mov_b32 v3, 1\nbuffer_store_dword v3, v2, {s(SWS,4)}, s61 offen offset:128 sc1")
        a.lab(L)
        a("s_mov_b64 exec, -1")
    else:
        a(f"s_lshl_b32 s61, s{SDT1}, 10\ns_add_u32 s61, s61, {G_G}")
        arrive(a, C_GA, 4, 61, 27)
    l10(a, 5)
    a(f"s_mov_b32 s61, {C_GA}")
    a.lab("L_m2")
    w = SKW
    a(f"s_setprio {OPT.get('prio2', 2)}\ns_mul_i32 s66, s{w}, {M1STR}\ns_add_u32 s66, s66, {M1BASE}\nv_mov_b32 v12, s61")
    mlp_setup(a, SW2, 4096, 66)
    a(f"s_mul_i32 s67, s{w}, 14\ns_cmp_eq_u32 s{w}, 3\ns_cselect_b32 s67, 41, s67")
    a(f"s_lshl_b32 s{S_TO}, s67, 17\ns_lshl_b32 s65, s{SST}, 7\ns_add_u32 s{S_TO}, s{S_TO}, s65")
    skip_off(a, MSK)
    a(f"s_mul_i32 s{S_DO}, s{SDT3}, {54*10240}\ns_mul_i32 s65, s67, 10240\ns_add_u32 s{S_DO}, s{S_DO}, s65\ns_add_u32 s{S_DO}, s{S_DO}, {OFF_G}")
    for i in range(80): a(f"v_mov_b32 v{MACC+i}, 0")
    oth = a.newlab("ww"); go = a.newlab("wg")
    a(f"s_cmp_lg_u32 s{w}, 0\ns_cbranch_scc1 {oth}\ns_mov_b32 s51, {G_W+128}\nv_mov_b32 v2, 0")
    gpoll(a, 2, SWS, "s51", 1, 1)
    lds_set(a, C_W2)
    a(f"s_branch {go}")
    a.lab(oth)
    lds_wait(a, C_W2, 1, ls=1)
    a.lab(go)
    if OPT.get("w2c", 1):
        a(f"s_lshr_b32 s51, s{SW2}, 7\ns_add_u32 s51, s51, s{SST}\ns_and_b32 s51, s51, 7\ns_cmp_lg_u32 s51, 3\ns_cbranch_scc1 L_now2c")
        for k in range(3): a(f"s_mov_b32 s{S_SRD+k}, s{SWS+k}")
        a(f"s_movk_i32 s{S_D8}, 1024\ns_movk_i32 s{S_STEP}, 5120\ns_lshr_b32 s51, s{SST}, 3\ns_mul_i32 s51, s51, 54\ns_add_u32 s51, s51, s67\ns_lshl_b32 s{S_TO}, s51, 13\ns_add_u32 s{S_TO}, s{S_TO}, {OFF_W2C}")
        a(f"v_and_b32 v2, 127, v{MDMA}\nv_and_b32 v3, 0xffffff80, v{MSK}\nv_or_b32 v{MDMA}, v2, v3")
        a.lab("L_now2c")
    lds_wait(a, None, 4, vreg=12)
    a(f"s_cmp_ge_u32 s{w}, 2\ns_cbranch_scc1 L_p3")
    NT = "nt" if OPT.get("sk4", 0) == 2 else ""
    mlp_dma(a, 2, NT)
    a.lab("L_p3")
    for k in (3, 0, 1): mlp_dma(a, k, NT)
    a(f"s_cmp_ge_u32 s{w}, 2\ns_cbranch_scc0 L_p3b")
    mlp_dma(a, 2, NT)
    a.lab("L_p3b")
    a(f"v_and_b32 v2, 15, v{VL}\nv_mul_u32_u24 v12, 10, v2\nv_lshrrev_b32 v3, 5, v{VL}\nv_add_u32 v12, v12, v3\nv_bfe_u32 v2, v{VL}, 2, 1\nv_xor_b32 v12, v12, v2\nv_lshlrev_b32 v12, 4, v12\nv_bfe_u32 v2, v{VL}, 4, 1\nv_mul_u32_u24 v2, 2560, v2\nv_add3_u32 v12, v12, v2, s66")
    a(f"v_lshrrev_b32 v2, 4, v{VL}\nv_and_b32 v3, 15, v{VL}\nv_lshlrev_b32 v13, 4, v3\nv_lshl_add_u32 v13, v2, 9, v13\nv_lshlrev_b32 v14, 3, v3\nv_lshl_add_u32 v14, v2, 9, v14")
    a(f"s_lshl_b32 s70, s{SST}, 16\ns_lshl_b32 s51, s{w}, 13\ns_add_u32 s70, s70, s51\ns_add_u32 s70, s70, {OFF_O1}\ns_add_u32 s71, s70, 32768\ns_add_u32 s72, s70, 4096\ns_add_u32 s73, s71, 4096")
    a(f"s_lshl_b32 s49, s{SST}, 14\ns_lshl_b32 s51, s{w}, 11\ns_add_u32 s49, s49, s51\ns_add_u32 s49, s49, {OFF_O2}\ns_add_u32 s50, s49, 8192")
    a(f"s_mul_i32 s48, s{SDT3}, 102400\ns_mul_i32 s51, s{w}, 25600\ns_add_u32 s48, s48, s51\ns_add_u32 s48, s48, {OFF_WOF}")
    def wof_ld(r):
        for db in range(5):
            a(f"buffer_load_dwordx4 {v(r+4*db,4)}, v{MDIR}, {s(SWS,4)}, s48 offen offset:{(db&3)*1024} {LD}")
            if db >= 3: a(f"s_add_u32 s48, s48, {4096 if db == 3 else 1024}")
    for st in range(3): wof_ld(192+20*st)
    WL = OPT.get("wl", 0)
    if WL:
        a(f"s_mul_i32 s51, s{w}, 5120\ns_add_u32 s51, s51, 42240\ns_mov_b32 m0, s51\nv_add_u32 v252, s51, v{MDIR}")
        for db in range(4): a(f"buffer_load_dwordx4 v{MDIR}, {s(SWS,4)}, s48 offen offset:{db*1024} {LD} lds")
        a(f"s_add_u32 m0, s51, 4096\ns_add_u32 s48, s48, 4096\nbuffer_load_dwordx4 v{MDIR}, {s(SWS,4)}, s48 offen {LD} lds")
        a(f"s_add_u32 s51, s66, 16384\ns_mov_b32 m0, s51\ns_add_u32 s48, s48, 1024\nv_add_u32 v253, s51, v{MDIR}")
        for db in range(4): a(f"buffer_load_dwordx4 v{MDIR}, {s(SWS,4)}, s48 offen offset:{db*1024} {LD} lds")
        a(f"s_lshl_b32 s51, s{w}, 10\ns_add_u32 s51, s51, {L_ST}\ns_mov_b32 m0, s51\ns_add_u32 s48, s48, 4096\nv_add_u32 v254, s51, v{MDIR}\nbuffer_load_dwordx4 v{MDIR}, {s(SWS,4)}, s48 offen {LD} lds")
    l10(a, 6)
    if OPT.get("ord", 1) in (0, 2): a(f"s_cmp_lt_u32 s{SJ}, 15\ns_cbranch_scc1 L_a_pf")
    a.lab("L_a_pfd")
    if OPT.get("pwg", 0):
        a(f"s_mul_i32 s51, s{SDT3}, 5\nv_lshlrev_b32 v2, 2, v{VL}\nv_add_u32 v2, s51, v2\nv_lshrrev_b32 v2, 3, v2\nv_lshlrev_b32 v2, 10, v2\ns_lshl_b32 s51, s{w}, 8\ns_add_u32 s51, s51, {G_G+128}\ns_setprio 3")
        gpoll(a, 2, SWS, "s51", 1, 2)
    else:
        oth = a.newlab("gw"); go = a.newlab("gg")
        a(f"s_cmp_lg_u32 s{w}, 0\ns_cbranch_scc1 {oth}")
        a(f"s_mul_i32 s51, s{SDT3}, 5\nv_lshlrev_b32 v2, 2, v{VL}\nv_add_u32 v2, s51, v2\nv_lshrrev_b32 v2, 3, v2\nv_lshlrev_b32 v2, 10, v2\ns_mov_b32 s51, {G_G+128}\ns_setprio 3")
        gpoll(a, 2, SWS, "s51", 1, 2)
        lds_set(a, C_GGO)
        a(f"s_setprio {OPT.get('prio2', 2)}\ns_branch {go}")
        a.lab(oth)
        lds_wait(a, C_GGO, 1, ls=1)
        a.lab(go)
    stamp(a, 5); l10(a, 7)
    SM_ = OPT.get("smaj", 1)
    a(f"s_mov_b32 s{S_CNT}, 3\ns_mov_b32 s69, 3\ns_cmp_ge_u32 s{w}, 2\ns_cbranch_scc1 L_d3")
    for lab, order, ent in ((None, (2, 3, 0, 1), "L_mb2"), ("L_d3", (3, 0, 1, 2), "L_mb3")):
        if lab: a.lab(lab)
        for n_, k in enumerate(order):
            if SM_: a(f"s_setprio {3-n_}")
            for db in range(5): mlp_dir(a, k, db, LD)
        a(f"s_setprio {OPT.get('prio2', 2)}\ns_branch {ent}" if SM_ else f"s_waitcnt vmcnt(0)\ns_branch {ent}")
    if SM_:
        for k in range(4):
            a.lab(f"L_fw{k}")
            a(f"s_sub_u32 s69, s69, 1\ns_cmp_eq_u32 s69, 0\ns_cbranch_scc1 L_fw{k}c\ns_cmp_eq_u32 s69, 1\ns_cbranch_scc1 L_fw{k}b\ns_waitcnt vmcnt(15)\ns_branch L_fb{k}")
            a.lab(f"L_fw{k}b"); a(f"s_waitcnt vmcnt(19)\ns_branch L_fb{k}")
            a.lab(f"L_fw{k}c"); a(f"s_waitcnt vmcnt(23)\ns_branch L_fb{k}")
    a(".p2align 3")
    for k in range(4):
        a.lab(f"L_mb{k}")
        if SM_:
            a(f"s_cmp_lg_u32 s69, 0\ns_cbranch_scc1 L_fw{k}")
            a.lab(f"L_fb{k}")
        mlp_body(a, k, 27, True, LD, swap=True)
    a(f"s_sub_u32 s{S_CNT}, s{S_CNT}, 1\ns_cmp_lg_u32 s{S_CNT}, 0\ns_cbranch_scc1 L_mb0")
    def o_ld(st):
        r = MB + 20*(st & 3)
        for sb in range(4):
            if st < 4: a(f"buffer_load_dwordx4 {v(r+4*sb,4)}, v13, {s(SWS,4)}, s{70+(sb>>1)+2*(st>>1)} offen offset:{(sb&1)*256+(st&1)*2048} {LD}")
            else:
                for e in range(2): a(f"buffer_load_dwordx2 {v(r+4*sb+2*e,2)}, v14, {s(SWS,4)}, s{49+(sb>>1)} offen offset:{(sb&1)*128+e*256} {LD}")
    a(f"v_mov_b32 v2, {C_OGO}\nds_read_b32 v15, v2")
    mlp_body(a, 0, 27, False, LD, swap=True)
    a("v_readfirstlane_b32 s60, v15\ns_cmp_eq_u32 s60, 0\ns_cbranch_scc1 L_olate")
    stamp(a, 2)
    o_ld(0)
    for k in range(1, 4):
        mlp_body(a, k, 27-5*k, False, LD, swap=True)
        o_ld(k)
    a.lab("L_wo")
    seq = [(db, sb) for db in range(5) for sb in range(4)]
    for st in range(5):
        if WL: a(f"s_waitcnt vmcnt({[12, 16, 12, 8, 0][st]})" + ("" if st < 3 else f" lgkmcnt({5 if st == 3 else 0})"))
        else: a(f"s_waitcnt vmcnt({[12, 21, 22, 13, 0][st]})")
        if st == 4: a("s_setprio 3")
        LAG = 5
        for n_ in range(20 + (LAG if st == 4 else 0)):
            if n_ < 20:
                db, sb = seq[n_]; acc = v(MACC+(sb*5+db)*4, 4)
                a(f"v_mfma_f32_16x16x32_bf16 {acc}, {v(192+20*(st%3)+4*db,4)}, {v(MB+20*(st&3)+4*sb,4)}, {acc}")
            if st == 4 and n_ >= LAG:
                db, sb = seq[n_-LAG]
                if n_ == LAG or n_ >= 20: a("s_nop 3" if n_ == LAG else "s_nop 0")
                a(f"ds_write_b128 v12, {v(MACC+(sb*5+db)*4,4)} offset:{sb*5120+db*32}")
        if WL:
            if st == 0:
                o_ld(4)
                for db in range(5): a(f"ds_read_b128 {v(192+4*db,4)}, v252 offset:{db*1024}")
            if st == 1:
                for db in range(5): a(f"ds_read_b128 {v(212+4*db,4)}, v{253 if db < 4 else 254} offset:{(db&3)*1024}")
        else:
            if st == 0: wof_ld(192); o_ld(4)
            if st == 1: wof_ld(212)
    stamp(a, 6); l10(a, 0, 11)
    l10(a, 1, 11)
    a("s_waitcnt lgkmcnt(0)")
    l10(a, 2, 11)
    a("s_barrier")
    l10(a, 3, 11)
    stamp_dump(a, 0)
    a("s_endpgm")
    a.lab("L_olate")
    for k in range(1, 4): mlp_body(a, k, 27-9*k, False, LD, swap=True)
    lds_wait(a, C_OGO, 1, ls=0)
    stamp(a, 2)
    for k in range(4): o_ld(k)
    a("s_branch L_wo")
    a.lab("L_cons")
    kwait(a)
    init_counters(a)
    cons_setup(a)
    a(f"s_setprio {OPT.get('prioc', 2)}\ns_waitcnt lgkmcnt(0)\ns_barrier")
    stamp(a, 2); l10(a, 0, 12)
    a(f"s_cmp_ge_u32 s{SN}, 10\ns_cbranch_scc1 L_consv")
    for vori in (0, 1):
        if vori: a.lab("L_consv")
        cons_loop(a, vori)
        stamp(a, 3); l10(a, 5, 12)
        a("s_setprio 3")
        cons_epi(a, vori)
        l10(a, 6, 12)
        if not vori: a("s_branch L_qdone")
    a.lab("L_qdone")
    ids_late(a)
    a(f"s_mov_b32 s{SHAS1}, 0\ns_lshl_b32 s61, s{SM}, 8\ns_add_u32 s61, s61, {G_Q}")
    arrive(a, C_QA, 4, 61, 15, C_QD)
    l10(a, 7, 12)
    a.lab("L_attn")
    attn2(a)
    a.lab("L_adone")
    a("s_setprio 2")
    a(f"s_lshl_b32 s61, s{SBQ}, 8\ns_add_u32 s61, s61, {G_O}")
    arrive(a, C_OA, 4, 61, 32)
    w = SWAVE
    a(f"s_mov_b32 s{SKW}, s{w}\ns_setprio {OPT.get('priow', 2)}")
    a(f"s_lshl_b32 s65, s{SST}, 6\ns_lshl_b32 s68, s{w}, 4\ns_add_u32 s65, s65, s68\ns_mul_i32 s74, s65, 1280\ns_mul_i32 s68, s{SDT3}, 160\ns_add_u32 s74, s74, s68\ns_lshl_b32 s65, s65, 1")
    a(f"v_lshlrev_b32 v2, 1, v{VL}\ns_mov_b64 exec, 0xffff\nbuffer_load_ushort v16, v2, {s(SB2,4)}, s65 offen\ns_mov_b64 exec, -1")
    for k in range(3):
        a(f"v_add_u32 v2, {64*k}, v{VL}\nv_mul_u32_u24 v3, 205, v2\nv_lshrrev_b32 v3, 11, v3\nv_mul_u32_u24 v4, 1120, v3\nv_lshl_add_u32 v{207+k}, v2, 4, v4\nv_min_u32 v3, 15, v3\nv_lshlrev_b32 v{17+k}, 2, v3")
        if k == 2: a(f"v_cmp_gt_u32 vcc, 32, v{VL}\nv_mov_b32 v4, {OOB}\ns_nop 0\nv_cndmask_b32 v209, v4, v209, vcc")
        a(f"buffer_load_dwordx4 {v(192+4*k,4)}, v{207+k}, {s(SX,4)}, s74 offen")
    go = a.newlab("og")
    a(f"s_cmp_lg_u32 s{w}, 0\ns_cbranch_scc1 {go}")
    a(f"s_lshr_b32 s51, s{SST}, 2\ns_lshl_b32 s51, s51, 8\ns_add_u32 s51, s51, {G_O+128}\nv_mov_b32 v2, 0")
    gpoll(a, 2, SWS, "s51", 1, 1, slp=OPT.get("so", 8))
    lds_set(a, C_OGO)
    a.lab(go)
    stamp(a, 6)
    a(f"s_mul_i32 s65, s{w}, 5120\ns_add_u32 s65, s65, {M1BASE}")
    for k in range(3):
        a(f"v_add_u32 v2, {64*k}, v{VL}\nv_min_u32 v2, 159, v2\nv_mul_u32_u24 v3, 205, v2\nv_bfe_u32 v4, v3, 13, 1\nv_xor_b32 v2, v2, v4\nv_lshlrev_b32 v2, 4, v2\nv_add_u32 v{210+2*k}, s65, v2\nv_add_u32 v{211+2*k}, 2560, v{210+2*k}")
    a("s_waitcnt vmcnt(0)")
    for k in range(3): a(f"ds_bpermute_b32 v{204+k}, v{17+k}, v16")
    a("s_waitcnt lgkmcnt(0)")
    for k in range(3):
        a(f"v_lshlrev_b32 v{204+k}, 16, v{204+k}")
        for q in range(4): a(f"v_lshlrev_b32 v{40+8*k+2*q}, 16, v{192+4*k+q}\nv_and_b32 v{41+8*k+2*q}, 0xffff0000, v{192+4*k+q}")
        for q in range(8): a(f"v_add_f32 v{40+8*k+q}, v{40+8*k+q}, v{204+k}")
    stamp(a, 1)
    a("s_setprio 3\ns_barrier")
    stamp(a, 2, False) if OPT.get("fin") else None; l10(a, 0, 11)
    for k in range(3):
        for src in range(4): a(f"ds_read_b128 {v(96+32*k+8*src,4)}, v{210+2*k} offset:{src*M1STR}\nds_read_b128 {v(100+32*k+8*src,4)}, v{211+2*k} offset:{src*M1STR}")
        if k >= 1:
            a("s_waitcnt lgkmcnt(8)")
            for src in range(4):
                for q in range(4): a(f"v_pk_add_f32 {v(40+8*(k-1)+2*q,2)}, {v(40+8*(k-1)+2*q,2)}, {v(96+32*(k-1)+8*src+2*q,2)}")
            for q in range(4): a(f"v_cvt_pk_bf16_f32 v{16+4*(k-1)+q}, v{40+8*(k-1)+2*q}, v{41+8*(k-1)+2*q}")
            a(f"buffer_store_dwordx4 {v(16+4*(k-1),4)}, v{207+k-1}, {s(SOUT,4)}, s74 offen {OPT.get('outf', 1) and 'sc1' or ''}")
        if k == 1: pass
    a("s_waitcnt lgkmcnt(0)")
    for src in range(4):
        for q in range(4): a(f"v_pk_add_f32 {v(56+2*q,2)}, {v(56+2*q,2)}, {v(160+8*src+2*q,2)}")
    for q in range(4): a(f"v_cvt_pk_bf16_f32 v{24+q}, v{56+2*q}, v{57+2*q}")
    l10(a, 1, 11)
    a(f"buffer_store_dwordx4 v[24:27], v209, {s(SOUT,4)}, s74 offen {OPT.get('outf', 1) and 'sc1' or ''}")
    l10(a, 2, 11)
    if blocks.STAMP: a("s_waitcnt vmcnt(0)")
    l10(a, 3, 11)
    stamp_dump(a, 0)
    a("s_endpgm")
    a.lab("L_end"); a("s_endpgm")
    a('.section .rodata,"a"')
    return a.text() + kd(NAME)
if __name__ == "__main__":
    blocks.STAMP = "stamp" in sys.argv
    for x in sys.argv[2:]:
        if "=" in x: k, val = x.split("="); blocks.OPT[k] = int(val)
    t = gen()
    print("hazards:", hazard_check(t))
    open(sys.argv[1], "w").write(open("hdr.txt").read() + t)
    import subprocess
    r = subprocess.run(["clang", "-x", "assembler", "-target", "amdgcn-amd-amdhsa", "-mcpu=gfx950", "-c", sys.argv[1], "-o", "x.o"], capture_output=True, text=True)
    if r.returncode: print(r.stderr[:1500]); sys.exit(1)
```
